```python
import torch

def _softmax(x, axis=-1):
    return torch.softmax(x, dim=axis)
def _gelu(x):
    return torch.nn.functional.gelu(x, approximate="tanh")
def _silu(x):
    return torch.nn.functional.silu(x)
def _sigmoid(x):
    return torch.sigmoid(x)
def _layernorm(x, axis=-1, eps=1e-5):
    m = x.mean(dim=axis, keepdim=True)
    v = x.var(dim=axis, keepdim=True, unbiased=False)
    return (x - m) / torch.sqrt(v + eps)
def _scatter_add(tgt, idx, src, axis=0):
    return tgt.clone().index_add_(axis, idx, src)
def _segment_sum(src, seg, n):
    out = torch.zeros((n,) + src.shape[1:], dtype=src.dtype)
    return out.index_add_(0, seg, src)
def _pad(x, pw):
    flat = tuple(v for pair in reversed(pw) for v in pair)
    return torch.nn.functional.pad(x, flat)

kernel_name = 'parallel_sum__sliding_block__geglu_ffn__prompt'

def setup_inputs():

    _w = (lambda a: (lambda t: t.to(torch.bfloat16) if t.is_floating_point() else t)(torch.as_tensor(a)))
    def _A_setup():
        B, S, D = 1, 2048, 448
        return {
            "x": _w((lambda *s: torch.randn(*s, dtype=torch.bfloat16) * 0.05)(B, S, D)),
            "wqkv": _w((lambda *s: torch.randn(*s, dtype=torch.bfloat16) * 0.1)(D, 3 * D)),
            "wo": _w((lambda *s: torch.randn(*s, dtype=torch.bfloat16) * 0.05)(D, D)),
        }
    _A_in = _A_setup()

    def _B_setup():
        B, S, D, F = 1, 2048, 448, 1792
        return {
            "x": _w((lambda *s: torch.randn(*s, dtype=torch.bfloat16) * 0.05)(B, S, D)),
            "w_gate": _w((lambda *s: torch.randn(*s, dtype=torch.bfloat16) * 0.05)(D, F)),
            "w_up": _w((lambda *s: torch.randn(*s, dtype=torch.bfloat16) * 0.05)(D, F)),
            "w_down": _w((lambda *s: torch.randn(*s, dtype=torch.bfloat16) * 0.05)(F, D)),
        }
    _B_in = _B_setup()

    return {
        "A_x": _A_in["x"],
        "A_wqkv": _A_in["wqkv"],
        "A_wo": _A_in["wo"],
        "B_x": _B_in["x"],
        "B_w_gate": _B_in["w_gate"],
        "B_w_up": _B_in["w_up"],
        "B_w_down": _B_in["w_down"],
    }

def reference(A_x, A_wqkv, A_wo, B_x, B_w_gate, B_w_up, B_w_down):
    def _A_ref(x, wqkv, wo):
        B, S, D = x.shape
        H = 16; Dh = D // H; W = 256
        qkv = (lambda x, *d: x.permute(*d))((x @ wqkv).reshape(B, S, 3, H, Dh), 2, 0, 3, 1, 4)
        q, k, v = qkv[0], qkv[1], qkv[2]
        scores = torch.einsum("bhqd,bhkd->bhqk", q, k) * (Dh ** -0.5)
        idx = torch.arange(S)
        mask = (idx[:, None] - idx[None, :] >= 0) & (idx[:, None] - idx[None, :] < W)
        scores = torch.where(mask[None, None], scores, -1e9)
        p = _softmax(scores, axis=-1)
        o = torch.einsum("bhqk,bhkd->bhqd", p, v)
        return (lambda x, *d: x.permute(*d))(o, 0, 2, 1, 3).reshape(B, S, D) @ wo

    def _B_ref(x, w_gate, w_up, w_down):
        return (_gelu(x @ w_gate) * (x @ w_up)) @ w_down

    x = A_x
    xn = _layernorm(x, axis=-1)
    return x + _A_ref(xn, A_wqkv, A_wo) + _B_ref(xn, B_w_gate, B_w_up, B_w_down)
```

```python
import re

TRANS = ("v_exp_f32", "v_log_f32", "v_rcp_f32", "v_rsq_f32", "v_sqrt_f32", "v_sin_f32", "v_cos_f32",
         "v_rcp_iflag_f32")

_reg_re = re.compile(r"^(-|\|)?(abs\()?([vsa])(\d+|\[(\d+):(\d+)\])\)?\|?$")


def parse_reg(tok):
    tok = tok.strip()
    if tok == "vcc":
        return {("s", 106), ("s", 107)}
    if tok in ("vcc_lo",):
        return {("s", 106)}
    if tok in ("vcc_hi",):
        return {("s", 107)}
    if tok == "exec":
        return {("s", 126), ("s", 127)}
    if tok == "exec_lo":
        return {("s", 126)}
    if tok == "exec_hi":
        return {("s", 127)}
    if tok == "m0":
        return {("s", 124)}
    m = _reg_re.match(tok)
    if not m:
        return set()
    k = m.group(3)
    if m.group(5) is not None:
        return {(k, i) for i in range(int(m.group(5)), int(m.group(6)) + 1)}
    return {(k, int(m.group(4)))}


def split_ops(s):
    out = []
    depth = 0
    cur = ""
    for ch in s:
        if ch in "[(":
            depth += 1
        if ch in "])":
            depth -= 1
        if ch == "," and depth == 0:
            out.append(cur.strip())
            cur = ""
        else:
            cur += ch
    if cur.strip():
        out.append(cur.strip())
    return out


class Ins:
    __slots__ = ("text", "mn", "w", "r", "kind", "passes", "srcc", "srcab", "states", "store_data", "dpp",
                 "lds_dma", "is_trans")

    def __init__(self, text):
        self.text = text
        t = text.split(";")[0].strip()
        parts = t.split(None, 1)
        mn = parts[0]
        self.mn = mn
        rest = parts[1] if len(parts) > 1 else ""
        ops = split_ops(rest)
        mods = ""
        if ops:
            sp = ops[-1].split(None, 1)
            if len(sp) > 1:
                ops[-1] = sp[0]
                mods = sp[1]
        self.w = set()
        self.r = set()
        self.passes = 0
        self.srcc = set()
        self.srcab = set()
        self.states = 1
        self.store_data = set()
        self.dpp = ("_dpp" in mn) or ("quad_perm" in mods) or ("row_" in mods)
        self.lds_dma = False
        base = mn.replace("_e32", "").replace("_e64", "").replace("_dpp", "").replace("_sdwa", "")
        self.is_trans = base in TRANS
        R = [parse_reg(o) for o in ops]
        if mn == "s_nop":
            self.kind = "nop"
            self.states = int(ops[0], 0) + 1
        elif mn.startswith("v_mfma"):
            self.kind = "mfma"
            self.w = R[0]
            self.srcab = R[1] | R[2]
            self.srcc = R[3]
            self.r = self.srcab | self.srcc
            self.passes = 8 if "32x32x16" in mn else 4
        elif mn.startswith("v_"):
            self.kind = "valu"
            if base.startswith("v_cmp"):
                self.w = R[0]
                for x in R[1:]:
                    self.r |= x
                if base.startswith("v_cmpx"):
                    self.w |= parse_reg("exec")
            elif base.startswith("v_permlane") and "swap" in base:
                self.w = R[0] | R[1]
                self.r = R[0] | R[1]
            elif base in ("v_add_co_u32", "v_sub_co_u32", "v_addc_co_u32", "v_subb_co_u32", "v_mad_u64_u32"):
                self.w = R[0] | R[1]
                for x in R[2:]:
                    self.r |= x
            else:
                self.w = R[0]
                for x in R[1:]:
                    self.r |= x
                if base in ("v_fmac_f32", "v_dot2c_f32_bf16", "v_pk_fmac_f16", "v_writelane_b32"):
                    self.r |= R[0]
                if self.dpp:
                    self.r |= R[0]
        elif mn.startswith("buffer_") or mn.startswith("global_"):
            self.kind = "vmem"
            allmods = mods.split()
            if mn in ("buffer_inv", "buffer_wbl2"):
                pass
            elif "lds" in allmods or "load_lds" in mn:
                self.lds_dma = True
                for x in R:
                    self.r |= x
                self.r |= parse_reg("m0")
            elif "load" in mn:
                self.w = R[0]
                for x in R[1:]:
                    self.r |= x
            elif "store" in mn:
                for x in R:
                    self.r |= x
                d = R[0] if mn.startswith("buffer_") else R[1]
                if "x4" in mn or "x3" in mn:
                    self.store_data = d
            elif "atomic" in mn:
                for x in R:
                    self.r |= x
                if "sc0" in allmods:
                    self.w = R[0]
        elif mn.startswith("ds_"):
            self.kind = "ds"
            if mn.startswith("ds_read") or mn.startswith("ds_bpermute") or mn.startswith("ds_permute") or mn.startswith("ds_swizzle") or "_rtn" in mn:
                self.w = R[0]
                for x in R[1:]:
                    self.r |= x
            else:
                for x in R:
                    self.r |= x
        elif mn.startswith("s_load") or mn.startswith("s_buffer_load") or mn in ("s_memtime", "s_memrealtime"):
            self.kind = "smem"
            self.w = R[0]
            for x in R[1:]:
                self.r |= x
        elif mn.startswith("s_"):
            self.kind = "salu"
            if mn.startswith("s_cmp") or mn.startswith("s_cbranch") or mn in ("s_branch", "s_barrier", "s_waitcnt", "s_endpgm", "s_sleep", "s_setprio", "s_bitcmp1_b32", "s_bitcmp0_b32"):
                for x in R:
                    self.r |= x
            else:
                if R:
                    self.w = R[0]
                for x in R[1:]:
                    self.r |= x
                if "saveexec" in mn:
                    self.w |= parse_reg("exec")
        else:
            raise ValueError("unknown mnemonic " + text)


def isv(s):
    return {x for x in s if x[0] in "va"}


def iss(s):
    return {x for x in s if x[0] == "s"}


EXEC = parse_reg("exec")
M0 = parse_reg("m0")


def required(p, c):
    need = 0
    pv = isv(p.w)
    ps = iss(p.w)
    if p.kind == "valu":
        if c.kind == "mfma" and (pv & c.r):
            need = max(need, 2)
        if c.kind == "mfma" and (ps & EXEC):
            need = max(need, 4)
        if p.is_trans and c.kind in ("valu", "mfma", "vmem", "ds") and not c.is_trans and (pv & (c.r | c.w)):
            need = max(need, 1)
        if p.is_trans and c.is_trans and (pv & c.r):
            need = max(need, 1)
        if ps:
            if c.kind == "valu" and (ps & c.r):
                need = max(need, 2)
                if c.mn.startswith("v_readlane") or c.mn.startswith("v_writelane") or c.mn.startswith("v_div_fmas"):
                    need = max(need, 4)
            if c.kind == "vmem" and (ps & c.r):
                need = max(need, 5)
            if c.kind == "salu" and (ps & c.r):
                need = max(need, 1)
            if (ps & EXEC):
                if c.kind == "valu" and c.dpp:
                    need = max(need, 5)
                if c.mn.startswith("v_readlane") or c.mn.startswith("v_readfirstlane") or c.mn.startswith("v_writelane") or c.mn.startswith("v_permlane"):
                    need = max(need, 4)
        if c.kind == "valu":
            if c.dpp and (pv & c.r):
                need = max(need, 2)
            if c.mn.startswith("v_permlane") and (pv & c.r):
                need = max(need, 2)
            if (c.mn.startswith("v_readlane") or c.mn.startswith("v_readfirstlane")) and (pv & c.r):
                need = max(need, 1)
            if ("sdwa" in p.text or "op_sel" in p.text) and (pv & (c.r | c.w)):
                need = max(need, 1)
    if p.kind == "salu":
        if (ps & M0) and (c.lds_dma):
            need = max(need, 1)
    if p.kind == "vmem" and p.store_data:
        if (p.store_data & c.w):
            need = max(need, 2)
    if p.kind == "mfma":
        n = p.passes
        tbl_ab = {4: 8, 8: 12}[n]
        tbl_ovl = {4: 6, 8: 10}[n]
        tbl_war = {4: 3, 8: 7}[n]
        if c.kind == "mfma":
            if pv & c.srcab:
                need = max(need, tbl_ab)
            if pv & c.srcc:
                if c.srcc == p.w and c.passes == p.passes:
                    pass
                else:
                    need = max(need, tbl_ovl)
            elif pv & c.w:
                need = max(need, tbl_ovl)
        elif c.kind in ("valu", "vmem", "ds"):
            if pv & (c.r | c.w):
                need = max(need, tbl_ab)
            if c.kind in ("valu", "ds", "vmem") and (p.srcc & c.w):
                need = max(need, tbl_war)
    return need


class Asm:
    def __init__(self):
        self.lines = []
        self.hist = []
        self.nins = 0
        self.nnop = 0

    def raw(self, text):
        self.lines.append(text)

    def comment(self, text):
        self.lines.append("    ; " + text)

    def label(self, name):
        self.fence()
        self.lines.append(name + ":")

    def fence(self, n=None):
        worst = 0
        dist = 0
        for p in reversed(self.hist):
            req = 0
            if p.kind == "mfma":
                req = {4: 8, 8: 12}[p.passes]
            elif p.kind == "valu":
                req = 5 if iss(p.w) else 2
            elif p.kind == "vmem" and p.store_data:
                req = 2
            elif p.kind == "salu" and (iss(p.w) & M0):
                req = 1
            worst = max(worst, req - dist)
            dist += p.states
            if dist > 16:
                break
        if worst > 0:
            self._nop(worst)
        self.hist = []

    def _nop(self, n):
        while n > 0:
            k = min(n, 16)
            i = Ins("s_nop %d" % (k - 1))
            self.lines.append("    s_nop %d" % (k - 1))
            self.hist.append(i)
            self.nnop += 1
            n -= k

    def __call__(self, text):
        for t in text.split("\n"):
            t = t.strip()
            if not t:
                continue
            if t.startswith(";"):
                self.lines.append("    " + t)
                continue
            if t.endswith(":"):
                self.label(t[:-1])
                continue
            self.emit(t)

    def emit(self, text):
        c = Ins(text)
        dist = 0
        pad = 0
        for p in reversed(self.hist):
            need = required(p, c)
            if need - dist > pad:
                pad = need - dist
            dist += p.states
            if dist > 20:
                break
        if pad > 0:
            self._nop(pad)
        if c.mn.startswith("s_cbranch") or c.mn == "s_branch":
            saved = c
            self.fence()
        self.lines.append("    " + text)
        self.hist.append(c)
        if len(self.hist) > 40:
            self.hist = self.hist[-30:]
        self.nins += 1

    def text(self):
        return "\n".join(self.lines) + "\n"


def kernel_header(name):
    return f".text\n.globl {name}\n.p2align 8\n.type {name},@function\n{name}:\n"


def kernel_desc(name, vgpr, sgpr=102):
    acc = (vgpr + 3) // 4 * 4
    return f""".section .rodata,"a"
.p2align 6
.amdhsa_kernel {name}
  .amdhsa_next_free_vgpr {vgpr}
  .amdhsa_next_free_sgpr {sgpr}
  .amdhsa_accum_offset {acc}
  .amdhsa_group_segment_fixed_size 0
  .amdhsa_kernarg_size 80
  .amdhsa_user_sgpr_count 2
  .amdhsa_user_sgpr_kernarg_segment_ptr 1
  .amdhsa_system_sgpr_workgroup_id_x 1
.end_amdhsa_kernel
"""
```

```python
import sys, struct, math
sys.path.insert(0, "dev")
from asmlib import Asm, kernel_header, kernel_desc

def f2u(f):
    return struct.unpack("<I", struct.pack("<f", f))[0]

QF = 0
KF = 2 << 20
VF = 4 << 20
HF = 8 << 20
WS_BYTES = 268435456
NKS = 144

X_BYTES = 2048 * 896
WQKV_BYTES = 448 * 2688
WG_BYTES = 448 * 3584
WD_BYTES = 1792 * 896
WO_BYTES = 448 * 896

LOG2E = 1.4426950408889634
QSCALE = (28 ** -0.5) * LOG2E
GC1 = -2.0 * 0.7978845608028654 * LOG2E
GC2 = GC1 * 0.044715


class VM:
    def __init__(self):
        self.ops = []
    def issue(self, tag):
        self.ops.append(tag)
    def wait_n(self, tag):
        idx = max(i for i, t in enumerate(self.ops) if t == tag)
        return len(self.ops) - 1 - idx


def srd(a, d, lo, hi, nbytes):
    a(f"s_mov_b32 s{d}, s{lo}")
    a(f"s_and_b32 s{d+1}, s{hi}, 0xffff")
    a(f"s_mov_b32 s{d+2}, {nbytes}")
    a(f"s_mov_b32 s{d+3}, 0x00020000")


SLOT = 28672
XBASE = 3 * SLOT

def gen_k1(name):
    a = Asm()
    a.raw(kernel_header(name))
    vX = 128
    ACC = [64, 96]
    vW = 48
    vT = 16
    v_lane, v_dq, v_dg, v_rdA, v_rdB, v_st, v_msk, v_c1 = 1, 2, 3, 4, 5, 6, 7, 8
    v_bqk, v_bv, v_bg0, v_bg1 = 9, 10, 11, 12
    v_stk, v_one = 13, 14
    v_xa = 240
    v_xw = 244
    v_xo = 246
    sX, sWq, sWg, sWS = 36, 40, 44, 48
    s_w, s_tb, s_a, s_b, s_g, s_mt = 52, 53, 54, 55, 56, 57
    s_qbase, s_gbase, s_m0b, s_t0, s_t1, s_scale, s_c2 = 58, 59, 60, 61, 62, 63, 64
    s_qkst, s_vst, s_hst, s_vbase = 65, 66, 67, 68

    a("s_cmp_ge_u32 s2, 256")
    a("s_cbranch_scc1 L1_end")
    a("s_load_dwordx16 s[16:31], s[0:1], 0")
    a("s_load_dwordx4 s[32:35], s[0:1], 64")
    a(f"v_and_b32 v{v_lane}, 63, v0")
    a(f"v_lshrrev_b32 v{vT}, 6, v0")
    a(f"v_readfirstlane_b32 s{s_w}, v{vT}")
    a(f"s_and_b32 s{s_t0}, s2, 7")
    a(f"s_lshr_b32 s{s_t1}, s2, 3")
    a(f"s_and_b32 s{s_tb}, s{s_t0}, 1")
    a(f"s_lshl_b32 s{s_tb}, s{s_tb}, 3")
    a(f"s_and_b32 s{s_b}, s{s_t1}, 7")
    a(f"s_add_u32 s{s_tb}, s{s_tb}, s{s_b}")
    a(f"s_lshr_b32 s{s_a}, s{s_t0}, 1")
    a(f"s_lshr_b32 s{s_b}, s{s_t1}, 3")
    a(f"s_lshr_b32 s{s_g}, s{s_w}, 2")
    a(f"s_and_b32 s{s_mt}, s{s_w}, 3")
    a(f"v_lshrrev_b32 v{vT}, 3, v{v_lane}")
    a(f"v_and_b32 v{vT+1}, 7, v{v_lane}")
    a(f"v_mul_u32_u24 v{v_xo}, 896, v{vT}")
    a(f"v_lshl_add_u32 v{v_xo}, v{vT+1}, 4, v{v_xo}")
    a(f"s_lshl_b32 s{s_t0}, s{s_tb}, 7")
    a(f"s_lshl_b32 s{s_t1}, s{s_w}, 4")
    a(f"s_add_u32 s{s_t0}, s{s_t0}, s{s_t1}")
    a(f"s_mul_i32 s{s_t0}, s{s_t0}, 896")
    a(f"s_add_u32 s{s_t1}, s{s_t0}, {8*896}")
    a(f"v_bfe_u32 v{vT+2}, v{v_lane}, 4, 1")
    a(f"v_lshlrev_b32 v{vT+3}, 2, v{vT+2}")
    a(f"v_xor_b32 v{vT+3}, v{vT+3}, v{vT+1}")
    a(f"v_mul_u32_u24 v{v_dq}, 2688, v{vT}")
    a(f"v_lshl_add_u32 v{v_dq}, v{vT+3}, 4, v{v_dq}")
    a(f"v_lshlrev_b32 v{vT+3}, 1, v{vT+2}")
    a(f"v_xor_b32 v{vT+3}, v{vT+3}, v{vT+1}")
    a(f"s_lshl_b32 s{s_gbase}, s{s_g}, 2")
    a(f"v_xor_b32 v{vT+3}, s{s_gbase}, v{vT+3}")
    a(f"v_mul_u32_u24 v{v_dg}, 3584, v{vT}")
    a(f"v_lshl_add_u32 v{v_dg}, v{vT+3}, 4, v{v_dg}")
    a("s_waitcnt lgkmcnt(0)")
    srd(a, sX, 16, 17, X_BYTES)
    vm = VM()
    def raw(e, i):
        if i < 4:
            return ACC[0] + 16 * e + 4 * i
        return ACC[1] + 12 * e + 4 * (i - 4)
    for e in range(2):
        for i in range(7):
            r = raw(e, i)
            a(f"buffer_load_dwordx4 v[{r}:{r+3}], v{v_xo}, s[{sX}:{sX+3}], s{s_t0 if e == 0 else s_t1} offen offset:{128*i}")
            vm.issue(f"x{e}")
    srd(a, sWq, 18, 19, WQKV_BYTES)
    a(f"s_cmp_eq_u32 s{s_g}, 0")
    a(f"s_cselect_b32 s{sWg}, s24, s26")
    a(f"s_cselect_b32 s{sWg+1}, s25, s27")
    a(f"s_and_b32 s{sWg+1}, s{sWg+1}, 0xffff")
    a(f"s_mov_b32 s{sWg+2}, {WG_BYTES}")
    a(f"s_mov_b32 s{sWg+3}, 0x00020000")
    srd(a, sWS, 34, 35, WS_BYTES)
    a(f"s_mul_i32 s{s_qbase}, s{s_w}, {28*2688}")
    a(f"s_mul_i32 s{s_vbase}, s{s_a}, {56*4}")
    a(f"s_add_u32 s{s_vbase}, s{s_vbase}, s{s_qbase}")
    a(f"s_add_u32 s{s_vbase}, s{s_vbase}, {56*32}")
    a(f"s_lshl_b32 s{s_t0}, s{s_a}, 2")
    a(f"s_add_u32 s{s_t0}, s{s_t0}, s{s_b}")
    a(f"s_mul_i32 s{s_t1}, s{s_t0}, 112")
    a(f"s_add_u32 s{s_qbase}, s{s_qbase}, s{s_t1}")
    a(f"s_cmp_lt_u32 s{s_t0}, 8")
    a(f"s_cselect_b32 s{s_scale}, 0x{f2u(QSCALE):08x}, 1.0")
    a(f"s_lshl_b32 s{s_qkst}, s{s_t0}, 1")
    a(f"s_add_u32 s{s_qkst}, s{s_qkst}, s{s_g}")
    a(f"s_lshl_b32 s{s_qkst}, s{s_qkst}, 17")
    a(f"s_lshl_b32 s{s_t1}, s{s_tb}, 2")
    a(f"s_add_u32 s{s_t1}, s{s_t1}, s{s_mt}")
    a(f"s_mul_i32 s{s_hst}, s{s_t1}, {NKS*1024}")
    a(f"s_lshl_b32 s{s_t1}, s{s_t1}, 11")
    a(f"s_add_u32 s{s_qkst}, s{s_qkst}, s{s_t1}")
    a(f"s_lshl_b32 s{s_vst}, s{s_a}, 2")
    a(f"s_add_u32 s{s_vst}, s{s_vst}, s{s_g}")
    a(f"s_lshl_b32 s{s_vst}, s{s_vst}, 17")
    a(f"s_add_u32 s{s_vst}, s{s_vst}, s{s_t1}")
    a(f"s_add_u32 s{s_vst}, s{s_vst}, {VF}")
    a(f"s_mul_i32 s{s_gbase}, s{s_a}, 448")
    a(f"s_lshl_b32 s{s_t1}, s{s_b}, 7")
    a(f"s_add_u32 s{s_gbase}, s{s_gbase}, s{s_t1}")
    a(f"s_lshl_b32 s{s_t1}, s{s_gbase}, 6")
    a(f"s_add_u32 s{s_hst}, s{s_hst}, s{s_t1}")
    a(f"s_lshl_b32 s{s_t1}, s{s_g}, 11")
    a(f"s_add_u32 s{s_hst}, s{s_hst}, s{s_t1}")
    a(f"s_add_u32 s{s_hst}, s{s_hst}, {HF}")
    a(f"s_lshl_b32 s{s_gbase}, s{s_gbase}, 1")
    a(f"s_mul_i32 s{s_t1}, s{s_mt}, {28*3584}")
    a(f"s_add_u32 s{s_gbase}, s{s_gbase}, s{s_t1}")
    a(f"s_mul_i32 s{s_m0b}, s{s_w}, {28*128}")
    a(f"s_mov_b32 s{s_c2}, 0x{f2u(GC2):08x}")
    a(f"v_mov_b32 v{v_c1}, 0x{f2u(GC1):08x}")

    def dma(a, vm, chunk, slot, tag):
        kind, idx, part = chunk
        for jj in range(4):
            if kind in ("qk", "v"):
                base = s_qbase if kind == "qk" else s_vbase
                off = (224 * part + 8 * jj) * 2688 + (112 * idx if kind == "v" else 0)
                sr, vo = sWq, v_dq
            else:
                base = s_gbase
                off = (112 * part + 8 * jj) * 3584 + 128 * idx
                sr, vo = sWg, v_dg
            a(f"s_add_u32 m0, s{s_m0b}, {slot*SLOT + jj*1024}")
            a(f"s_add_u32 s{s_t1}, s{base}, {off}")
            if jj == 3:
                a("s_mov_b32 exec_hi, 0")
            a(f"buffer_load_dwordx4 v{vo}, s[{sr}:{sr+3}], s{s_t1} offen lds")
            if jj == 3:
                a("s_mov_b32 exec_hi, -1")
            vm.issue(tag)

    seq1 = [("qk", 0, 0), ("qk", 0, 1)] + [("gu", 0, p) for p in range(4)] + [("gu", 1, p) for p in range(4)]
    seq2 = [("qk", 0, 0), ("qk", 0, 1), ("v", 0, 0), ("v", 0, 1), ("v", 1, 0), ("v", 1, 1)] + [("gu", 0, p) for p in range(4)]
    dma(a, vm, seq1[0], 0, "c0")
    dma(a, vm, seq1[1], 1, "c1")
    a(f"s_cmp_eq_u32 s{s_b}, 3")
    a("s_cbranch_scc1 L1_pre2")
    import copy
    vm_a = copy.deepcopy(vm)
    dma(a, vm_a, seq1[2], 2, "c2")
    a("s_branch L1_pre_done")
    a("L1_pre2:")
    dma(a, vm, seq2[2], 2, "c2")
    a("L1_pre_done:")

    t = vT
    a(f"v_bfe_u32 v{t}, v{v_lane}, 2, 2")
    a(f"v_and_b32 v{t+1}, 3, v{v_lane}")
    a(f"v_bfe_u32 v{t+2}, v{v_lane}, 4, 1")
    a(f"v_lshrrev_b32 v{t+3}, 5, v{v_lane}")
    a(f"v_lshrrev_b32 v{t+4}, 1, v{t+1}")
    a(f"v_and_b32 v{t+5}, 1, v{t+1}")
    a(f"v_lshl_or_b32 v{t+4}, v{t+5}, 1, v{t+4}")
    a(f"v_lshl_add_u32 v{t+5}, v{t+3}, 3, v{t}")
    a(f"v_lshlrev_b32 v{t+5}, 7, v{t+5}")
    a(f"v_lshrrev_b32 v{t+6}, 1, v{t}")
    a(f"s_mul_i32 s{s_t0}, s{s_g}, 56")
    a(f"v_lshlrev_b32 v{t+7}, 5, v{t+2}")
    a(f"v_lshl_add_u32 v{t+7}, v{t+4}, 3, v{t+7}")
    a(f"v_add_u32 v{t+7}, s{s_t0}, v{t+7}")
    a(f"v_lshlrev_b32 v{t+8}, 6, v{t+6}")
    a(f"v_xor_b32 v{t+7}, v{t+7}, v{t+8}")
    a(f"v_add_u32 v{v_bqk}, v{t+7}, v{t+5}")
    a(f"v_lshlrev_b32 v{t+7}, 4, v{t+1}")
    a(f"v_lshl_add_u32 v{t+7}, v{t+2}, 3, v{t+7}")
    a(f"v_add_u32 v{t+7}, s{s_t0}, v{t+7}")
    a(f"v_xor_b32 v{t+7}, v{t+7}, v{t+8}")
    a(f"v_add_u32 v{v_bv}, v{t+7}, v{t+5}")
    a(f"v_lshl_or_b32 v{t+7}, v{t+2}, 1, v{t+6}")
    a(f"s_lshl_b32 s{s_t0}, s{s_g}, 1")
    a(f"v_xor_b32 v{t+7}, s{s_t0}, v{t+7}")
    a(f"v_mul_u32_u24 v{t+8}, 14336, v{t+2}")
    a(f"v_add_u32 v{t+8}, v{t+8}, v{t+5}")
    a(f"v_lshl_add_u32 v{t+8}, v{t+4}, 3, v{t+8}")
    a(f"v_lshl_add_u32 v{v_bg0}, v{t+7}, 5, v{t+8}")
    a(f"v_xor_b32 v{v_bg1}, 32, v{v_bg0}")
    a(f"v_lshlrev_b32 v{v_st}, 4, v{v_lane}")
    a(f"v_bfe_u32 v{t+7}, v{v_lane}, 3, 1")
    a(f"v_lshlrev_b32 v{t+7}, 4, v{t+7}")
    a(f"v_lshl_or_b32 v{t+7}, v{t+2}, 3, v{t+7}")
    a(f"v_and_b32 v{t+8}, 0x27, v{v_lane}")
    a(f"v_or_b32 v{t+7}, v{t+7}, v{t+8}")
    a(f"v_lshlrev_b32 v{v_stk}, 4, v{t+7}")
    a(f"s_cmp_eq_u32 s{s_scale}, 1.0")
    a("s_cselect_b64 vcc, -1, 0")
    a(f"v_cndmask_b32 v{v_stk}, v{v_st}, v{v_stk}, vcc")
    a(f"v_cmp_gt_u32 vcc, 32, v{v_lane}")
    a(f"v_cndmask_b32 v{v_msk}, 0, -1, vcc")
    a(f"v_lshrrev_b32 v{t}, 3, v{v_lane}")
    a(f"v_and_b32 v{t+1}, 7, v{v_lane}")
    a(f"s_lshl_b32 s{s_t0}, s{s_w}, 4")
    for e in range(2):
        a(f"v_add_u32 v{t+2}, s{s_t0}, v{t}")
        if e:
            a(f"v_add_u32 v{t+2}, 8, v{t+2}")
        a(f"v_bfe_u32 v{t+3}, v{t+2}, 1, 3")
        a(f"v_xor_b32 v{t+3}, v{t+3}, v{t+1}")
        a(f"v_lshlrev_b32 v{t+2}, 7, v{t+2}")
        a(f"v_lshl_add_u32 v{t+2}, v{t+3}, 4, v{t+2}")
        a(f"v_add_u32 v{v_xw+e}, {XBASE}, v{t+2}")
    a(f"v_and_b32 v{t}, 0x13, v{v_lane}")
    a(f"v_bfe_u32 v{t+1}, v{v_lane}, 2, 1")
    a(f"v_lshl_or_b32 v{t}, v{t+1}, 3, v{t}")
    a(f"v_bfe_u32 v{t+1}, v{v_lane}, 3, 1")
    a(f"v_lshl_or_b32 v{t}, v{t+1}, 2, v{t}")
    a(f"s_lshl_b32 s{s_t0}, s{s_mt}, 5")
    a(f"v_add_u32 v{t}, s{s_t0}, v{t}")
    a(f"v_bfe_u32 v{t+1}, v{t}, 1, 3")
    a(f"v_lshrrev_b32 v{t+2}, 5, v{v_lane}")
    a(f"v_xor_b32 v{t+1}, v{t+1}, v{t+2}")
    a(f"v_lshlrev_b32 v{t}, 7, v{t}")
    a(f"v_lshl_add_u32 v{t}, v{t+1}, 4, v{t}")
    a(f"v_add_u32 v{v_xa}, {XBASE}, v{t}")
    for s2 in range(1, 4):
        a(f"v_xor_b32 v{v_xa+s2}, {32*s2}, v{v_xa}")
    a(f"v_and_b32 v{t}, 31, v{v_lane}")
    a(f"v_cmp_eq_u32 s[70:71], 28, v{t}")
    a(f"v_mov_b32 v{v_one}, 0x3f803f80")

    F = vX
    for e in range(2):
        a(f"s_waitcnt vmcnt({vm.wait_n(f'x{e}')})")
        for i in range(7):
            for d in range(4):
                r = raw(e, i) + d
                f = F + 8 * i + 2 * d
                a(f"v_lshlrev_b32 v{f}, 16, v{r}")
                a(f"v_and_b32 v{f+1}, 0xffff0000, v{r}")
        a(f"v_pk_add_f32 v[{t}:{t+1}], v[{F}:{F+1}], v[{F+2}:{F+3}]")
        a(f"v_pk_add_f32 v[{t+2}:{t+3}], v[{F+4}:{F+5}], v[{F+6}:{F+7}]")
        for p in range(4, 28):
            tt = t + 2 * (p & 1)
            a(f"v_pk_add_f32 v[{tt}:{tt+1}], v[{tt}:{tt+1}], v[{F+2*p}:{F+2*p+1}]")
        a(f"v_pk_add_f32 v[{t}:{t+1}], v[{t}:{t+1}], v[{t+2}:{t+3}]")
        a(f"v_add_f32 v{t}, v{t}, v{t+1}")
        def red8(r):
            a(f"v_add_f32_dpp v{r}, v{r}, v{r} quad_perm:[1,0,3,2] row_mask:0xf bank_mask:0xf")
            a(f"v_add_f32_dpp v{r}, v{r}, v{r} quad_perm:[2,3,0,1] row_mask:0xf bank_mask:0xf")
            a(f"v_add_f32_dpp v{r}, v{r}, v{r} row_half_mirror row_mask:0xf bank_mask:0xf")
        red8(t)
        a(f"v_mul_f32 v{t+4}, 0x{f2u(-1.0/448):08x}, v{t}")
        for p in range(28):
            a(f"v_pk_add_f32 v[{F+2*p}:{F+2*p+1}], v[{F+2*p}:{F+2*p+1}], v[{t+4}:{t+5}] op_sel_hi:[1,0]")
        a(f"v_pk_mul_f32 v[{t}:{t+1}], v[{F}:{F+1}], v[{F}:{F+1}]")
        a(f"v_pk_mul_f32 v[{t+2}:{t+3}], v[{F+2}:{F+3}], v[{F+2}:{F+3}]")
        for p in range(2, 28):
            tt = t + 2 * (p & 1)
            a(f"v_pk_fma_f32 v[{tt}:{tt+1}], v[{F+2*p}:{F+2*p+1}], v[{F+2*p}:{F+2*p+1}], v[{tt}:{tt+1}]")
        a(f"v_pk_add_f32 v[{t}:{t+1}], v[{t}:{t+1}], v[{t+2}:{t+3}]")
        a(f"v_add_f32 v{t}, v{t}, v{t+1}")
        red8(t)
        a(f"v_mov_b32 v{t+1}, 0x{f2u(1e-5):08x}")
        a(f"v_fmac_f32 v{t+1}, 0x{f2u(1.0/448):08x}, v{t}")
        a(f"v_rsq_f32 v{t+4}, v{t+1}")
        for p in range(28):
            a(f"v_pk_mul_f32 v[{F+2*p}:{F+2*p+1}], v[{F+2*p}:{F+2*p+1}], v[{t+4}:{t+5}] op_sel_hi:[1,0]")
        for i in range(7):
            for d in range(4):
                r = raw(e, i) + d
                f = F + 8 * i + 2 * d
                a(f"v_cvt_pk_bf16_f32 v{r}, v{f}, v{f+1}")
        for i in range(4):
            r = raw(e, i)
            a(f"ds_write_b128 v{v_xw+e}, v[{r}:{r+3}] offset:{i*16384}")
    a("s_waitcnt lgkmcnt(0)")
    a("s_barrier")
    for i in range(4):
        for s2 in range(4):
            r = vX + 4 * (4 * i + s2)
            a(f"ds_read_b128 v[{r}:{r+3}], v{v_xa+s2} offset:{i*16384}")
    a("s_waitcnt lgkmcnt(0)")
    a("s_barrier")
    for e in range(2):
        for i in range(4, 7):
            r = raw(e, i)
            a(f"ds_write_b128 v{v_xw+e}, v[{r}:{r+3}] offset:{(i-4)*16384}")
    a("s_waitcnt lgkmcnt(0)")
    a("s_barrier")
    for i in range(4, 7):
        for s2 in range(4):
            r = vX + 4 * (4 * i + s2)
            a(f"ds_read_b128 v[{r}:{r+3}], v{v_xa+s2} offset:{(i-4)*16384}")
    a(f"s_waitcnt vmcnt({vm.wait_n('c0')}) lgkmcnt(0)")
    a("s_barrier")

    a(f"s_cmp_eq_u32 s{s_b}, 3")
    a("s_cbranch_scc1 L1_type2")

    def epi_qk(acc):
        E = []
        for r in range(16):
            E.append(f"v_mul_f32 v{acc+r}, s{s_scale}, v{acc+r}")
        for d in range(8):
            E.append(f"v_cvt_pk_bf16_f32 v{vT+d}, v{acc+2*d}, v{acc+2*d+1}")
        E.append(f"v_and_b32 v{vT+6}, v{vT+6}, v{v_msk}")
        E.append(f"v_and_b32 v{vT+7}, v{vT+7}, v{v_msk}")
        E.append(f"buffer_store_dwordx4 v[{vT}:{vT+3}], v{v_stk}, s[{sWS}:{sWS+3}], s{s_qkst} offen")
        E.append(f"buffer_store_dwordx4 v[{vT+4}:{vT+7}], v{v_stk}, s[{sWS}:{sWS+3}], s{s_qkst} offen offset:1024")
        return E

    def epi_v(acc, idx):
        E = []
        for d in range(8):
            E.append(f"v_cvt_pk_bf16_f32 v{vT+d}, v{acc+2*d}, v{acc+2*d+1}")
        for d in range(8):
            E.append(f"v_cndmask_b32 v{vT+d}, v{vT+d}, v{v_one}, s[70:71]")
        if idx:
            E.append(f"s_add_u32 s{s_vst}, s{s_vst}, {2 << 17}")
        E.append(f"buffer_store_dwordx4 v[{vT}:{vT+3}], v{v_st}, s[{sWS}:{sWS+3}], s{s_vst} offen")
        E.append(f"buffer_store_dwordx4 v[{vT+4}:{vT+7}], v{v_st}, s[{sWS}:{sWS+3}], s{s_vst} offen offset:1024")
        return E

    def epi_gu(acc, idx):
        E = []
        if idx:
            E.append(f"s_add_u32 s{s_hst}, s{s_hst}, 4096")
        for jj in range(2):
            A = acc + 16 * jj
            T = vT + 16 * jj
            for i in range(8):
                E.append(f"v_mul_f32 v{T+i}, v{A+i}, v{A+i}")
            for i in range(8):
                E.append(f"v_fma_f32 v{T+i}, v{T+i}, s{s_c2}, v{v_c1}")
            for i in range(8):
                E.append(f"v_mul_f32 v{T+i}, v{T+i}, v{A+i}")
            for i in range(8):
                E.append(f"v_exp_f32 v{T+i}, v{T+i}")
                E.append(f"v_mul_f32 v{A+i}, v{A+i}, v{A+8+i}")
            for i in range(8):
                E.append(f"v_add_f32 v{T+i}, 1.0, v{T+i}")
            for i in range(8):
                E.append(f"v_rcp_f32 v{T+i}, v{T+i}")
            for i in range(8):
                E.append(f"v_mul_f32 v{A+i}, v{A+i}, v{T+i}")
            for d in range(4):
                E.append(f"v_cvt_pk_bf16_f32 v{T+8+d}, v{A+2*d}, v{A+2*d+1}")
            E.append(f"buffer_store_dwordx4 v[{T+8}:{T+11}], v{v_st}, s[{sWS}:{sWS+3}], s{s_hst} offen offset:{1024*jj}")
        return E

    def main(seq, vm):
        dma(a, vm, seq[3], 3, "c3")
        M = []
        sp = -1
        prev = None
        for c, (kind, idx, part) in enumerate(seq):
            if (kind, idx) != prev:
                sp += 1
                prev = (kind, idx)
            if kind in ("qk", "v"):
                for s in range(14):
                    M.append(dict(c=c, kind=kind, idx=idx, ks=14 * part + s, sl=s, jj=0, first=(part == 0 and s == 0), sp=sp))
            else:
                for s in range(7):
                    for jj in range(2):
                        M.append(dict(c=c, kind=kind, idx=idx, ks=7 * part + s, sl=s, jj=jj, first=(part == 0 and s == 0), sp=sp))
        LA = 3
        cur_chunk_addr = [-1]
        def reads(m):
            mm = M[m]
            c = mm["c"]
            if cur_chunk_addr[0] != c:
                cur_chunk_addr[0] = c
                so = (c % 5) * SLOT
                if mm["kind"] == "qk":
                    a(f"v_add_u32 v{v_rdA}, {so}, v{v_bqk}")
                elif mm["kind"] == "v":
                    a(f"v_add_u32 v{v_rdA}, {so}, v{v_bv}")
                else:
                    a(f"v_add_u32 v{v_rdA}, {so}, v{v_bg0}")
                    a(f"v_add_u32 v{v_rdB}, {so}, v{v_bg1}")
            b = vW + 4 * (m % 4)
            ad = v_rdB if mm["jj"] else v_rdA
            o = mm["sl"] * 2048
            a(f"ds_read_b64_tr_b16 v[{b}:{b+1}], v{ad} offset:{o}")
            a(f"ds_read_b64_tr_b16 v[{b+2}:{b+3}], v{ad} offset:{o+512}")
        for m in range(LA):
            reads(m)
        pend = []
        rate = 0.0
        accum = 0.0
        n = len(M)
        for m in range(n):
            mm = M[m]
            c = mm["c"]
            if m % 14 == 8 and c + 1 < len(seq):
                a(f"s_waitcnt vmcnt({vm.wait_n(f'c{c+1}')})")
                a("s_barrier")
                if c + 4 < len(seq):
                    dma(a, vm, seq[c + 4], (c + 4) % 5, f"c{c+4}")
            if m + LA < n:
                reads(m + LA)
                a(f"s_waitcnt lgkmcnt({2*LA})")
            else:
                a(f"s_waitcnt lgkmcnt({2*(n-1-m)})")
            acc = ACC[mm["sp"] % 2] + 16 * mm["jj"]
            b = vW + 4 * (m % 4)
            x = vX + 4 * mm["ks"]
            csrc = "0" if mm["first"] else f"v[{acc}:{acc+15}]"
            if mm["kind"] == "v":
                a(f"v_mfma_f32_32x32x16_bf16 v[{acc}:{acc+15}], v[{x}:{x+3}], v[{b}:{b+3}], {csrc}")
            else:
                a(f"v_mfma_f32_32x32x16_bf16 v[{acc}:{acc+15}], v[{b}:{b+3}], v[{x}:{x+3}], {csrc}")
            last_of_sp = (m + 1 == n) or (M[m + 1]["sp"] != mm["sp"])
            if pend and not hold[0]:
                accum += rate
                while accum >= 1.0 and pend:
                    ins = pend.pop(0)
                    a(ins)
                    if ins.startswith("buffer_"):
                        vm.issue("st")
                    accum -= 1.0
            if hold[0]:
                hold[0] -= 1
            if last_of_sp:
                while pend:
                    ins = pend.pop(0)
                    a(ins)
                    if ins.startswith("buffer_"):
                        vm.issue("st")
                accb = ACC[mm["sp"] % 2]
                if mm["kind"] == "qk":
                    pend = epi_qk(accb)
                elif mm["kind"] == "v":
                    pend = epi_v(accb, mm["idx"])
                else:
                    pend = epi_gu(accb, mm["idx"])
                if m + 1 < n:
                    nsp = sum(1 for q in M if q["sp"] == mm["sp"] + 1)
                    rate = len(pend) / max(1, (nsp - 4))
                    rate = max(rate, 2.0)
                    accum = 0.0
                    hold[0] = 2
        for ins in pend:
            a(ins)
        a("s_endpgm")

    hold = [0]
    main(seq1, copy.deepcopy(vm))
    a("L1_type2:")
    hold = [0]
    main(seq2, copy.deepcopy(vm))
    a("L1_end:")
    a("s_endpgm")
    return a, 248


def gen_k2(name):
    a = Asm()
    a.raw(kernel_header(name))
    sWS = 8
    s_w, s_h, s_qb, s_t0, s_t1, s_bd = 12, 13, 14, 15, 16, 17
    v_lane, v_l16, v_ka, v_va, v_d, v_m, v_t = 1, 2, 3, 4, 5, 6, 8
    vQ = 16
    vS = 32
    vKF = 104
    vP = 136
    vO = 172
    a("s_cmp_ge_u32 s2, 256")
    a("s_cbranch_scc1 L2_end")
    a("s_load_dwordx2 s[4:5], s[0:1], 72")
    a(f"v_and_b32 v{v_lane}, 63, v0")
    a(f"v_lshrrev_b32 v{v_t}, 6, v0")
    a(f"v_readfirstlane_b32 s{s_w}, v{v_t}")
    a(f"s_and_b32 s{s_t0}, s2, 7")
    a(f"s_lshr_b32 s{s_t1}, s2, 3")
    a(f"s_lshl_b32 s{s_h}, s{s_t0}, 1")
    a(f"s_lshr_b32 s{s_t0}, s{s_t1}, 4")
    a(f"s_add_u32 s{s_h}, s{s_h}, s{s_t0}")
    a(f"s_and_b32 s{s_qb}, s{s_t1}, 15")
    a(f"v_lshlrev_b32 v{v_l16}, 4, v{v_lane}")
    a("s_waitcnt lgkmcnt(0)")
    srd(a, sWS, 4, 5, WS_BYTES)
    a(f"s_lshl_b32 s{s_t0}, s{s_h}, 17")
    a(f"s_lshl_b32 s{s_t1}, s{s_qb}, 13")
    a(f"s_add_u32 s{s_t0}, s{s_t0}, s{s_t1}")
    a(f"s_mul_i32 s{s_t1}, s{s_w}, 3072")
    a(f"s_mov_b32 m0, s{s_t1}")
    a(f"s_add_u32 s18, s{s_t0}, s{s_t1}")
    a(f"s_add_u32 s19, s18, {KF - 16384}")
    a(f"s_add_u32 s20, s18, {VF - 16384}")
    for j in range(3):
        a(f"buffer_load_dwordx4 v{v_l16}, s[{sWS}:{sWS+3}], s19 offen offset:{1024*j} lds")
    a(f"v_and_b32 v{v_t}, 15, v{v_lane}")
    a(f"v_lshrrev_b32 v{v_t+1}, 4, v{v_lane}")
    a(f"v_lshlrev_b32 v{v_t+2}, 9, v{v_t+1}")
    a(f"v_lshl_add_u32 v{v_t+2}, v{v_t}, 4, v{v_t+2}")
    a(f"s_lshr_b32 s21, s{s_w}, 1")
    a(f"s_lshl_b32 s21, s21, 11")
    a(f"s_and_b32 s22, s{s_w}, 1")
    a(f"s_lshl_b32 s22, s22, 8")
    a(f"s_add_u32 s21, s21, s22")
    a(f"s_add_u32 s23, s21, s{s_t0}")
    a(f"buffer_load_dwordx4 v[{vQ}:{vQ+3}], v{v_t+2}, s[{sWS}:{sWS+3}], s23 offen")
    a(f"s_add_u32 m0, s{s_t1}, 24576")
    for j in range(3):
        a(f"buffer_load_dwordx4 v{v_l16}, s[{sWS}:{sWS+3}], s20 offen offset:{1024*j} lds")
    a(f"s_lshr_b32 s21, s{s_w}, 1")
    a(f"s_lshl_b32 s21, s21, 11")
    a(f"v_add_u32 v{v_ka}, s21, v{v_t+2}")
    a(f"v_add_u32 v{v_va}, 24576, v{v_ka}")
    a(f"s_lshl_b32 s24, s{s_qb}, 2")
    a(f"s_lshr_b32 s25, s{s_w}, 1")
    a(f"s_add_u32 s{s_bd}, s24, s25")
    a(f"s_mul_i32 s24, s{s_bd}, {NKS*1024}")
    a(f"s_lshl_b32 s25, s{s_h}, 11")
    a(f"s_add_u32 s24, s24, s25")
    a(f"s_add_u32 s24, s24, s22")
    a(f"s_add_u32 s24, s24, {HF + 112*1024}")
    a(f"v_and_b32 v{v_d}, 3, v{v_lane}")
    a(f"v_bfe_u32 v{v_t+3}, v{v_lane}, 2, 1")
    a(f"v_lshl_or_b32 v{v_d}, v{v_t+3}, 3, v{v_d}")
    a(f"v_bfe_u32 v{v_t+3}, v{v_lane}, 3, 1")
    a(f"v_lshl_or_b32 v{v_d}, v{v_t+3}, 2, v{v_d}")
    a(f"s_lshr_b32 s25, s22, 4")
    a(f"v_add_u32 v{v_d}, s25, v{v_d}")
    a(f"v_lshlrev_b32 v{v_t+3}, 3, v{v_t+1}")
    a(f"v_sub_u32 v{v_d}, v{v_d}, v{v_t+3}")
    for i in range(8):
        a(f"v_cmp_le_i32 s[{32+2*i}:{33+2*i}], {i}, v{v_d}")
    a("s_waitcnt vmcnt(3)")
    a("s_barrier")
    def kread(i):
        b, t = divmod(i, 2)
        r = vKF + 4 * (i % 8)
        a(f"ds_read_b128 v[{r}:{r+3}], v{v_ka} offset:{b*2048 + t*256}")
    LA = 6
    for i in range(LA):
        kread(i)
    for i in range(18):
        if i + LA < 18:
            kread(i + LA)
            a(f"s_waitcnt lgkmcnt({LA})")
        else:
            a(f"s_waitcnt lgkmcnt({17-i})")
        r = vKF + 4 * (i % 8)
        a(f"v_mfma_f32_16x16x32_bf16 v[{vS+4*i}:{vS+4*i+3}], v[{r}:{r+3}], v[{vQ}:{vQ+3}], 0")
    a(f"s_cmp_ge_u32 s{s_bd}, 8")
    a("s_cbranch_scc1 L2_allvalid")
    for b in range(8):
        a(f"s_cmp_ge_u32 s{s_bd}, {8-b}")
        a("s_cbranch_scc1 L2_allvalid")
        for i in range(8):
            a(f"v_mov_b32 v{vS+8*b+i}, 0xf149f2ca")
    a("L2_allvalid:")
    a("s_waitcnt vmcnt(0)")
    a("s_barrier")
    for i in range(8):
        a(f"v_cndmask_b32 v{vS+i}, v{vS+i}, v{vS+64+i}, s[{32+2*i}:{33+2*i}]")
    a(f"v_max3_f32 v{v_m}, v{vS}, v{vS+1}, v{vS+2}")
    a(f"v_max3_f32 v{v_t}, v{vS+3}, v{vS+4}, v{vS+5}")
    k = 6
    tog = 0
    while k < 64:
        d = v_m if tog == 0 else v_t
        a(f"v_max3_f32 v{d}, v{d}, v{vS+k}, v{vS+k+1}")
        k += 2
        tog ^= 1
    a(f"v_max_f32 v{v_m}, v{v_m}, v{v_t}")
    a(f"v_mov_b32 v{v_t}, v{v_m}")
    a(f"v_permlane32_swap_b32 v{v_m}, v{v_t}")
    a(f"v_max_f32 v{v_m}, v{v_m}, v{v_t}")
    a(f"v_mov_b32 v{v_t}, v{v_m}")
    a(f"v_permlane16_swap_b32 v{v_m}, v{v_t}")
    a(f"v_max_f32 v{v_m}, v{v_m}, v{v_t}")
    def vread(i):
        b = order[i // 2]
        t = i % 2
        r = vKF + 4 * (i % 8)
        a(f"ds_read_b128 v[{r}:{r+3}], v{v_va} offset:{b*2048 + t*256}")
    order = [1, 2, 3, 4, 5, 6, 7, 0, 8]
    for i in range(LA):
        vread(i)
    def softmax_block(b):
        for i in range(8):
            a(f"v_sub_f32 v{vS+8*b+i}, v{vS+8*b+i}, v{v_m}")
        for i in range(8):
            a(f"v_exp_f32 v{vS+8*b+i}, v{vS+8*b+i}")
        if b == 0:
            for i in range(8):
                a(f"v_cndmask_b32 v{vS+64+i}, 0, v{vS+i}, s[{32+2*i}:{33+2*i}]")
            for i in range(8):
                a(f"v_cndmask_b32 v{vS+i}, v{vS+i}, 0, s[{32+2*i}:{33+2*i}]")
            for d in range(4):
                a(f"v_cvt_pk_bf16_f32 v{vP+32+d}, v{vS+64+2*d}, v{vS+64+2*d+1}")
        for d in range(4):
            a(f"v_cvt_pk_bf16_f32 v{vP+4*b+d}, v{vS+8*b+2*d}, v{vS+8*b+2*d+1}")
    softmax_block(order[0])
    for bi in range(9):
        b = order[bi]
        if bi + 1 < 8:
            softmax_block(order[bi + 1])
        for t in range(2):
            i = 2 * bi + t
            if i + LA < 18:
                vread(i + LA)
                a(f"s_waitcnt lgkmcnt({LA})")
            else:
                a(f"s_waitcnt lgkmcnt({17-i})")
            r = vKF + 4 * (i % 8)
            cs = "0" if bi == 0 else f"v[{vO+4*t}:{vO+4*t+3}]"
            a(f"v_mfma_f32_16x16x32_bf16 v[{vO+4*t}:{vO+4*t+3}], v[{r}:{r+3}], v[{vP+4*b}:{vP+4*b+3}], {cs}")
    a(f"v_mov_b32 v{v_t}, v{vO+4}")
    a(f"v_mov_b32 v{v_t+1}, v{vO+4}")
    a(f"v_permlane32_swap_b32 v{v_t}, v{v_t+1}")
    a(f"v_mov_b32 v{v_t}, v{v_t+1}")
    a(f"v_permlane16_swap_b32 v{v_t}, v{v_t+1}")
    a(f"v_rcp_f32 v{v_t+1}, v{v_t+1}")
    for i in range(8):
        a(f"v_mul_f32 v{vO+i}, v{vO+i}, v{v_t+1}")
    for d in range(4):
        a(f"v_cvt_pk_bf16_f32 v{vQ+d}, v{vO+2*d}, v{vO+2*d+1}")
    a(f"v_cmp_gt_u32 vcc, 48, v{v_lane}")
    a(f"v_cndmask_b32 v{vQ+2}, 0, v{vQ+2}, vcc")
    a(f"v_cndmask_b32 v{vQ+3}, 0, v{vQ+3}, vcc")
    a(f"buffer_store_dwordx4 v[{vQ}:{vQ+3}], v{v_t+2}, s[{sWS}:{sWS+3}], s24 offen")
    a("L2_end:")
    a("s_endpgm")
    return a, 184


CSLOT = 32768

def gen_k3(name):
    a = Asm()
    a.raw(kernel_header(name))
    sWS, sWd, sWo, sX, sO = 36, 40, 44, 48, 52
    s_w, s_tb, s_nb, s_t0, s_t1, s_kh, s_mt, s_nt = 56, 57, 58, 59, 60, 61, 62, 63
    s_hb, s_wb, s_wob, s_m0h, s_m0w = 64, 65, 66, 67, 68
    v_lane, v_l16, v_dw, v_ah, v_aw, v_xo, v_t = 1, 2, 3, 4, 5, 6, 8
    v_ah2, v_aw2, v_ah4, v_aw4 = 16, 17, 18, 19
    vXr = 20
    vAcc = 32
    vF = 48
    NSL = 5
    a("s_cmp_ge_u32 s2, 256")
    a("s_cbranch_scc1 L3_end")
    a(f"s_lshr_b32 s{s_t1}, s2, 3")
    a(f"s_cmp_ge_u32 s{s_t1}, 28")
    a("s_cbranch_scc1 L3_end")
    a("s_load_dwordx16 s[16:31], s[0:1], 0")
    a("s_load_dwordx4 s[32:35], s[0:1], 64")
    a(f"v_and_b32 v{v_lane}, 63, v0")
    a(f"v_lshrrev_b32 v{v_t}, 6, v0")
    a(f"v_readfirstlane_b32 s{s_w}, v{v_t}")
    a(f"s_and_b32 s{s_t0}, s2, 7")
    a(f"s_and_b32 s{s_tb}, s{s_t1}, 3")
    a(f"s_lshl_b32 s{s_t0}, s{s_t0}, 2")
    a(f"s_add_u32 s{s_tb}, s{s_tb}, s{s_t0}")
    a(f"s_lshr_b32 s{s_nb}, s{s_t1}, 2")
    a(f"s_lshr_b32 s{s_kh}, s{s_w}, 2")
    a(f"s_bfe_u32 s{s_mt}, s{s_w}, 0x10001")
    a(f"s_and_b32 s{s_nt}, s{s_w}, 1")
    a(f"v_lshlrev_b32 v{v_l16}, 4, v{v_lane}")
    t = v_t
    a(f"v_lshrrev_b32 v{t}, 3, v{v_lane}")
    a(f"v_and_b32 v{t+1}, 7, v{v_lane}")
    a(f"v_bfe_u32 v{t+2}, v{v_lane}, 4, 1")
    a(f"v_lshlrev_b32 v{t+3}, 2, v{t+2}")
    a(f"v_xor_b32 v{t+3}, v{t+3}, v{t+1}")
    a(f"v_mul_u32_u24 v{v_dw}, 896, v{t}")
    a(f"v_lshl_add_u32 v{v_dw}, v{t+3}, 4, v{v_dw}")
    a(f"s_lshl_b32 s{s_hb}, s{s_tb}, 1")
    a(f"s_add_u32 s{s_hb}, s{s_hb}, s{s_kh}")
    a(f"s_mul_i32 s{s_hb}, s{s_hb}, {NKS*1024}")
    a(f"s_and_b32 s{s_t0}, s{s_w}, 3")
    a(f"s_lshl_b32 s{s_t0}, s{s_t0}, 11")
    a(f"s_add_u32 s{s_hb}, s{s_hb}, s{s_t0}")
    a(f"s_add_u32 s{s_hb}, s{s_hb}, {HF}")
    a(f"s_lshl_b32 s{s_m0h}, s{s_w}, 11")
    a(f"s_add_u32 s{s_m0w}, s{s_m0h}, 16384")
    a(f"s_mul_i32 s{s_wb}, s{s_w}, {16*896}")
    a(f"s_lshl_b32 s{s_t0}, s{s_nb}, 7")
    a(f"s_add_u32 s{s_wb}, s{s_wb}, s{s_t0}")
    a(f"s_lshr_b32 s{s_wob}, s{s_w}, 1")
    a(f"s_mul_i32 s{s_wob}, s{s_wob}, 28")
    a(f"s_lshl_b32 s{s_t1}, s{s_nt}, 4")
    a(f"s_add_u32 s{s_wob}, s{s_wob}, s{s_t1}")
    a(f"s_mul_i32 s{s_wob}, s{s_wob}, 896")
    a(f"s_add_u32 s{s_wob}, s{s_wob}, s{s_t0}")
    a("s_waitcnt lgkmcnt(0)")
    srd(a, sWS, 34, 35, WS_BYTES)
    srd(a, sWd, 28, 29, WD_BYTES)
    srd(a, sWo, 20, 21, WO_BYTES)
    vm = VM()
    def dma(c):
        slot = (c % NSL) * CSLOT
        for jj in range(2):
            a(f"s_add_u32 m0, s{s_m0w}, {slot + 1024*jj}")
            if c < 14:
                a(f"s_add_u32 s{s_t1}, s{s_wb}, {(128*c + 8*jj)*896}")
                a(f"buffer_load_dwordx4 v{v_dw}, s[{sWd}:{sWd+3}], s{s_t1} offen lds")
            else:
                a(f"s_add_u32 s{s_t1}, s{s_wob}, {(112*(c-14) + 8*jj)*896}")
                a(f"buffer_load_dwordx4 v{v_dw}, s[{sWo}:{sWo+3}], s{s_t1} offen lds")
            vm.issue(f"c{c}")
        a(f"s_add_u32 m0, s{s_m0h}, {slot}")
        a(f"s_add_u32 s{s_t1}, s{s_hb}, {8*c*1024}")
        for jj in range(2):
            a(f"buffer_load_dwordx4 v{v_l16}, s[{sWS}:{sWS+3}], s{s_t1} offen offset:{1024*jj} lds")
            vm.issue(f"c{c}")
    for c in range(NSL - 1):
        dma(c)
    srd(a, sX, 16, 17, X_BYTES)
    srd(a, sO, 30, 31, X_BYTES)
    a(f"v_and_b32 v{t}, 0x13, v{v_lane}")
    a(f"v_bfe_u32 v{t+1}, v{v_lane}, 2, 1")
    a(f"v_lshl_or_b32 v{t}, v{t+1}, 3, v{t}")
    a(f"v_bfe_u32 v{t+1}, v{v_lane}, 3, 1")
    a(f"v_lshl_or_b32 v{t}, v{t+1}, 2, v{t}")
    a(f"v_mul_u32_u24 v{v_xo}, 896, v{t}")
    a(f"v_lshrrev_b32 v{t+1}, 5, v{v_lane}")
    a(f"v_lshl_add_u32 v{v_xo}, v{t+1}, 4, v{v_xo}")
    a(f"s_lshl_b32 s{s_t0}, s{s_tb}, 1")
    a(f"s_add_u32 s{s_t0}, s{s_t0}, s{s_mt}")
    a(f"s_mul_i32 s{s_t0}, s{s_t0}, {32*896}")
    a(f"s_lshl_b32 s{s_t1}, s{s_nb}, 7")
    a(f"s_add_u32 s{s_t0}, s{s_t0}, s{s_t1}")
    a(f"s_lshl_b32 s{s_t1}, s{s_nt}, 6")
    a(f"s_add_u32 s{s_t0}, s{s_t0}, s{s_t1}")
    a(f"s_lshl_b32 s{s_t1}, s{s_kh}, 5")
    a(f"s_add_u32 s70, s{s_t0}, s{s_t1}")
    a(f"buffer_load_dwordx4 v[{vXr}:{vXr+3}], v{v_xo}, s[{sX}:{sX+3}], s70 offen")
    vm.issue("x")
    a(f"s_lshl_b32 s{s_t0}, s{s_mt}, 13")
    a(f"s_lshl_b32 s{s_t1}, s{s_kh}, 12")
    a(f"s_add_u32 s{s_t0}, s{s_t0}, s{s_t1}")
    a(f"v_add_u32 v{v_ah}, s{s_t0}, v{v_l16}")
    a(f"v_bfe_u32 v{t}, v{v_lane}, 2, 2")
    a(f"v_and_b32 v{t+2}, 3, v{v_lane}")
    a(f"v_bfe_u32 v{t+3}, v{v_lane}, 4, 1")
    a(f"v_lshrrev_b32 v{t+4}, 1, v{t+2}")
    a(f"v_and_b32 v{t+5}, 1, v{t+2}")
    a(f"v_lshl_or_b32 v{t+4}, v{t+5}, 1, v{t+4}")
    a(f"v_lshl_add_u32 v{t+5}, v{t+1}, 3, v{t}")
    a(f"v_lshlrev_b32 v{t+5}, 7, v{t+5}")
    a(f"v_lshrrev_b32 v{t+6}, 1, v{t}")
    a(f"v_xor_b32 v{t+6}, s{s_nt}, v{t+6}")
    a(f"v_lshl_add_u32 v{t+5}, v{t+6}, 6, v{t+5}")
    a(f"v_lshl_add_u32 v{t+5}, v{t+3}, 5, v{t+5}")
    a(f"v_lshl_add_u32 v{t+5}, v{t+4}, 3, v{t+5}")
    a(f"s_lshl_b32 s{s_t0}, s{s_kh}, 13")
    a(f"s_add_u32 s{s_t0}, s{s_t0}, 16384")
    a(f"v_add_u32 v{v_aw}, s{s_t0}, v{t+5}")
    a(f"v_add_u32 v{v_ah2}, {2*CSLOT}, v{v_ah}")
    a(f"v_add_u32 v{v_aw2}, {2*CSLOT}, v{v_aw}")
    a(f"v_add_u32 v{v_ah4}, {4*CSLOT}, v{v_ah}")
    a(f"v_add_u32 v{v_aw4}, {4*CSLOT}, v{v_aw}")
    NC = 18
    for c in range(NC):
        a(f"s_waitcnt vmcnt({vm.wait_n(f'c{c}')})")
        a("s_barrier")
        if c + NSL - 1 < NC:
            dma(c + NSL - 1)
        sl = c % NSL
        ah = [v_ah, v_ah, v_ah2, v_ah2, v_ah4][sl]
        aw = [v_aw, v_aw, v_aw2, v_aw2, v_aw4][sl]
        so = (sl & 1) * CSLOT if sl < 4 else 0
        for i in range(4):
            f = vF + 8 * i
            a(f"ds_read_b128 v[{f}:{f+3}], v{ah} offset:{so + 1024*i}")
            a(f"ds_read_b64_tr_b16 v[{f+4}:{f+5}], v{aw} offset:{so + 2048*i}")
            a(f"ds_read_b64_tr_b16 v[{f+6}:{f+7}], v{aw} offset:{so + 2048*i + 512}")
        for i in range(4):
            f = vF + 8 * i
            a(f"s_waitcnt lgkmcnt({3*(3-i)})")
            cs = "0" if (c == 0 and i == 0) else f"v[{vAcc}:{vAcc+15}]"
            a(f"v_mfma_f32_32x32x16_bf16 v[{vAcc}:{vAcc+15}], v[{f+4}:{f+7}], v[{f}:{f+3}], {cs}")
    a("s_barrier")
    a(f"s_lshl_b32 s{s_t0}, s{s_w}, 11")
    a(f"v_lshlrev_b32 v{t}, 4, v{v_lane}")
    a(f"v_add_u32 v{t+1}, s{s_t0}, v{t}")
    a(f"v_xor_b32 v{t+2}, 8192, v{t+1}")
    a(f"s_cmp_eq_u32 s{s_kh}, 0")
    a("s_cbranch_scc1 L3_k0")
    a(f"ds_write_b128 v{t+1}, v[{vAcc}:{vAcc+3}]")
    a(f"ds_write_b128 v{t+1}, v[{vAcc+4}:{vAcc+7}] offset:1024")
    for i in range(8):
        a(f"v_mov_b32 v{vAcc+i}, v{vAcc+8+i}")
    a("s_branch L3_k1")
    a("L3_k0:")
    a(f"ds_write_b128 v{t+1}, v[{vAcc+8}:{vAcc+11}]")
    a(f"ds_write_b128 v{t+1}, v[{vAcc+12}:{vAcc+15}] offset:1024")
    a("L3_k1:")
    a("s_waitcnt lgkmcnt(0)")
    a("s_barrier")
    a(f"ds_read_b128 v[{vF}:{vF+3}], v{t+2}")
    a(f"ds_read_b128 v[{vF+4}:{vF+7}], v{t+2} offset:1024")
    for d in range(4):
        a(f"v_lshlrev_b32 v{vF+8+2*d}, 16, v{vXr+d}")
        a(f"v_and_b32 v{vF+9+2*d}, 0xffff0000, v{vXr+d}")
    for i in range(8):
        a(f"v_add_f32 v{vAcc+i}, v{vAcc+i}, v{vF+8+i}")
    a("s_waitcnt lgkmcnt(0)")
    for i in range(8):
        a(f"v_add_f32 v{vAcc+i}, v{vAcc+i}, v{vF+i}")
    for d in range(4):
        a(f"v_cvt_pk_bf16_f32 v{vXr+d}, v{vAcc+2*d}, v{vAcc+2*d+1}")
    a(f"buffer_store_dwordx4 v[{vXr}:{vXr+3}], v{v_xo}, s[{sO}:{sO+3}], s70 offen")
    a("L3_end:")
    a("s_endpgm")
    return a, 80


HEADER = """; Kernarg layout for this problem (80 bytes, ptrs only, base s[0:1]):
;   offset   8: d_in[1] A_wqkv  shape=(448, 1344) dtype=bfloat16
;   offset  72: d_ws      268435456 bytes workspace
"""

def build(which=(1, 2, 3)):
    ks = []
    out = HEADER
    if 1 in which:
        out += "; @launch kernel=k1_kernel grid=(256,1,1) block=(512,1,1) lds=163840\n"
    if 2 in which:
        out += "; @launch kernel=k2_kernel grid=(256,1,1) block=(512,1,1) lds=49152\n"
    if 3 in which:
        out += "; @launch kernel=k3_kernel grid=(256,1,1) block=(512,1,1) lds=163840\n"
    out += '.amdgcn_target "amdgcn-amd-amdhsa--gfx950"\n'
    descs = ""
    for idx, (nm, fn) in enumerate((("k1_kernel", gen_k1), ("k2_kernel", gen_k2), ("k3_kernel", gen_k3)), 1):
        if idx not in which:
            continue
        a, nv = fn(nm)
        out += a.text()
        descs += kernel_desc(nm, nv)
        print(nm, "instrs", a.nins, "nops", a.nnop, file=sys.stderr)
    return out + descs

if __name__ == "__main__":
    path = sys.argv[1] if len(sys.argv) > 1 else "parallel_sum__sliding_block__geglu_ffn__prompt.s"
    which = tuple(int(c) for c in sys.argv[2]) if len(sys.argv) > 2 else (1, 2, 3)
    open(path, "w").write(build(which))
```

```python
import sys, struct, math
sys.path.insert(0, "dev")
from asmlib import Asm, kernel_header, kernel_desc

def f2u(f):
    return struct.unpack("<I", struct.pack("<f", f))[0]

QF = 0
KF = 2 << 20
VF = 4 << 20
HF = 8 << 20
WS_BYTES = 268435456
NKS = 144

X_BYTES = 2048 * 896
WQKV_BYTES = 448 * 2688
WG_BYTES = 448 * 3584
WD_BYTES = 1792 * 896
WO_BYTES = 448 * 896

LOG2E = 1.4426950408889634
QSCALE = (28 ** -0.5) * LOG2E
GC1 = -2.0 * 0.7978845608028654 * LOG2E
GC2 = GC1 * 0.044715


class VM:
    def __init__(self):
        self.ops = []
    def issue(self, tag):
        self.ops.append(tag)
    def wait_n(self, tag):
        idx = max(i for i, t in enumerate(self.ops) if t == tag)
        return len(self.ops) - 1 - idx


STAMP = False
STAMP_OFF = 200 << 20
class Stamps:
    def __init__(self, a, base=72, kid=0):
        self.a = a; self.base = base; self.n = 0; self.kid = kid
    def rt(self):
        if not STAMP: return
        self.a(f"s_memrealtime s[{self.base+2*self.n}:{self.base+2*self.n+1}]"); self.n += 1
    def __call__(self):
        if not STAMP: return
        assert self.base + 2*self.n + 1 <= 101
        self.a(f"s_memtime s[{self.base+2*self.n}:{self.base+2*self.n+1}]"); self.n += 1
    def dump(self, sWS, s_w, vt):
        if not STAMP: return
        a = self.a
        a("s_waitcnt vmcnt(0) lgkmcnt(0)")
        self(); self.rt()
        a("s_waitcnt lgkmcnt(0)")
        a(f"s_lshl_b32 s3, s2, 3")
        a(f"s_add_u32 s3, s3, s{s_w}")
        a(f"s_lshl_b32 s3, s3, 6")
        a(f"s_add_u32 s3, s3, {STAMP_OFF + (self.kid << 20)}")
        a(f"v_mov_b32 v{vt+1}, 0")
        for i in range(self.n):
            a(f"v_mov_b32 v{vt}, s{self.base+2*i}")
            a(f"buffer_store_dword v{vt}, v{vt+1}, s[{sWS}:{sWS+3}], s3 offen offset:{4*i}")
            a("s_nop 1")

def srd(a, d, lo, hi, nbytes):
    a(f"s_mov_b32 s{d}, s{lo}")
    a(f"s_and_b32 s{d+1}, s{hi}, 0xffff")
    a(f"s_mov_b32 s{d+2}, {nbytes}")
    a(f"s_mov_b32 s{d+3}, 0x00020000")


SLOT = 28672
XBASE = 3 * SLOT

def gen_k1(name):
    a = Asm()
    a.raw(kernel_header(name))
    vX = 128
    ACC = [64, 96]
    vW = 48
    vT = 16
    v_lane, v_dq, v_dg, v_rdA, v_rdB, v_st, v_msk, v_c1 = 1, 2, 3, 4, 5, 6, 7, 8
    v_bqk, v_bv, v_bg0, v_bg1 = 9, 10, 11, 12
    v_stk, v_one = 13, 14
    v_xa = 240
    v_xw = 244
    v_xo = 246
    sX, sWq, sWg, sWS = 36, 40, 44, 48
    s_w, s_tb, s_a, s_b, s_g, s_mt = 52, 53, 54, 55, 56, 57
    s_qbase, s_gbase, s_m0b, s_t0, s_t1, s_scale, s_c2 = 58, 59, 60, 61, 62, 63, 64
    s_qkst, s_vst, s_hst, s_vbase = 65, 66, 67, 68

    a("s_cmp_ge_u32 s2, 256")
    a("s_cbranch_scc1 L1_end")
    st = Stamps(a, 72, 0)
    st.rt(); st()
    a("s_load_dwordx16 s[16:31], s[0:1], 0")
    a("s_load_dwordx4 s[32:35], s[0:1], 64")
    a(f"v_and_b32 v{v_lane}, 63, v0")
    a(f"v_lshrrev_b32 v{vT}, 6, v0")
    a(f"v_readfirstlane_b32 s{s_w}, v{vT}")
    a(f"s_and_b32 s{s_t0}, s2, 7")
    a(f"s_lshr_b32 s{s_t1}, s2, 3")
    a(f"s_and_b32 s{s_tb}, s{s_t0}, 1")
    a(f"s_lshl_b32 s{s_tb}, s{s_tb}, 3")
    a(f"s_and_b32 s{s_b}, s{s_t1}, 7")
    a(f"s_add_u32 s{s_tb}, s{s_tb}, s{s_b}")
    a(f"s_lshr_b32 s{s_a}, s{s_t0}, 1")
    a(f"s_lshr_b32 s{s_b}, s{s_t1}, 3")
    a(f"s_lshr_b32 s{s_g}, s{s_w}, 2")
    a(f"s_and_b32 s{s_mt}, s{s_w}, 3")
    a(f"v_lshrrev_b32 v{vT}, 3, v{v_lane}")
    a(f"v_and_b32 v{vT+1}, 7, v{v_lane}")
    a(f"v_mul_u32_u24 v{v_xo}, 896, v{vT}")
    a(f"v_lshl_add_u32 v{v_xo}, v{vT+1}, 4, v{v_xo}")
    a(f"s_lshl_b32 s{s_t0}, s{s_tb}, 7")
    a(f"s_lshl_b32 s{s_t1}, s{s_w}, 4")
    a(f"s_add_u32 s{s_t0}, s{s_t0}, s{s_t1}")
    a(f"s_mul_i32 s{s_t0}, s{s_t0}, 896")
    a(f"s_add_u32 s{s_t1}, s{s_t0}, {8*896}")
    a(f"v_bfe_u32 v{vT+2}, v{v_lane}, 4, 1")
    a(f"v_lshlrev_b32 v{vT+3}, 2, v{vT+2}")
    a(f"v_xor_b32 v{vT+3}, v{vT+3}, v{vT+1}")
    a(f"v_mul_u32_u24 v{v_dq}, 2688, v{vT}")
    a(f"v_lshl_add_u32 v{v_dq}, v{vT+3}, 4, v{v_dq}")
    a(f"v_lshlrev_b32 v{vT+3}, 1, v{vT+2}")
    a(f"v_xor_b32 v{vT+3}, v{vT+3}, v{vT+1}")
    a(f"s_lshl_b32 s{s_gbase}, s{s_g}, 2")
    a(f"v_xor_b32 v{vT+3}, s{s_gbase}, v{vT+3}")
    a(f"v_mul_u32_u24 v{v_dg}, 3584, v{vT}")
    a(f"v_lshl_add_u32 v{v_dg}, v{vT+3}, 4, v{v_dg}")
    a("s_waitcnt lgkmcnt(0)")
    srd(a, sX, 16, 17, X_BYTES)
    vm = VM()
    def raw(e, i):
        if i < 4:
            return ACC[0] + 16 * e + 4 * i
        return ACC[1] + 12 * e + 4 * (i - 4)
    for e in range(2):
        for i in range(7):
            r = raw(e, i)
            a(f"buffer_load_dwordx4 v[{r}:{r+3}], v{v_xo}, s[{sX}:{sX+3}], s{s_t0 if e == 0 else s_t1} offen offset:{128*i}")
            vm.issue(f"x{e}")
    srd(a, sWq, 18, 19, WQKV_BYTES)
    a(f"s_cmp_eq_u32 s{s_g}, 0")
    a(f"s_cselect_b32 s{sWg}, s24, s26")
    a(f"s_cselect_b32 s{sWg+1}, s25, s27")
    a(f"s_and_b32 s{sWg+1}, s{sWg+1}, 0xffff")
    a(f"s_mov_b32 s{sWg+2}, {WG_BYTES}")
    a(f"s_mov_b32 s{sWg+3}, 0x00020000")
    srd(a, sWS, 34, 35, WS_BYTES)
    a(f"s_mul_i32 s{s_qbase}, s{s_w}, {28*2688}")
    a(f"s_mul_i32 s{s_vbase}, s{s_a}, {56*4}")
    a(f"s_add_u32 s{s_vbase}, s{s_vbase}, s{s_qbase}")
    a(f"s_add_u32 s{s_vbase}, s{s_vbase}, {56*32}")
    a(f"s_lshl_b32 s{s_t0}, s{s_a}, 2")
    a(f"s_add_u32 s{s_t0}, s{s_t0}, s{s_b}")
    a(f"s_mul_i32 s{s_t1}, s{s_t0}, 112")
    a(f"s_add_u32 s{s_qbase}, s{s_qbase}, s{s_t1}")
    a(f"s_cmp_lt_u32 s{s_t0}, 8")
    a(f"s_cselect_b32 s{s_scale}, 0x{f2u(QSCALE):08x}, 1.0")
    a(f"s_lshl_b32 s{s_qkst}, s{s_t0}, 1")
    a(f"s_add_u32 s{s_qkst}, s{s_qkst}, s{s_g}")
    a(f"s_lshl_b32 s{s_qkst}, s{s_qkst}, 17")
    a(f"s_lshl_b32 s{s_t1}, s{s_tb}, 2")
    a(f"s_add_u32 s{s_t1}, s{s_t1}, s{s_mt}")
    a(f"s_mul_i32 s{s_hst}, s{s_t1}, {NKS*1024}")
    a(f"s_lshl_b32 s{s_t1}, s{s_t1}, 11")
    a(f"s_add_u32 s{s_qkst}, s{s_qkst}, s{s_t1}")
    a(f"s_lshl_b32 s{s_vst}, s{s_a}, 2")
    a(f"s_add_u32 s{s_vst}, s{s_vst}, s{s_g}")
    a(f"s_lshl_b32 s{s_vst}, s{s_vst}, 17")
    a(f"s_add_u32 s{s_vst}, s{s_vst}, s{s_t1}")
    a(f"s_add_u32 s{s_vst}, s{s_vst}, {VF}")
    a(f"s_mul_i32 s{s_gbase}, s{s_a}, 448")
    a(f"s_lshl_b32 s{s_t1}, s{s_b}, 7")
    a(f"s_add_u32 s{s_gbase}, s{s_gbase}, s{s_t1}")
    a(f"s_lshl_b32 s{s_t1}, s{s_gbase}, 6")
    a(f"s_add_u32 s{s_hst}, s{s_hst}, s{s_t1}")
    a(f"s_lshl_b32 s{s_t1}, s{s_g}, 11")
    a(f"s_add_u32 s{s_hst}, s{s_hst}, s{s_t1}")
    a(f"s_add_u32 s{s_hst}, s{s_hst}, {HF}")
    a(f"s_lshl_b32 s{s_gbase}, s{s_gbase}, 1")
    a(f"s_mul_i32 s{s_t1}, s{s_mt}, {28*3584}")
    a(f"s_add_u32 s{s_gbase}, s{s_gbase}, s{s_t1}")
    a(f"s_mul_i32 s{s_m0b}, s{s_w}, {28*128}")
    a(f"s_mov_b32 s{s_c2}, 0x{f2u(GC2):08x}")
    a(f"v_mov_b32 v{v_c1}, 0x{f2u(GC1):08x}")

    def dma(a, vm, chunk, slot, tag):
        kind, idx, part = chunk
        for jj in range(4):
            if kind in ("qk", "v"):
                base = s_qbase if kind == "qk" else s_vbase
                off = (224 * part + 8 * jj) * 2688 + (112 * idx if kind == "v" else 0)
                sr, vo = sWq, v_dq
            else:
                base = s_gbase
                off = (112 * part + 8 * jj) * 3584 + 128 * idx
                sr, vo = sWg, v_dg
            a(f"s_add_u32 m0, s{s_m0b}, {slot*SLOT + jj*1024}")
            a(f"s_add_u32 s{s_t1}, s{base}, {off}")
            if jj == 3:
                a("s_mov_b32 exec_hi, 0")
            a(f"buffer_load_dwordx4 v{vo}, s[{sr}:{sr+3}], s{s_t1} offen lds")
            if jj == 3:
                a("s_mov_b32 exec_hi, -1")
            vm.issue(tag)

    seq1 = [("qk", 0, 0), ("qk", 0, 1)] + [("gu", 0, p) for p in range(4)] + [("gu", 1, p) for p in range(4)]
    seq2 = [("qk", 0, 0), ("qk", 0, 1), ("v", 0, 0), ("v", 0, 1), ("v", 1, 0), ("v", 1, 1)] + [("gu", 0, p) for p in range(4)]
    dma(a, vm, seq1[0], 0, "c0")
    dma(a, vm, seq1[1], 1, "c1")
    a(f"s_cmp_eq_u32 s{s_b}, 3")
    a("s_cbranch_scc1 L1_pre2")
    import copy
    vm_a = copy.deepcopy(vm)
    dma(a, vm_a, seq1[2], 2, "c2")
    a("s_branch L1_pre_done")
    a("L1_pre2:")
    dma(a, vm, seq2[2], 2, "c2")
    a("L1_pre_done:")

    t = vT
    a(f"v_bfe_u32 v{t}, v{v_lane}, 2, 2")
    a(f"v_and_b32 v{t+1}, 3, v{v_lane}")
    a(f"v_bfe_u32 v{t+2}, v{v_lane}, 4, 1")
    a(f"v_lshrrev_b32 v{t+3}, 5, v{v_lane}")
    a(f"v_lshrrev_b32 v{t+4}, 1, v{t+1}")
    a(f"v_and_b32 v{t+5}, 1, v{t+1}")
    a(f"v_lshl_or_b32 v{t+4}, v{t+5}, 1, v{t+4}")
    a(f"v_lshl_add_u32 v{t+5}, v{t+3}, 3, v{t}")
    a(f"v_lshlrev_b32 v{t+5}, 7, v{t+5}")
    a(f"v_lshrrev_b32 v{t+6}, 1, v{t}")
    a(f"s_mul_i32 s{s_t0}, s{s_g}, 56")
    a(f"v_lshlrev_b32 v{t+7}, 5, v{t+2}")
    a(f"v_lshl_add_u32 v{t+7}, v{t+4}, 3, v{t+7}")
    a(f"v_add_u32 v{t+7}, s{s_t0}, v{t+7}")
    a(f"v_lshlrev_b32 v{t+8}, 6, v{t+6}")
    a(f"v_xor_b32 v{t+7}, v{t+7}, v{t+8}")
    a(f"v_add_u32 v{v_bqk}, v{t+7}, v{t+5}")
    a(f"v_lshlrev_b32 v{t+7}, 4, v{t+1}")
    a(f"v_lshl_add_u32 v{t+7}, v{t+2}, 3, v{t+7}")
    a(f"v_add_u32 v{t+7}, s{s_t0}, v{t+7}")
    a(f"v_xor_b32 v{t+7}, v{t+7}, v{t+8}")
    a(f"v_add_u32 v{v_bv}, v{t+7}, v{t+5}")
    a(f"v_lshl_or_b32 v{t+7}, v{t+2}, 1, v{t+6}")
    a(f"s_lshl_b32 s{s_t0}, s{s_g}, 1")
    a(f"v_xor_b32 v{t+7}, s{s_t0}, v{t+7}")
    a(f"v_mul_u32_u24 v{t+8}, 14336, v{t+2}")
    a(f"v_add_u32 v{t+8}, v{t+8}, v{t+5}")
    a(f"v_lshl_add_u32 v{t+8}, v{t+4}, 3, v{t+8}")
    a(f"v_lshl_add_u32 v{v_bg0}, v{t+7}, 5, v{t+8}")
    a(f"v_xor_b32 v{v_bg1}, 32, v{v_bg0}")
    a(f"v_lshlrev_b32 v{v_st}, 4, v{v_lane}")
    a(f"v_bfe_u32 v{t+7}, v{v_lane}, 3, 1")
    a(f"v_lshlrev_b32 v{t+7}, 4, v{t+7}")
    a(f"v_lshl_or_b32 v{t+7}, v{t+2}, 3, v{t+7}")
    a(f"v_and_b32 v{t+8}, 0x27, v{v_lane}")
    a(f"v_or_b32 v{t+7}, v{t+7}, v{t+8}")
    a(f"v_lshlrev_b32 v{v_stk}, 4, v{t+7}")
    a(f"s_cmp_eq_u32 s{s_scale}, 1.0")
    a("s_cselect_b64 vcc, -1, 0")
    a(f"v_cndmask_b32 v{v_stk}, v{v_st}, v{v_stk}, vcc")
    a(f"v_cmp_gt_u32 vcc, 32, v{v_lane}")
    a(f"v_cndmask_b32 v{v_msk}, 0, -1, vcc")
    a(f"v_lshrrev_b32 v{t}, 3, v{v_lane}")
    a(f"v_and_b32 v{t+1}, 7, v{v_lane}")
    a(f"s_lshl_b32 s{s_t0}, s{s_w}, 4")
    for e in range(2):
        a(f"v_add_u32 v{t+2}, s{s_t0}, v{t}")
        if e:
            a(f"v_add_u32 v{t+2}, 8, v{t+2}")
        a(f"v_bfe_u32 v{t+3}, v{t+2}, 1, 3")
        a(f"v_xor_b32 v{t+3}, v{t+3}, v{t+1}")
        a(f"v_lshlrev_b32 v{t+2}, 7, v{t+2}")
        a(f"v_lshl_add_u32 v{t+2}, v{t+3}, 4, v{t+2}")
        a(f"v_add_u32 v{v_xw+e}, {XBASE}, v{t+2}")
    a(f"v_and_b32 v{t}, 0x13, v{v_lane}")
    a(f"v_bfe_u32 v{t+1}, v{v_lane}, 2, 1")
    a(f"v_lshl_or_b32 v{t}, v{t+1}, 3, v{t}")
    a(f"v_bfe_u32 v{t+1}, v{v_lane}, 3, 1")
    a(f"v_lshl_or_b32 v{t}, v{t+1}, 2, v{t}")
    a(f"s_lshl_b32 s{s_t0}, s{s_mt}, 5")
    a(f"v_add_u32 v{t}, s{s_t0}, v{t}")
    a(f"v_bfe_u32 v{t+1}, v{t}, 1, 3")
    a(f"v_lshrrev_b32 v{t+2}, 5, v{v_lane}")
    a(f"v_xor_b32 v{t+1}, v{t+1}, v{t+2}")
    a(f"v_lshlrev_b32 v{t}, 7, v{t}")
    a(f"v_lshl_add_u32 v{t}, v{t+1}, 4, v{t}")
    a(f"v_add_u32 v{v_xa}, {XBASE}, v{t}")
    for s2 in range(1, 4):
        a(f"v_xor_b32 v{v_xa+s2}, {32*s2}, v{v_xa}")
    a(f"v_and_b32 v{t}, 31, v{v_lane}")
    a(f"v_cmp_eq_u32 s[70:71], 28, v{t}")
    a(f"v_mov_b32 v{v_one}, 0x3f803f80")

    F = vX
    for e in range(2):
        a(f"s_waitcnt vmcnt({vm.wait_n(f'x{e}')})")
        st()
        for i in range(7):
            for d in range(4):
                r = raw(e, i) + d
                f = F + 8 * i + 2 * d
                a(f"v_lshlrev_b32 v{f}, 16, v{r}")
                a(f"v_and_b32 v{f+1}, 0xffff0000, v{r}")
        a(f"v_pk_add_f32 v[{t}:{t+1}], v[{F}:{F+1}], v[{F+2}:{F+3}]")
        a(f"v_pk_add_f32 v[{t+2}:{t+3}], v[{F+4}:{F+5}], v[{F+6}:{F+7}]")
        for p in range(4, 28):
            tt = t + 2 * (p & 1)
            a(f"v_pk_add_f32 v[{tt}:{tt+1}], v[{tt}:{tt+1}], v[{F+2*p}:{F+2*p+1}]")
        a(f"v_pk_add_f32 v[{t}:{t+1}], v[{t}:{t+1}], v[{t+2}:{t+3}]")
        a(f"v_add_f32 v{t}, v{t}, v{t+1}")
        def red8(r):
            a(f"v_add_f32_dpp v{r}, v{r}, v{r} quad_perm:[1,0,3,2] row_mask:0xf bank_mask:0xf")
            a(f"v_add_f32_dpp v{r}, v{r}, v{r} quad_perm:[2,3,0,1] row_mask:0xf bank_mask:0xf")
            a(f"v_add_f32_dpp v{r}, v{r}, v{r} row_half_mirror row_mask:0xf bank_mask:0xf")
        red8(t)
        a(f"v_mul_f32 v{t+4}, 0x{f2u(-1.0/448):08x}, v{t}")
        for p in range(28):
            a(f"v_pk_add_f32 v[{F+2*p}:{F+2*p+1}], v[{F+2*p}:{F+2*p+1}], v[{t+4}:{t+5}] op_sel_hi:[1,0]")
        a(f"v_pk_mul_f32 v[{t}:{t+1}], v[{F}:{F+1}], v[{F}:{F+1}]")
        a(f"v_pk_mul_f32 v[{t+2}:{t+3}], v[{F+2}:{F+3}], v[{F+2}:{F+3}]")
        for p in range(2, 28):
            tt = t + 2 * (p & 1)
            a(f"v_pk_fma_f32 v[{tt}:{tt+1}], v[{F+2*p}:{F+2*p+1}], v[{F+2*p}:{F+2*p+1}], v[{tt}:{tt+1}]")
        a(f"v_pk_add_f32 v[{t}:{t+1}], v[{t}:{t+1}], v[{t+2}:{t+3}]")
        a(f"v_add_f32 v{t}, v{t}, v{t+1}")
        red8(t)
        a(f"v_mov_b32 v{t+1}, 0x{f2u(1e-5):08x}")
        a(f"v_fmac_f32 v{t+1}, 0x{f2u(1.0/448):08x}, v{t}")
        a(f"v_rsq_f32 v{t+4}, v{t+1}")
        for p in range(28):
            a(f"v_pk_mul_f32 v[{F+2*p}:{F+2*p+1}], v[{F+2*p}:{F+2*p+1}], v[{t+4}:{t+5}] op_sel_hi:[1,0]")
        for i in range(7):
            for d in range(4):
                r = raw(e, i) + d
                f = F + 8 * i + 2 * d
                a(f"v_cvt_pk_bf16_f32 v{r}, v{f}, v{f+1}")
        for i in range(4):
            r = raw(e, i)
            a(f"ds_write_b128 v{v_xw+e}, v[{r}:{r+3}] offset:{i*16384}")
    a("s_waitcnt lgkmcnt(0)")
    st()
    a("s_barrier")
    for i in range(4):
        for s2 in range(4):
            r = vX + 4 * (4 * i + s2)
            a(f"ds_read_b128 v[{r}:{r+3}], v{v_xa+s2} offset:{i*16384}")
    a("s_waitcnt lgkmcnt(0)")
    a("s_barrier")
    for e in range(2):
        for i in range(4, 7):
            r = raw(e, i)
            a(f"ds_write_b128 v{v_xw+e}, v[{r}:{r+3}] offset:{(i-4)*16384}")
    a("s_waitcnt lgkmcnt(0)")
    a("s_barrier")
    for i in range(4, 7):
        for s2 in range(4):
            r = vX + 4 * (4 * i + s2)
            a(f"ds_read_b128 v[{r}:{r+3}], v{v_xa+s2} offset:{(i-4)*16384}")
    a(f"s_waitcnt vmcnt({vm.wait_n('c0')}) lgkmcnt(0)")
    a("s_barrier")

    st()
    a(f"s_cmp_eq_u32 s{s_b}, 3")
    a("s_cbranch_scc1 L1_type2")

    def epi_qk(acc):
        E = []
        for r in range(16):
            E.append(f"v_mul_f32 v{acc+r}, s{s_scale}, v{acc+r}")
        for d in range(8):
            E.append(f"v_cvt_pk_bf16_f32 v{vT+d}, v{acc+2*d}, v{acc+2*d+1}")
        E.append(f"v_and_b32 v{vT+6}, v{vT+6}, v{v_msk}")
        E.append(f"v_and_b32 v{vT+7}, v{vT+7}, v{v_msk}")
        E.append(f"buffer_store_dwordx4 v[{vT}:{vT+3}], v{v_stk}, s[{sWS}:{sWS+3}], s{s_qkst} offen")
        E.append(f"buffer_store_dwordx4 v[{vT+4}:{vT+7}], v{v_stk}, s[{sWS}:{sWS+3}], s{s_qkst} offen offset:1024")
        return E

    def epi_v(acc, idx):
        E = []
        for d in range(8):
            E.append(f"v_cvt_pk_bf16_f32 v{vT+d}, v{acc+2*d}, v{acc+2*d+1}")
        for d in range(8):
            E.append(f"v_cndmask_b32 v{vT+d}, v{vT+d}, v{v_one}, s[70:71]")
        if idx:
            E.append(f"s_add_u32 s{s_vst}, s{s_vst}, {2 << 17}")
        E.append(f"buffer_store_dwordx4 v[{vT}:{vT+3}], v{v_st}, s[{sWS}:{sWS+3}], s{s_vst} offen")
        E.append(f"buffer_store_dwordx4 v[{vT+4}:{vT+7}], v{v_st}, s[{sWS}:{sWS+3}], s{s_vst} offen offset:1024")
        return E

    def epi_gu(acc, idx):
        E = []
        if idx:
            E.append(f"s_add_u32 s{s_hst}, s{s_hst}, 4096")
        for jj in range(2):
            A = acc + 16 * jj
            T = vT + 16 * jj
            for i in range(8):
                E.append(f"v_mul_f32 v{T+i}, v{A+i}, v{A+i}")
            for i in range(8):
                E.append(f"v_fma_f32 v{T+i}, v{T+i}, s{s_c2}, v{v_c1}")
            for i in range(8):
                E.append(f"v_mul_f32 v{T+i}, v{T+i}, v{A+i}")
            for i in range(8):
                E.append(f"v_exp_f32 v{T+i}, v{T+i}")
                E.append(f"v_mul_f32 v{A+i}, v{A+i}, v{A+8+i}")
            for i in range(8):
                E.append(f"v_add_f32 v{T+i}, 1.0, v{T+i}")
            for i in range(8):
                E.append(f"v_rcp_f32 v{T+i}, v{T+i}")
            for i in range(8):
                E.append(f"v_mul_f32 v{A+i}, v{A+i}, v{T+i}")
            for d in range(4):
                E.append(f"v_cvt_pk_bf16_f32 v{T+8+d}, v{A+2*d}, v{A+2*d+1}")
            E.append(f"buffer_store_dwordx4 v[{T+8}:{T+11}], v{v_st}, s[{sWS}:{sWS+3}], s{s_hst} offen offset:{1024*jj}")
        return E

    def main(seq, vm):
        st.n = st_n0
        dma(a, vm, seq[3], 3, "c3")
        M = []
        sp = -1
        prev = None
        for c, (kind, idx, part) in enumerate(seq):
            if (kind, idx) != prev:
                sp += 1
                prev = (kind, idx)
            if kind in ("qk", "v"):
                for s in range(14):
                    M.append(dict(c=c, kind=kind, idx=idx, ks=14 * part + s, sl=s, jj=0, first=(part == 0 and s == 0), sp=sp))
            else:
                for s in range(7):
                    for jj in range(2):
                        M.append(dict(c=c, kind=kind, idx=idx, ks=7 * part + s, sl=s, jj=jj, first=(part == 0 and s == 0), sp=sp))
        LA = 3
        cur_chunk_addr = [-1]
        def reads(m):
            mm = M[m]
            c = mm["c"]
            if cur_chunk_addr[0] != c:
                cur_chunk_addr[0] = c
                so = (c % 5) * SLOT
                if mm["kind"] == "qk":
                    a(f"v_add_u32 v{v_rdA}, {so}, v{v_bqk}")
                elif mm["kind"] == "v":
                    a(f"v_add_u32 v{v_rdA}, {so}, v{v_bv}")
                else:
                    a(f"v_add_u32 v{v_rdA}, {so}, v{v_bg0}")
                    a(f"v_add_u32 v{v_rdB}, {so}, v{v_bg1}")
            b = vW + 4 * (m % 4)
            ad = v_rdB if mm["jj"] else v_rdA
            o = mm["sl"] * 2048
            a(f"ds_read_b64_tr_b16 v[{b}:{b+1}], v{ad} offset:{o}")
            a(f"ds_read_b64_tr_b16 v[{b+2}:{b+3}], v{ad} offset:{o+512}")
        for m in range(LA):
            reads(m)
        pend = []
        rate = 0.0
        accum = 0.0
        n = len(M)
        for m in range(n):
            mm = M[m]
            c = mm["c"]
            if m % 14 == 8 and c + 1 < len(seq):
                a(f"s_waitcnt vmcnt({vm.wait_n(f'c{c+1}')})")
                a("s_barrier")
                if c + 4 < len(seq):
                    dma(a, vm, seq[c + 4], (c + 4) % 5, f"c{c+4}")
            if m % 28 == 0 and m > 0:
                st()
            if m + LA < n:
                reads(m + LA)
                a(f"s_waitcnt lgkmcnt({2*LA})")
            else:
                a(f"s_waitcnt lgkmcnt({2*(n-1-m)})")
            acc = ACC[mm["sp"] % 2] + 16 * mm["jj"]
            b = vW + 4 * (m % 4)
            x = vX + 4 * mm["ks"]
            csrc = "0" if mm["first"] else f"v[{acc}:{acc+15}]"
            if mm["kind"] == "v":
                a(f"v_mfma_f32_32x32x16_bf16 v[{acc}:{acc+15}], v[{x}:{x+3}], v[{b}:{b+3}], {csrc}")
            else:
                a(f"v_mfma_f32_32x32x16_bf16 v[{acc}:{acc+15}], v[{b}:{b+3}], v[{x}:{x+3}], {csrc}")
            last_of_sp = (m + 1 == n) or (M[m + 1]["sp"] != mm["sp"])
            if pend and not hold[0]:
                accum += rate
                while accum >= 1.0 and pend:
                    ins = pend.pop(0)
                    a(ins)
                    if ins.startswith("buffer_"):
                        vm.issue("st")
                    accum -= 1.0
            if hold[0]:
                hold[0] -= 1
            if last_of_sp:
                while pend:
                    ins = pend.pop(0)
                    a(ins)
                    if ins.startswith("buffer_"):
                        vm.issue("st")
                accb = ACC[mm["sp"] % 2]
                if mm["kind"] == "qk":
                    pend = epi_qk(accb)
                elif mm["kind"] == "v":
                    pend = epi_v(accb, mm["idx"])
                else:
                    pend = epi_gu(accb, mm["idx"])
                if m + 1 < n:
                    nsp = sum(1 for q in M if q["sp"] == mm["sp"] + 1)
                    rate = len(pend) / max(1, (nsp - 4))
                    rate = max(rate, 2.0)
                    accum = 0.0
                    hold[0] = 2
        st()
        for ins in pend:
            a(ins)
        st()
        st.dump(sWS, s_w, vT)
        a("s_endpgm")
    st_n0 = st.n

    hold = [0]
    main(seq1, copy.deepcopy(vm))
    a("L1_type2:")
    hold = [0]
    main(seq2, copy.deepcopy(vm))
    a("L1_end:")
    a("s_endpgm")
    return a, 248


def gen_k2(name):
    a = Asm()
    a.raw(kernel_header(name))
    sWS = 8
    s_w, s_h, s_qb, s_t0, s_t1, s_bd = 12, 13, 14, 15, 16, 17
    v_lane, v_l16, v_ka, v_va, v_d, v_m, v_t = 1, 2, 3, 4, 5, 6, 8
    vQ = 16
    vS = 32
    vKF = 104
    vP = 136
    vO = 172
    a("s_cmp_ge_u32 s2, 256")
    a("s_cbranch_scc1 L2_end")
    st = Stamps(a, 72, 1)
    st.rt(); st()
    a("s_load_dwordx2 s[4:5], s[0:1], 72")
    a(f"v_and_b32 v{v_lane}, 63, v0")
    a(f"v_lshrrev_b32 v{v_t}, 6, v0")
    a(f"v_readfirstlane_b32 s{s_w}, v{v_t}")
    a(f"s_and_b32 s{s_t0}, s2, 7")
    a(f"s_lshr_b32 s{s_t1}, s2, 3")
    a(f"s_lshl_b32 s{s_h}, s{s_t0}, 1")
    a(f"s_lshr_b32 s{s_t0}, s{s_t1}, 4")
    a(f"s_add_u32 s{s_h}, s{s_h}, s{s_t0}")
    a(f"s_and_b32 s{s_qb}, s{s_t1}, 15")
    a(f"v_lshlrev_b32 v{v_l16}, 4, v{v_lane}")
    a("s_waitcnt lgkmcnt(0)")
    srd(a, sWS, 4, 5, WS_BYTES)
    a(f"s_lshl_b32 s{s_t0}, s{s_h}, 17")
    a(f"s_lshl_b32 s{s_t1}, s{s_qb}, 13")
    a(f"s_add_u32 s{s_t0}, s{s_t0}, s{s_t1}")
    a(f"s_mul_i32 s{s_t1}, s{s_w}, 3072")
    a(f"s_mov_b32 m0, s{s_t1}")
    a(f"s_add_u32 s18, s{s_t0}, s{s_t1}")
    a(f"s_add_u32 s19, s18, {KF - 16384}")
    a(f"s_add_u32 s20, s18, {VF - 16384}")
    for j in range(3):
        a(f"buffer_load_dwordx4 v{v_l16}, s[{sWS}:{sWS+3}], s19 offen offset:{1024*j} lds")
    a(f"v_and_b32 v{v_t}, 15, v{v_lane}")
    a(f"v_lshrrev_b32 v{v_t+1}, 4, v{v_lane}")
    a(f"v_lshlrev_b32 v{v_t+2}, 9, v{v_t+1}")
    a(f"v_lshl_add_u32 v{v_t+2}, v{v_t}, 4, v{v_t+2}")
    a(f"s_lshr_b32 s21, s{s_w}, 1")
    a(f"s_lshl_b32 s21, s21, 11")
    a(f"s_and_b32 s22, s{s_w}, 1")
    a(f"s_lshl_b32 s22, s22, 8")
    a(f"s_add_u32 s21, s21, s22")
    a(f"s_add_u32 s23, s21, s{s_t0}")
    a(f"buffer_load_dwordx4 v[{vQ}:{vQ+3}], v{v_t+2}, s[{sWS}:{sWS+3}], s23 offen")
    a(f"s_add_u32 m0, s{s_t1}, 24576")
    for j in range(3):
        a(f"buffer_load_dwordx4 v{v_l16}, s[{sWS}:{sWS+3}], s20 offen offset:{1024*j} lds")
    a(f"s_lshr_b32 s21, s{s_w}, 1")
    a(f"s_lshl_b32 s21, s21, 11")
    a(f"v_add_u32 v{v_ka}, s21, v{v_t+2}")
    a(f"v_add_u32 v{v_va}, 24576, v{v_ka}")
    a(f"s_lshl_b32 s24, s{s_qb}, 2")
    a(f"s_lshr_b32 s25, s{s_w}, 1")
    a(f"s_add_u32 s{s_bd}, s24, s25")
    a(f"s_mul_i32 s24, s{s_bd}, {NKS*1024}")
    a(f"s_lshl_b32 s25, s{s_h}, 11")
    a(f"s_add_u32 s24, s24, s25")
    a(f"s_add_u32 s24, s24, s22")
    a(f"s_add_u32 s24, s24, {HF + 112*1024}")
    a(f"v_and_b32 v{v_d}, 3, v{v_lane}")
    a(f"v_bfe_u32 v{v_t+3}, v{v_lane}, 2, 1")
    a(f"v_lshl_or_b32 v{v_d}, v{v_t+3}, 3, v{v_d}")
    a(f"v_bfe_u32 v{v_t+3}, v{v_lane}, 3, 1")
    a(f"v_lshl_or_b32 v{v_d}, v{v_t+3}, 2, v{v_d}")
    a(f"s_lshr_b32 s25, s22, 4")
    a(f"v_add_u32 v{v_d}, s25, v{v_d}")
    a(f"v_lshlrev_b32 v{v_t+3}, 3, v{v_t+1}")
    a(f"v_sub_u32 v{v_d}, v{v_d}, v{v_t+3}")
    for i in range(8):
        a(f"v_cmp_le_i32 s[{32+2*i}:{33+2*i}], {i}, v{v_d}")
    a("s_waitcnt vmcnt(3)")
    a("s_barrier")
    st()
    def kread(i):
        b, t = divmod(i, 2)
        r = vKF + 4 * (i % 8)
        a(f"ds_read_b128 v[{r}:{r+3}], v{v_ka} offset:{b*2048 + t*256}")
    LA = 6
    for i in range(LA):
        kread(i)
    for i in range(18):
        if i + LA < 18:
            kread(i + LA)
            a(f"s_waitcnt lgkmcnt({LA})")
        else:
            a(f"s_waitcnt lgkmcnt({17-i})")
        r = vKF + 4 * (i % 8)
        a(f"v_mfma_f32_16x16x32_bf16 v[{vS+4*i}:{vS+4*i+3}], v[{r}:{r+3}], v[{vQ}:{vQ+3}], 0")
    a(f"s_cmp_ge_u32 s{s_bd}, 8")
    a("s_cbranch_scc1 L2_allvalid")
    for b in range(8):
        a(f"s_cmp_ge_u32 s{s_bd}, {8-b}")
        a("s_cbranch_scc1 L2_allvalid")
        for i in range(8):
            a(f"v_mov_b32 v{vS+8*b+i}, 0xf149f2ca")
    a("L2_allvalid:")
    a("s_waitcnt vmcnt(0)")
    a("s_barrier")
    st()
    for i in range(8):
        a(f"v_cndmask_b32 v{vS+i}, v{vS+i}, v{vS+64+i}, s[{32+2*i}:{33+2*i}]")
    a(f"v_max3_f32 v{v_m}, v{vS}, v{vS+1}, v{vS+2}")
    a(f"v_max3_f32 v{v_t}, v{vS+3}, v{vS+4}, v{vS+5}")
    k = 6
    tog = 0
    while k < 64:
        d = v_m if tog == 0 else v_t
        a(f"v_max3_f32 v{d}, v{d}, v{vS+k}, v{vS+k+1}")
        k += 2
        tog ^= 1
    a(f"v_max_f32 v{v_m}, v{v_m}, v{v_t}")
    a(f"v_mov_b32 v{v_t}, v{v_m}")
    a(f"v_permlane32_swap_b32 v{v_m}, v{v_t}")
    a(f"v_max_f32 v{v_m}, v{v_m}, v{v_t}")
    a(f"v_mov_b32 v{v_t}, v{v_m}")
    a(f"v_permlane16_swap_b32 v{v_m}, v{v_t}")
    a(f"v_max_f32 v{v_m}, v{v_m}, v{v_t}")
    def vread(i):
        b = order[i // 2]
        t = i % 2
        r = vKF + 4 * (i % 8)
        a(f"ds_read_b128 v[{r}:{r+3}], v{v_va} offset:{b*2048 + t*256}")
    order = [1, 2, 3, 4, 5, 6, 7, 0, 8]
    for i in range(LA):
        vread(i)
    def softmax_block(b):
        for i in range(8):
            a(f"v_sub_f32 v{vS+8*b+i}, v{vS+8*b+i}, v{v_m}")
        for i in range(8):
            a(f"v_exp_f32 v{vS+8*b+i}, v{vS+8*b+i}")
        if b == 0:
            for i in range(8):
                a(f"v_cndmask_b32 v{vS+64+i}, 0, v{vS+i}, s[{32+2*i}:{33+2*i}]")
            for i in range(8):
                a(f"v_cndmask_b32 v{vS+i}, v{vS+i}, 0, s[{32+2*i}:{33+2*i}]")
            for d in range(4):
                a(f"v_cvt_pk_bf16_f32 v{vP+32+d}, v{vS+64+2*d}, v{vS+64+2*d+1}")
        for d in range(4):
            a(f"v_cvt_pk_bf16_f32 v{vP+4*b+d}, v{vS+8*b+2*d}, v{vS+8*b+2*d+1}")
    softmax_block(order[0])
    for bi in range(9):
        b = order[bi]
        if bi + 1 < 8:
            softmax_block(order[bi + 1])
        for t in range(2):
            i = 2 * bi + t
            if i + LA < 18:
                vread(i + LA)
                a(f"s_waitcnt lgkmcnt({LA})")
            else:
                a(f"s_waitcnt lgkmcnt({17-i})")
            r = vKF + 4 * (i % 8)
            cs = "0" if bi == 0 else f"v[{vO+4*t}:{vO+4*t+3}]"
            a(f"v_mfma_f32_16x16x32_bf16 v[{vO+4*t}:{vO+4*t+3}], v[{r}:{r+3}], v[{vP+4*b}:{vP+4*b+3}], {cs}")
    st()
    a(f"v_mov_b32 v{v_t}, v{vO+4}")
    a(f"v_mov_b32 v{v_t+1}, v{vO+4}")
    a(f"v_permlane32_swap_b32 v{v_t}, v{v_t+1}")
    a(f"v_mov_b32 v{v_t}, v{v_t+1}")
    a(f"v_permlane16_swap_b32 v{v_t}, v{v_t+1}")
    a(f"v_rcp_f32 v{v_t+1}, v{v_t+1}")
    for i in range(8):
        a(f"v_mul_f32 v{vO+i}, v{vO+i}, v{v_t+1}")
    for d in range(4):
        a(f"v_cvt_pk_bf16_f32 v{vQ+d}, v{vO+2*d}, v{vO+2*d+1}")
    a(f"v_cmp_gt_u32 vcc, 48, v{v_lane}")
    a(f"v_cndmask_b32 v{vQ+2}, 0, v{vQ+2}, vcc")
    a(f"v_cndmask_b32 v{vQ+3}, 0, v{vQ+3}, vcc")
    a(f"buffer_store_dwordx4 v[{vQ}:{vQ+3}], v{v_t+2}, s[{sWS}:{sWS+3}], s24 offen")
    st.dump(sWS, s_w, v_t)
    a("L2_end:")
    a("s_endpgm")
    return a, 184


CSLOT = 32768

def gen_k3(name):
    a = Asm()
    a.raw(kernel_header(name))
    sWS, sWd, sWo, sX, sO = 36, 40, 44, 48, 52
    s_w, s_tb, s_nb, s_t0, s_t1, s_kh, s_mt, s_nt = 56, 57, 58, 59, 60, 61, 62, 63
    s_hb, s_wb, s_wob, s_m0h, s_m0w = 64, 65, 66, 67, 68
    v_lane, v_l16, v_dw, v_ah, v_aw, v_xo, v_t = 1, 2, 3, 4, 5, 6, 8
    v_ah2, v_aw2, v_ah4, v_aw4 = 16, 17, 18, 19
    vXr = 20
    vAcc = 32
    vF = 48
    NSL = 5
    a("s_cmp_ge_u32 s2, 256")
    a("s_cbranch_scc1 L3_end")
    a(f"s_lshr_b32 s{s_t1}, s2, 3")
    a(f"s_cmp_ge_u32 s{s_t1}, 28")
    a("s_cbranch_scc1 L3_end")
    st = Stamps(a, 72, 2)
    st.rt(); st()
    a("s_load_dwordx16 s[16:31], s[0:1], 0")
    a("s_load_dwordx4 s[32:35], s[0:1], 64")
    a(f"v_and_b32 v{v_lane}, 63, v0")
    a(f"v_lshrrev_b32 v{v_t}, 6, v0")
    a(f"v_readfirstlane_b32 s{s_w}, v{v_t}")
    a(f"s_and_b32 s{s_t0}, s2, 7")
    a(f"s_and_b32 s{s_tb}, s{s_t1}, 3")
    a(f"s_lshl_b32 s{s_t0}, s{s_t0}, 2")
    a(f"s_add_u32 s{s_tb}, s{s_tb}, s{s_t0}")
    a(f"s_lshr_b32 s{s_nb}, s{s_t1}, 2")
    a(f"s_lshr_b32 s{s_kh}, s{s_w}, 2")
    a(f"s_bfe_u32 s{s_mt}, s{s_w}, 0x10001")
    a(f"s_and_b32 s{s_nt}, s{s_w}, 1")
    a(f"v_lshlrev_b32 v{v_l16}, 4, v{v_lane}")
    t = v_t
    a(f"v_lshrrev_b32 v{t}, 3, v{v_lane}")
    a(f"v_and_b32 v{t+1}, 7, v{v_lane}")
    a(f"v_bfe_u32 v{t+2}, v{v_lane}, 4, 1")
    a(f"v_lshlrev_b32 v{t+3}, 2, v{t+2}")
    a(f"v_xor_b32 v{t+3}, v{t+3}, v{t+1}")
    a(f"v_mul_u32_u24 v{v_dw}, 896, v{t}")
    a(f"v_lshl_add_u32 v{v_dw}, v{t+3}, 4, v{v_dw}")
    a(f"s_lshl_b32 s{s_hb}, s{s_tb}, 1")
    a(f"s_add_u32 s{s_hb}, s{s_hb}, s{s_kh}")
    a(f"s_mul_i32 s{s_hb}, s{s_hb}, {NKS*1024}")
    a(f"s_and_b32 s{s_t0}, s{s_w}, 3")
    a(f"s_lshl_b32 s{s_t0}, s{s_t0}, 11")
    a(f"s_add_u32 s{s_hb}, s{s_hb}, s{s_t0}")
    a(f"s_add_u32 s{s_hb}, s{s_hb}, {HF}")
    a(f"s_lshl_b32 s{s_m0h}, s{s_w}, 11")
    a(f"s_add_u32 s{s_m0w}, s{s_m0h}, 16384")
    a(f"s_mul_i32 s{s_wb}, s{s_w}, {16*896}")
    a(f"s_lshl_b32 s{s_t0}, s{s_nb}, 7")
    a(f"s_add_u32 s{s_wb}, s{s_wb}, s{s_t0}")
    a(f"s_lshr_b32 s{s_wob}, s{s_w}, 1")
    a(f"s_mul_i32 s{s_wob}, s{s_wob}, 28")
    a(f"s_lshl_b32 s{s_t1}, s{s_nt}, 4")
    a(f"s_add_u32 s{s_wob}, s{s_wob}, s{s_t1}")
    a(f"s_mul_i32 s{s_wob}, s{s_wob}, 896")
    a(f"s_add_u32 s{s_wob}, s{s_wob}, s{s_t0}")
    a("s_waitcnt lgkmcnt(0)")
    srd(a, sWS, 34, 35, WS_BYTES)
    srd(a, sWd, 28, 29, WD_BYTES)
    srd(a, sWo, 20, 21, WO_BYTES)
    vm = VM()
    import os
    SKIP = os.environ.get("K3_SKIP", "")
    def dma(c):
        slot = (c % NSL) * CSLOT
        for jj in range(2):
            if "w" in SKIP: continue
            a(f"s_add_u32 m0, s{s_m0w}, {slot + 1024*jj}")
            if c < 14:
                a(f"s_add_u32 s{s_t1}, s{s_wb}, {(128*c + 8*jj)*896}")
                a(f"buffer_load_dwordx4 v{v_dw}, s[{sWd}:{sWd+3}], s{s_t1} offen lds")
            else:
                a(f"s_add_u32 s{s_t1}, s{s_wob}, {(112*(c-14) + 8*jj)*896}")
                a(f"buffer_load_dwordx4 v{v_dw}, s[{sWo}:{sWo+3}], s{s_t1} offen lds")
            vm.issue(f"c{c}")
        a(f"s_add_u32 m0, s{s_m0h}, {slot}")
        a(f"s_add_u32 s{s_t1}, s{s_hb}, {8*c*1024}")
        for jj in range(2):
            if "h" in SKIP: continue
            a(f"buffer_load_dwordx4 v{v_l16}, s[{sWS}:{sWS+3}], s{s_t1} offen offset:{1024*jj} lds")
            vm.issue(f"c{c}")
    for c in range(NSL - 1):
        dma(c)
    srd(a, sX, 16, 17, X_BYTES)
    srd(a, sO, 30, 31, X_BYTES)
    a(f"v_and_b32 v{t}, 0x13, v{v_lane}")
    a(f"v_bfe_u32 v{t+1}, v{v_lane}, 2, 1")
    a(f"v_lshl_or_b32 v{t}, v{t+1}, 3, v{t}")
    a(f"v_bfe_u32 v{t+1}, v{v_lane}, 3, 1")
    a(f"v_lshl_or_b32 v{t}, v{t+1}, 2, v{t}")
    a(f"v_mul_u32_u24 v{v_xo}, 896, v{t}")
    a(f"v_lshrrev_b32 v{t+1}, 5, v{v_lane}")
    a(f"v_lshl_add_u32 v{v_xo}, v{t+1}, 4, v{v_xo}")
    a(f"s_lshl_b32 s{s_t0}, s{s_tb}, 1")
    a(f"s_add_u32 s{s_t0}, s{s_t0}, s{s_mt}")
    a(f"s_mul_i32 s{s_t0}, s{s_t0}, {32*896}")
    a(f"s_lshl_b32 s{s_t1}, s{s_nb}, 7")
    a(f"s_add_u32 s{s_t0}, s{s_t0}, s{s_t1}")
    a(f"s_lshl_b32 s{s_t1}, s{s_nt}, 6")
    a(f"s_add_u32 s{s_t0}, s{s_t0}, s{s_t1}")
    a(f"s_lshl_b32 s{s_t1}, s{s_kh}, 5")
    a(f"s_add_u32 s70, s{s_t0}, s{s_t1}")
    a(f"buffer_load_dwordx4 v[{vXr}:{vXr+3}], v{v_xo}, s[{sX}:{sX+3}], s70 offen")
    vm.issue("x")
    a(f"s_lshl_b32 s{s_t0}, s{s_mt}, 13")
    a(f"s_lshl_b32 s{s_t1}, s{s_kh}, 12")
    a(f"s_add_u32 s{s_t0}, s{s_t0}, s{s_t1}")
    a(f"v_add_u32 v{v_ah}, s{s_t0}, v{v_l16}")
    a(f"v_bfe_u32 v{t}, v{v_lane}, 2, 2")
    a(f"v_and_b32 v{t+2}, 3, v{v_lane}")
    a(f"v_bfe_u32 v{t+3}, v{v_lane}, 4, 1")
    a(f"v_lshrrev_b32 v{t+4}, 1, v{t+2}")
    a(f"v_and_b32 v{t+5}, 1, v{t+2}")
    a(f"v_lshl_or_b32 v{t+4}, v{t+5}, 1, v{t+4}")
    a(f"v_lshl_add_u32 v{t+5}, v{t+1}, 3, v{t}")
    a(f"v_lshlrev_b32 v{t+5}, 7, v{t+5}")
    a(f"v_lshrrev_b32 v{t+6}, 1, v{t}")
    a(f"v_xor_b32 v{t+6}, s{s_nt}, v{t+6}")
    a(f"v_lshl_add_u32 v{t+5}, v{t+6}, 6, v{t+5}")
    a(f"v_lshl_add_u32 v{t+5}, v{t+3}, 5, v{t+5}")
    a(f"v_lshl_add_u32 v{t+5}, v{t+4}, 3, v{t+5}")
    a(f"s_lshl_b32 s{s_t0}, s{s_kh}, 13")
    a(f"s_add_u32 s{s_t0}, s{s_t0}, 16384")
    a(f"v_add_u32 v{v_aw}, s{s_t0}, v{t+5}")
    a(f"v_add_u32 v{v_ah2}, {2*CSLOT}, v{v_ah}")
    a(f"v_add_u32 v{v_aw2}, {2*CSLOT}, v{v_aw}")
    a(f"v_add_u32 v{v_ah4}, {4*CSLOT}, v{v_ah}")
    a(f"v_add_u32 v{v_aw4}, {4*CSLOT}, v{v_aw}")
    NC = 18
    for c in range(NC):
        a(f"s_waitcnt vmcnt({vm.wait_n(f'c{c}')})")
        a("s_barrier")
        if c in (0, 1, 2, 4, 6, 8, 10, 12, 14, 17):
            st()
        if c + NSL - 1 < NC:
            dma(c + NSL - 1)
        sl = c % NSL
        ah = [v_ah, v_ah, v_ah2, v_ah2, v_ah4][sl]
        aw = [v_aw, v_aw, v_aw2, v_aw2, v_aw4][sl]
        so = (sl & 1) * CSLOT if sl < 4 else 0
        for i in range(4):
            f = vF + 8 * i
            a(f"ds_read_b128 v[{f}:{f+3}], v{ah} offset:{so + 1024*i}")
            a(f"ds_read_b64_tr_b16 v[{f+4}:{f+5}], v{aw} offset:{so + 2048*i}")
            a(f"ds_read_b64_tr_b16 v[{f+6}:{f+7}], v{aw} offset:{so + 2048*i + 512}")
        for i in range(4):
            f = vF + 8 * i
            a(f"s_waitcnt lgkmcnt({3*(3-i)})")
            cs = "0" if (c == 0 and i == 0) else f"v[{vAcc}:{vAcc+15}]"
            a(f"v_mfma_f32_32x32x16_bf16 v[{vAcc}:{vAcc+15}], v[{f+4}:{f+7}], v[{f}:{f+3}], {cs}")
    a("s_barrier")
    a(f"s_lshl_b32 s{s_t0}, s{s_w}, 11")
    a(f"v_lshlrev_b32 v{t}, 4, v{v_lane}")
    a(f"v_add_u32 v{t+1}, s{s_t0}, v{t}")
    a(f"v_xor_b32 v{t+2}, 8192, v{t+1}")
    a(f"s_cmp_eq_u32 s{s_kh}, 0")
    a("s_cbranch_scc1 L3_k0")
    a(f"ds_write_b128 v{t+1}, v[{vAcc}:{vAcc+3}]")
    a(f"ds_write_b128 v{t+1}, v[{vAcc+4}:{vAcc+7}] offset:1024")
    for i in range(8):
        a(f"v_mov_b32 v{vAcc+i}, v{vAcc+8+i}")
    a("s_branch L3_k1")
    a("L3_k0:")
    a(f"ds_write_b128 v{t+1}, v[{vAcc+8}:{vAcc+11}]")
    a(f"ds_write_b128 v{t+1}, v[{vAcc+12}:{vAcc+15}] offset:1024")
    a("L3_k1:")
    a("s_waitcnt lgkmcnt(0)")
    a("s_barrier")
    a(f"ds_read_b128 v[{vF}:{vF+3}], v{t+2}")
    a(f"ds_read_b128 v[{vF+4}:{vF+7}], v{t+2} offset:1024")
    for d in range(4):
        a(f"v_lshlrev_b32 v{vF+8+2*d}, 16, v{vXr+d}")
        a(f"v_and_b32 v{vF+9+2*d}, 0xffff0000, v{vXr+d}")
    for i in range(8):
        a(f"v_add_f32 v{vAcc+i}, v{vAcc+i}, v{vF+8+i}")
    a("s_waitcnt lgkmcnt(0)")
    for i in range(8):
        a(f"v_add_f32 v{vAcc+i}, v{vAcc+i}, v{vF+i}")
    for d in range(4):
        a(f"v_cvt_pk_bf16_f32 v{vXr+d}, v{vAcc+2*d}, v{vAcc+2*d+1}")
    a(f"buffer_store_dwordx4 v[{vXr}:{vXr+3}], v{v_xo}, s[{sO}:{sO+3}], s70 offen")
    st.dump(sWS, s_w, v_t)
    a("L3_end:")
    a("s_endpgm")
    return a, 80


HEADER = """; Kernarg layout for this problem (80 bytes, ptrs only, base s[0:1]):
;   offset   8: d_in[1] A_wqkv  shape=(448, 1344) dtype=bfloat16
;   offset  72: d_ws      268435456 bytes workspace
"""

def build(which=(1, 2, 3)):
    ks = []
    out = HEADER
    if 1 in which:
        out += "; @launch kernel=k1_kernel grid=(256,1,1) block=(512,1,1) lds=163840\n"
    if 2 in which:
        out += "; @launch kernel=k2_kernel grid=(256,1,1) block=(512,1,1) lds=49152\n"
    if 3 in which:
        out += "; @launch kernel=k3_kernel grid=(256,1,1) block=(512,1,1) lds=163840\n"
    out += '.amdgcn_target "amdgcn-amd-amdhsa--gfx950"\n'
    descs = ""
    for idx, (nm, fn) in enumerate((("k1_kernel", gen_k1), ("k2_kernel", gen_k2), ("k3_kernel", gen_k3)), 1):
        if idx not in which:
            continue
        a, nv = fn(nm)
        out += a.text()
        descs += kernel_desc(nm, nv)
        print(nm, "instrs", a.nins, "nops", a.nnop, file=sys.stderr)
    return out + descs

if __name__ == "__main__":
    path = sys.argv[1] if len(sys.argv) > 1 else "parallel_sum__sliding_block__geglu_ffn__prompt.s"
    which = tuple(int(c) for c in sys.argv[2]) if len(sys.argv) > 2 else (1, 2, 3)
    if len(sys.argv) > 3 and sys.argv[3] == "stamp":
        STAMP = True
    open(path, "w").write(build(which))
```

```python
import sys, struct, math, copy, os
sys.path.insert(0, "dev")
from asmlib import Asm, kernel_header, kernel_desc

NAME = "parallel_sum__sliding_block__geglu_ffn__prompt_kernel"

def f2u(f):
    return struct.unpack("<I", struct.pack("<f", f))[0]

QF = 0
KF = 2 << 20
VF = 4 << 20
FL = 6 << 20
HF = 8 << 20
WS_BYTES = 268435456
NKS = 144
F_QK, F_V, F_H, F_O = 0, 1, 2, 3
OOB = 0x7FFFFF00

X_BYTES = 2048 * 896
WQKV_BYTES = 448 * 2688
WG_BYTES = 448 * 3584
WD_BYTES = 1792 * 896
WO_BYTES = 448 * 896

LOG2E = 1.4426950408889634
QSCALE = (28 ** -0.5) * LOG2E
GC1 = -2.0 * 0.7978845608028654 * LOG2E
GC2 = GC1 * 0.044715

STAMP = False
STAMP_OFF = 200 << 20
OPT = dict(map=1, NH=4, NW=6, rot=1, rotc=1, touch=5)

class VM:
    def __init__(self):
        self.ops = []
    def issue(self, tag):
        self.ops.append(tag)
    def wait_n(self, *tags):
        idx = max(i for i, t in enumerate(self.ops) if t in tags)
        n = len(self.ops) - 1 - idx
        return min(n, 63)
    def has(self, tag):
        return tag in self.ops


class Stamps:
    def __init__(self, a, base=80):
        self.a = a; self.base = base; self.n = 0
    def rt(self):
        if not STAMP: return
        self.a(f"s_memrealtime s[{self.base+2*self.n}:{self.base+2*self.n+1}]"); self.n += 1
    def __call__(self):
        if not STAMP: return
        assert self.base + 2*self.n + 1 <= 101, "too many stamps"
        self.a(f"s_memtime s[{self.base+2*self.n}:{self.base+2*self.n+1}]"); self.n += 1
    def spill(self, vreg, lane0):
        if not STAMP: return lane0
        a = self.a
        a("s_waitcnt lgkmcnt(0)")
        for i in range(self.n):
            a(f"v_writelane_b32 v{vreg}, s{self.base+2*i}, {lane0+i}")
        lane0 += self.n
        self.n = 0
        return lane0


def srd(a, d, lo, hi, nbytes):
    a(f"s_mov_b32 s{d}, s{lo}")
    a(f"s_and_b32 s{d+1}, s{hi}, 0xffff")
    a(f"s_mov_b32 s{d+2}, {nbytes}")
    a(f"s_mov_b32 s{d+3}, 0x00020000")

SLOT = 28672
XBASE = 3 * SLOT

def gen():
    a = Asm()
    a.raw(kernel_header(NAME))
    NH, NW = OPT["NH"], OPT["NW"]
    sX, sWq, sWg, sWS, sWd, sWo, sO, sDbg = 36, 40, 44, 48, 52, 56, 60, 64
    s_w, s_tb, s_cb, s_g, s_mt, s_rot = 68, 69, 70, 71, 72, 73
    s_t0, s_t1, s_t2 = 74, 75, 76
    s_n0 = 78
    s_q0, s_q3, s_v0, s_v3, s_g0, s_g3 = 4, 5, 6, 7, 8, 9
    s_m0, s_m3, s_scale, s_c2, s_qkst, s_vst = 10, 11, 12, 13, 14, 15
    s_hst = 77
    s_one = 16
    vX = 128
    ACC = [64, 96]
    vW = 48
    vT = 16
    v_lane, v_dq, v_dg, v_rdA, v_rdB, v_st, v_msk, v_c1 = 1, 2, 3, 4, 5, 6, 7, 8
    v_bqk, v_bv, v_bg0, v_bg1 = 9, 10, 11, 12
    v_stk, v_one = 13, 14
    v_stamp = 15
    v_xa = 240
    v_xw = 244
    v_xo = 246
    v_non = 248
    v_fa = 252
    v_pa = 253
    v_pf = 254
    t = vT

    st = Stamps(a)
    a("s_cmp_ge_u32 s2, 256")
    a("s_cbranch_scc1 L_end")
    st.rt(); st()
    a("s_load_dwordx16 s[16:31], s[0:1], 0")
    a("s_load_dwordx4 s[32:35], s[0:1], 64")
    a(f"s_memrealtime s[{s_n0}:{s_n0+1}]")
    a(f"v_and_b32 v{v_lane}, 63, v0")
    a(f"v_lshrrev_b32 v{t}, 6, v0")
    a(f"v_readfirstlane_b32 s{s_w}, v{t}")
    a(f"s_and_b32 s{s_t0}, s2, 7")
    a(f"s_lshr_b32 s{s_t1}, s2, 3")
    if OPT["map"] == 1:
        a(f"s_and_b32 s{s_tb}, s{s_t0}, 3")
        a(f"s_and_b32 s{s_t2}, s{s_t1}, 3")
        a(f"s_lshl2_add_u32 s{s_tb}, s{s_tb}, s{s_t2}")
        a(f"s_lshr_b32 s{s_cb}, s{s_t0}, 2")
        a(f"s_lshr_b32 s{s_t1}, s{s_t1}, 2")
        a(f"s_lshl3_add_u32 s{s_cb}, s{s_cb}, s{s_t1}")
        a(f"s_lshl1_add_u32 s{s_rot}, s{s_t2}, s{s_t1}")
    else:
        a(f"s_and_b32 s{s_tb}, s{s_t0}, 1")
        a(f"s_and_b32 s{s_t2}, s{s_t1}, 7")
        a(f"s_lshl3_add_u32 s{s_tb}, s{s_tb}, s{s_t2}")
        a(f"s_lshr_b32 s{s_cb}, s{s_t0}, 1")
        a(f"s_lshr_b32 s{s_t1}, s{s_t1}, 3")
        a(f"s_lshl2_add_u32 s{s_cb}, s{s_cb}, s{s_t1}")
        a(f"s_lshl1_add_u32 s{s_rot}, s{s_t1}, s{s_t2}")
    a(f"s_sub_u32 s{s_t0}, s{s_rot}, 7")
    a(f"s_min_u32 s{s_rot}, s{s_rot}, s{s_t0}")
    if not OPT["rot"]:
        a(f"s_mov_b32 s{s_rot}, 0")
    a(f"s_lshr_b32 s{s_g}, s{s_w}, 2")
    a(f"s_and_b32 s{s_mt}, s{s_w}, 3")
    a(f"v_lshrrev_b32 v{t}, 3, v{v_lane}")
    a(f"v_and_b32 v{t+1}, 7, v{v_lane}")
    a(f"v_mul_u32_u24 v{v_xo}, 896, v{t}")
    a(f"v_lshl_add_u32 v{v_xo}, v{t+1}, 4, v{v_xo}")
    a(f"s_lshl_b32 s{s_t0}, s{s_tb}, 7")
    a(f"s_lshl_b32 s{s_t1}, s{s_w}, 4")
    a(f"s_add_u32 s{s_t0}, s{s_t0}, s{s_t1}")
    a(f"s_mul_i32 s{s_t0}, s{s_t0}, 896")
    a(f"v_add_u32 v{v_xo}, s{s_t0}, v{v_xo}")
    a(f"v_add_u32 v{v_xo+1}, {8*896}, v{v_xo}")
    a(f"s_lshl_b32 s{s_t0}, s{s_rot}, 7")
    a(f"v_bfe_u32 v{t+2}, v{v_lane}, 4, 1")
    a(f"v_lshlrev_b32 v{t+3}, 2, v{t+2}")
    a(f"v_xor_b32 v{t+3}, v{t+3}, v{t+1}")
    a(f"v_mul_u32_u24 v{v_dq}, 2688, v{t}")
    a(f"v_lshl_add_u32 v{v_dq}, v{t+3}, 4, v{v_dq}")
    a(f"v_lshlrev_b32 v{t+3}, 1, v{t+2}")
    a(f"v_xor_b32 v{t+3}, v{t+3}, v{t+1}")
    a(f"s_lshl_b32 s{s_t1}, s{s_g}, 2")
    a(f"v_xor_b32 v{t+3}, s{s_t1}, v{t+3}")
    a(f"v_mul_u32_u24 v{v_dg}, 3584, v{t}")
    a(f"v_lshl_add_u32 v{v_dg}, v{t+3}, 4, v{v_dg}")
    a("s_waitcnt lgkmcnt(0)")
    srd(a, sX, 16, 17, X_BYTES)
    vm = VM()
    def raw(e, i):
        if i < 4:
            return ACC[0] + 16 * e + 4 * i
        return ACC[1] + 12 * e + 4 * (i - 4)
    for j in range(7):
        for e in range(2):
            r = raw(e, j)
            a(f"buffer_load_dwordx4 v[{r}:{r+3}], v{v_xo+e}, s[{sX}:{sX+3}], s{s_t0} offen")
            vm.issue(f"x{j}")
        if j < 6:
            a(f"s_add_u32 s{s_t0}, s{s_t0}, 128")
            a(f"s_sub_u32 s{s_t1}, s{s_t0}, 896")
            a(f"s_min_u32 s{s_t0}, s{s_t0}, s{s_t1}")
    srd(a, sWq, 18, 19, WQKV_BYTES)
    a(f"s_cmp_eq_u32 s{s_g}, 0")
    a(f"s_cselect_b32 s{sWg}, s24, s26")
    a(f"s_cselect_b32 s{sWg+1}, s25, s27")
    a(f"s_and_b32 s{sWg+1}, s{sWg+1}, 0xffff")
    a(f"s_mov_b32 s{sWg+2}, {WG_BYTES}")
    a(f"s_mov_b32 s{sWg+3}, 0x00020000")
    a(f"s_lshl_b32 s{s_t0}, s{s_rot}, 6")
    a(f"s_lshl3_add_u32 s{s_t1}, s{s_mt}, s{s_t0}")
    a(f"s_lshl2_add_u32 s{s_t2}, s{s_mt}, s{s_t0}")
    a(f"s_add_u32 s{s_t2}, s{s_t2}, 96")
    a(f"s_mul_i32 s{s_g0}, s{s_t1}, 3584")
    a(f"s_mul_i32 s{s_g3}, s{s_t2}, 3584")
    a(f"s_mul_i32 s{s_t0}, s{s_g}, 112")
    a(f"s_add_u32 s{s_t1}, s{s_t1}, s{s_t0}")
    a(f"s_add_u32 s{s_t2}, s{s_t2}, s{s_t0}")
    a(f"s_mul_i32 s{s_q0}, s{s_t1}, 2688")
    a(f"s_mul_i32 s{s_q3}, s{s_t2}, 2688")
    a(f"s_lshr_b32 s{s_t0}, s{s_cb}, 2")
    a(f"s_mul_i32 s{s_t1}, s{s_t0}, 224")
    a(f"s_add_u32 s{s_t1}, s{s_t1}, {56*32}")
    a(f"s_add_u32 s{s_v0}, s{s_q0}, s{s_t1}")
    a(f"s_add_u32 s{s_v3}, s{s_q3}, s{s_t1}")
    a(f"s_mul_i32 s{s_t1}, s{s_cb}, 112")
    a(f"s_add_u32 s{s_q0}, s{s_q0}, s{s_t1}")
    a(f"s_add_u32 s{s_q3}, s{s_q3}, s{s_t1}")
    a(f"s_mul_i32 s{s_t1}, s{s_t0}, 448")
    a(f"s_and_b32 s{s_t2}, s{s_cb}, 3")
    a(f"s_lshl_b32 s{s_t2}, s{s_t2}, 7")
    a(f"s_add_u32 s{s_t1}, s{s_t1}, s{s_t2}")
    a(f"s_lshl1_add_u32 s{s_g0}, s{s_t1}, s{s_g0}")
    a(f"s_lshl1_add_u32 s{s_g3}, s{s_t1}, s{s_g3}")
    a(f"s_lshl_b32 s{s_hst}, s{s_t1}, 6")
    a(f"s_mul_i32 s{s_m0}, s{s_g}, {112*128}")
    a(f"s_lshl_b32 s{s_t1}, s{s_mt}, 9")
    a(f"s_add_u32 s{s_m3}, s{s_m0}, s{s_t1}")
    a(f"s_add_u32 s{s_m3}, s{s_m3}, {96*128}")
    a(f"s_lshl1_add_u32 s{s_m0}, s{s_t1}, s{s_m0}")

    def dmaA(vm, chunk, slot, tag):
        kind, idx, part = chunk
        for jj in range(4):
            if kind in ("qk", "v"):
                b0, b3 = (s_q0, s_q3) if kind == "qk" else (s_v0, s_v3)
                stride, total = 2688, WQKV_BYTES
                off = 224 * part * stride + (112 * idx if kind == "v" else 0)
                sr, vo = sWq, v_dq
            else:
                b0, b3 = s_g0, s_g3
                stride, total = 3584, WG_BYTES
                off = 112 * part * stride + 128 * idx
                sr, vo = sWg, v_dg
            if jj < 3:
                a(f"s_add_u32 m0, s{s_m0}, {slot*SLOT + jj*4096}")
                a(f"s_add_u32 s{s_t1}, s{b0}, {off + 32*jj*stride}")
            else:
                a(f"s_add_u32 m0, s{s_m3}, {slot*SLOT}")
                a(f"s_add_u32 s{s_t1}, s{b3}, {off}")
            a(f"s_sub_u32 s{s_t2}, s{s_t1}, {total}")
            a(f"s_min_u32 s{s_t1}, s{s_t1}, s{s_t2}")
            if jj == 3:
                a("s_mov_b32 exec_hi, 0")
            a(f"buffer_load_dwordx4 v{vo}, s[{sr}:{sr+3}], s{s_t1} offen lds")
            if jj == 3:
                a("s_mov_b32 exec_hi, -1")
            vm.issue(tag)

    seq1 = [("qk", 0, 0), ("qk", 0, 1)] + [("gu", 0, p) for p in range(4)] + [("gu", 1, p) for p in range(4)]
    seq2 = [("qk", 0, 0), ("qk", 0, 1), ("v", 0, 0), ("v", 0, 1), ("v", 1, 0), ("v", 1, 1)] + [("gu", 0, p) for p in range(4)]
    dmaA(vm, seq1[0], 0, "c0")
    dmaA(vm, seq1[1], 1, "c1")
    a(f"s_and_b32 s{s_t0}, s{s_cb}, 3")
    a(f"s_cmp_eq_u32 s{s_t0}, 3")
    a("s_cbranch_scc1 L_pre2")
    dmaA(copy.deepcopy(vm), seq1[2], 2, "c2")
    a("s_branch L_pre_done")
    a("L_pre2:")
    dmaA(vm, seq2[2], 2, "c2")
    a("L_pre_done:")
    srd(a, sWS, 34, 35, WS_BYTES)
    srd(a, sDbg, 32, 33, 256)
    srd(a, sWd, 28, 29, WD_BYTES)
    srd(a, sWo, 20, 21, WO_BYTES)
    srd(a, sO, 30, 31, X_BYTES)
    a(f"v_mov_b32 v{v_non}, s{s_n0}")
    a(f"v_mov_b32 v{v_non+1}, s{s_n0+1}")
    a(f"v_mov_b32 v{v_non+2}, 0")
    a(f"v_mov_b32 v{v_non+3}, 0")
    a(f"v_cmp_eq_u32 vcc, 0, v0")
    a(f"v_mov_b32 v{t}, {OOB}")
    a(f"v_cndmask_b32 v{v_fa}, v{t}, 0, vcc")
    a(f"buffer_atomic_cmpswap_x2 v[{v_non}:{v_non+3}], v{v_fa}, s[{sDbg}:{sDbg+3}], 0 offen sc0 sc1")
    vm.issue("nonce")
    a(f"s_cmp_lt_u32 s{s_cb}, 8")
    a(f"s_cselect_b32 s{s_scale}, 0x{f2u(QSCALE):08x}, 1.0")
    a(f"s_lshl1_add_u32 s{s_qkst}, s{s_cb}, s{s_g}")
    a(f"s_lshl_b32 s{s_qkst}, s{s_qkst}, 17")
    a(f"s_lshl2_add_u32 s{s_t1}, s{s_tb}, s{s_mt}")
    a(f"s_mul_i32 s{s_t2}, s{s_t1}, {NKS*1024}")
    a(f"s_add_u32 s{s_hst}, s{s_hst}, s{s_t2}")
    a(f"s_lshl_b32 s{s_t2}, s{s_g}, 11")
    a(f"s_add_u32 s{s_hst}, s{s_hst}, s{s_t2}")
    a(f"s_add_u32 s{s_hst}, s{s_hst}, {HF}")
    a(f"s_lshl_b32 s{s_t1}, s{s_t1}, 11")
    a(f"s_add_u32 s{s_qkst}, s{s_qkst}, s{s_t1}")
    a(f"s_and_b32 s{s_vst}, s{s_cb}, 12")
    a(f"s_add_u32 s{s_vst}, s{s_vst}, s{s_g}")
    a(f"s_lshl_b32 s{s_vst}, s{s_vst}, 17")
    a(f"s_add_u32 s{s_vst}, s{s_vst}, s{s_t1}")
    a(f"s_add_u32 s{s_vst}, s{s_vst}, {VF}")
    a(f"s_mov_b32 s{s_c2}, 0x{f2u(GC2):08x}")
    a(f"v_mov_b32 v{v_c1}, 0x{f2u(GC1):08x}")

    a(f"v_bfe_u32 v{t}, v{v_lane}, 2, 2")
    a(f"v_and_b32 v{t+1}, 3, v{v_lane}")
    a(f"v_bfe_u32 v{t+2}, v{v_lane}, 4, 1")
    a(f"v_lshrrev_b32 v{t+3}, 5, v{v_lane}")
    a(f"v_lshrrev_b32 v{t+4}, 1, v{t+1}")
    a(f"v_and_b32 v{t+5}, 1, v{t+1}")
    a(f"v_lshl_or_b32 v{t+4}, v{t+5}, 1, v{t+4}")
    a(f"v_lshl_add_u32 v{t+5}, v{t+3}, 3, v{t}")
    a(f"v_lshlrev_b32 v{t+5}, 7, v{t+5}")
    a(f"v_lshrrev_b32 v{t+6}, 1, v{t}")
    a(f"s_mul_i32 s{s_t0}, s{s_g}, 56")
    a(f"v_lshlrev_b32 v{t+7}, 5, v{t+2}")
    a(f"v_lshl_add_u32 v{t+7}, v{t+4}, 3, v{t+7}")
    a(f"v_add_u32 v{t+7}, s{s_t0}, v{t+7}")
    a(f"v_lshlrev_b32 v{t+8}, 6, v{t+6}")
    a(f"v_xor_b32 v{t+7}, v{t+7}, v{t+8}")
    a(f"v_add_u32 v{v_bqk}, v{t+7}, v{t+5}")
    a(f"v_lshlrev_b32 v{t+7}, 4, v{t+1}")
    a(f"v_lshl_add_u32 v{t+7}, v{t+2}, 3, v{t+7}")
    a(f"v_add_u32 v{t+7}, s{s_t0}, v{t+7}")
    a(f"v_xor_b32 v{t+7}, v{t+7}, v{t+8}")
    a(f"v_add_u32 v{v_bv}, v{t+7}, v{t+5}")
    a(f"v_lshl_or_b32 v{t+7}, v{t+2}, 1, v{t+6}")
    a(f"s_lshl_b32 s{s_t0}, s{s_g}, 1")
    a(f"v_xor_b32 v{t+7}, s{s_t0}, v{t+7}")
    a(f"v_mul_u32_u24 v{t+8}, 14336, v{t+2}")
    a(f"v_add_u32 v{t+8}, v{t+8}, v{t+5}")
    a(f"v_lshl_add_u32 v{t+8}, v{t+4}, 3, v{t+8}")
    a(f"v_lshl_add_u32 v{v_bg0}, v{t+7}, 5, v{t+8}")
    a(f"v_xor_b32 v{v_bg1}, 32, v{v_bg0}")
    a(f"v_lshlrev_b32 v{v_st}, 4, v{v_lane}")
    a(f"v_bfe_u32 v{t+7}, v{v_lane}, 3, 1")
    a(f"v_lshlrev_b32 v{t+7}, 4, v{t+7}")
    a(f"v_lshl_or_b32 v{t+7}, v{t+2}, 3, v{t+7}")
    a(f"v_and_b32 v{t+8}, 0x27, v{v_lane}")
    a(f"v_or_b32 v{t+7}, v{t+7}, v{t+8}")
    a(f"v_lshlrev_b32 v{v_stk}, 4, v{t+7}")
    a(f"s_cmp_eq_u32 s{s_scale}, 1.0")
    a("s_cselect_b64 vcc, -1, 0")
    a(f"v_cndmask_b32 v{v_stk}, v{v_st}, v{v_stk}, vcc")
    a(f"v_cmp_gt_u32 vcc, 32, v{v_lane}")
    a(f"v_cndmask_b32 v{v_msk}, 0, -1, vcc")
    a(f"v_lshrrev_b32 v{t}, 3, v{v_lane}")
    a(f"v_and_b32 v{t+1}, 7, v{v_lane}")
    a(f"s_lshl_b32 s{s_t0}, s{s_w}, 4")
    for e in range(2):
        a(f"v_add_u32 v{t+2}, s{s_t0}, v{t}")
        if e:
            a(f"v_add_u32 v{t+2}, 8, v{t+2}")
        a(f"v_bfe_u32 v{t+3}, v{t+2}, 1, 3")
        a(f"v_xor_b32 v{t+3}, v{t+3}, v{t+1}")
        a(f"v_lshlrev_b32 v{t+2}, 7, v{t+2}")
        a(f"v_lshl_add_u32 v{t+2}, v{t+3}, 4, v{t+2}")
        a(f"v_add_u32 v{v_xw+e}, {XBASE}, v{t+2}")
    a(f"v_and_b32 v{t}, 0x13, v{v_lane}")
    a(f"v_bfe_u32 v{t+1}, v{v_lane}, 2, 1")
    a(f"v_lshl_or_b32 v{t}, v{t+1}, 3, v{t}")
    a(f"v_bfe_u32 v{t+1}, v{v_lane}, 3, 1")
    a(f"v_lshl_or_b32 v{t}, v{t+1}, 2, v{t}")
    a(f"s_lshl_b32 s{s_t0}, s{s_mt}, 5")
    a(f"v_add_u32 v{t}, s{s_t0}, v{t}")
    a(f"v_bfe_u32 v{t+1}, v{t}, 1, 3")
    a(f"v_lshrrev_b32 v{t+2}, 5, v{v_lane}")
    a(f"v_xor_b32 v{t+1}, v{t+1}, v{t+2}")
    a(f"v_lshlrev_b32 v{t}, 7, v{t}")
    a(f"v_lshl_add_u32 v{t}, v{t+1}, 4, v{t}")
    a(f"v_add_u32 v{v_xa}, {XBASE}, v{t}")
    for s2 in range(1, 4):
        a(f"v_xor_b32 v{v_xa+s2}, {32*s2}, v{v_xa}")
    a(f"v_and_b32 v{t}, 31, v{v_lane}")
    a(f"v_cmp_eq_u32 s[{s_one}:{s_one+1}], 28, v{t}")
    a(f"v_mov_b32 v{v_one}, 0x3f803f80")
    s_h, s_qb = 18, 19
    a(f"s_and_b32 s{s_t0}, s2, 7")
    a(f"s_lshr_b32 s{s_t1}, s2, 7")
    a(f"s_lshl1_add_u32 s{s_h}, s{s_t0}, s{s_t1}")
    a(f"s_bfe_u32 s{s_qb}, s2, 0x40003")
    a(f"s_lshr_b32 s{s_t0}, s{s_h}, 1")
    a(f"s_or_b32 s{s_t1}, s{s_h}, 3")
    a(f"s_add_u32 s{s_t2}, s{s_t0}, 8")
    a(f"s_add_u32 s{s_t1}, s{s_t1}, 256")
    a(f"v_mov_b32 v{t}, s{s_t2}")
    a(f"v_mov_b32 v{t+1}, s{s_t1}")
    a(f"v_cmp_lt_u32 vcc, 3, v0")
    a(f"v_cndmask_b32 v{t}, v{t}, v{t+1}, vcc")
    a(f"v_mov_b32 v{t+1}, s{s_t0}")
    a(f"v_cmp_eq_u32 vcc, 0, v0")
    a(f"v_cndmask_b32 v{t}, v{t}, v{t+1}, vcc")
    a(f"v_subrev_u32 v{t+1}, 1, v0")
    a(f"v_subrev_u32 v{t+2}, 4, v0")
    a(f"v_min_u32 v{t+1}, v{t+1}, v{t+2}")
    a(f"v_cndmask_b32 v{t+1}, v{t+1}, 0, vcc")
    a(f"v_sub_u32 v{t+1}, s{s_qb}, v{t+1}")
    a(f"v_max_i32 v{t+1}, 0, v{t+1}")
    a(f"v_lshl_add_u32 v{t}, v{t+1}, 4, v{t}")
    a(f"v_lshlrev_b32 v{t}, 3, v{t}")
    a(f"v_add_u32 v{t}, {FL}, v{t}")
    a(f"v_mov_b32 v{t+1}, {OOB}")
    a(f"v_cmp_gt_u32 vcc, 7, v0")
    a(f"v_cndmask_b32 v{v_pa}, v{t+1}, v{t}, vcc")
    s_fp = 20
    a(f"s_lshl4_add_u32 s{s_fp}, s{s_tb}, s{s_cb}")
    a(f"s_lshl_b32 s{s_fp}, s{s_fp}, 3")
    a(f"s_add_u32 s{s_fp}, s{s_fp}, {FL}")
    s_tch = 21
    sTch = 24
    a(f"s_lshr_b32 s{s_t0}, s2, 3")
    a(f"s_lshl3_add_u32 s{s_t0}, s{s_t0}, s{s_w}")
    a(f"s_sub_u32 s{s_t1}, s{s_t0}, 196")
    a(f"s_cmp_lt_u32 s{s_t0}, 196")
    a(f"s_cselect_b32 s{s_tch}, s{s_t0}, s{s_t1}")
    a(f"s_cselect_b32 s{sTch}, s{sWd}, s{sWo}")
    a(f"s_cselect_b32 s{sTch+1}, s{sWd+1}, s{sWo+1}")
    a(f"s_cselect_b32 s{sTch+2}, s{sWd+2}, s{sWo+2}")
    a(f"s_mov_b32 s{sTch+3}, 0x00020000")
    a(f"s_lshl_b32 s{s_tch}, s{s_tch}, 13")

    F = vX
    SUM = [t, t + 4]
    SQ = [t + 2, t + 6]
    for j in range(7):
        a(f"s_waitcnt vmcnt({vm.wait_n(f'x{j}')})")
        if j == 0 or j == 6:
            st()
        for e in range(2):
            for d in range(4):
                r = raw(e, j) + d
                f = F + 56 * e + 8 * j + 2 * d
                a(f"v_lshlrev_b32 v{f}, 16, v{r}")
                a(f"v_and_b32 v{f+1}, 0xffff0000, v{r}")
            for d in range(4):
                f = F + 56 * e + 8 * j + 2 * d
                if j == 0 and d == 0:
                    a(f"v_pk_mul_f32 v[{SQ[e]}:{SQ[e]+1}], v[{f}:{f+1}], v[{f}:{f+1}]")
                elif j == 0 and d == 1:
                    a(f"v_pk_add_f32 v[{SUM[e]}:{SUM[e]+1}], v[{f-2}:{f-1}], v[{f}:{f+1}]")
                    a(f"v_pk_fma_f32 v[{SQ[e]}:{SQ[e]+1}], v[{f}:{f+1}], v[{f}:{f+1}], v[{SQ[e]}:{SQ[e]+1}]")
                else:
                    a(f"v_pk_add_f32 v[{SUM[e]}:{SUM[e]+1}], v[{SUM[e]}:{SUM[e]+1}], v[{f}:{f+1}]")
                    a(f"v_pk_fma_f32 v[{SQ[e]}:{SQ[e]+1}], v[{f}:{f+1}], v[{f}:{f+1}], v[{SQ[e]}:{SQ[e]+1}]")
    R4 = [SUM[0], SQ[0], SUM[1], SQ[1]]
    for r in R4:
        a(f"v_add_f32 v{r}, v{r}, v{r+1}")
    for pat in ("quad_perm:[1,0,3,2]", "quad_perm:[2,3,0,1]", "row_half_mirror"):
        for r in R4:
            a(f"v_add_f32_dpp v{r}, v{r}, v{r} {pat} row_mask:0xf bank_mask:0xf")
    RS = [t + 8, t + 12]
    for e in range(2):
        a(f"v_mul_f32 v{SUM[e]}, 0x{f2u(1.0/448):08x}, v{SUM[e]}")
        a(f"v_mul_f32 v{SQ[e]}, 0x{f2u(1.0/448):08x}, v{SQ[e]}")
    for e in range(2):
        a(f"v_fma_f32 v{SQ[e]}, -v{SUM[e]}, v{SUM[e]}, v{SQ[e]}")
    for e in range(2):
        a(f"v_max_f32 v{SQ[e]}, 0, v{SQ[e]}")
    for e in range(2):
        a(f"v_add_f32 v{SQ[e]}, 0x{f2u(1e-5):08x}, v{SQ[e]}")
    for e in range(2):
        a(f"v_rsq_f32 v{RS[e]}, v{SQ[e]}")
    for e in range(2):
        a(f"v_mul_f32 v{RS[e]+2}, -v{SUM[e]}, v{RS[e]}")
    def norm(e, j):
        for d in range(4):
            f = F + 56 * e + 8 * j + 2 * d
            a(f"v_pk_fma_f32 v[{f}:{f+1}], v[{f}:{f+1}], v[{RS[e]}:{RS[e]+1}], v[{RS[e]+2}:{RS[e]+3}] op_sel_hi:[1,0,0]")
        for d in range(4):
            f = F + 56 * e + 8 * j + 2 * d
            a(f"v_cvt_pk_bf16_f32 v{raw(e, j)+d}, v{f}, v{f+1}")
    for j in range(4):
        for e in range(2):
            norm(e, j)
            r = raw(e, j)
            a(f"ds_write_b128 v{v_xw+e}, v[{r}:{r+3}] offset:{j*16384}")
    for j in range(4, 7):
        for e in range(2):
            norm(e, j)
    a("s_waitcnt lgkmcnt(0)")
    a("s_barrier")
    for i in range(4):
        for s2 in range(4):
            r = vX + 4 * (4 * i + s2)
            a(f"ds_read_b128 v[{r}:{r+3}], v{v_xa+s2} offset:{i*16384}")
    a("s_waitcnt lgkmcnt(0)")
    a("s_barrier")
    for e in range(2):
        for i in range(4, 7):
            r = raw(e, i)
            a(f"ds_write_b128 v{v_xw+e}, v[{r}:{r+3}] offset:{(i-4)*16384}")
    a("s_waitcnt lgkmcnt(0)")
    a("s_barrier")
    for i in range(4, 7):
        for s2 in range(4):
            r = vX + 4 * (4 * i + s2)
            a(f"ds_read_b128 v[{r}:{r+3}], v{v_xa+s2} offset:{(i-4)*16384}")
    a(f"s_waitcnt vmcnt({vm.wait_n('c0')}) lgkmcnt(0)")
    a("s_barrier")
    st()
    a(f"s_and_b32 s{s_t0}, s{s_cb}, 3")
    a(f"s_cmp_eq_u32 s{s_t0}, 3")
    a("s_cbranch_scc1 L_type2")

    SC = "sc1"
    def epi_qk(acc):
        E = []
        for r in range(16):
            E.append(f"v_mul_f32 v{acc+r}, s{s_scale}, v{acc+r}")
        for d in range(8):
            E.append(f"v_cvt_pk_bf16_f32 v{vT+d}, v{acc+2*d}, v{acc+2*d+1}")
        E.append(f"v_and_b32 v{vT+6}, v{vT+6}, v{v_msk}")
        E.append(f"v_and_b32 v{vT+7}, v{vT+7}, v{v_msk}")
        E.append(f"buffer_store_dwordx4 v[{vT}:{vT+3}], v{v_stk}, s[{sWS}:{sWS+3}], s{s_qkst} offen {SC}")
        E.append(f"buffer_store_dwordx4 v[{vT+4}:{vT+7}], v{v_stk}, s[{sWS}:{sWS+3}], s{s_qkst} offen offset:1024 {SC}")
        return E

    def epi_v(acc, idx):
        E = []
        for d in range(8):
            E.append(f"v_cvt_pk_bf16_f32 v{vT+d}, v{acc+2*d}, v{acc+2*d+1}")
        for d in range(8):
            E.append(f"v_cndmask_b32 v{vT+d}, v{vT+d}, v{v_one}, s[{s_one}:{s_one+1}]")
        if idx:
            E.append(f"s_add_u32 s{s_vst}, s{s_vst}, {2 << 17}")
        E.append(f"buffer_store_dwordx4 v[{vT}:{vT+3}], v{v_st}, s[{sWS}:{sWS+3}], s{s_vst} offen {SC}")
        E.append(f"buffer_store_dwordx4 v[{vT+4}:{vT+7}], v{v_st}, s[{sWS}:{sWS+3}], s{s_vst} offen offset:1024 {SC}")
        return E

    def epi_gu(acc):
        E = []
        for jj in range(2):
            A = acc + 16 * jj
            T = vT + 16 * jj
            for i in range(8):
                E.append(f"v_mul_f32 v{T+i}, v{A+i}, v{A+i}")
            for i in range(8):
                E.append(f"v_fma_f32 v{T+i}, v{T+i}, s{s_c2}, v{v_c1}")
            for i in range(8):
                E.append(f"v_mul_f32 v{T+i}, v{T+i}, v{A+i}")
            for i in range(8):
                E.append(f"v_exp_f32 v{T+i}, v{T+i}")
                E.append(f"v_mul_f32 v{A+i}, v{A+i}, v{A+8+i}")
            for i in range(8):
                E.append(f"v_add_f32 v{T+i}, 1.0, v{T+i}")
            for i in range(8):
                E.append(f"v_rcp_f32 v{T+i}, v{T+i}")
            for i in range(8):
                E.append(f"v_mul_f32 v{A+i}, v{A+i}, v{T+i}")
            for d in range(4):
                E.append(f"v_cvt_pk_bf16_f32 v{T+8+d}, v{A+2*d}, v{A+2*d+1}")
            E.append(f"buffer_store_dwordx4 v[{T+8}:{T+11}], v{v_st}, s[{sWS}:{sWS+3}], s{s_hst} offen offset:{1024*jj} {SC}")
        return E

    def publish(vm, kind, s_base):
        a(f"s_add_u32 s{s_t1}, s{s_base}, {kind*2048}")
        a(f"buffer_store_dwordx2 v[{v_non}:{v_non+1}], v{v_fa}, s[{sWS}:{sWS+3}], s{s_t1} offen sc1")
        vm.issue("flag")

    st_n0 = st.n
    def main(seq, vm, accoff):
        st.n = st_n0
        dmaA(vm, seq[3], 3, "c3")
        M = []
        sp = -1
        prev = None
        for c, (kind, idx, part) in enumerate(seq):
            if (kind, idx) != prev:
                sp += 1
                prev = (kind, idx)
            if kind in ("qk", "v"):
                for s in range(14):
                    M.append(dict(c=c, kind=kind, idx=idx, ks=14 * part + s, sl=s, jj=0, first=(part == 0 and s == 0), sp=sp))
            else:
                for s in range(7):
                    for jj in range(2):
                        M.append(dict(c=c, kind=kind, idx=idx, ks=7 * part + s, sl=s, jj=jj, first=(part == 0 and s == 0), sp=sp))
        LA = 3
        cur = [-1]
        def reads(m):
            mm = M[m]
            c = mm["c"]
            if cur[0] != c:
                cur[0] = c
                so = (c % 5) * SLOT
                if mm["kind"] == "qk":
                    a(f"v_add_u32 v{v_rdA}, {so}, v{v_bqk}")
                elif mm["kind"] == "v":
                    a(f"v_add_u32 v{v_rdA}, {so}, v{v_bv}")
                else:
                    a(f"v_add_u32 v{v_rdA}, {so}, v{v_bg0}")
                    a(f"v_add_u32 v{v_rdB}, {so}, v{v_bg1}")
            b = vW + 4 * (m % 4)
            ad = v_rdB if mm["jj"] else v_rdA
            o = mm["sl"] * 2048
            a(f"ds_read_b64_tr_b16 v[{b}:{b+1}], v{ad} offset:{o}")
            a(f"ds_read_b64_tr_b16 v[{b+2}:{b+3}], v{ad} offset:{o+512}")
        for m in range(LA):
            reads(m)
        pend = []
        pend_tag = "st"
        rate = 0.0
        accum = 0.0
        hold = 0
        n = len(M)
        pub = {4: (F_QK, "st_qk0")}
        if seq[2][0] == "v":
            pub[8] = (F_V, "st_v1")
        def emit_pend():
            ins = pend.pop(0)
            a(ins)
            if ins.startswith("buffer_"):
                vm.issue(pend_tag)
        for m in range(n):
            mm = M[m]
            c = mm["c"]
            if m % 14 == 8 and c + 1 < len(seq):
                tags = [f"c{c+1}"]
                if c in pub:
                    assert vm.has(pub[c][1])
                    tags.append(pub[c][1])
                a(f"s_waitcnt vmcnt({vm.wait_n(*tags)})")
                a("s_barrier")
                if c in pub:
                    publish(vm, pub[c][0], s_fp)
                if c + 4 < len(seq):
                    dmaA(vm, seq[c + 4], (c + 4) % 5, f"c{c+4}")
                if c == 2:
                    a(f"v_readfirstlane_b32 s{s_t1}, v{v_non}")
                    a(f"v_readfirstlane_b32 s{s_t2}, v{v_non+1}")
                    a(f"s_or_b32 s{s_t0}, s{s_t1}, s{s_t2}")
                    a(f"s_cselect_b32 s{s_n0}, s{s_t1}, s{s_n0}")
                    a(f"s_cselect_b32 s{s_n0+1}, s{s_t2}, s{s_n0+1}")
                    a(f"v_mov_b32 v{v_non}, s{s_n0}")
                    a(f"v_mov_b32 v{v_non+1}, s{s_n0+1}")
                if c == OPT["touch"]:
                    a(f"v_lshlrev_b32 v{v_non+2}, 7, v{v_lane}")
                    a(f"buffer_load_dword v{v_non+3}, v{v_non+2}, s[{sTch}:{sTch+3}], s{s_tch} offen")
                    vm.issue("touch")
            if m == n - 8:
                a(f"buffer_load_dwordx2 v[{v_pf}:{v_pf+1}], v{v_pa}, s[{sWS}:{sWS+3}], 0 offen sc1")
                vm.issue("poll")
            if m % 56 == 0 and m > 0:
                st()
            if m + LA < n:
                reads(m + LA)
                a(f"s_waitcnt lgkmcnt({2*LA})")
            else:
                a(f"s_waitcnt lgkmcnt({2*(n-1-m)})")
            accb = ACC[(mm["sp"] + accoff) % 2]
            acc = accb + 16 * mm["jj"]
            b = vW + 4 * (m % 4)
            x = vX + 4 * mm["ks"]
            csrc = "0" if mm["first"] else f"v[{acc}:{acc+15}]"
            if mm["kind"] == "v":
                a(f"v_mfma_f32_32x32x16_bf16 v[{acc}:{acc+15}], v[{x}:{x+3}], v[{b}:{b+3}], {csrc}")
            else:
                a(f"v_mfma_f32_32x32x16_bf16 v[{acc}:{acc+15}], v[{b}:{b+3}], v[{x}:{x+3}], {csrc}")
            last_of_sp = (m + 1 == n) or (M[m + 1]["sp"] != mm["sp"])
            if pend and not hold:
                accum += rate
                while accum >= 1.0 and pend:
                    emit_pend()
                    accum -= 1.0
            if hold:
                hold -= 1
            if last_of_sp:
                while pend:
                    emit_pend()
                if m + 1 < n:
                    if mm["kind"] == "qk":
                        pend = epi_qk(accb)
                    elif mm["kind"] == "v":
                        pend = epi_v(accb, mm["idx"])
                    else:
                        pend = epi_gu(accb) + [f"s_add_u32 s{s_hst}, s{s_hst}, 4096"]
                    pend_tag = f"st_{mm['kind']}{mm['idx']}"
                    nsp = sum(1 for q in M if q["sp"] == mm["sp"] + 1)
                    rate = max(len(pend) / max(1, (nsp - 4)), 3.0)
                    accum = 0.0
                    hold = 2
                else:
                    assert accb == ACC[1]

    main(seq1, copy.deepcopy(vm), 1)
    a("s_branch L_postA")
    a("L_type2:")
    main(seq2, copy.deepcopy(vm), 0)
    a("L_postA:")
    st()

    spin_id = [0]
    def wait_flags(nlanes):
        i = spin_id[0]; spin_id[0] += 1
        a(f"s_cmp_lg_u32 s{s_w}, 0")
        a(f"s_cbranch_scc1 L_wf_done{i}")
        a(f"s_mov_b32 s{s_t2}, 0")
        a(f"L_wf{i}:")
        a("s_waitcnt vmcnt(0)")
        a(f"v_cmp_eq_u64 vcc, v[{v_pf}:{v_pf+1}], v[{v_non}:{v_non+1}]")
        a(f"s_and_b32 s{s_t1}, vcc_lo, {(1 << nlanes) - 1}")
        a(f"s_cmp_eq_u32 s{s_t1}, {(1 << nlanes) - 1}")
        a(f"s_cbranch_scc1 L_wf_done{i}")
        a(f"s_add_u32 s{s_t2}, s{s_t2}, 1")
        a(f"s_cmp_gt_u32 s{s_t2}, 200000")
        a(f"s_cbranch_scc1 L_wf_done{i}")
        a("s_sleep 1")
        a(f"buffer_load_dwordx2 v[{v_pf}:{v_pf+1}], v{v_pa}, s[{sWS}:{sWS+3}], 0 offen sc1")
        a(f"s_branch L_wf{i}")
        a(f"L_wf_done{i}:")

    vm = VM()
    vQ = 128
    vS = 132
    vKF = 204
    vP = 64
    vO = 100
    v_qa, v_ka, v_va, v_d, v_m, v_u = 2, 3, 4, 5, 7, 240
    s_kv, s_par, s_bd, s_ost = 4, 5, 6, 7
    a(f"s_lshl_b32 s{s_kv}, s{s_h}, 17")
    a(f"s_lshl_b32 s{s_t1}, s{s_qb}, 13")
    a(f"s_add_u32 s{s_kv}, s{s_kv}, s{s_t1}")
    a(f"v_and_b32 v{v_u}, 15, v{v_lane}")
    a(f"v_lshrrev_b32 v{v_u+1}, 4, v{v_lane}")
    a(f"v_lshlrev_b32 v{v_qa}, 9, v{v_u+1}")
    a(f"v_lshl_add_u32 v{v_qa}, v{v_u}, 4, v{v_qa}")
    a(f"s_and_b32 s{s_par}, s{s_w}, 1")
    a(f"s_lshl_b32 s{s_par}, s{s_par}, 8")
    wait_flags(7)
    a("s_barrier")
    st()
    a(f"s_mul_i32 s{s_t0}, s{s_w}, 3072")
    a(f"s_mov_b32 m0, s{s_t0}")
    a(f"s_add_u32 s{s_t1}, s{s_kv}, s{s_t0}")
    a(f"s_add_u32 s{s_t2}, s{s_t1}, {KF - 16384}")
    for j in range(3):
        a(f"buffer_load_dwordx4 v{v_st}, s[{sWS}:{sWS+3}], s{s_t2} offen offset:{1024*j} sc1 lds")
        vm.issue("k")
    a(f"s_lshr_b32 s{s_bd}, s{s_w}, 1")
    a(f"s_lshl_b32 s{s_t2}, s{s_bd}, 11")
    a(f"v_add_u32 v{v_ka}, s{s_t2}, v{v_qa}")
    a(f"v_add_u32 v{v_va}, 24576, v{v_ka}")
    a(f"s_add_u32 s{s_t2}, s{s_t2}, s{s_par}")
    a(f"s_add_u32 s{s_t2}, s{s_t2}, s{s_kv}")
    a(f"buffer_load_dwordx4 v[{vQ}:{vQ+3}], v{v_qa}, s[{sWS}:{sWS+3}], s{s_t2} offen sc1")
    vm.issue("k")
    a(f"s_add_u32 m0, s{s_t0}, 24576")
    a(f"s_add_u32 s{s_t2}, s{s_t1}, {VF - 16384}")
    for j in range(3):
        a(f"buffer_load_dwordx4 v{v_st}, s[{sWS}:{sWS+3}], s{s_t2} offen offset:{1024*j} sc1 lds")
        vm.issue("v")
    for ins in epi_gu(ACC[1]):
        a(ins)
        if ins.startswith("buffer_"):
            vm.issue("st_h")
    st()
    s_tb64, s_nb, s_kh, s_cmt, s_nt = 8, 9, 10, 11, 12
    s_hb, s_hr, s_wb, s_wob, s_m0h, s_m0w, s_xo = 13, 14, 15, 21, 22, 23, 77
    v_dw = 9
    a(f"s_and_b32 s{s_t0}, s2, 7")
    a(f"s_bfe_u32 s{s_t1}, s2, 0x20003")
    a(f"s_lshl2_add_u32 s{s_tb64}, s{s_t0}, s{s_t1}")
    a(f"s_lshr_b32 s{s_nb}, s2, 5")
    a(f"s_lshr_b32 s{s_kh}, s{s_w}, 2")
    a(f"s_bfe_u32 s{s_cmt}, s{s_w}, 0x10001")
    a(f"s_and_b32 s{s_nt}, s{s_w}, 1")
    u = v_u + 2
    a(f"v_lshrrev_b32 v{u}, 3, v{v_lane}")
    a(f"v_and_b32 v{u+1}, 7, v{v_lane}")
    a(f"v_bfe_u32 v{u+2}, v{v_lane}, 4, 1")
    a(f"v_lshlrev_b32 v{u+3}, 2, v{u+2}")
    a(f"v_xor_b32 v{u+3}, v{u+3}, v{u+1}")
    a(f"v_mul_u32_u24 v{v_dw}, 896, v{u}")
    a(f"v_lshl_add_u32 v{v_dw}, v{u+3}, 4, v{v_dw}")
    a(f"s_lshl1_add_u32 s{s_hb}, s{s_tb64}, s{s_kh}")
    a(f"s_mul_i32 s{s_hb}, s{s_hb}, {NKS*1024}")
    a(f"s_and_b32 s{s_t0}, s{s_w}, 3")
    a(f"s_lshl_b32 s{s_t0}, s{s_t0}, 11")
    a(f"s_add_u32 s{s_hb}, s{s_hb}, s{s_t0}")
    a(f"s_add_u32 s{s_hb}, s{s_hb}, {HF}")
    a(f"s_lshl_b32 s{s_m0h}, s{s_w}, 11")
    a(f"s_add_u32 s{s_m0w}, s{s_m0h}, {NH*16384}")
    a(f"s_mul_i32 s{s_wb}, s{s_w}, {16*896}")
    a(f"s_lshl_b32 s{s_t0}, s{s_nb}, 7")
    a(f"s_add_u32 s{s_wb}, s{s_wb}, s{s_t0}")
    a(f"s_lshr_b32 s{s_wob}, s{s_w}, 1")
    a(f"s_mul_i32 s{s_wob}, s{s_wob}, 28")
    a(f"s_lshl4_add_u32 s{s_wob}, s{s_nt}, s{s_wob}")
    a(f"s_mul_i32 s{s_wob}, s{s_wob}, 896")
    a(f"s_add_u32 s{s_wob}, s{s_wob}, s{s_t0}")
    if OPT["rotc"]:
        a(f"s_lshl_b32 s{s_hr}, s{s_nb}, 14")
        a(f"s_mul_i32 s{s_t0}, s{s_nb}, {2*128*896}")
        a(f"s_add_u32 s{s_wb}, s{s_wb}, s{s_t0}")
    else:
        a(f"s_mov_b32 s{s_hr}, 0")

    def dmaW(c):
        slot = (c % NW) * 16384
        if c >= 14:
            a(f"s_add_u32 s{s_t0}, s{s_nb}, {c-14}")
            a(f"s_and_b32 s{s_t0}, s{s_t0}, 3")
            a(f"s_mul_i32 s{s_t0}, s{s_t0}, {112*896}")
            a(f"s_add_u32 s{s_t0}, s{s_t0}, s{s_wob}")
        for jj in range(2):
            a(f"s_add_u32 m0, s{s_m0w}, {slot + 1024*jj}")
            if c < 14:
                a(f"s_add_u32 s{s_t1}, s{s_wb}, {(128*c + 8*jj)*896}")
                a(f"s_sub_u32 s{s_t2}, s{s_t1}, {WD_BYTES}")
                a(f"s_min_u32 s{s_t1}, s{s_t1}, s{s_t2}")
                a(f"buffer_load_dwordx4 v{v_dw}, s[{sWd}:{sWd+3}], s{s_t1} offen lds")
            else:
                a(f"s_add_u32 s{s_t1}, s{s_t0}, {8*jj*896}")
                a(f"buffer_load_dwordx4 v{v_dw}, s[{sWo}:{sWo+3}], s{s_t1} offen lds")
            vm.issue(f"w{c}")

    def dmaH(c):
        slot = (c % NH) * 16384
        a(f"s_add_u32 m0, s{s_m0h}, {slot}")
        if c < 14:
            a(f"s_add_u32 s{s_t1}, s{s_hr}, {8192*c}")
            a(f"s_sub_u32 s{s_t2}, s{s_t1}, {14*8192}")
            a(f"s_min_u32 s{s_t1}, s{s_t1}, s{s_t2}")
        else:
            a(f"s_add_u32 s{s_t1}, s{s_nb}, {c-14}")
            a(f"s_and_b32 s{s_t1}, s{s_t1}, 3")
            a(f"s_lshl_b32 s{s_t1}, s{s_t1}, 13")
            a(f"s_add_u32 s{s_t1}, s{s_t1}, {14*8192}")
        a(f"s_add_u32 s{s_t1}, s{s_t1}, s{s_hb}")
        for jj in range(2):
            a(f"buffer_load_dwordx4 v{v_st}, s[{sWS}:{sWS+3}], s{s_t1} offen offset:{1024*jj} sc1 lds")
            vm.issue(f"h{c}")

    for c in range(NW):
        dmaW(c)
    a(f"s_lshl2_add_u32 s{s_bd}, s{s_qb}, s{s_bd}")
    a(f"s_mul_i32 s{s_ost}, s{s_bd}, {NKS*1024}")
    a(f"s_lshl_b32 s{s_t0}, s{s_h}, 11")
    a(f"s_add_u32 s{s_ost}, s{s_ost}, s{s_t0}")
    a(f"s_add_u32 s{s_ost}, s{s_ost}, s{s_par}")
    a(f"s_add_u32 s{s_ost}, s{s_ost}, {HF + 112*1024}")
    a(f"v_and_b32 v{v_d}, 3, v{v_lane}")
    a(f"v_bfe_u32 v{u}, v{v_lane}, 2, 1")
    a(f"v_lshl_or_b32 v{v_d}, v{u}, 3, v{v_d}")
    a(f"v_bfe_u32 v{u}, v{v_lane}, 3, 1")
    a(f"v_lshl_or_b32 v{v_d}, v{u}, 2, v{v_d}")
    a(f"s_lshr_b32 s{s_t0}, s{s_par}, 4")
    a(f"v_add_u32 v{v_d}, s{s_t0}, v{v_d}")
    a(f"v_lshlrev_b32 v{u}, 3, v{v_u+1}")
    a(f"v_sub_u32 v{v_d}, v{v_d}, v{u}")
    MK = [24, 26, 28, 30, 32, 34, 40, 42]
    for i in range(8):
        a(f"v_cmp_le_i32 s[{MK[i]}:{MK[i]+1}], {i}, v{v_d}")
    a(f"s_lshr_b32 s{s_t0}, s{s_tb64}, 1")
    a(f"s_lshl_b32 s{s_t0}, s{s_t0}, 7")
    a(f"s_add_u32 s{s_t0}, s{s_t0}, {FL + F_H*2048}")
    a(f"v_lshl_add_u32 v{u}, v0, 3, s{s_t0}")
    a(f"v_mov_b32 v{u+1}, {OOB}")
    a(f"v_cmp_gt_u32 vcc, 16, v0")
    a(f"v_cndmask_b32 v{v_pa}, v{u+1}, v{u}, vcc")
    a(f"s_waitcnt vmcnt({vm.wait_n('st_h')})")
    a("s_barrier")
    publish(vm, F_H, s_fp)
    st()
    lane0 = st.spill(v_stamp, 0)

    def kread(i):
        b, tt = divmod(i, 2)
        r = vKF + 4 * (i % 8)
        a(f"ds_read_b128 v[{r}:{r+3}], v{v_ka} offset:{b*2048 + tt*256}")
    LA = 6
    for i in range(LA):
        kread(i)
    for i in range(18):
        if i + LA < 18:
            kread(i + LA)
            a(f"s_waitcnt lgkmcnt({LA})")
        else:
            a(f"s_waitcnt lgkmcnt({17-i})")
        r = vKF + 4 * (i % 8)
        a(f"v_mfma_f32_16x16x32_bf16 v[{vS+4*i}:{vS+4*i+3}], v[{r}:{r+3}], v[{vQ}:{vQ+3}], 0")
    a(f"s_cmp_ge_u32 s{s_bd}, 8")
    a("s_cbranch_scc1 L_allvalid")
    for b in range(8):
        a(f"s_cmp_ge_u32 s{s_bd}, {8-b}")
        a("s_cbranch_scc1 L_allvalid")
        for i in range(8):
            a(f"v_mov_b32 v{vS+8*b+i}, 0xf149f2ca")
    a("L_allvalid:")
    for i in range(8):
        a(f"v_cndmask_b32 v{vS+i}, v{vS+i}, v{vS+64+i}, s[{MK[i]}:{MK[i]+1}]")
    a(f"v_max3_f32 v{v_m}, v{vS}, v{vS+1}, v{vS+2}")
    a(f"v_max3_f32 v{u}, v{vS+3}, v{vS+4}, v{vS+5}")
    k = 6
    tog = 0
    while k < 64:
        d = v_m if tog == 0 else u
        a(f"v_max3_f32 v{d}, v{d}, v{vS+k}, v{vS+k+1}")
        k += 2
        tog ^= 1
    a(f"v_max_f32 v{v_m}, v{v_m}, v{u}")
    a(f"v_mov_b32 v{u}, v{v_m}")
    a(f"v_permlane32_swap_b32 v{v_m}, v{u}")
    a(f"v_max_f32 v{v_m}, v{v_m}, v{u}")
    a(f"v_mov_b32 v{u}, v{v_m}")
    a(f"v_permlane16_swap_b32 v{v_m}, v{u}")
    a(f"v_max_f32 v{v_m}, v{v_m}, v{u}")
    order = [1, 2, 3, 4, 5, 6, 7, 0, 8]
    def vread(i):
        b = order[i // 2]
        tt = i % 2
        r = vKF + 4 * (i % 8)
        a(f"ds_read_b128 v[{r}:{r+3}], v{v_va} offset:{b*2048 + tt*256}")
    for i in range(LA):
        vread(i)
    def softmax_block(b):
        for i in range(8):
            a(f"v_sub_f32 v{vS+8*b+i}, v{vS+8*b+i}, v{v_m}")
        for i in range(8):
            a(f"v_exp_f32 v{vS+8*b+i}, v{vS+8*b+i}")
        if b == 0:
            for i in range(8):
                a(f"v_cndmask_b32 v{vS+64+i}, 0, v{vS+i}, s[{MK[i]}:{MK[i]+1}]")
            for i in range(8):
                a(f"v_cndmask_b32 v{vS+i}, v{vS+i}, 0, s[{MK[i]}:{MK[i]+1}]")
            for d in range(4):
                a(f"v_cvt_pk_bf16_f32 v{vP+32+d}, v{vS+64+2*d}, v{vS+64+2*d+1}")
        for d in range(4):
            a(f"v_cvt_pk_bf16_f32 v{vP+4*b+d}, v{vS+8*b+2*d}, v{vS+8*b+2*d+1}")
    softmax_block(order[0])
    for bi in range(9):
        b = order[bi]
        if bi == 3:
            a(f"buffer_load_dwordx2 v[{v_pf}:{v_pf+1}], v{v_pa}, s[{sWS}:{sWS+3}], 0 offen sc1")
            vm.issue("poll")
        if bi + 1 < 8:
            softmax_block(order[bi + 1])
        if bi == 6:
            a("s_waitcnt lgkmcnt(0)")
            a(f"s_cmp_ge_u32 s{s_nb}, 7")
            a("s_cbranch_scc1 L_noC1")
            wait_flags(16)
            a("s_barrier")
            vmC = vm
            for c in range(NH):
                dmaH(c)
            a("L_noC1:")
        for tt in range(2):
            i = 2 * bi + tt
            if i + LA < 18:
                vread(i + LA)
                a(f"s_waitcnt lgkmcnt({LA})")
            elif bi < 6:
                a(f"s_waitcnt lgkmcnt({17-i})")
            r = vKF + 4 * (i % 8)
            cs = "0" if bi == 0 else f"v[{vO+4*tt}:{vO+4*tt+3}]"
            a(f"v_mfma_f32_16x16x32_bf16 v[{vO+4*tt}:{vO+4*tt+3}], v[{r}:{r+3}], v[{vP+4*b}:{vP+4*b+3}], {cs}")
    a(f"v_mov_b32 v{u}, v{vO+4}")
    a(f"v_mov_b32 v{u+1}, v{vO+4}")
    a(f"v_permlane32_swap_b32 v{u}, v{u+1}")
    a(f"v_mov_b32 v{u}, v{u+1}")
    a(f"v_permlane16_swap_b32 v{u}, v{u+1}")
    a(f"v_rcp_f32 v{u+1}, v{u+1}")
    for i in range(8):
        a(f"v_mul_f32 v{vO+i}, v{vO+i}, v{u+1}")
    for d in range(4):
        a(f"v_cvt_pk_bf16_f32 v{vQ+d}, v{vO+2*d}, v{vO+2*d+1}")
    a(f"v_cmp_gt_u32 vcc, 48, v{v_lane}")
    a(f"v_cndmask_b32 v{vQ+2}, 0, v{vQ+2}, vcc")
    a(f"v_cndmask_b32 v{vQ+3}, 0, v{vQ+3}, vcc")
    a(f"buffer_store_dwordx4 v[{vQ}:{vQ+3}], v{v_qa}, s[{sWS}:{sWS+3}], s{s_ost} offen sc1")
    vm.issue("st_o")
    st()
    s_fo = 4
    a(f"s_lshl4_add_u32 s{s_fo}, s{s_qb}, s{s_h}")
    a(f"s_lshl_b32 s{s_fo}, s{s_fo}, 3")
    a(f"s_add_u32 s{s_fo}, s{s_fo}, {FL}")
    a(f"s_cmp_lt_u32 s{s_nb}, 7")
    a("s_cbranch_scc1 L_phaseC")
    a("s_waitcnt vmcnt(0)")
    a("s_barrier")
    publish(VM(), F_O, s_fo)
    a("s_branch L_end")
    a("L_phaseC:")

    v_ah, v_aw, v_cxo = 2, 3, 4
    v_awB = 5
    vXr = 16
    vAcc = 32
    vF = 64
    tt = 20
    a(f"v_add_u32 v{v_pa}, {(F_O-F_H)*2048}, v{v_pa}")
    a(f"v_and_b32 v{tt}, 0x13, v{v_lane}")
    a(f"v_bfe_u32 v{tt+1}, v{v_lane}, 2, 1")
    a(f"v_lshl_or_b32 v{tt}, v{tt+1}, 3, v{tt}")
    a(f"v_bfe_u32 v{tt+1}, v{v_lane}, 3, 1")
    a(f"v_lshl_or_b32 v{tt}, v{tt+1}, 2, v{tt}")
    a(f"v_mul_u32_u24 v{v_cxo}, 896, v{tt}")
    a(f"v_lshrrev_b32 v{tt+1}, 5, v{v_lane}")
    a(f"v_lshl_add_u32 v{v_cxo}, v{tt+1}, 4, v{v_cxo}")
    a(f"s_lshl1_add_u32 s{s_t0}, s{s_tb64}, s{s_cmt}")
    a(f"s_mul_i32 s{s_xo}, s{s_t0}, {32*896}")
    a(f"s_lshl_b32 s{s_t1}, s{s_nb}, 7")
    a(f"s_add_u32 s{s_xo}, s{s_xo}, s{s_t1}")
    a(f"s_lshl_b32 s{s_t1}, s{s_nt}, 6")
    a(f"s_add_u32 s{s_xo}, s{s_xo}, s{s_t1}")
    a(f"s_lshl_b32 s{s_t1}, s{s_kh}, 5")
    a(f"s_add_u32 s{s_xo}, s{s_xo}, s{s_t1}")
    a(f"buffer_load_dwordx4 v[{vXr}:{vXr+3}], v{v_cxo}, s[{sX}:{sX+3}], s{s_xo} offen")
    vm.issue("xr")
    a(f"s_lshl_b32 s{s_t0}, s{s_cmt}, 13")
    a(f"s_lshl_b32 s{s_t1}, s{s_kh}, 12")
    a(f"s_add_u32 s{s_t0}, s{s_t0}, s{s_t1}")
    a(f"v_add_u32 v{v_ah}, s{s_t0}, v{v_st}")
    a(f"v_bfe_u32 v{tt}, v{v_lane}, 2, 2")
    a(f"v_and_b32 v{tt+2}, 3, v{v_lane}")
    a(f"v_bfe_u32 v{tt+3}, v{v_lane}, 4, 1")
    a(f"v_lshrrev_b32 v{tt+4}, 1, v{tt+2}")
    a(f"v_and_b32 v{tt+5}, 1, v{tt+2}")
    a(f"v_lshl_or_b32 v{tt+4}, v{tt+5}, 1, v{tt+4}")
    a(f"v_lshl_add_u32 v{tt+5}, v{tt+1}, 3, v{tt}")
    a(f"v_lshlrev_b32 v{tt+5}, 7, v{tt+5}")
    a(f"v_lshrrev_b32 v{tt+6}, 1, v{tt}")
    a(f"v_xor_b32 v{tt+6}, s{s_nt}, v{tt+6}")
    a(f"v_lshl_add_u32 v{tt+5}, v{tt+6}, 6, v{tt+5}")
    a(f"v_lshl_add_u32 v{tt+5}, v{tt+3}, 5, v{tt+5}")
    a(f"v_lshl_add_u32 v{tt+5}, v{tt+4}, 3, v{tt+5}")
    a(f"s_lshl_b32 s{s_t0}, s{s_kh}, 13")
    a(f"s_add_u32 s{s_t0}, s{s_t0}, {NH*16384}")
    a(f"v_add_u32 v{v_aw}, s{s_t0}, v{tt+5}")
    a(f"v_add_u32 v{v_awB}, 65536, v{v_aw}")
    assert NH <= 4 and NW <= 8
    NC = 18
    def creads(c):
        sh = (c % NH) * 16384
        sw = (c % NW)
        aw = v_aw if sw < 4 else v_awB
        swo = (sw % 4) * 16384
        base = vF + 32 * (c & 1)
        for i in range(4):
            f = base + 8 * i
            a(f"ds_read_b128 v[{f}:{f+3}], v{v_ah} offset:{sh + 1024*i}")
            a(f"ds_read_b64_tr_b16 v[{f+4}:{f+5}], v{aw} offset:{swo + 2048*i}")
            a(f"ds_read_b64_tr_b16 v[{f+6}:{f+7}], v{aw} offset:{swo + 2048*i + 512}")
    a(f"s_waitcnt vmcnt({vm.wait_n('h0', 'w0')})")
    a("s_barrier")
    st()
    creads(0)
    PUB_O = 2
    POLL_O = 14 - NH - 3
    for c in range(NC):
        if c + 1 < NC:
            tags = [f"h{c+1}", f"w{c+1}"]
            if c == PUB_O:
                tags.append("st_o")
            if c + NH == 14:
                a("s_waitcnt lgkmcnt(0)")
                wait_flags(16)
            a(f"s_waitcnt vmcnt({vm.wait_n(*tags)}) lgkmcnt(0)")
            a("s_barrier")
            if c in (4, 9, 13):
                st()
            if c == PUB_O:
                publish(vm, F_O, s_fo)
            if c + NH < NC:
                dmaH(c + NH)
            if c + NW < NC:
                dmaW(c + NW)
            if c == POLL_O:
                a(f"buffer_load_dwordx2 v[{v_pf}:{v_pf+1}], v{v_pa}, s[{sWS}:{sWS+3}], 0 offen sc1")
                vm.issue("poll")
            creads(c + 1)
        else:
            a("s_waitcnt lgkmcnt(0)")
        base = vF + 32 * (c & 1)
        for i in range(4):
            f = base + 8 * i
            cs = "0" if (c == 0 and i == 0) else f"v[{vAcc}:{vAcc+15}]"
            a(f"v_mfma_f32_32x32x16_bf16 v[{vAcc}:{vAcc+15}], v[{f+4}:{f+7}], v[{f}:{f+3}], {cs}")
    st()
    a("s_barrier")
    a(f"s_lshl_b32 s{s_t0}, s{s_w}, 11")
    a(f"v_add_u32 v{tt+1}, s{s_t0}, v{v_st}")
    a(f"v_xor_b32 v{tt+2}, 8192, v{tt+1}")
    a(f"s_cmp_eq_u32 s{s_kh}, 0")
    a("s_cbranch_scc1 L_k0")
    a(f"ds_write_b128 v{tt+1}, v[{vAcc}:{vAcc+3}]")
    a(f"ds_write_b128 v{tt+1}, v[{vAcc+4}:{vAcc+7}] offset:1024")
    for i in range(8):
        a(f"v_mov_b32 v{vAcc+i}, v{vAcc+8+i}")
    a("s_branch L_k1")
    a("L_k0:")
    a(f"ds_write_b128 v{tt+1}, v[{vAcc+8}:{vAcc+11}]")
    a(f"ds_write_b128 v{tt+1}, v[{vAcc+12}:{vAcc+15}] offset:1024")
    a("L_k1:")
    a("s_waitcnt lgkmcnt(0)")
    a("s_barrier")
    a(f"ds_read_b128 v[{vF}:{vF+3}], v{tt+2}")
    a(f"ds_read_b128 v[{vF+4}:{vF+7}], v{tt+2} offset:1024")
    for d in range(4):
        a(f"v_lshlrev_b32 v{vF+8+2*d}, 16, v{vXr+d}")
        a(f"v_and_b32 v{vF+9+2*d}, 0xffff0000, v{vXr+d}")
    for i in range(8):
        a(f"v_add_f32 v{vAcc+i}, v{vAcc+i}, v{vF+8+i}")
    a("s_waitcnt lgkmcnt(0)")
    for i in range(8):
        a(f"v_add_f32 v{vAcc+i}, v{vAcc+i}, v{vF+i}")
    for d in range(4):
        a(f"v_cvt_pk_bf16_f32 v{vXr+d}, v{vAcc+2*d}, v{vAcc+2*d+1}")
    a(f"buffer_store_dwordx4 v[{vXr}:{vXr+3}], v{v_cxo}, s[{sO}:{sO+3}], s{s_xo} offen")
    if STAMP:
        a("s_waitcnt vmcnt(0)")
        st(); st.rt()
        lane0 = st.spill(v_stamp, lane0)
        a(f"s_lshl3_add_u32 s3, s2, s{s_w}")
        a("s_lshl_b32 s3, s3, 7")
        a(f"s_add_u32 s3, s3, {STAMP_OFF}")
        a(f"v_lshlrev_b32 v{tt}, 2, v{v_lane}")
        a(f"v_cmp_gt_u32 vcc, {lane0}, v{v_lane}")
        a("s_and_saveexec_b64 s[4:5], vcc")
        a(f"buffer_store_dword v{v_stamp}, v{tt}, s[{sWS}:{sWS+3}], s3 offen")
        print("stamps:", lane0, file=sys.stderr)
    a("L_end:")
    a("s_endpgm")
    return a


HEADER = """; Fused persistent kernel: LN + QKV/gate/up GEMM -> sliding-window attention -> [H|O] @ [w_down; wo] + x
;   0 A_x, 8 A_wqkv, 16 A_wo, 24 B_x, 32 B_w_gate, 40 B_w_up, 48 B_w_down, 56 d_out, 64 d_debug, 72 d_ws
; @launch grid=(256,1,1) block=(512,1,1) lds=163840
.amdgcn_target "amdgcn-amd-amdhsa--gfx950"
"""

def build():
    a = gen()
    print("instrs", a.nins, "nops", a.nnop, file=sys.stderr)
    return HEADER + a.text() + kernel_desc(NAME, 256)

if __name__ == "__main__":
    path = sys.argv[1] if len(sys.argv) > 1 else "parallel_sum__sliding_block__geglu_ffn__prompt.s"
    for arg in sys.argv[2:]:
        if arg == "stamp":
            STAMP = True
        else:
            k, v = arg.split("=")
            OPT[k] = int(v)
    open(path, "w").write(build())
```

```python
import re

TRANS = ("v_exp_f32", "v_log_f32", "v_rcp_f32", "v_rsq_f32", "v_sqrt_f32", "v_sin_f32", "v_cos_f32",
         "v_rcp_iflag_f32")

_reg_re = re.compile(r"^(-|\|)?(abs\()?([vsa])(\d+|\[(\d+):(\d+)\])\)?\|?$")


def parse_reg(tok):
    tok = tok.strip()
    if tok == "vcc":
        return {("s", 106), ("s", 107)}
    if tok in ("vcc_lo",):
        return {("s", 106)}
    if tok in ("vcc_hi",):
        return {("s", 107)}
    if tok == "exec":
        return {("s", 126), ("s", 127)}
    if tok == "exec_lo":
        return {("s", 126)}
    if tok == "exec_hi":
        return {("s", 127)}
    if tok == "m0":
        return {("s", 124)}
    m = _reg_re.match(tok)
    if not m:
        return set()
    k = m.group(3)
    if m.group(5) is not None:
        return {(k, i) for i in range(int(m.group(5)), int(m.group(6)) + 1)}
    return {(k, int(m.group(4)))}


def split_ops(s):
    out = []
    depth = 0
    cur = ""
    for ch in s:
        if ch in "[(":
            depth += 1
        if ch in "])":
            depth -= 1
        if ch == "," and depth == 0:
            out.append(cur.strip())
            cur = ""
        else:
            cur += ch
    if cur.strip():
        out.append(cur.strip())
    return out


class Ins:
    __slots__ = ("text", "mn", "w", "r", "kind", "passes", "srcc", "srcab", "states", "store_data", "dpp",
                 "lds_dma", "is_trans")

    def __init__(self, text):
        self.text = text
        t = text.split(";")[0].strip()
        parts = t.split(None, 1)
        mn = parts[0]
        self.mn = mn
        rest = parts[1] if len(parts) > 1 else ""
        ops = split_ops(rest)
        mods = ""
        if ops:
            sp = ops[-1].split(None, 1)
            if len(sp) > 1:
                ops[-1] = sp[0]
                mods = sp[1]
        self.w = set()
        self.r = set()
        self.passes = 0
        self.srcc = set()
        self.srcab = set()
        self.states = 1
        self.store_data = set()
        self.dpp = ("_dpp" in mn) or ("quad_perm" in mods) or ("row_" in mods)
        self.lds_dma = False
        base = mn.replace("_e32", "").replace("_e64", "").replace("_dpp", "").replace("_sdwa", "")
        self.is_trans = base in TRANS
        R = [parse_reg(o) for o in ops]
        if mn == "s_nop":
            self.kind = "nop"
            self.states = int(ops[0], 0) + 1
        elif mn.startswith("v_mfma"):
            self.kind = "mfma"
            self.w = R[0]
            self.srcab = R[1] | R[2]
            self.srcc = R[3]
            self.r = self.srcab | self.srcc
            self.passes = 8 if "32x32x16" in mn else (2 if "4x4x4" in mn else 4)
        elif mn.startswith("v_"):
            self.kind = "valu"
            if base.startswith("v_cmp"):
                self.w = R[0]
                for x in R[1:]:
                    self.r |= x
                if base.startswith("v_cmpx"):
                    self.w |= parse_reg("exec")
            elif base.startswith("v_permlane") and "swap" in base:
                self.w = R[0] | R[1]
                self.r = R[0] | R[1]
            elif base in ("v_add_co_u32", "v_sub_co_u32", "v_addc_co_u32", "v_subb_co_u32", "v_mad_u64_u32"):
                self.w = R[0] | R[1]
                for x in R[2:]:
                    self.r |= x
            else:
                self.w = R[0]
                for x in R[1:]:
                    self.r |= x
                if base in ("v_fmac_f32", "v_dot2c_f32_bf16", "v_pk_fmac_f16", "v_writelane_b32"):
                    self.r |= R[0]
                if self.dpp:
                    self.r |= R[0]
        elif mn.startswith("buffer_") or mn.startswith("global_"):
            self.kind = "vmem"
            allmods = mods.split()
            if mn in ("buffer_inv", "buffer_wbl2"):
                pass
            elif "lds" in allmods or "load_lds" in mn:
                self.lds_dma = True
                for x in R:
                    self.r |= x
                self.r |= parse_reg("m0")
            elif "load" in mn:
                self.w = R[0]
                for x in R[1:]:
                    self.r |= x
            elif "store" in mn:
                for x in R:
                    self.r |= x
                d = R[0] if mn.startswith("buffer_") else R[1]
                if "x4" in mn or "x3" in mn:
                    self.store_data = d
            elif "atomic" in mn:
                for x in R:
                    self.r |= x
                if "sc0" in allmods:
                    self.w = R[0]
        elif mn.startswith("ds_"):
            self.kind = "ds"
            if mn.startswith("ds_read") or mn.startswith("ds_bpermute") or mn.startswith("ds_permute") or mn.startswith("ds_swizzle") or "_rtn" in mn:
                self.w = R[0]
                for x in R[1:]:
                    self.r |= x
            else:
                for x in R:
                    self.r |= x
        elif mn.startswith("s_load") or mn.startswith("s_buffer_load") or mn in ("s_memtime", "s_memrealtime"):
            self.kind = "smem"
            self.w = R[0]
            for x in R[1:]:
                self.r |= x
        elif mn.startswith("s_"):
            self.kind = "salu"
            if mn.startswith("s_cmp") or mn.startswith("s_cbranch") or mn in ("s_branch", "s_barrier", "s_waitcnt", "s_endpgm", "s_sleep", "s_setprio", "s_bitcmp1_b32", "s_bitcmp0_b32"):
                for x in R:
                    self.r |= x
            else:
                if R:
                    self.w = R[0]
                for x in R[1:]:
                    self.r |= x
                if "saveexec" in mn:
                    self.w |= parse_reg("exec")
        else:
            raise ValueError("unknown mnemonic " + text)


def isv(s):
    return {x for x in s if x[0] in "va"}


def iss(s):
    return {x for x in s if x[0] == "s"}


EXEC = parse_reg("exec")
M0 = parse_reg("m0")


def required(p, c):
    need = 0
    pv = isv(p.w)
    ps = iss(p.w)
    if p.kind == "valu":
        if c.kind == "mfma" and (pv & c.r):
            need = max(need, 2)
        if c.kind == "mfma" and (ps & EXEC):
            need = max(need, 4)
        if p.is_trans and c.kind in ("valu", "mfma", "vmem", "ds") and not c.is_trans and (pv & (c.r | c.w)):
            need = max(need, 1)
        if p.is_trans and c.is_trans and (pv & c.r):
            need = max(need, 1)
        if ps:
            if c.kind == "valu" and (ps & c.r):
                need = max(need, 2)
                if c.mn.startswith("v_readlane") or c.mn.startswith("v_writelane") or c.mn.startswith("v_div_fmas"):
                    need = max(need, 4)
            if c.kind == "vmem" and (ps & c.r):
                need = max(need, 5)
            if c.kind == "salu" and (ps & c.r):
                need = max(need, 1)
            if (ps & EXEC):
                if c.kind == "valu" and c.dpp:
                    need = max(need, 5)
                if c.mn.startswith("v_readlane") or c.mn.startswith("v_readfirstlane") or c.mn.startswith("v_writelane") or c.mn.startswith("v_permlane"):
                    need = max(need, 4)
        if c.kind == "valu":
            if c.dpp and (pv & c.r):
                need = max(need, 2)
            if c.mn.startswith("v_permlane") and (pv & c.r):
                need = max(need, 2)
            if (c.mn.startswith("v_readlane") or c.mn.startswith("v_readfirstlane")) and (pv & c.r):
                need = max(need, 1)
            if ("sdwa" in p.text or "op_sel" in p.text) and (pv & (c.r | c.w)):
                need = max(need, 1)
    if p.kind == "salu":
        if (ps & M0) and (c.lds_dma):
            need = max(need, 1)
    if p.kind == "vmem" and p.store_data:
        if (p.store_data & c.w):
            need = max(need, 2)
    if p.kind == "mfma":
        n = p.passes
        tbl_ab = {2: 5, 4: 8, 8: 12}[n]
        tbl_ovl = {2: 4, 4: 6, 8: 10}[n]
        tbl_war = {2: 1, 4: 3, 8: 7}[n]
        if c.kind == "mfma":
            if pv & c.srcab:
                need = max(need, tbl_ab)
            if pv & c.srcc:
                if c.srcc == p.w and c.passes == p.passes:
                    if n == 2:
                        need = max(need, 2)
                else:
                    need = max(need, tbl_ovl)
            elif pv & c.w:
                need = max(need, tbl_ovl)
        elif c.kind in ("valu", "vmem", "ds"):
            if pv & (c.r | c.w):
                need = max(need, tbl_ab)
            if c.kind in ("valu", "ds", "vmem") and (p.srcc & c.w):
                need = max(need, tbl_war)
    return need


class Asm:
    def __init__(self):
        self.lines = []
        self.hist = []
        self.nins = 0
        self.nnop = 0

    def raw(self, text):
        self.lines.append(text)

    def comment(self, text):
        self.lines.append("    ; " + text)

    def label(self, name):
        self.fence()
        self.lines.append(name + ":")

    def fence(self, n=None):
        worst = 0
        dist = 0
        for p in reversed(self.hist):
            req = 0
            if p.kind == "mfma":
                req = {2: 5, 4: 8, 8: 12}[p.passes]
            elif p.kind == "valu":
                req = 5 if iss(p.w) else 2
            elif p.kind == "vmem" and p.store_data:
                req = 2
            elif p.kind == "salu" and (iss(p.w) & M0):
                req = 1
            worst = max(worst, req - dist)
            dist += p.states
            if dist > 16:
                break
        if worst > 0:
            self._nop(worst)
        self.hist = []

    def _nop(self, n):
        while n > 0:
            k = min(n, 16)
            i = Ins("s_nop %d" % (k - 1))
            self.lines.append("    s_nop %d" % (k - 1))
            self.hist.append(i)
            self.nnop += 1
            n -= k

    def __call__(self, text):
        for t in text.split("\n"):
            t = t.strip()
            if not t:
                continue
            if t.startswith(";"):
                self.lines.append("    " + t)
                continue
            if t.endswith(":"):
                self.label(t[:-1])
                continue
            self.emit(t)

    def emit(self, text):
        c = Ins(text)
        dist = 0
        pad = 0
        for p in reversed(self.hist):
            need = required(p, c)
            if need - dist > pad:
                pad = need - dist
            dist += p.states
            if dist > 20:
                break
        if pad > 0:
            self._nop(pad)
        if c.mn.startswith("s_cbranch") or c.mn == "s_branch":
            saved = c
            self.fence()
        self.lines.append("    " + text)
        self.hist.append(c)
        if len(self.hist) > 40:
            self.hist = self.hist[-30:]
        self.nins += 1

    def text(self):
        return "\n".join(self.lines) + "\n"


def kernel_header(name):
    return f".text\n.globl {name}\n.p2align 8\n.type {name},@function\n{name}:\n"


def kernel_desc(name, vgpr, sgpr=102):
    acc = (vgpr + 3) // 4 * 4
    return f""".section .rodata,"a"
.p2align 6
.amdhsa_kernel {name}
  .amdhsa_next_free_vgpr {vgpr}
  .amdhsa_next_free_sgpr {sgpr}
  .amdhsa_accum_offset {acc}
  .amdhsa_group_segment_fixed_size 0
  .amdhsa_kernarg_size 80
  .amdhsa_user_sgpr_count 2
  .amdhsa_user_sgpr_kernarg_segment_ptr 1
  .amdhsa_system_sgpr_workgroup_id_x 1
.end_amdhsa_kernel
"""
```

```python
import sys, struct, math, copy, os
sys.path.insert(0, "dev")
from asmlib import Asm, kernel_header, kernel_desc

NAME = "parallel_sum__sliding_block__geglu_ffn__prompt_kernel"

def f2u(f):
    return struct.unpack("<I", struct.pack("<f", f))[0]

QF = 0
KF = 2 << 20
VF = 4 << 20
FL = 6 << 20
HF = 8 << 20
WS_BYTES = 268435456
NKS = 144
F_QK, F_H, F_O, F_V = 0, 1, 2, 3
OOB = 0x7FFFFF00

X_BYTES = 2048 * 896
WQKV_BYTES = 448 * 2688
WG_BYTES = 448 * 3584
WD_BYTES = 1792 * 896
WO_BYTES = 448 * 896

LOG2E = 1.4426950408889634
QSCALE = (28 ** -0.5) * LOG2E
GC1 = -2.0 * 0.7978845608028654 * LOG2E
GC2 = GC1 * 0.044715

STAMP = False
STAMP_OFF = 200 << 20
STM = [int(x) for x in os.environ.get('STM', '11,28,56,84,112').split(',')]
OPT = dict(NH=4, NW=6, rotc=1, b2=10, bgp=1, qkst=44, pubm=112, pk=1, w2s=84,
           wfirst=4, wspread=16, pubo=2, p1=1, slp=4, hst0=104, hst1=122, qkgap=0, d7=0, d8=0, d9=0,
           c1e=3, xr=3, xf=9, qkn=1, hn=1, hgap=0, tq=7, lnm=1, dmae=7, xil=1, pubqk=5, kq=8, kqlead=12, vpos=8)


class Cnt:
    def __init__(self, cap):
        self.ops = []
        self.cap = cap
    def issue(self, tag):
        self.ops.append(tag)
    def wait_n(self, *tags):
        idx = max(i for i, t in enumerate(self.ops) if t in tags)
        n = len(self.ops) - 1 - idx
        return min(n, self.cap)
    def has(self, tag):
        return tag in self.ops

def VM():
    return Cnt(63)


class Stamps:
    def __init__(self, a, vreg, base=98):
        self.a = a; self.base = base; self.n = 0; self.names = []; self.vreg = vreg
    def _flush_prev(self):
        if self.n >= 1:
            k = self.n - 1
            self.a(f"v_writelane_b32 v{self.vreg}, s{self.base + 2*(k % 2)}, {k}")
    def __call__(self, name="", rt=False, wait=False):
        if not STAMP: return
        p = self.base + 2 * (self.n % 2)
        self.a(f"{'s_memrealtime' if rt else 's_memtime'} s[{p}:{p+1}]")
        if wait:
            self.a("s_waitcnt lgkmcnt(0)")
        self._flush_prev()
        self.n += 1
        self.names.append(name)
    def finish(self):
        self.a("s_waitcnt lgkmcnt(0)")
        self._flush_prev()


def srd(d, lo, hi, nbytes):
    return [f"s_mov_b32 s{d}, s{lo}", f"s_and_b32 s{d+1}, s{hi}, 0xffff",
            f"s_mov_b32 s{d+2}, {nbytes}", f"s_mov_b32 s{d+3}, 0x00020000"]

SLOT = 28672
XBASE = 49152


def gen():
    a = Asm()
    a.raw(kernel_header(NAME))
    def A(lst):
        for x in lst:
            a(x)
    NH, NW = OPT["NH"], OPT["NW"]
    sX, sWq, sWg, sWS, sWd, sWo, sO, sDbg = 36, 40, 44, 48, 52, 56, 60, 64
    s_w, s_tb, s_cb, s_g, s_mt = 68, 69, 70, 71, 72
    s_t0, s_t1, s_t2 = 74, 75, 76
    s_hst = 77
    s_n0 = 78
    s_q0, s_q3, s_v0, s_v3, s_g0, s_g3 = 4, 5, 6, 7, 8, 9
    s_m0, s_m3, s_scale, s_tg, s_qkst, s_vst = 10, 11, 12, 13, 14, 15
    s_wr = 3
    s_b1 = 73
    s_b2 = 0
    s_d0, s_d1 = 96, 97
    s_one = 16
    s_h, s_qb, s_fp, s_tch = 18, 19, 20, 21
    s_mq0, s_mq3 = 22, 23
    sTch = 24
    s_xr, s_xr1, s_tr, s_tqk = 80, 81, 82, 83
    s_kv, s_par, s_bd, s_ost = 84, 85, 86, 87
    s_tb64, s_nb, s_kh, s_cmt, s_nt = 88, 89, 90, 91, 92
    s_hb, s_hr, s_wb = 93, 94, 95
    s_wob, s_m0h, s_m0w, s_xo = 28, 29, 30, 31
    s_fo = 80
    MK = [24, 26, 16, 64, 32, 34, 40, 42]
    vX = 128
    ACC = [64, 96]
    vW = 48
    vT = 16
    v_lane, v_dq, v_dg, v_rdA, v_rdB, v_st, v_msk = 1, 2, 3, 4, 5, 6, 7
    v_bqk, v_bg0, v_bg1 = 9, 11, 12
    v_c1, v_c2, v_k1 = 8, 10, 14
    v_stk = 13
    v_stamp = 15
    v_xa = 32
    v_xw = 40
    v_xo = 44
    v_dv, v_dvh, v_bv0, v_bv1 = 40, 41, 42, 43
    v_tg, v_tq = 46, 47
    v_dw, v_d = 44, 45
    v_paH = 46
    v_paV = 47
    vQ = 240
    v_qa = 244
    v_one = 245
    v_e0, v_td = 246, 247
    v_non = 248
    v_e1, v_zero = 250, 251
    v_fa = 252
    v_pa = 253
    v_pf = 254
    t = vT

    st = Stamps(a, v_stamp)
    a("s_cmp_ge_u32 s2, 256")
    a("s_cbranch_scc1 L_end")
    st("rt", rt=True); st("t0", wait=True)
    a("s_load_dwordx16 s[16:31], s[0:1], 0")
    a("s_load_dwordx4 s[32:35], s[0:1], 64")
    a(f"s_memrealtime s[{s_n0}:{s_n0+1}]")
    a(f"v_and_b32 v{v_lane}, 63, v0")
    a(f"v_lshrrev_b32 v{t}, 6, v0")
    a(f"v_readfirstlane_b32 s{s_w}, v{t}")
    a(f"s_and_b32 s{s_tb}, s2, 3")
    a(f"s_bfe_u32 s{s_t2}, s2, 0x20003")
    a(f"s_lshl2_add_u32 s{s_tb}, s{s_tb}, s{s_t2}")
    a(f"s_bfe_u32 s{s_cb}, s2, 0x10002")
    a(f"s_lshr_b32 s{s_t1}, s2, 5")
    a(f"s_lshl3_add_u32 s{s_cb}, s{s_cb}, s{s_t1}")
    a(f"s_lshr_b32 s{s_g}, s{s_w}, 2")
    a(f"s_and_b32 s{s_mt}, s{s_w}, 3")
    a(f"s_and_b32 s{s_t0}, s{s_cb}, 1")
    a(f"s_and_b32 s{s_t1}, s{s_cb}, 2")
    a(f"s_lshl2_add_u32 s{s_t0}, s{s_t1}, s{s_t0}")
    a(f"s_lshl_b32 s{s_wr}, s{s_w}, 1")
    a(f"s_xor_b32 s{s_wr}, s{s_wr}, s{s_t0}")
    a(f"v_lshrrev_b32 v{t}, 3, v{v_lane}")
    a(f"v_and_b32 v{t+1}, 7, v{v_lane}")
    a(f"v_mul_u32_u24 v{v_xo}, 896, v{t}")
    a(f"v_lshl_add_u32 v{v_xo}, v{t+1}, 4, v{v_xo}")
    a(f"s_lshl4_add_u32 s{s_t0}, s{s_tb}, s{s_wr}")
    a(f"s_mul_i32 s{s_xr}, s{s_t0}, {8*896}")
    a(f"s_xor_b32 s{s_t0}, s{s_t0}, 1")
    a(f"s_mul_i32 s{s_xr1}, s{s_t0}, {8*896}")
    a(f"v_mov_b32 v{v_e1}, {OOB}")
    a("s_waitcnt lgkmcnt(0)")
    A(srd(sX, 16, 17, X_BYTES))
    vm = VM()
    def raw(e, i):
        return ACC[0] + 28 * e + 4 * i
    def xload(e, j, track=True):
        r = raw(e, j)
        a(f"buffer_load_dwordx4 v[{r}:{r+3}], v{v_xo}, s[{sX}:{sX+3}], s{s_xr1 if e else s_xr} offen offset:{128*j}")
        if track:
            vm.issue(f"x{e}{j}")
    def gtouch(sr, nl, per_wg8, vt, vmx=None):
        if per_wg8:
            a(f"s_lshl3_add_u32 s{s_t0}, s2, s{s_w}")
        else:
            a(f"s_lshl2_add_u32 s{s_t0}, s2, s{s_mt}")
        a(f"s_mul_i32 s{s_t0}, s{s_t0}, {nl}")
        a(f"v_min_u32 v{vt}, {nl-1}, v{v_lane}")
        a(f"v_add_lshl_u32 v{vt}, v{vt}, s{s_t0}, 7")
        a(f"s_mov_b64 exec, {(1 << nl) - 1}")
        a(f"buffer_load_dword v{v_td}, v{vt}, s[{sr}:{sr+3}], 0 offen")
        a(f"s_mov_b64 exec, -1")
        if vmx is not None:
            vmx.issue("t")
    XF = OPT["xf"]
    xorder = [(0, j) for j in range(7)] + [(1, j) for j in range(7)]
    A(srd(sWq, 18, 19, WQKV_BYTES))
    a(f"s_cmp_lg_u32 s{s_g}, 0")
    a("s_cbranch_scc1 L_x0skip")
    for k, (e, j) in enumerate(xorder[:XF]):
        if k == OPT["tq"]:
            gtouch(sWq, 10, False, t + 10)
        xload(e, j, False)
    a("L_x0skip:")
    a(f"s_cmp_eq_u32 s{s_g}, 0")
    a(f"s_cselect_b32 s{sWg}, s24, s26")
    a(f"s_cselect_b32 s{sWg+1}, s25, s27")
    a(f"s_and_b32 s{sWg+1}, s{sWg+1}, 0xffff")
    a(f"s_mov_b32 s{sWg+2}, {WG_BYTES}")
    a(f"s_mov_b32 s{sWg+3}, 0x00020000")
    A(srd(sDbg, 32, 33, 256))
    a(f"s_or_b32 s{s_n0}, s{s_n0}, 1")
    a(f"v_mov_b32 v{v_non}, s{s_n0}")
    a(f"v_mov_b32 v{v_non+1}, s{s_n0+1}")
    a(f"v_cmp_eq_u32 s[{s_d0}:{s_d0+1}], 0, v0")
    a(f"v_cndmask_b32 v{v_fa}, v{v_e1}, 0, s[{s_d0}:{s_d0+1}]")
    a(f"s_cmp_eq_u32 s2, 0")
    a(f"s_cselect_b64 s[{s_d0}:{s_d0+1}], s[{s_d0}:{s_d0+1}], 0")
    a(f"v_cndmask_b32 v{v_e0}, v{v_e1}, 0, s[{s_d0}:{s_d0+1}]")
    a(f"v_mov_b32 v{v_zero}, 0")
    a(f"v_bfe_u32 v{t+2}, v{v_lane}, 4, 1")
    a(f"v_lshlrev_b32 v{t+3}, 2, v{t+2}")
    a(f"v_xor_b32 v{t+3}, v{t+3}, v{t+1}")
    a(f"v_mul_u32_u24 v{v_dq}, 2688, v{t}")
    a(f"v_lshl_add_u32 v{v_dq}, v{t+3}, 4, v{v_dq}")
    a(f"v_lshlrev_b32 v{t+3}, 1, v{t+2}")
    a(f"v_xor_b32 v{t+3}, v{t+3}, v{t+1}")
    a(f"s_lshl_b32 s{s_t1}, s{s_g}, 2")
    a(f"v_xor_b32 v{t+3}, s{s_t1}, v{t+3}")
    a(f"v_mul_u32_u24 v{v_dg}, 3584, v{t}")
    a(f"v_lshl_add_u32 v{v_dg}, v{t+3}, 4, v{v_dg}")
    a(f"s_lshl_b32 s{s_t0}, s{s_wr}, 3")
    for e in range(2):
        a(f"v_add_u32 v{t+2}, s{s_t0}, v{t}")
        if e:
            a(f"v_xor_b32 v{t+2}, 8, v{t+2}")
        a(f"v_bfe_u32 v{t+3}, v{t+2}, 1, 3")
        a(f"v_xor_b32 v{t+3}, v{t+3}, v{t+1}")
        a(f"v_lshlrev_b32 v{t+2}, 7, v{t+2}")
        a(f"v_lshl_add_u32 v{t+2}, v{t+3}, 4, v{t+2}")
        a(f"v_add_u32 v{v_xw+e}, {XBASE}, v{t+2}")
        a(f"v_add_u32 v{v_xw+2+e}, {XBASE+65536}, v{t+2}")
    a(f"s_mul_i32 s{s_g0}, s{s_mt}, {8*3584}")
    a(f"s_mul_i32 s{s_g3}, s{s_mt}, {4*3584}")
    a(f"s_add_u32 s{s_g3}, s{s_g3}, {96*3584}")
    a(f"s_mul_i32 s{s_q0}, s{s_w}, {8*2688}")
    a(f"s_mul_i32 s{s_v0}, s{s_w}, {4*2688}")
    a(f"s_add_u32 s{s_q3}, s{s_v0}, {128*2688}")
    a(f"s_lshr_b32 s{s_t0}, s{s_cb}, 2")
    a(f"s_mul_i32 s{s_t1}, s{s_t0}, 224")
    a(f"s_add_u32 s{s_t1}, s{s_t1}, {56*32}")
    a(f"s_mul_i32 s{s_v3}, s{s_w}, {2*2688}")
    a(f"s_add_u32 s{s_v0}, s{s_v0}, s{s_t1}")
    a(f"s_add_u32 s{s_v3}, s{s_v3}, s{s_t1}")
    a(f"s_add_u32 s{s_v3}, s{s_v3}, {96*2688}")
    a(f"s_mul_i32 s{s_t1}, s{s_cb}, 112")
    a(f"s_add_u32 s{s_q0}, s{s_q0}, s{s_t1}")
    a(f"s_add_u32 s{s_q3}, s{s_q3}, s{s_t1}")
    a(f"s_mul_i32 s{s_t1}, s{s_t0}, 448")
    a(f"s_and_b32 s{s_t0}, s{s_cb}, 3")
    a(f"s_lshl_b32 s{s_hst}, s{s_t0}, 7")
    a(f"s_add_u32 s{s_t1}, s{s_t1}, s{s_hst}")
    a(f"s_lshl1_add_u32 s{s_g0}, s{s_t1}, s{s_g0}")
    a(f"s_lshl1_add_u32 s{s_g3}, s{s_t1}, s{s_g3}")
    a(f"s_lshl_b32 s{s_hst}, s{s_t1}, 6")
    a(f"s_mul_i32 s{s_m0}, s{s_g}, {112*128}")
    a(f"s_lshl_b32 s{s_t1}, s{s_mt}, 9")
    a(f"s_add_u32 s{s_m3}, s{s_m0}, s{s_t1}")
    a(f"s_add_u32 s{s_m3}, s{s_m3}, {96*128}")
    a(f"s_lshl1_add_u32 s{s_m0}, s{s_t1}, s{s_m0}")
    a(f"s_lshl_b32 s{s_mq0}, s{s_w}, 10")
    a(f"s_lshl_b32 s{s_mq3}, s{s_w}, 9")
    a(f"s_add_u32 s{s_mq3}, s{s_mq3}, {128*128}")
    a(f"v_bfe_u32 v{t}, v{v_lane}, 2, 2")
    a(f"v_and_b32 v{t+1}, 3, v{v_lane}")
    a(f"v_bfe_u32 v{t+2}, v{v_lane}, 4, 1")
    a(f"v_lshrrev_b32 v{t+3}, 5, v{v_lane}")
    a(f"v_lshrrev_b32 v{t+4}, 1, v{t+1}")
    a(f"v_and_b32 v{t+5}, 1, v{t+1}")
    a(f"v_lshl_or_b32 v{t+4}, v{t+5}, 1, v{t+4}")
    a(f"v_lshl_add_u32 v{t+5}, v{t+3}, 3, v{t}")
    a(f"v_lshlrev_b32 v{t+5}, 7, v{t+5}")
    a(f"v_lshrrev_b32 v{t+6}, 1, v{t}")
    a(f"s_mul_i32 s{s_t0}, s{s_g}, 56")
    a(f"v_lshlrev_b32 v{t+7}, 5, v{t+2}")
    a(f"v_lshl_add_u32 v{t+7}, v{t+4}, 3, v{t+7}")
    a(f"v_add_u32 v{t+7}, s{s_t0}, v{t+7}")
    a(f"v_lshlrev_b32 v{t+8}, 6, v{t+6}")
    a(f"v_xor_b32 v{t+7}, v{t+7}, v{t+8}")
    a(f"v_add_u32 v{v_bqk}, v{t+7}, v{t+5}")
    a(f"v_lshl_or_b32 v{t+7}, v{t+2}, 1, v{t+6}")
    a(f"s_lshl_b32 s{s_t0}, s{s_g}, 1")
    a(f"v_xor_b32 v{t+7}, s{s_t0}, v{t+7}")
    a(f"v_mul_u32_u24 v{t+8}, 14336, v{t+2}")
    a(f"v_add_u32 v{t+8}, v{t+8}, v{t+5}")
    a(f"v_lshl_add_u32 v{t+8}, v{t+4}, 3, v{t+8}")
    a(f"v_lshl_add_u32 v{v_bg0}, v{t+7}, 5, v{t+8}")
    a(f"v_xor_b32 v{v_bg1}, 32, v{v_bg0}")
    a(f"v_and_b32 v{t}, 0x13, v{v_lane}")
    a(f"v_bfe_u32 v{t+1}, v{v_lane}, 2, 1")
    a(f"v_lshl_or_b32 v{t}, v{t+1}, 3, v{t}")
    a(f"v_bfe_u32 v{t+1}, v{v_lane}, 3, 1")
    a(f"v_lshl_or_b32 v{t}, v{t+1}, 2, v{t}")
    a(f"s_lshl_b32 s{s_t0}, s{s_mt}, 5")
    a(f"v_add_u32 v{t}, s{s_t0}, v{t}")
    a(f"v_bfe_u32 v{t+1}, v{t}, 1, 3")
    a(f"v_xor_b32 v{t+1}, v{t+1}, v{t+3}")
    a(f"v_lshlrev_b32 v{t}, 7, v{t}")
    a(f"v_lshl_add_u32 v{t}, v{t+1}, 4, v{t}")
    a(f"v_add_u32 v{v_xa}, {XBASE}, v{t}")
    for s2 in range(1, 4):
        a(f"v_xor_b32 v{v_xa+s2}, {32*s2}, v{v_xa}")
    for s2 in range(4):
        a(f"v_add_u32 v{v_xa+4+s2}, 65536, v{v_xa+s2}")

    def dmaA(chunk, slot, tag):
        kind, idx, part = chunk
        G = []
        for jj in range(4):
            g = []
            rowb = 128
            m3x = 0
            if kind == "qk":
                b0, b3 = s_q0, s_q3
                stride = 2688
                off = 224 * part * stride
                sr, vo = sWq, v_dq
                rows = [0, 64, None, 160][jj]
                m0r, m3r = s_mq0, s_mq3
            elif kind == "v":
                b0, b3 = s_v0, s_v3
                stride = 2688
                off = 112 * part * stride
                rows = [0, 32, 64, None][jj]
                sr, vo = sWq, (v_dvh if rows is None else v_dv)
                m0r, m3r = s_mq0, s_mq3
                rowb = 256
                m3x = 8192
            else:
                b0, b3 = s_g0, s_g3
                stride = 3584
                off = 112 * part * stride + 128 * idx
                sr, vo = sWg, v_dg
                rows = [0, 32, 64, None][jj]
                m0r, m3r = s_m0, s_m3
            half = rows is None
            if not half:
                g.append(f"s_add_u32 m0, s{m0r}, {slot*SLOT + rows*rowb}")
                g.append(f"s_add_u32 s{s_b1}, s{b0}, {off + rows*stride}")
            else:
                g.append(f"s_add_u32 m0, s{m3r}, {slot*SLOT + m3x}")
                g.append(f"s_add_u32 s{s_b1}, s{b3}, {off}")
                g.append("s_mov_b32 exec_hi, 0")
            g.append(f"buffer_load_dwordx4 v{vo}, s[{sr}:{sr+3}], s{s_b1} offen lds")
            if half:
                g.append("s_mov_b32 exec_hi, -1")
            G.append((g, tag))
        return G

    def emit_group(vm, grp):
        g, tag = grp
        for ins in g:
            a(ins)
            if ins.startswith("buffer_"):
                vm.issue(tag)

    seq1 = [("qk", 0, 0), ("qk", 0, 1)] + [("gu", 0, p) for p in range(4)] + [("gu", 1, p) for p in range(4)]
    seq2 = [("qk", 0, 0), ("qk", 0, 1)] + [("v", 0, p) for p in range(4)] + [("gu", 0, p) for p in range(4)]
    c1groups = dmaA(seq1[1], 1, "c1")
    early = dmaA(seq1[0], 0, "c0") + c1groups[:OPT["c1e"]]
    c1b = (c1groups[3][0], "c1b")
    st("setup")

    F = vX
    a(f"s_cmp_eq_u32 s{s_g}, 0")
    a("s_cbranch_scc1 L_x0skip2")
    for (e, j) in xorder[:XF]:
        xload(e, j, False)
    a("L_x0skip2:")
    for (e, j) in xorder[:XF]:
        vm.issue(f"x{e}{j}")
    xrest = list(xorder[XF:])
    if not OPT["xil"]:
        while xrest:
            xload(*xrest.pop(0))
    def qdma(i0_, i1_, lab):
        a(f"s_cmp_lg_u32 s{s_g}, 0")
        a(f"s_cbranch_scc1 L_nodma{lab}")
        for i in range(i0_, i1_):
            a(f"s_add_u32 m0, s{s_mq0}, {32*i*128}")
            a(f"s_add_u32 s{s_b1}, s{s_q0}, {32*i*2688}")
            a(f"buffer_load_dwordx4 v{v_dq}, s[{sWq}:{sWq+3}], s{s_b1} offen lds")
            vm.issue("c0" if i < 7 else "c1")
        a(f"L_nodma{lab}:")
    if OPT["lnm"]:
        MF = "v_mfma_f32_4x4x4_16b_bf16"
        vOnes, vM = t, t + 2
        vAh, vAl, vB = t + 4, t + 6, t + 8
        S_, Q_, R_, U_ = t + 12, t + 13, t + 14, t + 15
        SA = [F, F + 4]
        QA = [F + 8, F + 12]
        D0 = F + 16
        sJ = [4, 6, 8]
        a(f"v_mov_b32 v{vOnes}, 0x3f803f80")
        a(f"v_mov_b32 v{vOnes+1}, 0x3f803f80")
        a(f"v_and_b32 v{U_}, 3, v{v_lane}")
        a(f"v_and_b32 v{R_}, 1, v{v_lane}")
        a(f"v_lshlrev_b32 v{R_}, 4, v{R_}")
        a(f"v_mov_b32 v{S_}, 0xffff")
        a(f"v_lshlrev_b32 v{S_}, v{R_}, v{S_}")
        a(f"v_cmp_gt_u32 s[{s_kv}:{s_kv+1}], 2, v{U_}")
        a(f"v_cmp_eq_u32 s[{s_bd}:{s_bd+1}], 0, v{R_}")
        a(f"v_cndmask_b32 v{vM}, 0, v{S_}, s[{s_kv}:{s_kv+1}]")
        a(f"v_cndmask_b32 v{vM+1}, v{S_}, 0, s[{s_kv}:{s_kv+1}]")
        Q4 = lambda r: f"v[{r}:{r+3}]"
        P2 = lambda r: f"v[{r}:{r+1}]"
        for e in range(2):
            for j in range(7):
                if xrest:
                    xload(*xrest.pop(0))
                a(f"s_waitcnt vmcnt({vm.wait_n(f'x{e}{j}')})")
                if (e, j) in ((0, 0), (1, 6)):
                    st(f"x{e}{j}")
                r = raw(e, j)
                for h2 in range(2):
                    cs = "0" if j == 0 else Q4(SA[h2])
                    a(f"{MF} {Q4(SA[h2])}, {P2(vOnes)}, {P2(r+2*h2)}, {cs}")
                    cq = "0" if j == 0 else Q4(QA[h2])
                    a(f"{MF} {Q4(QA[h2])}, {P2(r+2*h2)}, {P2(r+2*h2)}, {cq}")
            if e == 1 and OPT["dmae"]:
                qdma(0, OPT["dmae"], "a")
            a(f"v_add_f32 v{S_}, v{SA[0]}, v{SA[1]}")
            for k in range(0, 4, 2):
                a(f"v_pk_add_f32 {P2(QA[0]+k)}, {P2(QA[0]+k)}, {P2(QA[1]+k)}")
            a(f"v_cndmask_b32 v{QA[0]}, v{QA[0]+1}, v{QA[0]}, s[{s_bd}:{s_bd+1}]")
            a(f"v_cndmask_b32 v{QA[0]+2}, v{QA[0]+3}, v{QA[0]+2}, s[{s_bd}:{s_bd+1}]")
            a(f"v_cndmask_b32 v{Q_}, v{QA[0]+2}, v{QA[0]}, s[{s_kv}:{s_kv+1}]")
            for pat in ("quad_perm:[1,0,3,2]", "quad_perm:[2,3,0,1]", "row_half_mirror"):
                for r in (S_, Q_):
                    a(f"v_add_f32_dpp v{r}, v{r}, v{r} {pat} row_mask:0xf bank_mask:0xf")
            a(f"v_mul_f32 v{S_}, 0x{f2u(1.0/448):08x}, v{S_}")
            a(f"v_mul_f32 v{Q_}, 0x{f2u(1.0/448):08x}, v{Q_}")
            a(f"v_fma_f32 v{Q_}, -v{S_}, v{S_}, v{Q_}")
            a(f"v_max_f32 v{Q_}, 0, v{Q_}")
            a(f"v_add_f32 v{Q_}, 0x{f2u(1e-5):08x}, v{Q_}")
            a(f"v_rsq_f32 v{R_}, v{Q_}")
            a(f"v_cvt_pk_bf16_f32 v{U_}, v{R_}, v{R_}")
            a(f"v_mul_f32 v{vB}, -v{S_}, v{R_}")
            a(f"v_and_b32 v{Q_}, 0xffff0000, v{U_}")
            a(f"v_and_b32 v{vAh}, v{U_}, v{vM}")
            a(f"v_and_b32 v{vAh+1}, v{U_}, v{vM+1}")
            a(f"v_sub_f32 v{Q_}, v{R_}, v{Q_}")
            a(f"v_cvt_pk_bf16_f32 v{U_}, v{Q_}, v{Q_}")
            for k in range(1, 4):
                a(f"v_mov_b32 v{vB+k}, v{vB}")
            a(f"v_and_b32 v{vAl}, v{U_}, v{vM}")
            a(f"v_and_b32 v{vAl+1}, v{U_}, v{vM+1}")
            def nm(j):
                r = raw(e, j)
                d = D0 + 8 * (j % 4)
                for h2 in range(2):
                    a(f"{MF} {Q4(d+4*h2)}, {P2(vAh)}, {P2(r+2*h2)}, {Q4(vB)}")
                for h2 in range(2):
                    a(f"{MF} {Q4(d+4*h2)}, {P2(vAl)}, {P2(r+2*h2)}, {Q4(d+4*h2)}")
            def cv(j):
                r = raw(e, j)
                d = D0 + 8 * (j % 4)
                for k in range(4):
                    a(f"v_cvt_pk_bf16_f32 v{r+k}, v{d+2*k}, v{d+2*k+1}")
                a(f"ds_write_b128 v{v_xw + e + (2 if j >= 4 else 0)}, v[{r}:{r+3}] offset:{(j % 4)*16384}")
            nm(0); nm(1)
            for j in range(7):
                if j + 2 < 7:
                    nm(j + 2)
                cv(j)
    else:
        S_, Q_, R_ = t, t + 2, t + 4
        for e in range(2):
            for j in range(7):
                if xrest:
                    xload(*xrest.pop(0))
                a(f"s_waitcnt vmcnt({vm.wait_n(f'x{e}{j}')})")
                if (e, j) in ((0, 0), (1, 6)):
                    st(f"x{e}{j}")
                for d in range(4):
                    r = raw(e, j) + d
                    f = F + 8 * j + 2 * d
                    a(f"v_lshlrev_b32 v{f}, 16, v{r}")
                    a(f"v_and_b32 v{f+1}, 0xffff0000, v{r}")
                for d in range(4):
                    f = F + 8 * j + 2 * d
                    if j == 0 and d == 0:
                        a(f"v_pk_mul_f32 v[{Q_}:{Q_+1}], v[{f}:{f+1}], v[{f}:{f+1}]")
                    elif j == 0 and d == 1:
                        a(f"v_pk_add_f32 v[{S_}:{S_+1}], v[{f-2}:{f-1}], v[{f}:{f+1}]")
                        a(f"v_pk_fma_f32 v[{Q_}:{Q_+1}], v[{f}:{f+1}], v[{f}:{f+1}], v[{Q_}:{Q_+1}]")
                    else:
                        a(f"v_pk_add_f32 v[{S_}:{S_+1}], v[{S_}:{S_+1}], v[{f}:{f+1}]")
                        a(f"v_pk_fma_f32 v[{Q_}:{Q_+1}], v[{f}:{f+1}], v[{f}:{f+1}], v[{Q_}:{Q_+1}]")
            if e == 1 and OPT["dmae"]:
                qdma(0, OPT["dmae"], "a")
            for r in (S_, Q_):
                a(f"v_add_f32 v{r}, v{r}, v{r+1}")
            for pat in ("quad_perm:[1,0,3,2]", "quad_perm:[2,3,0,1]", "row_half_mirror"):
                for r in (S_, Q_):
                    a(f"v_add_f32_dpp v{r}, v{r}, v{r} {pat} row_mask:0xf bank_mask:0xf")
            a(f"v_mul_f32 v{S_}, 0x{f2u(1.0/448):08x}, v{S_}")
            a(f"v_mul_f32 v{Q_}, 0x{f2u(1.0/448):08x}, v{Q_}")
            a(f"v_fma_f32 v{Q_}, -v{S_}, v{S_}, v{Q_}")
            a(f"v_max_f32 v{Q_}, 0, v{Q_}")
            a(f"v_add_f32 v{Q_}, 0x{f2u(1e-5):08x}, v{Q_}")
            a(f"v_rsq_f32 v{R_}, v{Q_}")
            a(f"v_mul_f32 v{R_+2}, -v{S_}, v{R_}")
            for j in range(7):
                for d in range(4):
                    f = F + 8 * j + 2 * d
                    a(f"v_pk_fma_f32 v[{f}:{f+1}], v[{f}:{f+1}], v[{R_}:{R_+1}], v[{R_+2}:{R_+3}] op_sel_hi:[1,0,0]")
                for d in range(4):
                    f = F + 8 * j + 2 * d
                    a(f"v_cvt_pk_bf16_f32 v{raw(e, j)+d}, v{f}, v{f+1}")
                r = raw(e, j)
                a(f"ds_write_b128 v{v_xw + e + (2 if j >= 4 else 0)}, v[{r}:{r+3}] offset:{(j % 4)*16384}")
    st("lnend")
    qdma(OPT["dmae"], 12, "b")
    gtouch(sWg, 13, False, t + 10, vm)
    a(f"buffer_store_dwordx2 v[{v_non}:{v_non+1}], v{v_e0}, s[{sDbg}:{sDbg+3}], 0 offen sc1")
    vm.issue("t")
    a(f"s_waitcnt vmcnt({vm.wait_n('c0')}) lgkmcnt(0)")
    a("s_barrier")
    st("B1")
    a(f"s_and_b32 s{s_t0}, s{s_cb}, 3")
    a(f"s_cmp_eq_u32 s{s_t0}, 3")
    a("s_cbranch_scc1 L_type2")

    def deferred(is2):
        D = []
        S = D.append
        tt = vT
        d0, d1 = s_d0, s_d1
        if is2:
            S(f"v_lshrrev_b32 v{tt}, 4, v{v_lane}")
            S(f"v_and_b32 v{tt+1}, 15, v{v_lane}")
            S(f"v_mul_u32_u24 v{tt+2}, 2688, v{tt}")
            S(f"v_lshlrev_b32 v{tt+3}, 2, v{tt}")
            S(f"v_xor_b32 v{tt+3}, v{tt+3}, v{tt+1}")
            S(f"v_lshl_add_u32 v{v_dv}, v{tt+3}, 4, v{tt+2}")
            S(f"s_and_b32 s{d0}, s{s_w}, 1")
            S(f"s_lshl_b32 s{d0}, s{d0}, 7")
            S(f"v_lshlrev_b32 v{tt+3}, 4, v{tt+3}")
            S(f"v_xor_b32 v{tt+3}, s{d0}, v{tt+3}")
            S(f"v_add_u32 v{v_dvh}, v{tt+3}, v{tt+2}")
            S(f"v_bfe_u32 v{tt}, v{v_lane}, 2, 2")
            S(f"v_and_b32 v{tt+1}, 3, v{v_lane}")
            S(f"v_bfe_u32 v{tt+2}, v{v_lane}, 4, 1")
            S(f"v_lshrrev_b32 v{tt+3}, 5, v{v_lane}")
            S(f"v_lshl_add_u32 v{tt+3}, v{tt+3}, 3, v{tt}")
            S(f"v_lshlrev_b32 v{tt+3}, 8, v{tt+3}")
            S(f"v_lshlrev_b32 v{tt+1}, 4, v{tt+1}")
            S(f"v_lshl_add_u32 v{tt+1}, v{tt+2}, 3, v{tt+1}")
            S(f"s_mul_i32 s{d0}, s{s_g}, 112")
            S(f"v_add_u32 v{tt+1}, s{d0}, v{tt+1}")
            S(f"v_lshlrev_b32 v{tt}, 6, v{tt}")
            S(f"v_xor_b32 v{tt+2}, v{tt+1}, v{tt}")
            S(f"v_add_u32 v{v_bv0}, v{tt+2}, v{tt+3}")
            S(f"v_add_u32 v{tt+1}, 56, v{tt+1}")
            S(f"v_xor_b32 v{tt+2}, v{tt+1}, v{tt}")
            S(f"v_add_u32 v{v_bv1}, v{tt+2}, v{tt+3}")
        D += srd(sWS, 34, 35, WS_BYTES) + srd(sWd, 28, 29, WD_BYTES) + srd(sWo, 20, 21, WO_BYTES) + srd(sO, 30, 31, X_BYTES)
        S(f"s_cmp_lt_u32 s{s_cb}, 8\ns_cselect_b32 s{s_scale}, 0x{f2u(QSCALE):08x}, 1.0")
        S(f"s_lshl1_add_u32 s{s_qkst}, s{s_cb}, s{s_g}")
        S(f"s_lshl_b32 s{s_qkst}, s{s_qkst}, 17")
        S(f"s_lshl2_add_u32 s{d0}, s{s_tb}, s{s_mt}")
        S(f"s_mul_i32 s{d1}, s{d0}, {NKS*1024}")
        S(f"s_add_u32 s{s_hst}, s{s_hst}, s{d1}")
        S(f"s_lshl_b32 s{d1}, s{s_g}, 11")
        S(f"s_add_u32 s{s_hst}, s{s_hst}, s{d1}")
        S(f"s_add_u32 s{s_hst}, s{s_hst}, {HF}")
        S(f"s_lshl_b32 s{d0}, s{d0}, 11")
        S(f"s_add_u32 s{s_qkst}, s{s_qkst}, s{d0}")
        if is2:
            S(f"s_and_b32 s{s_vst}, s{s_cb}, 12")
            S(f"s_lshl1_add_u32 s{s_vst}, s{s_g}, s{s_vst}")
            S(f"s_lshl_b32 s{s_vst}, s{s_vst}, 17")
            S(f"s_add_u32 s{s_vst}, s{s_vst}, s{d0}")
            S(f"s_add_u32 s{s_vst}, s{s_vst}, {VF}")
            S(f"v_and_b32 v{tt}, 31, v{v_lane}")
            S(f"v_cmp_eq_u32 s[{s_one}:{s_one+1}], 28, v{tt}")
            S(f"v_mov_b32 v{v_one}, 0x3f803f80")
        S(f"s_and_b32 s{s_wr}, s{s_tb}, 3")
        S(f"v_mov_b32 v{v_c1}, 0x{f2u(GC1):08x}")
        S(f"v_mov_b32 v{v_c2}, 0x{f2u(GC2):08x}")
        S(f"v_mov_b32 v{v_k1}, 1.0")
        S(f"v_lshlrev_b32 v{v_st}, 4, v{v_lane}")
        S(f"v_bfe_u32 v{tt}, v{v_lane}, 3, 1")
        S(f"v_lshlrev_b32 v{tt}, 4, v{tt}")
        S(f"v_bfe_u32 v{tt+1}, v{v_lane}, 4, 1")
        S(f"v_lshl_or_b32 v{tt}, v{tt+1}, 3, v{tt}")
        S(f"v_and_b32 v{tt+1}, 0x27, v{v_lane}")
        S(f"v_or_b32 v{tt}, v{tt}, v{tt+1}")
        S(f"v_lshlrev_b32 v{v_stk}, 4, v{tt}")
        S(f"s_cmp_lt_u32 s{s_cb}, 8\ns_cselect_b64 s[{d0}:{d0+1}], -1, 0")
        S(f"v_cndmask_b32 v{v_stk}, v{v_stk}, v{v_st}, s[{d0}:{d0+1}]")
        S(f"v_cmp_gt_u32 s[{d0}:{d0+1}], 32, v{v_lane}")
        S(f"v_cndmask_b32 v{v_msk}, 0, -1, s[{d0}:{d0+1}]")
        return D

    def deferred2():
        D = []
        S = D.append
        tt = vT + 8
        d0, d1 = s_d0, s_d1
        S(f"s_and_b32 s{d0}, s2, 7")
        S(f"s_lshr_b32 s{d1}, s2, 7")
        S(f"s_lshl1_add_u32 s{s_h}, s{d0}, s{d1}")
        S(f"s_bfe_u32 s{s_qb}, s2, 0x40003")
        S(f"s_bfe_u32 s{d1}, s2, 0x20003")
        S(f"s_lshl2_add_u32 s{s_tb64}, s{d0}, s{d1}")
        S(f"s_lshr_b32 s{s_nb}, s2, 5")
        S(f"s_lshr_b32 s{d0}, s{s_h}, 1")
        S(f"s_or_b32 s{d1}, s{s_h}, 3")
        S(f"v_min_u32 v{tt}, 1, v{v_lane}")
        S(f"v_sub_u32 v{tt+1}, v{v_lane}, v{tt}")
        S(f"v_sub_u32 v{tt+1}, s{s_qb}, v{tt+1}")
        S(f"v_max_i32 v{tt+1}, 0, v{tt+1}")
        S(f"v_lshl_add_u32 v{tt}, v{tt}, 3, s{d0}")
        S(f"v_lshl_add_u32 v{tt}, v{tt+1}, 4, v{tt}")
        S(f"v_lshlrev_b32 v{tt}, 3, v{tt}")
        S(f"v_add_u32 v{tt}, {FL + F_QK*2048}, v{tt}")
        S(f"v_sub_u32 v{tt+1}, s{s_qb}, v{v_lane}")
        S(f"v_max_i32 v{tt+1}, 0, v{tt+1}")
        S(f"v_lshl_add_u32 v{tt+1}, v{tt+1}, 4, s{d1}")
        S(f"v_lshlrev_b32 v{tt+1}, 3, v{tt+1}")
        S(f"v_add_u32 v{tt+1}, {FL + F_V*2048}, v{tt+1}")
        S(f"v_mov_b32 v{tt+2}, {OOB}")
        S(f"v_cmp_gt_u32 s[{d0}:{d0+1}], 4, v0")
        S(f"v_cndmask_b32 v{v_pa}, v{tt+2}, v{tt}, s[{d0}:{d0+1}]")
        S(f"v_cndmask_b32 v{v_paV}, v{tt+2}, v{tt+1}, s[{d0}:{d0+1}]")
        S(f"s_lshr_b32 s{d0}, s{s_tb64}, 1")
        S(f"s_lshl_b32 s{d0}, s{d0}, 7")
        S(f"s_add_u32 s{d0}, s{d0}, {FL + F_H*2048}")
        S(f"v_lshl_add_u32 v{tt}, v{v_lane}, 3, s{d0}")
        S(f"v_cmp_gt_u32 s[{d0}:{d0+1}], 16, v{0 if OPT['p1'] else v_lane}")
        S(f"v_cndmask_b32 v{v_paH}, v{tt+2}, v{tt}, s[{d0}:{d0+1}]")
        S(f"s_lshl4_add_u32 s{s_fp}, s{s_tb}, s{s_cb}")
        S(f"s_lshl_b32 s{s_fp}, s{s_fp}, 3")
        S(f"s_add_u32 s{s_fp}, s{s_fp}, {FL}")
        S(f"s_lshl4_add_u32 s{s_fo}, s{s_qb}, s{s_h}")
        S(f"s_lshl_b32 s{s_fo}, s{s_fo}, 3")
        S(f"s_add_u32 s{s_fo}, s{s_fo}, {FL}")
        S(f"s_lshl_b32 s{s_kv}, s{s_h}, 17")
        S(f"s_lshl_b32 s{d0}, s{s_qb}, 13")
        S(f"s_add_u32 s{s_kv}, s{s_kv}, s{d0}")
        S(f"v_and_b32 v{tt}, 15, v{v_lane}")
        S(f"v_lshrrev_b32 v{tt+1}, 4, v{v_lane}")
        S(f"v_lshlrev_b32 v{v_qa}, 9, v{tt+1}")
        S(f"v_lshl_add_u32 v{v_qa}, v{tt}, 4, v{v_qa}")
        S(f"s_and_b32 s{s_nt}, s{s_w}, 1")
        S(f"s_lshl_b32 s{s_par}, s{s_nt}, 8")
        S(f"s_lshr_b32 s{s_bd}, s{s_w}, 1")
        S(f"s_lshl2_add_u32 s{s_bd}, s{s_qb}, s{s_bd}")
        S(f"s_mul_i32 s{s_ost}, s{s_bd}, {NKS*1024}")
        S(f"s_lshl_b32 s{d0}, s{s_h}, 11")
        S(f"s_add_u32 s{s_ost}, s{s_ost}, s{d0}")
        S(f"s_add_u32 s{s_ost}, s{s_ost}, s{s_par}")
        S(f"s_add_u32 s{s_ost}, s{s_ost}, {HF + 112*1024}")
        S(f"v_and_b32 v{v_d}, 3, v{v_lane}")
        S(f"v_bfe_u32 v{tt}, v{v_lane}, 2, 1")
        S(f"v_lshl_or_b32 v{v_d}, v{tt}, 3, v{v_d}")
        S(f"v_bfe_u32 v{tt}, v{v_lane}, 3, 1")
        S(f"v_lshl_or_b32 v{v_d}, v{tt}, 2, v{v_d}")
        S(f"s_lshl_b32 s{d0}, s{s_nt}, 4")
        S(f"v_add_u32 v{v_d}, s{d0}, v{v_d}")
        S(f"v_lshlrev_b32 v{tt}, 3, v{tt+1}")
        S(f"v_sub_u32 v{v_d}, v{v_d}, v{tt}")
        S(f"s_lshr_b32 s{s_kh}, s{s_w}, 2")
        S(f"s_bfe_u32 s{s_cmt}, s{s_w}, 0x10001")
        S(f"v_lshrrev_b32 v{tt}, 3, v{v_lane}")
        S(f"v_and_b32 v{tt+1}, 7, v{v_lane}")
        S(f"v_bfe_u32 v{tt+2}, v{v_lane}, 4, 1")
        S(f"v_lshlrev_b32 v{tt+3}, 2, v{tt+2}")
        S(f"v_xor_b32 v{tt+3}, v{tt+3}, v{tt+1}")
        S(f"v_mul_u32_u24 v{v_dw}, 896, v{tt}")
        S(f"v_lshl_add_u32 v{v_dw}, v{tt+3}, 4, v{v_dw}")
        S(f"s_lshl_b32 s{s_m0h}, s{s_w}, 11")
        S(f"s_add_u32 s{s_m0w}, s{s_m0h}, {NH*16384}")
        S(f"s_mul_i32 s{s_wb}, s{s_w}, {16*896}")
        S(f"s_lshl_b32 s{d0}, s{s_nb}, 7")
        S(f"s_add_u32 s{s_wb}, s{s_wb}, s{d0}")
        S(f"s_lshr_b32 s{s_wob}, s{s_w}, 1")
        S(f"s_mul_i32 s{s_wob}, s{s_wob}, 28")
        S(f"s_lshl4_add_u32 s{s_wob}, s{s_nt}, s{s_wob}")
        S(f"s_mul_i32 s{s_wob}, s{s_wob}, 896")
        S(f"s_add_u32 s{s_wob}, s{s_wob}, s{d0}")
        S(f"s_lshl1_add_u32 s{d1}, s{s_tb64}, s{s_cmt}")
        S(f"s_mul_i32 s{s_xo}, s{d1}, {32*896}")
        S(f"s_add_u32 s{s_xo}, s{s_xo}, s{d0}")
        S(f"s_lshl_b32 s{d0}, s{s_nt}, 6")
        S(f"s_add_u32 s{s_xo}, s{s_xo}, s{d0}")
        S(f"s_lshl_b32 s{d0}, s{s_kh}, 5")
        S(f"s_add_u32 s{s_xo}, s{s_xo}, s{d0}")
        if OPT["rotc"]:
            S(f"s_lshl_b32 s{s_hr}, s{s_nb}, 14")
            S(f"s_mul_i32 s{d0}, s{s_nb}, {2*128*896}")
            S(f"s_add_u32 s{s_wb}, s{s_wb}, s{d0}")
        else:
            S(f"s_mov_b32 s{s_hr}, 0")
        S(f"s_lshl1_add_u32 s{s_hb}, s{s_tb64}, s{s_kh}")
        S(f"s_mul_i32 s{s_hb}, s{s_hb}, {NKS*1024}")
        S(f"s_lshl_b32 s{d0}, s{s_mt}, 11")
        S(f"s_add_u32 s{s_hb}, s{s_hb}, s{d0}")
        S(f"s_add_u32 s{s_hb}, s{s_hb}, {HF}")
        return D

    SC = "sc1"
    def epi_qk(acc):
        E = []
        for r in range(16):
            E.append(f"v_mul_f32 v{acc+r}, s{s_scale}, v{acc+r}")
        for d in range(8):
            E.append(f"v_cvt_pk_bf16_f32 v{vT+d}, v{acc+2*d}, v{acc+2*d+1}")
        E.append(f"v_and_b32 v{vT+6}, v{vT+6}, v{v_msk}")
        E.append(f"v_and_b32 v{vT+7}, v{vT+7}, v{v_msk}")
        return E
    qk_stores = [f"buffer_store_dwordx4 v[{vT}:{vT+3}], v{v_stk}, s[{sWS}:{sWS+3}], s{s_qkst} offen {SC}",
                 f"buffer_store_dwordx4 v[{vT+4}:{vT+7}], v{v_stk}, s[{sWS}:{sWS+3}], s{s_qkst} offen offset:1024 {SC}"]

    def epi_v(acc):
        E = []
        for jj in range(2):
            Ac = acc + 16 * jj
            T = vT + 8 * jj
            for d in range(8):
                E.append(f"v_cvt_pk_bf16_f32 v{T+d}, v{Ac+2*d}, v{Ac+2*d+1}")
            for d in range(8):
                E.append(f"v_cndmask_b32 v{T+d}, v{T+d}, v{v_one}, s[{s_one}:{s_one+1}]")
            if jj:
                E.append(f"s_add_u32 s{s_vst}, s{s_vst}, {1 << 17}")
            E.append(f"buffer_store_dwordx4 v[{T}:{T+3}], v{v_st}, s[{sWS}:{sWS+3}], s{s_vst} offen {SC}")
            E.append(f"buffer_store_dwordx4 v[{T+4}:{T+7}], v{v_st}, s[{sWS}:{sWS+3}], s{s_vst} offen offset:1024 {SC}")
        return E

    def epi_gu_tile(acc, jj, pk):
        E = []
        Ac = acc + 16 * jj
        T = vT + 12 * jj
        P = lambda r: f"v[{r}:{r+1}]"
        if pk:
            for i in range(0, 8, 2):
                E.append(f"v_pk_mul_f32 {P(T+i)}, {P(Ac+i)}, {P(Ac+i)}")
            for i in range(0, 8, 2):
                E.append(f"v_pk_fma_f32 {P(T+i)}, {P(T+i)}, {P(v_c2)}, {P(v_c1)} op_sel_hi:[1,0,0]")
            for i in range(0, 8, 2):
                E.append(f"v_pk_mul_f32 {P(T+i)}, {P(T+i)}, {P(Ac+i)}")
            for i in range(8):
                E.append(f"v_exp_f32 v{T+i}, v{T+i}")
                if i % 2:
                    E.append(f"v_pk_mul_f32 {P(Ac+i-1)}, {P(Ac+i-1)}, {P(Ac+8+i-1)}")
            for i in range(0, 8, 2):
                E.append(f"v_pk_add_f32 {P(T+i)}, {P(T+i)}, {P(v_k1)} op_sel_hi:[1,0]")
            for i in range(8):
                E.append(f"v_rcp_f32 v{T+i}, v{T+i}")
            for i in range(0, 8, 2):
                E.append(f"v_pk_mul_f32 {P(Ac+i)}, {P(Ac+i)}, {P(T+i)}")
        else:
            for i in range(8):
                E.append(f"v_mul_f32 v{T+i}, v{Ac+i}, v{Ac+i}")
            for i in range(8):
                E.append(f"v_fma_f32 v{T+i}, v{T+i}, v{v_c2}, v{v_c1}")
            for i in range(8):
                E.append(f"v_mul_f32 v{T+i}, v{T+i}, v{Ac+i}")
            for i in range(8):
                E.append(f"v_exp_f32 v{T+i}, v{T+i}")
                E.append(f"v_mul_f32 v{Ac+i}, v{Ac+i}, v{Ac+8+i}")
            for i in range(8):
                E.append(f"v_add_f32 v{T+i}, 1.0, v{T+i}")
            for i in range(8):
                E.append(f"v_rcp_f32 v{T+i}, v{T+i}")
            for i in range(8):
                E.append(f"v_mul_f32 v{Ac+i}, v{Ac+i}, v{T+i}")
        for d in range(4):
            E.append(f"v_cvt_pk_bf16_f32 v{T+8+d}, v{Ac+2*d}, v{Ac+2*d+1}")
        E.append(f"buffer_store_dwordx4 v[{T+8}:{T+11}], v{v_st}, s[{sWS}:{sWS+3}], s{s_hst} offen offset:{1024*jj} {SC}")
        return E

    def publish(vm, kind, s_base):
        a(f"s_add_u32 s{s_t1}, s{s_base}, {kind*2048}")
        a(f"buffer_store_dwordx2 v[{v_non}:{v_non+1}], v{v_fa}, s[{sWS}:{sWS+3}], s{s_t1} offen sc1")
        vm.issue("flag")

    def poll(vm, vaddr):
        a(f"buffer_load_dwordx2 v[{v_pf}:{v_pf+1}], v{vaddr}, s[{sWS}:{sWS+3}], 0 offen sc1")
        if vm is not None:
            vm.issue("poll")

    spin_id = [0]
    def wait_flags(vm, vaddr, nlanes):
        i = spin_id[0]; spin_id[0] += 1
        mask = (1 << nlanes) - 1
        if OPT["p1"]:
            a(f"s_cmp_lg_u32 s{s_w}, 0")
            a(f"s_cbranch_scc1 L_wf_done{i}")
        a(f"s_mov_b32 s{s_t2}, 0")
        a(f"s_waitcnt vmcnt({vm.wait_n('poll')})")
        a(f"L_wf{i}:")
        a(f"v_cmp_eq_u64 vcc, v[{v_pf}:{v_pf+1}], v[{v_non}:{v_non+1}]")
        a(f"s_and_b32 s{s_t1}, vcc_lo, {mask}")
        a(f"s_cmp_eq_u32 s{s_t1}, {mask}")
        a(f"s_cbranch_scc1 L_wf_done{i}")
        a(f"s_add_u32 s{s_t2}, s{s_t2}, 1")
        a(f"s_cmp_gt_u32 s{s_t2}, 100000")
        a(f"s_cbranch_scc1 L_wf_done{i}")
        a(f"s_sleep {OPT['slp']}")
        poll(None, vaddr)
        a("s_waitcnt vmcnt(0)")
        a(f"s_branch L_wf{i}")
        a(f"L_wf_done{i}:")

    def kq_groups():
        g = [f"s_mul_i32 s{s_b2}, s{s_w}, 3072",
             f"s_mov_b32 m0, s{s_b2}",
             f"s_add_u32 s{s_b1}, s{s_kv}, s{s_b2}",
             f"s_add_u32 s{s_b1}, s{s_b1}, {KF - 16384}"]
        for j in range(3):
            g.append(f"buffer_load_dwordx4 v{v_st}, s[{sWS}:{sWS+3}], s{s_b1} offen offset:{1024*j} sc1 lds")
        g2 = [f"s_lshr_b32 s{s_b2}, s{s_w}, 1",
              f"s_lshl_b32 s{s_b2}, s{s_b2}, 11",
              f"s_add_u32 s{s_b2}, s{s_b2}, s{s_par}",
              f"s_add_u32 s{s_b2}, s{s_b2}, s{s_kv}",
              f"buffer_load_dwordx4 v[{vQ}:{vQ+3}], v{v_qa}, s[{sWS}:{sWS+3}], s{s_b2} offen sc1"]
        return [(g, "k"), (g2, "k")]
    tailk = {}
    st_state = (st.n, list(st.names))
    def main(seq, vm):
        st.n, st.names = st_state[0], list(st_state[1])
        is2 = seq[2][0] == "v"
        lg = Cnt(15)
        M = []
        sp = -1
        prev = None
        for c, (kind, idx, part) in enumerate(seq):
            if (kind, idx) != prev:
                sp += 1
                prev = (kind, idx)
            if kind == "qk":
                for s in range(14):
                    M.append(dict(c=c, kind=kind, idx=idx, ks=14 * part + s, sl=s, jj=0, first=(part == 0 and s == 0), sp=sp))
            else:
                for s in range(7):
                    for jj in range(2):
                        M.append(dict(c=c, kind=kind, idx=idx, ks=7 * part + s, sl=s, jj=jj, first=(part == 0 and s == 0), sp=sp))
        LA = 3
        cur = [-1]
        def reads(m):
            mm = M[m]
            c = mm["c"]
            if cur[0] != c:
                cur[0] = c
                so = (c % 5) * SLOT
                if mm["kind"] == "qk":
                    a(f"v_add_u32 v{v_rdA}, {so}, v{v_bqk}")
                elif mm["kind"] == "v":
                    a(f"v_add_u32 v{v_rdA}, {so}, v{v_bv0}")
                    a(f"v_add_u32 v{v_rdB}, {so}, v{v_bv1}")
                else:
                    a(f"v_add_u32 v{v_rdA}, {so}, v{v_bg0}")
                    a(f"v_add_u32 v{v_rdB}, {so}, v{v_bg1}")
            b = vW + 4 * (m % 4)
            ad = v_rdB if mm["jj"] else v_rdA
            rb = 2 if mm["kind"] == "v" else 1
            o = mm["sl"] * 2048 * rb
            a(f"ds_read_b64_tr_b16 v[{b}:{b+1}], v{ad} offset:{o}")
            a(f"ds_read_b64_tr_b16 v[{b+2}:{b+3}], v{ad} offset:{o+512*rb}")
            lg.issue(f"w{m}"); lg.issue(f"w{m}")
        xn = [0]
        def xread(k=1):
            for _ in range(k):
                ks = xn[0]
                if ks >= 28:
                    return
                xn[0] += 1
                j, s2 = divmod(ks, 4)
                r = vX + 4 * ks
                a(f"ds_read_b128 v[{r}:{r+3}], v{v_xa + s2 + (4 if j >= 4 else 0)} offset:{(j % 4)*16384}")
                lg.issue(f"x{ks}")
        for m in range(LA):
            xread(1)
            reads(m)
        xread(3)
        pend = deferred(is2)
        pend_tag = "st"
        rate = len(pend) / 24.0
        accum = 0.0
        hold = 0
        n = len(M)
        bg = []
        B2 = OPT["b2"]
        def emit_pend():
            ins = pend.pop(0)
            a(ins)
            if ins.startswith("buffer_"):
                vm.issue(pend_tag)
        w2k = [0]
        def slot_store(stores, vaddr, k, nk, tag):
            if nk > 1:
                if nk == 2:
                    a(f"s_bitcmp{k}_b32 s{s_wr}, 0")
                else:
                    a(f"s_cmp_eq_u32 s{s_wr}, {k}")
                a(f"s_cselect_b64 s[{s_t0}:{s_t0+1}], -1, 0")
                a(f"v_cndmask_b32 v{v_e0}, v{v_e1}, v{vaddr}, s[{s_t0}:{s_t0+1}]")
                stores = [x.replace(f", v{vaddr},", f", v{v_e0},") for x in stores]
            for x in stores:
                a(x); vm.issue(tag)
        late = {}
        dsched = {}
        for m in range(n):
            mm = M[m]
            c = mm["c"]
            if m in STM:
                st(f"m{m}")
            if m == B2:
                assert xn[0] >= 28 and B2 <= 11
                a(f"s_waitcnt vmcnt({vm.wait_n('c1')}) lgkmcnt({lg.wait_n('x27')})")
                a("s_barrier")
                emit_group(vm, c1b)
                bg += dmaA(seq[2], 2, "c2") + dmaA(seq[3], 3, "c3") + dmaA(seq[4], 4, "c4")
                bg.append(([f"buffer_load_dwordx2 v[{v_non}:{v_non+1}], v{v_zero}, s[{sDbg}:{sDbg+3}], 0 offen sc1"], "nonce"))
            if m == 20:
                a(f"s_waitcnt vmcnt({vm.wait_n('c1b')})")
                a("s_barrier")
            if m % 14 == (8 if c != 1 else 10) and 1 <= c < len(seq) - 1:
                tags = [f"c{c+1}"]
                while not vm.has(tags[0]) or any(g[1] == tags[0] for g in bg):
                    emit_group(vm, bg.pop(0))
                if c == OPT["pubqk"]:
                    tags.append("st_qk")
                if c == OPT["kq"]:
                    wait_flags(vm, v_pa, 4)
                a(f"s_waitcnt vmcnt({vm.wait_n(*tags)})")
                a("s_barrier")
                if c == OPT["pubqk"]:
                    publish(vm, F_QK, s_fp)
                if c == OPT["kq"]:
                    bg += kq_groups()
                if c + 4 < len(seq):
                    dl = OPT.get(f"d{c+4}", 0)
                    if dl > m:
                        dsched[dl] = c + 4
                    else:
                        bg += dmaA(seq[c + 4], (c + 4) % 5, f"c{c+4}")
                if c == 4:
                    i = spin_id[0]; spin_id[0] += 1
                    a(f"s_mov_b32 s{s_t2}, 0")
                    a(f"L_nz{i}:")
                    a(f"v_readfirstlane_b32 s{s_t1}, v{v_non}")
                    a(f"s_cmp_lg_u32 s{s_t1}, 0")
                    a(f"s_cbranch_scc1 L_nz_done{i}")
                    a(f"s_add_u32 s{s_t2}, s{s_t2}, 1")
                    a(f"s_cmp_gt_u32 s{s_t2}, 100000")
                    a(f"s_cbranch_scc1 L_nz_done{i}")
                    a("s_sleep 2")
                    a(f"buffer_load_dwordx2 v[{v_non}:{v_non+1}], v{v_zero}, s[{sDbg}:{sDbg+3}], 0 offen sc1")
                    a("s_waitcnt vmcnt(0)")
                    a(f"s_branch L_nz{i}")
                    a(f"L_nz_done{i}:")
            if m in dsched:
                k = dsched[m]
                bg += dmaA(seq[k], k % 5, f"c{k}")
            for k in range(OPT["qkn"]):
                if m == OPT["qkst"] + k * OPT["qkgap"]:
                    slot_store(qk_stores, v_stk, k, OPT["qkn"], "st_qk")
            if m == OPT["pubm"] and is2:
                a(f"s_waitcnt vmcnt({vm.wait_n('st_qkv')})")
                a("s_barrier")
                publish(vm, F_V, s_fp)
            if m == 14 * OPT["kq"] + 8 - OPT["kqlead"]:
                poll(vm, v_pa)
            if m in late:
                for (ins, k, nk, flush) in late[m]:
                    if flush:
                        while pend:
                            emit_pend()
                    if ins.startswith("buffer_"):
                        slot_store([ins], v_st, k, nk, "st_h0")
                    else:
                        a(ins)
            if m == OPT["w2s"]:
                gtouch(sWd, 7, True, v_e0, vm)
                gtouch(sWo, 2, True, v_e0, vm)
            if m + LA < n:
                reads(m + LA)
            xread(OPT["xr"])
            tags = [f"w{m}"]
            if mm["sp"] == 0:
                tags.append(f"x{mm['ks']}")
            a(f"s_waitcnt lgkmcnt({lg.wait_n(*tags)})")
            accb = ACC[(mm["sp"] + 1) % 2]
            acc = accb + 16 * mm["jj"]
            b = vW + 4 * (m % 4)
            x = vX + 4 * mm["ks"]
            csrc = "0" if mm["first"] else f"v[{acc}:{acc+15}]"
            if mm["kind"] == "v":
                a(f"v_mfma_f32_32x32x16_bf16 v[{acc}:{acc+15}], v[{x}:{x+3}], v[{b}:{b+3}], {csrc}")
            else:
                a(f"v_mfma_f32_32x32x16_bf16 v[{acc}:{acc+15}], v[{b}:{b+3}], v[{x}:{x+3}], {csrc}")
            if bg and (m % OPT["bgp"] == 0 or len(bg) > 4):
                emit_group(vm, bg.pop(0))
            last_of_sp = (m + 1 == n) or (M[m + 1]["sp"] != mm["sp"])
            if pend and not hold:
                accum += rate
                while accum >= 1.0 and pend:
                    emit_pend()
                    accum -= 1.0
            if hold:
                hold -= 1
            if last_of_sp:
                while pend:
                    emit_pend()
                if m + 1 < n:
                    nsp = sum(1 for q in M if q["sp"] == mm["sp"] + 1)
                    if mm["kind"] == "qk":
                        pend = epi_qk(accb) + deferred2()
                        rate = max(len(pend) / (nsp - 8), 27.0 / max(1, OPT["qkst"] - 31))
                    elif mm["kind"] == "v":
                        pend = epi_v(accb)
                        pend_tag = "st_qkv"
                        rate = 3.0
                    else:
                        e0 = epi_gu_tile(accb, 0, OPT["pk"] & 2); e1 = epi_gu_tile(accb, 1, OPT["pk"] & 2)
                        if OPT["hst0"]:
                            s0_, s1_ = e0.pop(), e1.pop()
                            nk = OPT["hn"]
                            for k in range(nk):
                                late.setdefault(OPT["hst0"] + k * OPT["hgap"], []).append((s0_, k, nk, False))
                                late.setdefault(OPT["hst1"] + k * OPT["hgap"], []).append((s1_, k, nk, True))
                            late.setdefault(139, []).append((f"s_add_u32 s{s_hst}, s{s_hst}, 4096", 0, 1, False))
                            assert OPT["hst1"] + (nk - 1) * OPT["hgap"] <= 139
                            assert (OPT["hst0"] - 86) * 2 >= (OPT["hst1"] - 88)
                            pend = e0 + e1
                            rate = len(pend) / (OPT["hst1"] - 84 - 4)
                        else:
                            pend = e0 + e1 + [f"s_add_u32 s{s_hst}, s{s_hst}, 4096"]
                            rate = len(pend) / (nsp - 8)
                        pend_tag = "st_h0"
                    accum = 0.0
                    hold = 2
                else:
                    assert accb == ACC[1]
        assert not bg
        tailk[is2] = vm.wait_n("k")

    main(seq1, copy.deepcopy(vm))
    a("s_branch L_postA")
    a("L_type2:")
    main(seq2, copy.deepcopy(vm))
    a("L_postA:")
    st("T")
    vm = VM()

    vS = 132
    vKF = 204
    vP = 64
    vO = 100
    v_ka, v_va, v_m, v_u = 3, 4, 2, 128
    u = v_u

    def dmaW(c):
        slot = (c % NW) * 16384
        G = []
        for jj in range(2):
            g = [f"s_add_u32 m0, s{s_m0w}, {slot + 1024*jj}"]
            if c < 14:
                g.append(f"s_add_u32 s{s_b1}, s{s_wb}, {(128*c + 8*jj)*896}")
                g.append(f"s_sub_u32 s{s_b2}, s{s_b1}, {WD_BYTES}")
                g.append(f"s_min_u32 s{s_b1}, s{s_b1}, s{s_b2}")
                g.append(f"buffer_load_dwordx4 v{v_dw}, s[{sWd}:{sWd+3}], s{s_b1} offen lds")
            else:
                g.append(f"s_add_u32 s{s_b1}, s{s_nb}, {c-14}")
                g.append(f"s_and_b32 s{s_b1}, s{s_b1}, 3")
                g.append(f"s_mul_i32 s{s_b1}, s{s_b1}, {112*896}")
                g.append(f"s_add_u32 s{s_b1}, s{s_b1}, s{s_wob}")
                if jj:
                    g.append(f"s_add_u32 s{s_b1}, s{s_b1}, {8*896}")
                g.append(f"buffer_load_dwordx4 v{v_dw}, s[{sWo}:{sWo+3}], s{s_b1} offen lds")
            G.append((g, f"w{c}"))
        return G

    def dmaH(c):
        slot = (c % NH) * 16384
        g = [f"s_add_u32 m0, s{s_m0h}, {slot}"]
        if c < 14:
            g.append(f"s_add_u32 s{s_b1}, s{s_hr}, {8192*c}")
            g.append(f"s_sub_u32 s{s_b2}, s{s_b1}, {14*8192}")
            g.append(f"s_min_u32 s{s_b1}, s{s_b1}, s{s_b2}")
        else:
            g.append(f"s_add_u32 s{s_b1}, s{s_nb}, {c-14}")
            g.append(f"s_and_b32 s{s_b1}, s{s_b1}, 3")
            g.append(f"s_lshl_b32 s{s_b1}, s{s_b1}, 13")
            g.append(f"s_add_u32 s{s_b1}, s{s_b1}, {14*8192}")
        g.append(f"s_add_u32 s{s_b1}, s{s_b1}, s{s_hb}")
        for jj in range(2):
            g.append(f"buffer_load_dwordx4 v{v_st}, s[{sWS}:{sWS+3}], s{s_b1} offen offset:{1024*jj} sc1 lds")
        return (g, f"h{c}")

    wq = []
    for c in range(NW):
        wq += dmaW(c)
    cnt = [0]
    def e(ins, every=OPT["wspread"]):
        a(ins)
        cnt[0] += 1
        if cnt[0] % every == 0 and wq:
            emit_group(vm, wq.pop(0))

    poll(vm, v_paV)
    a(f"s_lshr_b32 s{s_t2}, s{s_w}, 1")
    a(f"s_lshl_b32 s{s_t2}, s{s_t2}, 11")
    a(f"v_add_u32 v{v_ka}, s{s_t2}, v{v_qa}")
    a(f"v_add_u32 v{v_va}, 24576, v{v_ka}")
    a(f"s_waitcnt vmcnt({min(tailk.values()) + 1})")
    a("s_barrier")
    st("BK")
    E0 = epi_gu_tile(ACC[1], 0, OPT["pk"] & 1)
    E1 = epi_gu_tile(ACC[1], 1, OPT["pk"] & 1)
    side = E0[:-1] + E1[:-1] + [f"v_cmp_le_i32 s[{MK[i]}:{MK[i]+1}], {i}, v{v_d}" for i in range(8)]

    def kread(i):
        b, tt = divmod(i, 2)
        r = vKF + 4 * (i % 8)
        a(f"ds_read_b128 v[{r}:{r+3}], v{v_ka} offset:{b*2048 + tt*256}")
    LA = 6
    per = (len(side) + 17) // 18
    nf = OPT["wfirst"]
    for i in range(LA):
        kread(i)
    for i in range(18):
        if i + LA < 18:
            kread(i + LA)
            a(f"s_waitcnt lgkmcnt({LA})")
        else:
            a(f"s_waitcnt lgkmcnt({17-i})")
        r = vKF + 4 * (i % 8)
        a(f"v_mfma_f32_16x16x32_bf16 v[{vS+4*i}:{vS+4*i+3}], v[{r}:{r+3}], v[{vQ}:{vQ+3}], 0")
        for _ in range(per):
            if side:
                a(side.pop(0))
        if i == OPT["vpos"]:
            st("preV")
            wait_flags(vm, v_paV, 3)
            a("s_barrier")
            st("fV")
            a(f"s_mul_i32 s{s_t0}, s{s_w}, 3072")
            a(f"s_add_u32 m0, s{s_t0}, 24576")
            a(f"s_add_u32 s{s_t1}, s{s_kv}, s{s_t0}")
            a(f"s_add_u32 s{s_t2}, s{s_t1}, {VF - 16384}")
            for j in range(3):
                a(f"buffer_load_dwordx4 v{v_st}, s[{sWS}:{sWS+3}], s{s_t2} offen offset:{1024*j} sc1 lds")
                vm.issue("v")
        if i < OPT["vpos"] and i % 2 == 1 and nf:
            emit_group(vm, wq.pop(0)); nf -= 1
    a(E0[-1]); vm.issue("st_h")
    a(E1[-1]); vm.issue("st_h")
    st("Sdone")
    a(f"s_cmp_ge_u32 s{s_bd}, 8")
    a("s_cbranch_scc1 L_allvalid")
    for b in range(8):
        a(f"s_cmp_ge_u32 s{s_bd}, {8-b}")
        a("s_cbranch_scc1 L_allvalid")
        for i in range(8):
            a(f"v_mov_b32 v{vS+8*b+i}, 0xf149f2ca")
    a("L_allvalid:")
    for i in range(8):
        e(f"v_cndmask_b32 v{vS+i}, v{vS+i}, v{vS+64+i}, s[{MK[i]}:{MK[i]+1}]")
    e(f"v_max3_f32 v{v_m}, v{vS+8}, v{vS+9}, v{vS+10}")
    e(f"v_max3_f32 v{u}, v{vS+11}, v{vS+12}, v{vS+13}")
    ks = list(range(14, 64, 2)) + list(range(0, 8, 2))
    tog = 0
    for k in ks:
        d = v_m if tog == 0 else u
        e(f"v_max3_f32 v{d}, v{d}, v{vS+k}, v{vS+k+1}")
        tog ^= 1
    a(f"v_max_f32 v{v_m}, v{v_m}, v{u}")
    a(f"v_mov_b32 v{u}, v{v_m}")
    a(f"v_permlane32_swap_b32 v{v_m}, v{u}")
    a(f"v_max_f32 v{v_m}, v{v_m}, v{u}")
    a(f"v_mov_b32 v{u}, v{v_m}")
    a(f"v_permlane16_swap_b32 v{v_m}, v{u}")
    a(f"v_max_f32 v{v_m}, v{v_m}, v{u}")
    order = [1, 2, 3, 4, 5, 6, 7, 0, 8]
    def softmax_block(b):
        for i in range(0, 8, 2):
            r = vS + 8 * b + i
            e(f"v_pk_add_f32 v[{r}:{r+1}], v[{r}:{r+1}], v[{v_m}:{v_m+1}] op_sel_hi:[1,0] neg_lo:[0,1] neg_hi:[0,1]")
        for i in range(8):
            e(f"v_exp_f32 v{vS+8*b+i}, v{vS+8*b+i}")
        if b == 0:
            for i in range(8):
                e(f"v_cndmask_b32 v{vS+64+i}, 0, v{vS+i}, s[{MK[i]}:{MK[i]+1}]")
            for i in range(8):
                e(f"v_cndmask_b32 v{vS+i}, v{vS+i}, 0, s[{MK[i]}:{MK[i]+1}]")
            for d in range(4):
                e(f"v_cvt_pk_bf16_f32 v{vP+32+d}, v{vS+64+2*d}, v{vS+64+2*d+1}")
        for d in range(4):
            e(f"v_cvt_pk_bf16_f32 v{vP+4*b+d}, v{vS+8*b+2*d}, v{vS+8*b+2*d+1}")
    softmax_block(order[0])
    st("preBV")
    a(f"s_waitcnt vmcnt({vm.wait_n('st_h', 'v')})")
    a("s_barrier")
    publish(vm, F_H, s_fp)
    st("BV")
    def vread(i):
        b = order[i // 2]
        tt = i % 2
        r = vKF + 4 * (i % 8)
        a(f"ds_read_b128 v[{r}:{r+3}], v{v_va} offset:{b*2048 + tt*256}")
    for i in range(LA):
        vread(i)
    for bi in range(9):
        b = order[bi]
        if bi == 4:
            while wq:
                emit_group(vm, wq.pop(0))
            poll(vm, v_paH)
        if bi + 1 < 8:
            softmax_block(order[bi + 1])
        if bi == 6:
            a("s_waitcnt lgkmcnt(0)")
            st("preH")
            a(f"s_cmp_ge_u32 s{s_nb}, 7")
            a("s_cbranch_scc1 L_noC1")
            wait_flags(vm, v_paH, 16)
            a("s_barrier")
            for c in range(NH):
                emit_group(vm, dmaH(c))
            a("L_noC1:")
            st("Hiss")
        for tt in range(2):
            i = 2 * bi + tt
            if i + LA < 18:
                vread(i + LA)
                a(f"s_waitcnt lgkmcnt({LA})")
            elif bi < 6:
                a(f"s_waitcnt lgkmcnt({17-i})")
            r = vKF + 4 * (i % 8)
            cs = "0" if bi == 0 else f"v[{vO+4*tt}:{vO+4*tt+3}]"
            a(f"v_mfma_f32_16x16x32_bf16 v[{vO+4*tt}:{vO+4*tt+3}], v[{r}:{r+3}], v[{vP+4*b}:{vP+4*b+3}], {cs}")
    a(f"v_mov_b32 v{u}, v{vO+4}")
    a(f"v_mov_b32 v{u+1}, v{vO+4}")
    a(f"v_permlane32_swap_b32 v{u}, v{u+1}")
    a(f"v_mov_b32 v{u}, v{u+1}")
    a(f"v_permlane16_swap_b32 v{u}, v{u+1}")
    a(f"v_rcp_f32 v{u+1}, v{u+1}")
    for i in range(8):
        a(f"v_mul_f32 v{vO+i}, v{vO+i}, v{u+1}")
    for d in range(4):
        a(f"v_cvt_pk_bf16_f32 v{vQ+d}, v{vO+2*d}, v{vO+2*d+1}")
    a(f"v_cmp_gt_u32 s[{s_d0}:{s_d0+1}], 48, v{v_lane}")
    a(f"v_cndmask_b32 v{vQ+2}, 0, v{vQ+2}, s[{s_d0}:{s_d0+1}]")
    a(f"v_cndmask_b32 v{vQ+3}, 0, v{vQ+3}, s[{s_d0}:{s_d0+1}]")
    a(f"buffer_store_dwordx4 v[{vQ}:{vQ+3}], v{v_qa}, s[{sWS}:{sWS+3}], s{s_ost} offen sc1")
    vm.issue("st_o")
    st("Ost")
    a(f"s_cmp_lt_u32 s{s_nb}, 7")
    a("s_cbranch_scc1 L_phaseC")
    a("s_waitcnt vmcnt(0)")
    a("s_barrier")
    publish(VM(), F_O, s_fo)
    a("s_branch L_end")
    a("L_phaseC:")

    v_ah, v_aw, v_cxo = 2, 3, 4
    v_awB = 5
    vXr = 16
    vAcc = 48
    vF = 64
    tt = 20
    a(f"v_add_u32 v{v_paH}, {(F_O-F_H)*2048}, v{v_paH}")
    a(f"v_and_b32 v{tt}, 0x13, v{v_lane}")
    a(f"v_bfe_u32 v{tt+1}, v{v_lane}, 2, 1")
    a(f"v_lshl_or_b32 v{tt}, v{tt+1}, 3, v{tt}")
    a(f"v_bfe_u32 v{tt+1}, v{v_lane}, 3, 1")
    a(f"v_lshl_or_b32 v{tt}, v{tt+1}, 2, v{tt}")
    a(f"v_mul_u32_u24 v{v_cxo}, 896, v{tt}")
    a(f"v_lshrrev_b32 v{tt+1}, 5, v{v_lane}")
    a(f"v_lshl_add_u32 v{v_cxo}, v{tt+1}, 4, v{v_cxo}")
    a(f"s_lshl_b32 s{s_t0}, s{s_cmt}, 13")
    a(f"s_lshl_b32 s{s_t1}, s{s_kh}, 12")
    a(f"s_add_u32 s{s_t0}, s{s_t0}, s{s_t1}")
    a(f"v_add_u32 v{v_ah}, s{s_t0}, v{v_st}")
    a(f"v_bfe_u32 v{tt}, v{v_lane}, 2, 2")
    a(f"v_and_b32 v{tt+2}, 3, v{v_lane}")
    a(f"v_bfe_u32 v{tt+3}, v{v_lane}, 4, 1")
    a(f"v_lshrrev_b32 v{tt+4}, 1, v{tt+2}")
    a(f"v_and_b32 v{tt+5}, 1, v{tt+2}")
    a(f"v_lshl_or_b32 v{tt+4}, v{tt+5}, 1, v{tt+4}")
    a(f"v_lshl_add_u32 v{tt+5}, v{tt+1}, 3, v{tt}")
    a(f"v_lshlrev_b32 v{tt+5}, 7, v{tt+5}")
    a(f"v_lshrrev_b32 v{tt+6}, 1, v{tt}")
    a(f"v_xor_b32 v{tt+6}, s{s_nt}, v{tt+6}")
    a(f"v_lshl_add_u32 v{tt+5}, v{tt+6}, 6, v{tt+5}")
    a(f"v_lshl_add_u32 v{tt+5}, v{tt+3}, 5, v{tt+5}")
    a(f"v_lshl_add_u32 v{tt+5}, v{tt+4}, 3, v{tt+5}")
    a(f"s_lshl_b32 s{s_t0}, s{s_kh}, 13")
    a(f"s_add_u32 s{s_t0}, s{s_t0}, {NH*16384}")
    a(f"v_add_u32 v{v_aw}, s{s_t0}, v{tt+5}")
    a(f"v_add_u32 v{v_awB}, 65536, v{v_aw}")
    assert NH <= 4 and NW <= 8
    NC = 18
    def creads(c):
        sh = (c % NH) * 16384
        sw = (c % NW)
        aw = v_aw if sw < 4 else v_awB
        swo = (sw % 4) * 16384
        base = vF + 32 * (c & 1)
        for i in range(4):
            f = base + 8 * i
            a(f"ds_read_b128 v[{f}:{f+3}], v{v_ah} offset:{sh + 1024*i}")
            a(f"ds_read_b64_tr_b16 v[{f+4}:{f+5}], v{aw} offset:{swo + 2048*i}")
            a(f"ds_read_b64_tr_b16 v[{f+6}:{f+7}], v{aw} offset:{swo + 2048*i + 512}")
    a(f"s_waitcnt vmcnt({vm.wait_n('h0', 'w0')})")
    a("s_barrier")
    st("C0")
    creads(0)
    PUB_O = OPT["pubo"]
    POLL_O = 14 - NH - 2
    wsched = {}
    nW = 2 * (NC - NW)
    last_it = NC - 1 - 3
    for q in range(nW):
        k = NW + q // 2
        it = int(q * (last_it + 1) / nW)
        it = max(it, k - NW)
        it = min(it, k - 3)
        wsched.setdefault(it, []).append((k, q % 2))
    for c in range(NC):
        if c + 1 < NC:
            tags = [f"h{c+1}", f"w{c+1}"]
            if c == PUB_O:
                tags.append("st_o")
            if c + NH == 14:
                wait_flags(vm, v_paH, 16)
            a(f"s_waitcnt vmcnt({vm.wait_n(*tags)}) lgkmcnt(0)")
            a("s_barrier")
            if c in (4, 9, 13):
                st(f"c{c}")
            creads(c + 1)
            if c == PUB_O:
                publish(vm, F_O, s_fo)
        else:
            a("s_waitcnt lgkmcnt(0)")
        G = []
        if c + NH < NC:
            G.append(dmaH(c + NH))
        for (k, jj) in wsched.get(c, []):
            G.append(dmaW(k)[jj])
        if c == POLL_O:
            G.append(([f"buffer_load_dwordx2 v[{v_pf}:{v_pf+1}], v{v_paH}, s[{sWS}:{sWS+3}], 0 offen sc1"], "poll"))
        if c == 12:
            G.append(([f"buffer_load_dwordx4 v[{vXr}:{vXr+3}], v{v_cxo}, s[{sX}:{sX+3}], s{s_xo} offen"], "xr"))
        base = vF + 32 * (c & 1)
        for i in range(4):
            f = base + 8 * i
            cs = "0" if (c == 0 and i == 0) else f"v[{vAcc}:{vAcc+15}]"
            a(f"v_mfma_f32_32x32x16_bf16 v[{vAcc}:{vAcc+15}], v[{f+4}:{f+7}], v[{f}:{f+3}], {cs}")
            if G:
                emit_group(vm, G.pop(0))
        while G:
            emit_group(vm, G.pop(0))
    st("Cend")
    a("s_barrier")
    a(f"s_lshl_b32 s{s_t0}, s{s_w}, 11")
    a(f"v_add_u32 v{tt+1}, s{s_t0}, v{v_st}")
    a(f"v_xor_b32 v{tt+2}, 8192, v{tt+1}")
    a(f"s_cmp_eq_u32 s{s_kh}, 0")
    a("s_cbranch_scc1 L_k0")
    a(f"ds_write_b128 v{tt+1}, v[{vAcc}:{vAcc+3}]")
    a(f"ds_write_b128 v{tt+1}, v[{vAcc+4}:{vAcc+7}] offset:1024")
    for i in range(8):
        a(f"v_mov_b32 v{vAcc+i}, v{vAcc+8+i}")
    a("s_branch L_k1")
    a("L_k0:")
    a(f"ds_write_b128 v{tt+1}, v[{vAcc+8}:{vAcc+11}]")
    a(f"ds_write_b128 v{tt+1}, v[{vAcc+12}:{vAcc+15}] offset:1024")
    a("L_k1:")
    a("s_waitcnt vmcnt(0) lgkmcnt(0)")
    a("s_barrier")
    a(f"ds_read_b128 v[{vF}:{vF+3}], v{tt+2}")
    a(f"ds_read_b128 v[{vF+4}:{vF+7}], v{tt+2} offset:1024")
    for d in range(4):
        a(f"v_lshlrev_b32 v{vF+8+2*d}, 16, v{vXr+d}")
        a(f"v_and_b32 v{vF+9+2*d}, 0xffff0000, v{vXr+d}")
    for i in range(8):
        a(f"v_add_f32 v{vAcc+i}, v{vAcc+i}, v{vF+8+i}")
    a("s_waitcnt lgkmcnt(0)")
    for i in range(8):
        a(f"v_add_f32 v{vAcc+i}, v{vAcc+i}, v{vF+i}")
    for d in range(4):
        a(f"v_cvt_pk_bf16_f32 v{vXr+d}, v{vAcc+2*d}, v{vAcc+2*d+1}")
    a(f"buffer_store_dwordx4 v[{vXr}:{vXr+3}], v{v_cxo}, s[{sO}:{sO+3}], s{s_xo} offen")
    if STAMP:
        a("s_waitcnt vmcnt(0)")
        st("end", wait=True); st("rt", rt=True, wait=True)
        st.finish()
        a(f"s_lshl3_add_u32 s3, s2, s{s_w}")
        a("s_lshl_b32 s3, s3, 7")
        a(f"s_add_u32 s3, s3, {STAMP_OFF}")
        a(f"v_lshlrev_b32 v{tt}, 2, v{v_lane}")
        a(f"v_cmp_gt_u32 vcc, {st.n}, v{v_lane}")
        a("s_and_saveexec_b64 s[4:5], vcc")
        a(f"buffer_store_dword v{v_stamp}, v{tt}, s[{sWS}:{sWS+3}], s3 offen")
        a.raw("; STAMPS " + " ".join(st.names))
        assert st.n <= 32
    a("L_end:")
    a("s_endpgm")
    return a


HEADER = """; Fused persistent kernel: LN + QKV/gate/up GEMM -> sliding-window attention -> [H|O] @ [w_down; wo] + x
;   0 A_x, 8 A_wqkv, 16 A_wo, 24 B_x, 32 B_w_gate, 40 B_w_up, 48 B_w_down, 56 d_out, 64 d_debug, 72 d_ws
; @launch grid=(256,1,1) block=(512,1,1) lds=163840
.amdgcn_target "amdgcn-amd-amdhsa--gfx950"
"""

def build():
    a = gen()
    print("instrs", a.nins, "nops", a.nnop, file=sys.stderr)
    return HEADER + a.text() + kernel_desc(NAME, 256)

if __name__ == "__main__":
    path = sys.argv[1] if len(sys.argv) > 1 else "parallel_sum__sliding_block__geglu_ffn__prompt.s"
    for arg in sys.argv[2:]:
        if arg == "stamp":
            STAMP = True
        else:
            k, v = arg.split("=")
            assert k in OPT, k
            OPT[k] = int(v)
    open(path, "w").write(build())
```

```python
import sys, struct, math, copy, os
sys.path.insert(0, "dev")
from asmlib import Asm, kernel_header, kernel_desc

NAME = "parallel_sum__sliding_block__geglu_ffn__prompt_kernel"

def f2u(f):
    return struct.unpack("<I", struct.pack("<f", f))[0]

QF = 0
KF = 2 << 20
VF = 4 << 20
FL = 6 << 20
HF = 8 << 20
WS_BYTES = 268435456
NKS = 144
F_QK, F_H, F_O, F_V = 0, 1, 2, 3
OOB = 0x7FFFFF00

X_BYTES = 2048 * 896
WQKV_BYTES = 448 * 2688
WG_BYTES = 448 * 3584
WD_BYTES = 1792 * 896
WO_BYTES = 448 * 896

LOG2E = 1.4426950408889634
QSCALE = (28 ** -0.5) * LOG2E
GC1 = -2.0 * 0.7978845608028654 * LOG2E
GC2 = GC1 * 0.044715

STAMP = False
DBGST = False
DBGN = ['t0','setup','x00','lnend','B1','m28','m84','T','Sdone','BV','Ost','C0','Cend','end']
STAMP_OFF = 200 << 20
STM = [int(x) for x in os.environ.get('STM', '11,28,56,84,112').split(',')]
OPT = dict(NH=4, NW=6, rotc=1, b2=10, bgp=1, qkst=44, pubm=112, pk=1, w2s=84,
           wfirst=4, wspread=16, pubo=2, p1=1, slp=4, hst0=104, hst1=122, qkgap=0, d7=0, d8=0, d9=0,
           c1e=3, xr=3, xf=9, qkn=1, hn=1, hgap=0, tq=7, lnm=1, dmae=7, xil=1, pubqk=5, kq=8, kqlead=12, vpos=8)


class Cnt:
    def __init__(self, cap):
        self.ops = []
        self.cap = cap
    def issue(self, tag):
        self.ops.append(tag)
    def wait_n(self, *tags):
        idx = max(i for i, t in enumerate(self.ops) if t in tags)
        n = len(self.ops) - 1 - idx
        return min(n, self.cap)
    def has(self, tag):
        return tag in self.ops

def VM():
    return Cnt(63)


class Stamps:
    def __init__(self, a, vreg, base=98):
        self.a = a; self.base = base; self.n = 0; self.names = []; self.vreg = vreg
    def _flush_prev(self):
        if self.n >= 1:
            k = self.n - 1
            self.a(f"v_writelane_b32 v{self.vreg}, s{self.base + 2*(k % 2)}, {k}")
    def __call__(self, name="", rt=False, wait=False):
        if not STAMP: return
        p = self.base + 2 * (self.n % 2)
        if DBGST and name not in DBGN: return
        self.a(f"{'s_memrealtime' if (rt or DBGST) else 's_memtime'} s[{p}:{p+1}]")
        if wait:
            self.a("s_waitcnt lgkmcnt(0)")
        self._flush_prev()
        self.n += 1
        self.names.append(name)
    def finish(self):
        self.a("s_waitcnt lgkmcnt(0)")
        self._flush_prev()


def srd(d, lo, hi, nbytes):
    return [f"s_mov_b32 s{d}, s{lo}", f"s_and_b32 s{d+1}, s{hi}, 0xffff",
            f"s_mov_b32 s{d+2}, {nbytes}", f"s_mov_b32 s{d+3}, 0x00020000"]

SLOT = 28672
XBASE = 49152


def gen():
    a = Asm()
    a.raw(kernel_header(NAME))
    def A(lst):
        for x in lst:
            a(x)
    NH, NW = OPT["NH"], OPT["NW"]
    sX, sWq, sWg, sWS, sWd, sWo, sO, sDbg = 36, 40, 44, 48, 52, 56, 60, 64
    s_w, s_tb, s_cb, s_g, s_mt = 68, 69, 70, 71, 72
    s_t0, s_t1, s_t2 = 74, 75, 76
    s_hst = 77
    s_n0 = 78
    s_q0, s_q3, s_v0, s_v3, s_g0, s_g3 = 4, 5, 6, 7, 8, 9
    s_m0, s_m3, s_scale, s_tg, s_qkst, s_vst = 10, 11, 12, 13, 14, 15
    s_wr = 3
    s_b1 = 73
    s_b2 = 0
    s_d0, s_d1 = 96, 97
    s_one = 16
    s_h, s_qb, s_fp, s_tch = 18, 19, 20, 21
    s_mq0, s_mq3 = 22, 23
    sTch = 24
    s_xr, s_xr1, s_tr, s_tqk = 80, 81, 82, 83
    s_kv, s_par, s_bd, s_ost = 84, 85, 86, 87
    s_tb64, s_nb, s_kh, s_cmt, s_nt = 88, 89, 90, 91, 92
    s_hb, s_hr, s_wb = 93, 94, 95
    s_wob, s_m0h, s_m0w, s_xo = 28, 29, 30, 31
    s_fo = 80
    MK = [24, 26, 16, 64, 32, 34, 40, 42]
    vX = 128
    ACC = [64, 96]
    vW = 48
    vT = 16
    v_lane, v_dq, v_dg, v_rdA, v_rdB, v_st, v_msk = 1, 2, 3, 4, 5, 6, 7
    v_bqk, v_bg0, v_bg1 = 9, 11, 12
    v_c1, v_c2, v_k1 = 8, 10, 14
    v_stk = 13
    v_stamp = 15
    v_xa = 32
    v_xw = 40
    v_xo = 44
    v_dv, v_dvh, v_bv0, v_bv1 = 40, 41, 42, 43
    v_tg, v_tq = 46, 47
    v_dw, v_d = 44, 45
    v_paH = 46
    v_paV = 47
    vQ = 240
    v_qa = 244
    v_one = 245
    v_e0, v_td = 246, 247
    v_non = 248
    v_e1, v_zero = 250, 251
    v_fa = 252
    v_pa = 253
    v_pf = 254
    t = vT

    st = Stamps(a, v_stamp)
    a("s_cmp_ge_u32 s2, 256")
    a("s_cbranch_scc1 L_end")
    st("rt", rt=True); st("t0", wait=True)
    if DBGST:
        a("s_mov_b64 s[82:83], s[0:1]")
    a("s_load_dwordx16 s[16:31], s[0:1], 0")
    a("s_load_dwordx4 s[32:35], s[0:1], 64")
    a(f"s_memrealtime s[{s_n0}:{s_n0+1}]")
    a(f"v_and_b32 v{v_lane}, 63, v0")
    a(f"v_lshrrev_b32 v{t}, 6, v0")
    a(f"v_readfirstlane_b32 s{s_w}, v{t}")
    a(f"s_and_b32 s{s_tb}, s2, 3")
    a(f"s_bfe_u32 s{s_t2}, s2, 0x20003")
    a(f"s_lshl2_add_u32 s{s_tb}, s{s_tb}, s{s_t2}")
    a(f"s_bfe_u32 s{s_cb}, s2, 0x10002")
    a(f"s_lshr_b32 s{s_t1}, s2, 5")
    a(f"s_lshl3_add_u32 s{s_cb}, s{s_cb}, s{s_t1}")
    a(f"s_lshr_b32 s{s_g}, s{s_w}, 2")
    a(f"s_and_b32 s{s_mt}, s{s_w}, 3")
    a(f"s_and_b32 s{s_t0}, s{s_cb}, 1")
    a(f"s_and_b32 s{s_t1}, s{s_cb}, 2")
    a(f"s_lshl2_add_u32 s{s_t0}, s{s_t1}, s{s_t0}")
    a(f"s_lshl_b32 s{s_wr}, s{s_w}, 1")
    a(f"s_xor_b32 s{s_wr}, s{s_wr}, s{s_t0}")
    a(f"v_lshrrev_b32 v{t}, 3, v{v_lane}")
    a(f"v_and_b32 v{t+1}, 7, v{v_lane}")
    a(f"v_mul_u32_u24 v{v_xo}, 896, v{t}")
    a(f"v_lshl_add_u32 v{v_xo}, v{t+1}, 4, v{v_xo}")
    a(f"s_lshl4_add_u32 s{s_t0}, s{s_tb}, s{s_wr}")
    a(f"s_mul_i32 s{s_xr}, s{s_t0}, {8*896}")
    a(f"s_xor_b32 s{s_t0}, s{s_t0}, 1")
    a(f"s_mul_i32 s{s_xr1}, s{s_t0}, {8*896}")
    a(f"v_mov_b32 v{v_e1}, {OOB}")
    a("s_waitcnt lgkmcnt(0)")
    A(srd(sX, 16, 17, X_BYTES))
    vm = VM()
    def raw(e, i):
        return ACC[0] + 28 * e + 4 * i
    def xload(e, j, track=True):
        r = raw(e, j)
        a(f"buffer_load_dwordx4 v[{r}:{r+3}], v{v_xo}, s[{sX}:{sX+3}], s{s_xr1 if e else s_xr} offen offset:{128*j}")
        if track:
            vm.issue(f"x{e}{j}")
    def gtouch(sr, nl, per_wg8, vt, vmx=None):
        if per_wg8:
            a(f"s_lshl3_add_u32 s{s_t0}, s2, s{s_w}")
        else:
            a(f"s_lshl2_add_u32 s{s_t0}, s2, s{s_mt}")
        a(f"s_mul_i32 s{s_t0}, s{s_t0}, {nl}")
        a(f"v_min_u32 v{vt}, {nl-1}, v{v_lane}")
        a(f"v_add_lshl_u32 v{vt}, v{vt}, s{s_t0}, 7")
        a(f"s_mov_b64 exec, {(1 << nl) - 1}")
        a(f"buffer_load_dword v{v_td}, v{vt}, s[{sr}:{sr+3}], 0 offen")
        a(f"s_mov_b64 exec, -1")
        if vmx is not None:
            vmx.issue("t")
    XF = OPT["xf"]
    xorder = [(0, j) for j in range(7)] + [(1, j) for j in range(7)]
    A(srd(sWq, 18, 19, WQKV_BYTES))
    a(f"s_cmp_lg_u32 s{s_g}, 0")
    a("s_cbranch_scc1 L_x0skip")
    for k, (e, j) in enumerate(xorder[:XF]):
        if k == OPT["tq"]:
            gtouch(sWq, 10, False, t + 10)
        xload(e, j, False)
    a("L_x0skip:")
    a(f"s_cmp_eq_u32 s{s_g}, 0")
    a(f"s_cselect_b32 s{sWg}, s24, s26")
    a(f"s_cselect_b32 s{sWg+1}, s25, s27")
    a(f"s_and_b32 s{sWg+1}, s{sWg+1}, 0xffff")
    a(f"s_mov_b32 s{sWg+2}, {WG_BYTES}")
    a(f"s_mov_b32 s{sWg+3}, 0x00020000")
    A(srd(sDbg, 32, 33, 256))
    a(f"s_or_b32 s{s_n0}, s{s_n0}, 1")
    a(f"v_mov_b32 v{v_non}, s{s_n0}")
    a(f"v_mov_b32 v{v_non+1}, s{s_n0+1}")
    a(f"v_cmp_eq_u32 s[{s_d0}:{s_d0+1}], 0, v0")
    a(f"v_cndmask_b32 v{v_fa}, v{v_e1}, 0, s[{s_d0}:{s_d0+1}]")
    a(f"s_cmp_eq_u32 s2, 0")
    a(f"s_cselect_b64 s[{s_d0}:{s_d0+1}], s[{s_d0}:{s_d0+1}], 0")
    a(f"v_cndmask_b32 v{v_e0}, v{v_e1}, 0, s[{s_d0}:{s_d0+1}]")
    a(f"v_mov_b32 v{v_zero}, 0")
    a(f"v_bfe_u32 v{t+2}, v{v_lane}, 4, 1")
    a(f"v_lshlrev_b32 v{t+3}, 2, v{t+2}")
    a(f"v_xor_b32 v{t+3}, v{t+3}, v{t+1}")
    a(f"v_mul_u32_u24 v{v_dq}, 2688, v{t}")
    a(f"v_lshl_add_u32 v{v_dq}, v{t+3}, 4, v{v_dq}")
    a(f"v_lshlrev_b32 v{t+3}, 1, v{t+2}")
    a(f"v_xor_b32 v{t+3}, v{t+3}, v{t+1}")
    a(f"s_lshl_b32 s{s_t1}, s{s_g}, 2")
    a(f"v_xor_b32 v{t+3}, s{s_t1}, v{t+3}")
    a(f"v_mul_u32_u24 v{v_dg}, 3584, v{t}")
    a(f"v_lshl_add_u32 v{v_dg}, v{t+3}, 4, v{v_dg}")
    a(f"s_lshl_b32 s{s_t0}, s{s_wr}, 3")
    for e in range(2):
        a(f"v_add_u32 v{t+2}, s{s_t0}, v{t}")
        if e:
            a(f"v_xor_b32 v{t+2}, 8, v{t+2}")
        a(f"v_bfe_u32 v{t+3}, v{t+2}, 1, 3")
        a(f"v_xor_b32 v{t+3}, v{t+3}, v{t+1}")
        a(f"v_lshlrev_b32 v{t+2}, 7, v{t+2}")
        a(f"v_lshl_add_u32 v{t+2}, v{t+3}, 4, v{t+2}")
        a(f"v_add_u32 v{v_xw+e}, {XBASE}, v{t+2}")
        a(f"v_add_u32 v{v_xw+2+e}, {XBASE+65536}, v{t+2}")
    a(f"s_mul_i32 s{s_g0}, s{s_mt}, {8*3584}")
    a(f"s_mul_i32 s{s_g3}, s{s_mt}, {4*3584}")
    a(f"s_add_u32 s{s_g3}, s{s_g3}, {96*3584}")
    a(f"s_mul_i32 s{s_q0}, s{s_w}, {8*2688}")
    a(f"s_mul_i32 s{s_v0}, s{s_w}, {4*2688}")
    a(f"s_add_u32 s{s_q3}, s{s_v0}, {128*2688}")
    a(f"s_lshr_b32 s{s_t0}, s{s_cb}, 2")
    a(f"s_mul_i32 s{s_t1}, s{s_t0}, 224")
    a(f"s_add_u32 s{s_t1}, s{s_t1}, {56*32}")
    a(f"s_mul_i32 s{s_v3}, s{s_w}, {2*2688}")
    a(f"s_add_u32 s{s_v0}, s{s_v0}, s{s_t1}")
    a(f"s_add_u32 s{s_v3}, s{s_v3}, s{s_t1}")
    a(f"s_add_u32 s{s_v3}, s{s_v3}, {96*2688}")
    a(f"s_mul_i32 s{s_t1}, s{s_cb}, 112")
    a(f"s_add_u32 s{s_q0}, s{s_q0}, s{s_t1}")
    a(f"s_add_u32 s{s_q3}, s{s_q3}, s{s_t1}")
    a(f"s_mul_i32 s{s_t1}, s{s_t0}, 448")
    a(f"s_and_b32 s{s_t0}, s{s_cb}, 3")
    a(f"s_lshl_b32 s{s_hst}, s{s_t0}, 7")
    a(f"s_add_u32 s{s_t1}, s{s_t1}, s{s_hst}")
    a(f"s_lshl1_add_u32 s{s_g0}, s{s_t1}, s{s_g0}")
    a(f"s_lshl1_add_u32 s{s_g3}, s{s_t1}, s{s_g3}")
    a(f"s_lshl_b32 s{s_hst}, s{s_t1}, 6")
    a(f"s_mul_i32 s{s_m0}, s{s_g}, {112*128}")
    a(f"s_lshl_b32 s{s_t1}, s{s_mt}, 9")
    a(f"s_add_u32 s{s_m3}, s{s_m0}, s{s_t1}")
    a(f"s_add_u32 s{s_m3}, s{s_m3}, {96*128}")
    a(f"s_lshl1_add_u32 s{s_m0}, s{s_t1}, s{s_m0}")
    a(f"s_lshl_b32 s{s_mq0}, s{s_w}, 10")
    a(f"s_lshl_b32 s{s_mq3}, s{s_w}, 9")
    a(f"s_add_u32 s{s_mq3}, s{s_mq3}, {128*128}")
    a(f"v_bfe_u32 v{t}, v{v_lane}, 2, 2")
    a(f"v_and_b32 v{t+1}, 3, v{v_lane}")
    a(f"v_bfe_u32 v{t+2}, v{v_lane}, 4, 1")
    a(f"v_lshrrev_b32 v{t+3}, 5, v{v_lane}")
    a(f"v_lshrrev_b32 v{t+4}, 1, v{t+1}")
    a(f"v_and_b32 v{t+5}, 1, v{t+1}")
    a(f"v_lshl_or_b32 v{t+4}, v{t+5}, 1, v{t+4}")
    a(f"v_lshl_add_u32 v{t+5}, v{t+3}, 3, v{t}")
    a(f"v_lshlrev_b32 v{t+5}, 7, v{t+5}")
    a(f"v_lshrrev_b32 v{t+6}, 1, v{t}")
    a(f"s_mul_i32 s{s_t0}, s{s_g}, 56")
    a(f"v_lshlrev_b32 v{t+7}, 5, v{t+2}")
    a(f"v_lshl_add_u32 v{t+7}, v{t+4}, 3, v{t+7}")
    a(f"v_add_u32 v{t+7}, s{s_t0}, v{t+7}")
    a(f"v_lshlrev_b32 v{t+8}, 6, v{t+6}")
    a(f"v_xor_b32 v{t+7}, v{t+7}, v{t+8}")
    a(f"v_add_u32 v{v_bqk}, v{t+7}, v{t+5}")
    a(f"v_lshl_or_b32 v{t+7}, v{t+2}, 1, v{t+6}")
    a(f"s_lshl_b32 s{s_t0}, s{s_g}, 1")
    a(f"v_xor_b32 v{t+7}, s{s_t0}, v{t+7}")
    a(f"v_mul_u32_u24 v{t+8}, 14336, v{t+2}")
    a(f"v_add_u32 v{t+8}, v{t+8}, v{t+5}")
    a(f"v_lshl_add_u32 v{t+8}, v{t+4}, 3, v{t+8}")
    a(f"v_lshl_add_u32 v{v_bg0}, v{t+7}, 5, v{t+8}")
    a(f"v_xor_b32 v{v_bg1}, 32, v{v_bg0}")
    a(f"v_and_b32 v{t}, 0x13, v{v_lane}")
    a(f"v_bfe_u32 v{t+1}, v{v_lane}, 2, 1")
    a(f"v_lshl_or_b32 v{t}, v{t+1}, 3, v{t}")
    a(f"v_bfe_u32 v{t+1}, v{v_lane}, 3, 1")
    a(f"v_lshl_or_b32 v{t}, v{t+1}, 2, v{t}")
    a(f"s_lshl_b32 s{s_t0}, s{s_mt}, 5")
    a(f"v_add_u32 v{t}, s{s_t0}, v{t}")
    a(f"v_bfe_u32 v{t+1}, v{t}, 1, 3")
    a(f"v_xor_b32 v{t+1}, v{t+1}, v{t+3}")
    a(f"v_lshlrev_b32 v{t}, 7, v{t}")
    a(f"v_lshl_add_u32 v{t}, v{t+1}, 4, v{t}")
    a(f"v_add_u32 v{v_xa}, {XBASE}, v{t}")
    for s2 in range(1, 4):
        a(f"v_xor_b32 v{v_xa+s2}, {32*s2}, v{v_xa}")
    for s2 in range(4):
        a(f"v_add_u32 v{v_xa+4+s2}, 65536, v{v_xa+s2}")

    def dmaA(chunk, slot, tag):
        kind, idx, part = chunk
        G = []
        for jj in range(4):
            g = []
            rowb = 128
            m3x = 0
            if kind == "qk":
                b0, b3 = s_q0, s_q3
                stride = 2688
                off = 224 * part * stride
                sr, vo = sWq, v_dq
                rows = [0, 64, None, 160][jj]
                m0r, m3r = s_mq0, s_mq3
            elif kind == "v":
                b0, b3 = s_v0, s_v3
                stride = 2688
                off = 112 * part * stride
                rows = [0, 32, 64, None][jj]
                sr, vo = sWq, (v_dvh if rows is None else v_dv)
                m0r, m3r = s_mq0, s_mq3
                rowb = 256
                m3x = 8192
            else:
                b0, b3 = s_g0, s_g3
                stride = 3584
                off = 112 * part * stride + 128 * idx
                sr, vo = sWg, v_dg
                rows = [0, 32, 64, None][jj]
                m0r, m3r = s_m0, s_m3
            half = rows is None
            if not half:
                g.append(f"s_add_u32 m0, s{m0r}, {slot*SLOT + rows*rowb}")
                g.append(f"s_add_u32 s{s_b1}, s{b0}, {off + rows*stride}")
            else:
                g.append(f"s_add_u32 m0, s{m3r}, {slot*SLOT + m3x}")
                g.append(f"s_add_u32 s{s_b1}, s{b3}, {off}")
                g.append("s_mov_b32 exec_hi, 0")
            g.append(f"buffer_load_dwordx4 v{vo}, s[{sr}:{sr+3}], s{s_b1} offen lds")
            if half:
                g.append("s_mov_b32 exec_hi, -1")
            G.append((g, tag))
        return G

    def emit_group(vm, grp):
        g, tag = grp
        for ins in g:
            a(ins)
            if ins.startswith("buffer_"):
                vm.issue(tag)

    seq1 = [("qk", 0, 0), ("qk", 0, 1)] + [("gu", 0, p) for p in range(4)] + [("gu", 1, p) for p in range(4)]
    seq2 = [("qk", 0, 0), ("qk", 0, 1)] + [("v", 0, p) for p in range(4)] + [("gu", 0, p) for p in range(4)]
    c1groups = dmaA(seq1[1], 1, "c1")
    early = dmaA(seq1[0], 0, "c0") + c1groups[:OPT["c1e"]]
    c1b = (c1groups[3][0], "c1b")
    st("setup")

    F = vX
    a(f"s_cmp_eq_u32 s{s_g}, 0")
    a("s_cbranch_scc1 L_x0skip2")
    for (e, j) in xorder[:XF]:
        xload(e, j, False)
    a("L_x0skip2:")
    for (e, j) in xorder[:XF]:
        vm.issue(f"x{e}{j}")
    xrest = list(xorder[XF:])
    if not OPT["xil"]:
        while xrest:
            xload(*xrest.pop(0))
    def qdma(i0_, i1_, lab):
        a(f"s_cmp_lg_u32 s{s_g}, 0")
        a(f"s_cbranch_scc1 L_nodma{lab}")
        for i in range(i0_, i1_):
            a(f"s_add_u32 m0, s{s_mq0}, {32*i*128}")
            a(f"s_add_u32 s{s_b1}, s{s_q0}, {32*i*2688}")
            a(f"buffer_load_dwordx4 v{v_dq}, s[{sWq}:{sWq+3}], s{s_b1} offen lds")
            vm.issue("c0" if i < 7 else "c1")
        a(f"L_nodma{lab}:")
    if OPT["lnm"]:
        MF = "v_mfma_f32_4x4x4_16b_bf16"
        vOnes, vM = t, t + 2
        vAh, vAl, vB = t + 4, t + 6, t + 8
        S_, Q_, R_, U_ = t + 12, t + 13, t + 14, t + 15
        SA = [F, F + 4]
        QA = [F + 8, F + 12]
        D0 = F + 16
        sJ = [4, 6, 8]
        a(f"v_mov_b32 v{vOnes}, 0x3f803f80")
        a(f"v_mov_b32 v{vOnes+1}, 0x3f803f80")
        a(f"v_and_b32 v{U_}, 3, v{v_lane}")
        a(f"v_and_b32 v{R_}, 1, v{v_lane}")
        a(f"v_lshlrev_b32 v{R_}, 4, v{R_}")
        a(f"v_mov_b32 v{S_}, 0xffff")
        a(f"v_lshlrev_b32 v{S_}, v{R_}, v{S_}")
        a(f"v_cmp_gt_u32 s[{s_kv}:{s_kv+1}], 2, v{U_}")
        a(f"v_cmp_eq_u32 s[{s_bd}:{s_bd+1}], 0, v{R_}")
        a(f"v_cndmask_b32 v{vM}, 0, v{S_}, s[{s_kv}:{s_kv+1}]")
        a(f"v_cndmask_b32 v{vM+1}, v{S_}, 0, s[{s_kv}:{s_kv+1}]")
        Q4 = lambda r: f"v[{r}:{r+3}]"
        P2 = lambda r: f"v[{r}:{r+1}]"
        for e in range(2):
            for j in range(7):
                if xrest:
                    xload(*xrest.pop(0))
                a(f"s_waitcnt vmcnt({vm.wait_n(f'x{e}{j}')})")
                if (e, j) in ((0, 0), (1, 6)):
                    st(f"x{e}{j}")
                r = raw(e, j)
                for h2 in range(2):
                    cs = "0" if j == 0 else Q4(SA[h2])
                    a(f"{MF} {Q4(SA[h2])}, {P2(vOnes)}, {P2(r+2*h2)}, {cs}")
                    cq = "0" if j == 0 else Q4(QA[h2])
                    a(f"{MF} {Q4(QA[h2])}, {P2(r+2*h2)}, {P2(r+2*h2)}, {cq}")
            if e == 1 and OPT["dmae"]:
                qdma(0, OPT["dmae"], "a")
            a(f"v_add_f32 v{S_}, v{SA[0]}, v{SA[1]}")
            for k in range(0, 4, 2):
                a(f"v_pk_add_f32 {P2(QA[0]+k)}, {P2(QA[0]+k)}, {P2(QA[1]+k)}")
            a(f"v_cndmask_b32 v{QA[0]}, v{QA[0]+1}, v{QA[0]}, s[{s_bd}:{s_bd+1}]")
            a(f"v_cndmask_b32 v{QA[0]+2}, v{QA[0]+3}, v{QA[0]+2}, s[{s_bd}:{s_bd+1}]")
            a(f"v_cndmask_b32 v{Q_}, v{QA[0]+2}, v{QA[0]}, s[{s_kv}:{s_kv+1}]")
            for pat in ("quad_perm:[1,0,3,2]", "quad_perm:[2,3,0,1]", "row_half_mirror"):
                for r in (S_, Q_):
                    a(f"v_add_f32_dpp v{r}, v{r}, v{r} {pat} row_mask:0xf bank_mask:0xf")
            a(f"v_mul_f32 v{S_}, 0x{f2u(1.0/448):08x}, v{S_}")
            a(f"v_mul_f32 v{Q_}, 0x{f2u(1.0/448):08x}, v{Q_}")
            a(f"v_fma_f32 v{Q_}, -v{S_}, v{S_}, v{Q_}")
            a(f"v_max_f32 v{Q_}, 0, v{Q_}")
            a(f"v_add_f32 v{Q_}, 0x{f2u(1e-5):08x}, v{Q_}")
            a(f"v_rsq_f32 v{R_}, v{Q_}")
            a(f"v_cvt_pk_bf16_f32 v{U_}, v{R_}, v{R_}")
            a(f"v_mul_f32 v{vB}, -v{S_}, v{R_}")
            a(f"v_and_b32 v{Q_}, 0xffff0000, v{U_}")
            a(f"v_and_b32 v{vAh}, v{U_}, v{vM}")
            a(f"v_and_b32 v{vAh+1}, v{U_}, v{vM+1}")
            a(f"v_sub_f32 v{Q_}, v{R_}, v{Q_}")
            a(f"v_cvt_pk_bf16_f32 v{U_}, v{Q_}, v{Q_}")
            for k in range(1, 4):
                a(f"v_mov_b32 v{vB+k}, v{vB}")
            a(f"v_and_b32 v{vAl}, v{U_}, v{vM}")
            a(f"v_and_b32 v{vAl+1}, v{U_}, v{vM+1}")
            def nm(j):
                r = raw(e, j)
                d = D0 + 8 * (j % 4)
                for h2 in range(2):
                    a(f"{MF} {Q4(d+4*h2)}, {P2(vAh)}, {P2(r+2*h2)}, {Q4(vB)}")
                for h2 in range(2):
                    a(f"{MF} {Q4(d+4*h2)}, {P2(vAl)}, {P2(r+2*h2)}, {Q4(d+4*h2)}")
            def cv(j):
                r = raw(e, j)
                d = D0 + 8 * (j % 4)
                for k in range(4):
                    a(f"v_cvt_pk_bf16_f32 v{r+k}, v{d+2*k}, v{d+2*k+1}")
                a(f"ds_write_b128 v{v_xw + e + (2 if j >= 4 else 0)}, v[{r}:{r+3}] offset:{(j % 4)*16384}")
            nm(0); nm(1)
            for j in range(7):
                if j + 2 < 7:
                    nm(j + 2)
                cv(j)
    else:
        S_, Q_, R_ = t, t + 2, t + 4
        for e in range(2):
            for j in range(7):
                if xrest:
                    xload(*xrest.pop(0))
                a(f"s_waitcnt vmcnt({vm.wait_n(f'x{e}{j}')})")
                if (e, j) in ((0, 0), (1, 6)):
                    st(f"x{e}{j}")
                for d in range(4):
                    r = raw(e, j) + d
                    f = F + 8 * j + 2 * d
                    a(f"v_lshlrev_b32 v{f}, 16, v{r}")
                    a(f"v_and_b32 v{f+1}, 0xffff0000, v{r}")
                for d in range(4):
                    f = F + 8 * j + 2 * d
                    if j == 0 and d == 0:
                        a(f"v_pk_mul_f32 v[{Q_}:{Q_+1}], v[{f}:{f+1}], v[{f}:{f+1}]")
                    elif j == 0 and d == 1:
                        a(f"v_pk_add_f32 v[{S_}:{S_+1}], v[{f-2}:{f-1}], v[{f}:{f+1}]")
                        a(f"v_pk_fma_f32 v[{Q_}:{Q_+1}], v[{f}:{f+1}], v[{f}:{f+1}], v[{Q_}:{Q_+1}]")
                    else:
                        a(f"v_pk_add_f32 v[{S_}:{S_+1}], v[{S_}:{S_+1}], v[{f}:{f+1}]")
                        a(f"v_pk_fma_f32 v[{Q_}:{Q_+1}], v[{f}:{f+1}], v[{f}:{f+1}], v[{Q_}:{Q_+1}]")
            if e == 1 and OPT["dmae"]:
                qdma(0, OPT["dmae"], "a")
            for r in (S_, Q_):
                a(f"v_add_f32 v{r}, v{r}, v{r+1}")
            for pat in ("quad_perm:[1,0,3,2]", "quad_perm:[2,3,0,1]", "row_half_mirror"):
                for r in (S_, Q_):
                    a(f"v_add_f32_dpp v{r}, v{r}, v{r} {pat} row_mask:0xf bank_mask:0xf")
            a(f"v_mul_f32 v{S_}, 0x{f2u(1.0/448):08x}, v{S_}")
            a(f"v_mul_f32 v{Q_}, 0x{f2u(1.0/448):08x}, v{Q_}")
            a(f"v_fma_f32 v{Q_}, -v{S_}, v{S_}, v{Q_}")
            a(f"v_max_f32 v{Q_}, 0, v{Q_}")
            a(f"v_add_f32 v{Q_}, 0x{f2u(1e-5):08x}, v{Q_}")
            a(f"v_rsq_f32 v{R_}, v{Q_}")
            a(f"v_mul_f32 v{R_+2}, -v{S_}, v{R_}")
            for j in range(7):
                for d in range(4):
                    f = F + 8 * j + 2 * d
                    a(f"v_pk_fma_f32 v[{f}:{f+1}], v[{f}:{f+1}], v[{R_}:{R_+1}], v[{R_+2}:{R_+3}] op_sel_hi:[1,0,0]")
                for d in range(4):
                    f = F + 8 * j + 2 * d
                    a(f"v_cvt_pk_bf16_f32 v{raw(e, j)+d}, v{f}, v{f+1}")
                r = raw(e, j)
                a(f"ds_write_b128 v{v_xw + e + (2 if j >= 4 else 0)}, v[{r}:{r+3}] offset:{(j % 4)*16384}")
    st("lnend")
    qdma(OPT["dmae"], 12, "b")
    gtouch(sWg, 13, False, t + 10, vm)
    a(f"buffer_store_dwordx2 v[{v_non}:{v_non+1}], v{v_e0}, s[{sDbg}:{sDbg+3}], 0 offen sc1")
    vm.issue("t")
    a(f"s_waitcnt vmcnt({vm.wait_n('c0')}) lgkmcnt(0)")
    a("s_barrier")
    st("B1")
    a(f"s_and_b32 s{s_t0}, s{s_cb}, 3")
    a(f"s_cmp_eq_u32 s{s_t0}, 3")
    a("s_cbranch_scc1 L_type2")

    def deferred(is2):
        D = []
        S = D.append
        tt = vT
        d0, d1 = s_d0, s_d1
        if is2:
            S(f"v_lshrrev_b32 v{tt}, 4, v{v_lane}")
            S(f"v_and_b32 v{tt+1}, 15, v{v_lane}")
            S(f"v_mul_u32_u24 v{tt+2}, 2688, v{tt}")
            S(f"v_lshlrev_b32 v{tt+3}, 2, v{tt}")
            S(f"v_xor_b32 v{tt+3}, v{tt+3}, v{tt+1}")
            S(f"v_lshl_add_u32 v{v_dv}, v{tt+3}, 4, v{tt+2}")
            S(f"s_and_b32 s{d0}, s{s_w}, 1")
            S(f"s_lshl_b32 s{d0}, s{d0}, 7")
            S(f"v_lshlrev_b32 v{tt+3}, 4, v{tt+3}")
            S(f"v_xor_b32 v{tt+3}, s{d0}, v{tt+3}")
            S(f"v_add_u32 v{v_dvh}, v{tt+3}, v{tt+2}")
            S(f"v_bfe_u32 v{tt}, v{v_lane}, 2, 2")
            S(f"v_and_b32 v{tt+1}, 3, v{v_lane}")
            S(f"v_bfe_u32 v{tt+2}, v{v_lane}, 4, 1")
            S(f"v_lshrrev_b32 v{tt+3}, 5, v{v_lane}")
            S(f"v_lshl_add_u32 v{tt+3}, v{tt+3}, 3, v{tt}")
            S(f"v_lshlrev_b32 v{tt+3}, 8, v{tt+3}")
            S(f"v_lshlrev_b32 v{tt+1}, 4, v{tt+1}")
            S(f"v_lshl_add_u32 v{tt+1}, v{tt+2}, 3, v{tt+1}")
            S(f"s_mul_i32 s{d0}, s{s_g}, 112")
            S(f"v_add_u32 v{tt+1}, s{d0}, v{tt+1}")
            S(f"v_lshlrev_b32 v{tt}, 6, v{tt}")
            S(f"v_xor_b32 v{tt+2}, v{tt+1}, v{tt}")
            S(f"v_add_u32 v{v_bv0}, v{tt+2}, v{tt+3}")
            S(f"v_add_u32 v{tt+1}, 56, v{tt+1}")
            S(f"v_xor_b32 v{tt+2}, v{tt+1}, v{tt}")
            S(f"v_add_u32 v{v_bv1}, v{tt+2}, v{tt+3}")
        D += srd(sWS, 34, 35, WS_BYTES) + srd(sWd, 28, 29, WD_BYTES) + srd(sWo, 20, 21, WO_BYTES) + srd(sO, 30, 31, X_BYTES)
        S(f"s_cmp_lt_u32 s{s_cb}, 8\ns_cselect_b32 s{s_scale}, 0x{f2u(QSCALE):08x}, 1.0")
        S(f"s_lshl1_add_u32 s{s_qkst}, s{s_cb}, s{s_g}")
        S(f"s_lshl_b32 s{s_qkst}, s{s_qkst}, 17")
        S(f"s_lshl2_add_u32 s{d0}, s{s_tb}, s{s_mt}")
        S(f"s_mul_i32 s{d1}, s{d0}, {NKS*1024}")
        S(f"s_add_u32 s{s_hst}, s{s_hst}, s{d1}")
        S(f"s_lshl_b32 s{d1}, s{s_g}, 11")
        S(f"s_add_u32 s{s_hst}, s{s_hst}, s{d1}")
        S(f"s_add_u32 s{s_hst}, s{s_hst}, {HF}")
        S(f"s_lshl_b32 s{d0}, s{d0}, 11")
        S(f"s_add_u32 s{s_qkst}, s{s_qkst}, s{d0}")
        if is2:
            S(f"s_and_b32 s{s_vst}, s{s_cb}, 12")
            S(f"s_lshl1_add_u32 s{s_vst}, s{s_g}, s{s_vst}")
            S(f"s_lshl_b32 s{s_vst}, s{s_vst}, 17")
            S(f"s_add_u32 s{s_vst}, s{s_vst}, s{d0}")
            S(f"s_add_u32 s{s_vst}, s{s_vst}, {VF}")
            S(f"v_and_b32 v{tt}, 31, v{v_lane}")
            S(f"v_cmp_eq_u32 s[{s_one}:{s_one+1}], 28, v{tt}")
            S(f"v_mov_b32 v{v_one}, 0x3f803f80")
        S(f"s_and_b32 s{s_wr}, s{s_tb}, 3")
        S(f"v_mov_b32 v{v_c1}, 0x{f2u(GC1):08x}")
        S(f"v_mov_b32 v{v_c2}, 0x{f2u(GC2):08x}")
        S(f"v_mov_b32 v{v_k1}, 1.0")
        S(f"v_lshlrev_b32 v{v_st}, 4, v{v_lane}")
        S(f"v_bfe_u32 v{tt}, v{v_lane}, 3, 1")
        S(f"v_lshlrev_b32 v{tt}, 4, v{tt}")
        S(f"v_bfe_u32 v{tt+1}, v{v_lane}, 4, 1")
        S(f"v_lshl_or_b32 v{tt}, v{tt+1}, 3, v{tt}")
        S(f"v_and_b32 v{tt+1}, 0x27, v{v_lane}")
        S(f"v_or_b32 v{tt}, v{tt}, v{tt+1}")
        S(f"v_lshlrev_b32 v{v_stk}, 4, v{tt}")
        S(f"s_cmp_lt_u32 s{s_cb}, 8\ns_cselect_b64 s[{d0}:{d0+1}], -1, 0")
        S(f"v_cndmask_b32 v{v_stk}, v{v_stk}, v{v_st}, s[{d0}:{d0+1}]")
        S(f"v_cmp_gt_u32 s[{d0}:{d0+1}], 32, v{v_lane}")
        S(f"v_cndmask_b32 v{v_msk}, 0, -1, s[{d0}:{d0+1}]")
        return D

    def deferred2():
        D = []
        S = D.append
        tt = vT + 8
        d0, d1 = s_d0, s_d1
        S(f"s_and_b32 s{d0}, s2, 7")
        S(f"s_lshr_b32 s{d1}, s2, 7")
        S(f"s_lshl1_add_u32 s{s_h}, s{d0}, s{d1}")
        S(f"s_bfe_u32 s{s_qb}, s2, 0x40003")
        S(f"s_bfe_u32 s{d1}, s2, 0x20003")
        S(f"s_lshl2_add_u32 s{s_tb64}, s{d0}, s{d1}")
        S(f"s_lshr_b32 s{s_nb}, s2, 5")
        S(f"s_lshr_b32 s{d0}, s{s_h}, 1")
        S(f"s_or_b32 s{d1}, s{s_h}, 3")
        S(f"v_min_u32 v{tt}, 1, v{v_lane}")
        S(f"v_sub_u32 v{tt+1}, v{v_lane}, v{tt}")
        S(f"v_sub_u32 v{tt+1}, s{s_qb}, v{tt+1}")
        S(f"v_max_i32 v{tt+1}, 0, v{tt+1}")
        S(f"v_lshl_add_u32 v{tt}, v{tt}, 3, s{d0}")
        S(f"v_lshl_add_u32 v{tt}, v{tt+1}, 4, v{tt}")
        S(f"v_lshlrev_b32 v{tt}, 3, v{tt}")
        S(f"v_add_u32 v{tt}, {FL + F_QK*2048}, v{tt}")
        S(f"v_sub_u32 v{tt+1}, s{s_qb}, v{v_lane}")
        S(f"v_max_i32 v{tt+1}, 0, v{tt+1}")
        S(f"v_lshl_add_u32 v{tt+1}, v{tt+1}, 4, s{d1}")
        S(f"v_lshlrev_b32 v{tt+1}, 3, v{tt+1}")
        S(f"v_add_u32 v{tt+1}, {FL + F_V*2048}, v{tt+1}")
        S(f"v_mov_b32 v{tt+2}, {OOB}")
        S(f"v_cmp_gt_u32 s[{d0}:{d0+1}], 4, v0")
        S(f"v_cndmask_b32 v{v_pa}, v{tt+2}, v{tt}, s[{d0}:{d0+1}]")
        S(f"v_cndmask_b32 v{v_paV}, v{tt+2}, v{tt+1}, s[{d0}:{d0+1}]")
        S(f"s_lshr_b32 s{d0}, s{s_tb64}, 1")
        S(f"s_lshl_b32 s{d0}, s{d0}, 7")
        S(f"s_add_u32 s{d0}, s{d0}, {FL + F_H*2048}")
        S(f"v_lshl_add_u32 v{tt}, v{v_lane}, 3, s{d0}")
        S(f"v_cmp_gt_u32 s[{d0}:{d0+1}], 16, v{0 if OPT['p1'] else v_lane}")
        S(f"v_cndmask_b32 v{v_paH}, v{tt+2}, v{tt}, s[{d0}:{d0+1}]")
        S(f"s_lshl4_add_u32 s{s_fp}, s{s_tb}, s{s_cb}")
        S(f"s_lshl_b32 s{s_fp}, s{s_fp}, 3")
        S(f"s_add_u32 s{s_fp}, s{s_fp}, {FL}")
        S(f"s_lshl4_add_u32 s{s_fo}, s{s_qb}, s{s_h}")
        S(f"s_lshl_b32 s{s_fo}, s{s_fo}, 3")
        S(f"s_add_u32 s{s_fo}, s{s_fo}, {FL}")
        S(f"s_lshl_b32 s{s_kv}, s{s_h}, 17")
        S(f"s_lshl_b32 s{d0}, s{s_qb}, 13")
        S(f"s_add_u32 s{s_kv}, s{s_kv}, s{d0}")
        S(f"v_and_b32 v{tt}, 15, v{v_lane}")
        S(f"v_lshrrev_b32 v{tt+1}, 4, v{v_lane}")
        S(f"v_lshlrev_b32 v{v_qa}, 9, v{tt+1}")
        S(f"v_lshl_add_u32 v{v_qa}, v{tt}, 4, v{v_qa}")
        S(f"s_and_b32 s{s_nt}, s{s_w}, 1")
        S(f"s_lshl_b32 s{s_par}, s{s_nt}, 8")
        S(f"s_lshr_b32 s{s_bd}, s{s_w}, 1")
        S(f"s_lshl2_add_u32 s{s_bd}, s{s_qb}, s{s_bd}")
        S(f"s_mul_i32 s{s_ost}, s{s_bd}, {NKS*1024}")
        S(f"s_lshl_b32 s{d0}, s{s_h}, 11")
        S(f"s_add_u32 s{s_ost}, s{s_ost}, s{d0}")
        S(f"s_add_u32 s{s_ost}, s{s_ost}, s{s_par}")
        S(f"s_add_u32 s{s_ost}, s{s_ost}, {HF + 112*1024}")
        S(f"v_and_b32 v{v_d}, 3, v{v_lane}")
        S(f"v_bfe_u32 v{tt}, v{v_lane}, 2, 1")
        S(f"v_lshl_or_b32 v{v_d}, v{tt}, 3, v{v_d}")
        S(f"v_bfe_u32 v{tt}, v{v_lane}, 3, 1")
        S(f"v_lshl_or_b32 v{v_d}, v{tt}, 2, v{v_d}")
        S(f"s_lshl_b32 s{d0}, s{s_nt}, 4")
        S(f"v_add_u32 v{v_d}, s{d0}, v{v_d}")
        S(f"v_lshlrev_b32 v{tt}, 3, v{tt+1}")
        S(f"v_sub_u32 v{v_d}, v{v_d}, v{tt}")
        S(f"s_lshr_b32 s{s_kh}, s{s_w}, 2")
        S(f"s_bfe_u32 s{s_cmt}, s{s_w}, 0x10001")
        S(f"v_lshrrev_b32 v{tt}, 3, v{v_lane}")
        S(f"v_and_b32 v{tt+1}, 7, v{v_lane}")
        S(f"v_bfe_u32 v{tt+2}, v{v_lane}, 4, 1")
        S(f"v_lshlrev_b32 v{tt+3}, 2, v{tt+2}")
        S(f"v_xor_b32 v{tt+3}, v{tt+3}, v{tt+1}")
        S(f"v_mul_u32_u24 v{v_dw}, 896, v{tt}")
        S(f"v_lshl_add_u32 v{v_dw}, v{tt+3}, 4, v{v_dw}")
        S(f"s_lshl_b32 s{s_m0h}, s{s_w}, 11")
        S(f"s_add_u32 s{s_m0w}, s{s_m0h}, {NH*16384}")
        S(f"s_mul_i32 s{s_wb}, s{s_w}, {16*896}")
        S(f"s_lshl_b32 s{d0}, s{s_nb}, 7")
        S(f"s_add_u32 s{s_wb}, s{s_wb}, s{d0}")
        S(f"s_lshr_b32 s{s_wob}, s{s_w}, 1")
        S(f"s_mul_i32 s{s_wob}, s{s_wob}, 28")
        S(f"s_lshl4_add_u32 s{s_wob}, s{s_nt}, s{s_wob}")
        S(f"s_mul_i32 s{s_wob}, s{s_wob}, 896")
        S(f"s_add_u32 s{s_wob}, s{s_wob}, s{d0}")
        S(f"s_lshl1_add_u32 s{d1}, s{s_tb64}, s{s_cmt}")
        S(f"s_mul_i32 s{s_xo}, s{d1}, {32*896}")
        S(f"s_add_u32 s{s_xo}, s{s_xo}, s{d0}")
        S(f"s_lshl_b32 s{d0}, s{s_nt}, 6")
        S(f"s_add_u32 s{s_xo}, s{s_xo}, s{d0}")
        S(f"s_lshl_b32 s{d0}, s{s_kh}, 5")
        S(f"s_add_u32 s{s_xo}, s{s_xo}, s{d0}")
        if OPT["rotc"]:
            S(f"s_lshl_b32 s{s_hr}, s{s_nb}, 14")
            S(f"s_mul_i32 s{d0}, s{s_nb}, {2*128*896}")
            S(f"s_add_u32 s{s_wb}, s{s_wb}, s{d0}")
        else:
            S(f"s_mov_b32 s{s_hr}, 0")
        S(f"s_lshl1_add_u32 s{s_hb}, s{s_tb64}, s{s_kh}")
        S(f"s_mul_i32 s{s_hb}, s{s_hb}, {NKS*1024}")
        S(f"s_lshl_b32 s{d0}, s{s_mt}, 11")
        S(f"s_add_u32 s{s_hb}, s{s_hb}, s{d0}")
        S(f"s_add_u32 s{s_hb}, s{s_hb}, {HF}")
        return D

    SC = "sc1"
    def epi_qk(acc):
        E = []
        for r in range(16):
            E.append(f"v_mul_f32 v{acc+r}, s{s_scale}, v{acc+r}")
        for d in range(8):
            E.append(f"v_cvt_pk_bf16_f32 v{vT+d}, v{acc+2*d}, v{acc+2*d+1}")
        E.append(f"v_and_b32 v{vT+6}, v{vT+6}, v{v_msk}")
        E.append(f"v_and_b32 v{vT+7}, v{vT+7}, v{v_msk}")
        return E
    qk_stores = [f"buffer_store_dwordx4 v[{vT}:{vT+3}], v{v_stk}, s[{sWS}:{sWS+3}], s{s_qkst} offen {SC}",
                 f"buffer_store_dwordx4 v[{vT+4}:{vT+7}], v{v_stk}, s[{sWS}:{sWS+3}], s{s_qkst} offen offset:1024 {SC}"]

    def epi_v(acc):
        E = []
        for jj in range(2):
            Ac = acc + 16 * jj
            T = vT + 8 * jj
            for d in range(8):
                E.append(f"v_cvt_pk_bf16_f32 v{T+d}, v{Ac+2*d}, v{Ac+2*d+1}")
            for d in range(8):
                E.append(f"v_cndmask_b32 v{T+d}, v{T+d}, v{v_one}, s[{s_one}:{s_one+1}]")
            if jj:
                E.append(f"s_add_u32 s{s_vst}, s{s_vst}, {1 << 17}")
            E.append(f"buffer_store_dwordx4 v[{T}:{T+3}], v{v_st}, s[{sWS}:{sWS+3}], s{s_vst} offen {SC}")
            E.append(f"buffer_store_dwordx4 v[{T+4}:{T+7}], v{v_st}, s[{sWS}:{sWS+3}], s{s_vst} offen offset:1024 {SC}")
        return E

    def epi_gu_tile(acc, jj, pk):
        E = []
        Ac = acc + 16 * jj
        T = vT + 12 * jj
        P = lambda r: f"v[{r}:{r+1}]"
        if pk:
            for i in range(0, 8, 2):
                E.append(f"v_pk_mul_f32 {P(T+i)}, {P(Ac+i)}, {P(Ac+i)}")
            for i in range(0, 8, 2):
                E.append(f"v_pk_fma_f32 {P(T+i)}, {P(T+i)}, {P(v_c2)}, {P(v_c1)} op_sel_hi:[1,0,0]")
            for i in range(0, 8, 2):
                E.append(f"v_pk_mul_f32 {P(T+i)}, {P(T+i)}, {P(Ac+i)}")
            for i in range(8):
                E.append(f"v_exp_f32 v{T+i}, v{T+i}")
                if i % 2:
                    E.append(f"v_pk_mul_f32 {P(Ac+i-1)}, {P(Ac+i-1)}, {P(Ac+8+i-1)}")
            for i in range(0, 8, 2):
                E.append(f"v_pk_add_f32 {P(T+i)}, {P(T+i)}, {P(v_k1)} op_sel_hi:[1,0]")
            for i in range(8):
                E.append(f"v_rcp_f32 v{T+i}, v{T+i}")
            for i in range(0, 8, 2):
                E.append(f"v_pk_mul_f32 {P(Ac+i)}, {P(Ac+i)}, {P(T+i)}")
        else:
            for i in range(8):
                E.append(f"v_mul_f32 v{T+i}, v{Ac+i}, v{Ac+i}")
            for i in range(8):
                E.append(f"v_fma_f32 v{T+i}, v{T+i}, v{v_c2}, v{v_c1}")
            for i in range(8):
                E.append(f"v_mul_f32 v{T+i}, v{T+i}, v{Ac+i}")
            for i in range(8):
                E.append(f"v_exp_f32 v{T+i}, v{T+i}")
                E.append(f"v_mul_f32 v{Ac+i}, v{Ac+i}, v{Ac+8+i}")
            for i in range(8):
                E.append(f"v_add_f32 v{T+i}, 1.0, v{T+i}")
            for i in range(8):
                E.append(f"v_rcp_f32 v{T+i}, v{T+i}")
            for i in range(8):
                E.append(f"v_mul_f32 v{Ac+i}, v{Ac+i}, v{T+i}")
        for d in range(4):
            E.append(f"v_cvt_pk_bf16_f32 v{T+8+d}, v{Ac+2*d}, v{Ac+2*d+1}")
        E.append(f"buffer_store_dwordx4 v[{T+8}:{T+11}], v{v_st}, s[{sWS}:{sWS+3}], s{s_hst} offen offset:{1024*jj} {SC}")
        return E

    def publish(vm, kind, s_base):
        a(f"s_add_u32 s{s_t1}, s{s_base}, {kind*2048}")
        a(f"buffer_store_dwordx2 v[{v_non}:{v_non+1}], v{v_fa}, s[{sWS}:{sWS+3}], s{s_t1} offen sc1")
        vm.issue("flag")

    def poll(vm, vaddr):
        a(f"buffer_load_dwordx2 v[{v_pf}:{v_pf+1}], v{vaddr}, s[{sWS}:{sWS+3}], 0 offen sc1")
        if vm is not None:
            vm.issue("poll")

    spin_id = [0]
    def wait_flags(vm, vaddr, nlanes):
        i = spin_id[0]; spin_id[0] += 1
        mask = (1 << nlanes) - 1
        if OPT["p1"]:
            a(f"s_cmp_lg_u32 s{s_w}, 0")
            a(f"s_cbranch_scc1 L_wf_done{i}")
        a(f"s_mov_b32 s{s_t2}, 0")
        a(f"s_waitcnt vmcnt({vm.wait_n('poll')})")
        a(f"L_wf{i}:")
        a(f"v_cmp_eq_u64 vcc, v[{v_pf}:{v_pf+1}], v[{v_non}:{v_non+1}]")
        a(f"s_and_b32 s{s_t1}, vcc_lo, {mask}")
        a(f"s_cmp_eq_u32 s{s_t1}, {mask}")
        a(f"s_cbranch_scc1 L_wf_done{i}")
        a(f"s_add_u32 s{s_t2}, s{s_t2}, 1")
        a(f"s_cmp_gt_u32 s{s_t2}, 100000")
        a(f"s_cbranch_scc1 L_wf_done{i}")
        a(f"s_sleep {OPT['slp']}")
        poll(None, vaddr)
        a("s_waitcnt vmcnt(0)")
        a(f"s_branch L_wf{i}")
        a(f"L_wf_done{i}:")

    def kq_groups():
        g = [f"s_mul_i32 s{s_b2}, s{s_w}, 3072",
             f"s_mov_b32 m0, s{s_b2}",
             f"s_add_u32 s{s_b1}, s{s_kv}, s{s_b2}",
             f"s_add_u32 s{s_b1}, s{s_b1}, {KF - 16384}"]
        for j in range(3):
            g.append(f"buffer_load_dwordx4 v{v_st}, s[{sWS}:{sWS+3}], s{s_b1} offen offset:{1024*j} sc1 lds")
        g2 = [f"s_lshr_b32 s{s_b2}, s{s_w}, 1",
              f"s_lshl_b32 s{s_b2}, s{s_b2}, 11",
              f"s_add_u32 s{s_b2}, s{s_b2}, s{s_par}",
              f"s_add_u32 s{s_b2}, s{s_b2}, s{s_kv}",
              f"buffer_load_dwordx4 v[{vQ}:{vQ+3}], v{v_qa}, s[{sWS}:{sWS+3}], s{s_b2} offen sc1"]
        return [(g, "k"), (g2, "k")]
    tailk = {}
    st_state = (st.n, list(st.names))
    def main(seq, vm):
        st.n, st.names = st_state[0], list(st_state[1])
        is2 = seq[2][0] == "v"
        lg = Cnt(15)
        M = []
        sp = -1
        prev = None
        for c, (kind, idx, part) in enumerate(seq):
            if (kind, idx) != prev:
                sp += 1
                prev = (kind, idx)
            if kind == "qk":
                for s in range(14):
                    M.append(dict(c=c, kind=kind, idx=idx, ks=14 * part + s, sl=s, jj=0, first=(part == 0 and s == 0), sp=sp))
            else:
                for s in range(7):
                    for jj in range(2):
                        M.append(dict(c=c, kind=kind, idx=idx, ks=7 * part + s, sl=s, jj=jj, first=(part == 0 and s == 0), sp=sp))
        LA = 3
        cur = [-1]
        def reads(m):
            mm = M[m]
            c = mm["c"]
            if cur[0] != c:
                cur[0] = c
                so = (c % 5) * SLOT
                if mm["kind"] == "qk":
                    a(f"v_add_u32 v{v_rdA}, {so}, v{v_bqk}")
                elif mm["kind"] == "v":
                    a(f"v_add_u32 v{v_rdA}, {so}, v{v_bv0}")
                    a(f"v_add_u32 v{v_rdB}, {so}, v{v_bv1}")
                else:
                    a(f"v_add_u32 v{v_rdA}, {so}, v{v_bg0}")
                    a(f"v_add_u32 v{v_rdB}, {so}, v{v_bg1}")
            b = vW + 4 * (m % 4)
            ad = v_rdB if mm["jj"] else v_rdA
            rb = 2 if mm["kind"] == "v" else 1
            o = mm["sl"] * 2048 * rb
            a(f"ds_read_b64_tr_b16 v[{b}:{b+1}], v{ad} offset:{o}")
            a(f"ds_read_b64_tr_b16 v[{b+2}:{b+3}], v{ad} offset:{o+512*rb}")
            lg.issue(f"w{m}"); lg.issue(f"w{m}")
        xn = [0]
        def xread(k=1):
            for _ in range(k):
                ks = xn[0]
                if ks >= 28:
                    return
                xn[0] += 1
                j, s2 = divmod(ks, 4)
                r = vX + 4 * ks
                a(f"ds_read_b128 v[{r}:{r+3}], v{v_xa + s2 + (4 if j >= 4 else 0)} offset:{(j % 4)*16384}")
                lg.issue(f"x{ks}")
        for m in range(LA):
            xread(1)
            reads(m)
        xread(3)
        pend = deferred(is2)
        pend_tag = "st"
        rate = len(pend) / 24.0
        accum = 0.0
        hold = 0
        n = len(M)
        bg = []
        B2 = OPT["b2"]
        def emit_pend():
            ins = pend.pop(0)
            a(ins)
            if ins.startswith("buffer_"):
                vm.issue(pend_tag)
        w2k = [0]
        def slot_store(stores, vaddr, k, nk, tag):
            if nk > 1:
                if nk == 2:
                    a(f"s_bitcmp{k}_b32 s{s_wr}, 0")
                else:
                    a(f"s_cmp_eq_u32 s{s_wr}, {k}")
                a(f"s_cselect_b64 s[{s_t0}:{s_t0+1}], -1, 0")
                a(f"v_cndmask_b32 v{v_e0}, v{v_e1}, v{vaddr}, s[{s_t0}:{s_t0+1}]")
                stores = [x.replace(f", v{vaddr},", f", v{v_e0},") for x in stores]
            for x in stores:
                a(x); vm.issue(tag)
        late = {}
        dsched = {}
        for m in range(n):
            mm = M[m]
            c = mm["c"]
            if m in STM:
                st(f"m{m}")
            if m == B2:
                assert xn[0] >= 28 and B2 <= 11
                a(f"s_waitcnt vmcnt({vm.wait_n('c1')}) lgkmcnt({lg.wait_n('x27')})")
                a("s_barrier")
                emit_group(vm, c1b)
                bg += dmaA(seq[2], 2, "c2") + dmaA(seq[3], 3, "c3") + dmaA(seq[4], 4, "c4")
                bg.append(([f"buffer_load_dwordx2 v[{v_non}:{v_non+1}], v{v_zero}, s[{sDbg}:{sDbg+3}], 0 offen sc1"], "nonce"))
            if m == 20:
                a(f"s_waitcnt vmcnt({vm.wait_n('c1b')})")
                a("s_barrier")
            if m % 14 == (8 if c != 1 else 10) and 1 <= c < len(seq) - 1:
                tags = [f"c{c+1}"]
                while not vm.has(tags[0]) or any(g[1] == tags[0] for g in bg):
                    emit_group(vm, bg.pop(0))
                if c == OPT["pubqk"]:
                    tags.append("st_qk")
                if c == OPT["kq"]:
                    wait_flags(vm, v_pa, 4)
                a(f"s_waitcnt vmcnt({vm.wait_n(*tags)})")
                a("s_barrier")
                if c == OPT["pubqk"]:
                    publish(vm, F_QK, s_fp)
                if c == OPT["kq"]:
                    bg += kq_groups()
                if c + 4 < len(seq):
                    dl = OPT.get(f"d{c+4}", 0)
                    if dl > m:
                        dsched[dl] = c + 4
                    else:
                        bg += dmaA(seq[c + 4], (c + 4) % 5, f"c{c+4}")
                if c == 4:
                    i = spin_id[0]; spin_id[0] += 1
                    a(f"s_mov_b32 s{s_t2}, 0")
                    a(f"L_nz{i}:")
                    a(f"v_readfirstlane_b32 s{s_t1}, v{v_non}")
                    a(f"s_cmp_lg_u32 s{s_t1}, 0")
                    a(f"s_cbranch_scc1 L_nz_done{i}")
                    a(f"s_add_u32 s{s_t2}, s{s_t2}, 1")
                    a(f"s_cmp_gt_u32 s{s_t2}, 100000")
                    a(f"s_cbranch_scc1 L_nz_done{i}")
                    a("s_sleep 2")
                    a(f"buffer_load_dwordx2 v[{v_non}:{v_non+1}], v{v_zero}, s[{sDbg}:{sDbg+3}], 0 offen sc1")
                    a("s_waitcnt vmcnt(0)")
                    a(f"s_branch L_nz{i}")
                    a(f"L_nz_done{i}:")
            if m in dsched:
                k = dsched[m]
                bg += dmaA(seq[k], k % 5, f"c{k}")
            for k in range(OPT["qkn"]):
                if m == OPT["qkst"] + k * OPT["qkgap"]:
                    slot_store(qk_stores, v_stk, k, OPT["qkn"], "st_qk")
            if m == OPT["pubm"] and is2:
                a(f"s_waitcnt vmcnt({vm.wait_n('st_qkv')})")
                a("s_barrier")
                publish(vm, F_V, s_fp)
            if m == 14 * OPT["kq"] + 8 - OPT["kqlead"]:
                poll(vm, v_pa)
            if m in late:
                for (ins, k, nk, flush) in late[m]:
                    if flush:
                        while pend:
                            emit_pend()
                    if ins.startswith("buffer_"):
                        slot_store([ins], v_st, k, nk, "st_h0")
                    else:
                        a(ins)
            if m == OPT["w2s"]:
                gtouch(sWd, 7, True, v_e0, vm)
                gtouch(sWo, 2, True, v_e0, vm)
            if m + LA < n:
                reads(m + LA)
            xread(OPT["xr"])
            tags = [f"w{m}"]
            if mm["sp"] == 0:
                tags.append(f"x{mm['ks']}")
            a(f"s_waitcnt lgkmcnt({lg.wait_n(*tags)})")
            accb = ACC[(mm["sp"] + 1) % 2]
            acc = accb + 16 * mm["jj"]
            b = vW + 4 * (m % 4)
            x = vX + 4 * mm["ks"]
            csrc = "0" if mm["first"] else f"v[{acc}:{acc+15}]"
            if mm["kind"] == "v":
                a(f"v_mfma_f32_32x32x16_bf16 v[{acc}:{acc+15}], v[{x}:{x+3}], v[{b}:{b+3}], {csrc}")
            else:
                a(f"v_mfma_f32_32x32x16_bf16 v[{acc}:{acc+15}], v[{b}:{b+3}], v[{x}:{x+3}], {csrc}")
            if bg and (m % OPT["bgp"] == 0 or len(bg) > 4):
                emit_group(vm, bg.pop(0))
            last_of_sp = (m + 1 == n) or (M[m + 1]["sp"] != mm["sp"])
            if pend and not hold:
                accum += rate
                while accum >= 1.0 and pend:
                    emit_pend()
                    accum -= 1.0
            if hold:
                hold -= 1
            if last_of_sp:
                while pend:
                    emit_pend()
                if m + 1 < n:
                    nsp = sum(1 for q in M if q["sp"] == mm["sp"] + 1)
                    if mm["kind"] == "qk":
                        pend = epi_qk(accb) + deferred2()
                        rate = max(len(pend) / (nsp - 8), 27.0 / max(1, OPT["qkst"] - 31))
                    elif mm["kind"] == "v":
                        pend = epi_v(accb)
                        pend_tag = "st_qkv"
                        rate = 3.0
                    else:
                        e0 = epi_gu_tile(accb, 0, OPT["pk"] & 2); e1 = epi_gu_tile(accb, 1, OPT["pk"] & 2)
                        if OPT["hst0"]:
                            s0_, s1_ = e0.pop(), e1.pop()
                            nk = OPT["hn"]
                            for k in range(nk):
                                late.setdefault(OPT["hst0"] + k * OPT["hgap"], []).append((s0_, k, nk, False))
                                late.setdefault(OPT["hst1"] + k * OPT["hgap"], []).append((s1_, k, nk, True))
                            late.setdefault(139, []).append((f"s_add_u32 s{s_hst}, s{s_hst}, 4096", 0, 1, False))
                            assert OPT["hst1"] + (nk - 1) * OPT["hgap"] <= 139
                            assert (OPT["hst0"] - 86) * 2 >= (OPT["hst1"] - 88)
                            pend = e0 + e1
                            rate = len(pend) / (OPT["hst1"] - 84 - 4)
                        else:
                            pend = e0 + e1 + [f"s_add_u32 s{s_hst}, s{s_hst}, 4096"]
                            rate = len(pend) / (nsp - 8)
                        pend_tag = "st_h0"
                    accum = 0.0
                    hold = 2
                else:
                    assert accb == ACC[1]
        assert not bg
        tailk[is2] = vm.wait_n("k")

    main(seq1, copy.deepcopy(vm))
    a("s_branch L_postA")
    a("L_type2:")
    main(seq2, copy.deepcopy(vm))
    a("L_postA:")
    st("T")
    vm = VM()

    vS = 132
    vKF = 204
    vP = 64
    vO = 100
    v_ka, v_va, v_m, v_u = 3, 4, 2, 128
    u = v_u

    def dmaW(c):
        slot = (c % NW) * 16384
        G = []
        for jj in range(2):
            g = [f"s_add_u32 m0, s{s_m0w}, {slot + 1024*jj}"]
            if c < 14:
                g.append(f"s_add_u32 s{s_b1}, s{s_wb}, {(128*c + 8*jj)*896}")
                g.append(f"s_sub_u32 s{s_b2}, s{s_b1}, {WD_BYTES}")
                g.append(f"s_min_u32 s{s_b1}, s{s_b1}, s{s_b2}")
                g.append(f"buffer_load_dwordx4 v{v_dw}, s[{sWd}:{sWd+3}], s{s_b1} offen lds")
            else:
                g.append(f"s_add_u32 s{s_b1}, s{s_nb}, {c-14}")
                g.append(f"s_and_b32 s{s_b1}, s{s_b1}, 3")
                g.append(f"s_mul_i32 s{s_b1}, s{s_b1}, {112*896}")
                g.append(f"s_add_u32 s{s_b1}, s{s_b1}, s{s_wob}")
                if jj:
                    g.append(f"s_add_u32 s{s_b1}, s{s_b1}, {8*896}")
                g.append(f"buffer_load_dwordx4 v{v_dw}, s[{sWo}:{sWo+3}], s{s_b1} offen lds")
            G.append((g, f"w{c}"))
        return G

    def dmaH(c):
        slot = (c % NH) * 16384
        g = [f"s_add_u32 m0, s{s_m0h}, {slot}"]
        if c < 14:
            g.append(f"s_add_u32 s{s_b1}, s{s_hr}, {8192*c}")
            g.append(f"s_sub_u32 s{s_b2}, s{s_b1}, {14*8192}")
            g.append(f"s_min_u32 s{s_b1}, s{s_b1}, s{s_b2}")
        else:
            g.append(f"s_add_u32 s{s_b1}, s{s_nb}, {c-14}")
            g.append(f"s_and_b32 s{s_b1}, s{s_b1}, 3")
            g.append(f"s_lshl_b32 s{s_b1}, s{s_b1}, 13")
            g.append(f"s_add_u32 s{s_b1}, s{s_b1}, {14*8192}")
        g.append(f"s_add_u32 s{s_b1}, s{s_b1}, s{s_hb}")
        for jj in range(2):
            g.append(f"buffer_load_dwordx4 v{v_st}, s[{sWS}:{sWS+3}], s{s_b1} offen offset:{1024*jj} sc1 lds")
        return (g, f"h{c}")

    wq = []
    for c in range(NW):
        wq += dmaW(c)
    cnt = [0]
    def e(ins, every=OPT["wspread"]):
        a(ins)
        cnt[0] += 1
        if cnt[0] % every == 0 and wq:
            emit_group(vm, wq.pop(0))

    poll(vm, v_paV)
    a(f"s_lshr_b32 s{s_t2}, s{s_w}, 1")
    a(f"s_lshl_b32 s{s_t2}, s{s_t2}, 11")
    a(f"v_add_u32 v{v_ka}, s{s_t2}, v{v_qa}")
    a(f"v_add_u32 v{v_va}, 24576, v{v_ka}")
    a(f"s_waitcnt vmcnt({min(tailk.values()) + 1})")
    a("s_barrier")
    st("BK")
    E0 = epi_gu_tile(ACC[1], 0, OPT["pk"] & 1)
    E1 = epi_gu_tile(ACC[1], 1, OPT["pk"] & 1)
    side = E0[:-1] + E1[:-1] + [f"v_cmp_le_i32 s[{MK[i]}:{MK[i]+1}], {i}, v{v_d}" for i in range(8)]

    def kread(i):
        b, tt = divmod(i, 2)
        r = vKF + 4 * (i % 8)
        a(f"ds_read_b128 v[{r}:{r+3}], v{v_ka} offset:{b*2048 + tt*256}")
    LA = 6
    per = (len(side) + 17) // 18
    nf = OPT["wfirst"]
    for i in range(LA):
        kread(i)
    for i in range(18):
        if i + LA < 18:
            kread(i + LA)
            a(f"s_waitcnt lgkmcnt({LA})")
        else:
            a(f"s_waitcnt lgkmcnt({17-i})")
        r = vKF + 4 * (i % 8)
        a(f"v_mfma_f32_16x16x32_bf16 v[{vS+4*i}:{vS+4*i+3}], v[{r}:{r+3}], v[{vQ}:{vQ+3}], 0")
        for _ in range(per):
            if side:
                a(side.pop(0))
        if i == OPT["vpos"]:
            st("preV")
            wait_flags(vm, v_paV, 3)
            a("s_barrier")
            st("fV")
            a(f"s_mul_i32 s{s_t0}, s{s_w}, 3072")
            a(f"s_add_u32 m0, s{s_t0}, 24576")
            a(f"s_add_u32 s{s_t1}, s{s_kv}, s{s_t0}")
            a(f"s_add_u32 s{s_t2}, s{s_t1}, {VF - 16384}")
            for j in range(3):
                a(f"buffer_load_dwordx4 v{v_st}, s[{sWS}:{sWS+3}], s{s_t2} offen offset:{1024*j} sc1 lds")
                vm.issue("v")
        if i < OPT["vpos"] and i % 2 == 1 and nf:
            emit_group(vm, wq.pop(0)); nf -= 1
    a(E0[-1]); vm.issue("st_h")
    a(E1[-1]); vm.issue("st_h")
    st("Sdone")
    a(f"s_cmp_ge_u32 s{s_bd}, 8")
    a("s_cbranch_scc1 L_allvalid")
    for b in range(8):
        a(f"s_cmp_ge_u32 s{s_bd}, {8-b}")
        a("s_cbranch_scc1 L_allvalid")
        for i in range(8):
            a(f"v_mov_b32 v{vS+8*b+i}, 0xf149f2ca")
    a("L_allvalid:")
    for i in range(8):
        e(f"v_cndmask_b32 v{vS+i}, v{vS+i}, v{vS+64+i}, s[{MK[i]}:{MK[i]+1}]")
    e(f"v_max3_f32 v{v_m}, v{vS+8}, v{vS+9}, v{vS+10}")
    e(f"v_max3_f32 v{u}, v{vS+11}, v{vS+12}, v{vS+13}")
    ks = list(range(14, 64, 2)) + list(range(0, 8, 2))
    tog = 0
    for k in ks:
        d = v_m if tog == 0 else u
        e(f"v_max3_f32 v{d}, v{d}, v{vS+k}, v{vS+k+1}")
        tog ^= 1
    a(f"v_max_f32 v{v_m}, v{v_m}, v{u}")
    a(f"v_mov_b32 v{u}, v{v_m}")
    a(f"v_permlane32_swap_b32 v{v_m}, v{u}")
    a(f"v_max_f32 v{v_m}, v{v_m}, v{u}")
    a(f"v_mov_b32 v{u}, v{v_m}")
    a(f"v_permlane16_swap_b32 v{v_m}, v{u}")
    a(f"v_max_f32 v{v_m}, v{v_m}, v{u}")
    order = [1, 2, 3, 4, 5, 6, 7, 0, 8]
    def softmax_block(b):
        for i in range(0, 8, 2):
            r = vS + 8 * b + i
            e(f"v_pk_add_f32 v[{r}:{r+1}], v[{r}:{r+1}], v[{v_m}:{v_m+1}] op_sel_hi:[1,0] neg_lo:[0,1] neg_hi:[0,1]")
        for i in range(8):
            e(f"v_exp_f32 v{vS+8*b+i}, v{vS+8*b+i}")
        if b == 0:
            for i in range(8):
                e(f"v_cndmask_b32 v{vS+64+i}, 0, v{vS+i}, s[{MK[i]}:{MK[i]+1}]")
            for i in range(8):
                e(f"v_cndmask_b32 v{vS+i}, v{vS+i}, 0, s[{MK[i]}:{MK[i]+1}]")
            for d in range(4):
                e(f"v_cvt_pk_bf16_f32 v{vP+32+d}, v{vS+64+2*d}, v{vS+64+2*d+1}")
        for d in range(4):
            e(f"v_cvt_pk_bf16_f32 v{vP+4*b+d}, v{vS+8*b+2*d}, v{vS+8*b+2*d+1}")
    softmax_block(order[0])
    st("preBV")
    a(f"s_waitcnt vmcnt({vm.wait_n('st_h', 'v')})")
    a("s_barrier")
    publish(vm, F_H, s_fp)
    st("BV")
    def vread(i):
        b = order[i // 2]
        tt = i % 2
        r = vKF + 4 * (i % 8)
        a(f"ds_read_b128 v[{r}:{r+3}], v{v_va} offset:{b*2048 + tt*256}")
    for i in range(LA):
        vread(i)
    for bi in range(9):
        b = order[bi]
        if bi == 4:
            while wq:
                emit_group(vm, wq.pop(0))
            poll(vm, v_paH)
        if bi + 1 < 8:
            softmax_block(order[bi + 1])
        if bi == 6:
            a("s_waitcnt lgkmcnt(0)")
            st("preH")
            a(f"s_cmp_ge_u32 s{s_nb}, 7")
            a("s_cbranch_scc1 L_noC1")
            wait_flags(vm, v_paH, 16)
            a("s_barrier")
            for c in range(NH):
                emit_group(vm, dmaH(c))
            a("L_noC1:")
            st("Hiss")
        for tt in range(2):
            i = 2 * bi + tt
            if i + LA < 18:
                vread(i + LA)
                a(f"s_waitcnt lgkmcnt({LA})")
            elif bi < 6:
                a(f"s_waitcnt lgkmcnt({17-i})")
            r = vKF + 4 * (i % 8)
            cs = "0" if bi == 0 else f"v[{vO+4*tt}:{vO+4*tt+3}]"
            a(f"v_mfma_f32_16x16x32_bf16 v[{vO+4*tt}:{vO+4*tt+3}], v[{r}:{r+3}], v[{vP+4*b}:{vP+4*b+3}], {cs}")
    a(f"v_mov_b32 v{u}, v{vO+4}")
    a(f"v_mov_b32 v{u+1}, v{vO+4}")
    a(f"v_permlane32_swap_b32 v{u}, v{u+1}")
    a(f"v_mov_b32 v{u}, v{u+1}")
    a(f"v_permlane16_swap_b32 v{u}, v{u+1}")
    a(f"v_rcp_f32 v{u+1}, v{u+1}")
    for i in range(8):
        a(f"v_mul_f32 v{vO+i}, v{vO+i}, v{u+1}")
    for d in range(4):
        a(f"v_cvt_pk_bf16_f32 v{vQ+d}, v{vO+2*d}, v{vO+2*d+1}")
    a(f"v_cmp_gt_u32 s[{s_d0}:{s_d0+1}], 48, v{v_lane}")
    a(f"v_cndmask_b32 v{vQ+2}, 0, v{vQ+2}, s[{s_d0}:{s_d0+1}]")
    a(f"v_cndmask_b32 v{vQ+3}, 0, v{vQ+3}, s[{s_d0}:{s_d0+1}]")
    a(f"buffer_store_dwordx4 v[{vQ}:{vQ+3}], v{v_qa}, s[{sWS}:{sWS+3}], s{s_ost} offen sc1")
    vm.issue("st_o")
    st("Ost")
    a(f"s_cmp_lt_u32 s{s_nb}, 7")
    a("s_cbranch_scc1 L_phaseC")
    a("s_waitcnt vmcnt(0)")
    a("s_barrier")
    publish(VM(), F_O, s_fo)
    a("s_branch L_end")
    a("L_phaseC:")

    v_ah, v_aw, v_cxo = 2, 3, 4
    v_awB = 5
    vXr = 16
    vAcc = 48
    vF = 64
    tt = 20
    a(f"v_add_u32 v{v_paH}, {(F_O-F_H)*2048}, v{v_paH}")
    a(f"v_and_b32 v{tt}, 0x13, v{v_lane}")
    a(f"v_bfe_u32 v{tt+1}, v{v_lane}, 2, 1")
    a(f"v_lshl_or_b32 v{tt}, v{tt+1}, 3, v{tt}")
    a(f"v_bfe_u32 v{tt+1}, v{v_lane}, 3, 1")
    a(f"v_lshl_or_b32 v{tt}, v{tt+1}, 2, v{tt}")
    a(f"v_mul_u32_u24 v{v_cxo}, 896, v{tt}")
    a(f"v_lshrrev_b32 v{tt+1}, 5, v{v_lane}")
    a(f"v_lshl_add_u32 v{v_cxo}, v{tt+1}, 4, v{v_cxo}")
    a(f"s_lshl_b32 s{s_t0}, s{s_cmt}, 13")
    a(f"s_lshl_b32 s{s_t1}, s{s_kh}, 12")
    a(f"s_add_u32 s{s_t0}, s{s_t0}, s{s_t1}")
    a(f"v_add_u32 v{v_ah}, s{s_t0}, v{v_st}")
    a(f"v_bfe_u32 v{tt}, v{v_lane}, 2, 2")
    a(f"v_and_b32 v{tt+2}, 3, v{v_lane}")
    a(f"v_bfe_u32 v{tt+3}, v{v_lane}, 4, 1")
    a(f"v_lshrrev_b32 v{tt+4}, 1, v{tt+2}")
    a(f"v_and_b32 v{tt+5}, 1, v{tt+2}")
    a(f"v_lshl_or_b32 v{tt+4}, v{tt+5}, 1, v{tt+4}")
    a(f"v_lshl_add_u32 v{tt+5}, v{tt+1}, 3, v{tt}")
    a(f"v_lshlrev_b32 v{tt+5}, 7, v{tt+5}")
    a(f"v_lshrrev_b32 v{tt+6}, 1, v{tt}")
    a(f"v_xor_b32 v{tt+6}, s{s_nt}, v{tt+6}")
    a(f"v_lshl_add_u32 v{tt+5}, v{tt+6}, 6, v{tt+5}")
    a(f"v_lshl_add_u32 v{tt+5}, v{tt+3}, 5, v{tt+5}")
    a(f"v_lshl_add_u32 v{tt+5}, v{tt+4}, 3, v{tt+5}")
    a(f"s_lshl_b32 s{s_t0}, s{s_kh}, 13")
    a(f"s_add_u32 s{s_t0}, s{s_t0}, {NH*16384}")
    a(f"v_add_u32 v{v_aw}, s{s_t0}, v{tt+5}")
    a(f"v_add_u32 v{v_awB}, 65536, v{v_aw}")
    assert NH <= 4 and NW <= 8
    NC = 18
    def creads(c):
        sh = (c % NH) * 16384
        sw = (c % NW)
        aw = v_aw if sw < 4 else v_awB
        swo = (sw % 4) * 16384
        base = vF + 32 * (c & 1)
        for i in range(4):
            f = base + 8 * i
            a(f"ds_read_b128 v[{f}:{f+3}], v{v_ah} offset:{sh + 1024*i}")
            a(f"ds_read_b64_tr_b16 v[{f+4}:{f+5}], v{aw} offset:{swo + 2048*i}")
            a(f"ds_read_b64_tr_b16 v[{f+6}:{f+7}], v{aw} offset:{swo + 2048*i + 512}")
    a(f"s_waitcnt vmcnt({vm.wait_n('h0', 'w0')})")
    a("s_barrier")
    st("C0")
    creads(0)
    PUB_O = OPT["pubo"]
    POLL_O = 14 - NH - 2
    wsched = {}
    nW = 2 * (NC - NW)
    last_it = NC - 1 - 3
    for q in range(nW):
        k = NW + q // 2
        it = int(q * (last_it + 1) / nW)
        it = max(it, k - NW)
        it = min(it, k - 3)
        wsched.setdefault(it, []).append((k, q % 2))
    for c in range(NC):
        if c + 1 < NC:
            tags = [f"h{c+1}", f"w{c+1}"]
            if c == PUB_O:
                tags.append("st_o")
            if c + NH == 14:
                wait_flags(vm, v_paH, 16)
            a(f"s_waitcnt vmcnt({vm.wait_n(*tags)}) lgkmcnt(0)")
            a("s_barrier")
            if c in (4, 9, 13):
                st(f"c{c}")
            creads(c + 1)
            if c == PUB_O:
                publish(vm, F_O, s_fo)
        else:
            a("s_waitcnt lgkmcnt(0)")
        G = []
        if c + NH < NC:
            G.append(dmaH(c + NH))
        for (k, jj) in wsched.get(c, []):
            G.append(dmaW(k)[jj])
        if c == POLL_O:
            G.append(([f"buffer_load_dwordx2 v[{v_pf}:{v_pf+1}], v{v_paH}, s[{sWS}:{sWS+3}], 0 offen sc1"], "poll"))
        if c == 12:
            G.append(([f"buffer_load_dwordx4 v[{vXr}:{vXr+3}], v{v_cxo}, s[{sX}:{sX+3}], s{s_xo} offen"], "xr"))
        base = vF + 32 * (c & 1)
        for i in range(4):
            f = base + 8 * i
            cs = "0" if (c == 0 and i == 0) else f"v[{vAcc}:{vAcc+15}]"
            a(f"v_mfma_f32_32x32x16_bf16 v[{vAcc}:{vAcc+15}], v[{f+4}:{f+7}], v[{f}:{f+3}], {cs}")
            if G:
                emit_group(vm, G.pop(0))
        while G:
            emit_group(vm, G.pop(0))
    st("Cend")
    a("s_barrier")
    a(f"s_lshl_b32 s{s_t0}, s{s_w}, 11")
    a(f"v_add_u32 v{tt+1}, s{s_t0}, v{v_st}")
    a(f"v_xor_b32 v{tt+2}, 8192, v{tt+1}")
    a(f"s_cmp_eq_u32 s{s_kh}, 0")
    a("s_cbranch_scc1 L_k0")
    a(f"ds_write_b128 v{tt+1}, v[{vAcc}:{vAcc+3}]")
    a(f"ds_write_b128 v{tt+1}, v[{vAcc+4}:{vAcc+7}] offset:1024")
    for i in range(8):
        a(f"v_mov_b32 v{vAcc+i}, v{vAcc+8+i}")
    a("s_branch L_k1")
    a("L_k0:")
    a(f"ds_write_b128 v{tt+1}, v[{vAcc+8}:{vAcc+11}]")
    a(f"ds_write_b128 v{tt+1}, v[{vAcc+12}:{vAcc+15}] offset:1024")
    a("L_k1:")
    a("s_waitcnt vmcnt(0) lgkmcnt(0)")
    a("s_barrier")
    a(f"ds_read_b128 v[{vF}:{vF+3}], v{tt+2}")
    a(f"ds_read_b128 v[{vF+4}:{vF+7}], v{tt+2} offset:1024")
    for d in range(4):
        a(f"v_lshlrev_b32 v{vF+8+2*d}, 16, v{vXr+d}")
        a(f"v_and_b32 v{vF+9+2*d}, 0xffff0000, v{vXr+d}")
    for i in range(8):
        a(f"v_add_f32 v{vAcc+i}, v{vAcc+i}, v{vF+8+i}")
    a("s_waitcnt lgkmcnt(0)")
    for i in range(8):
        a(f"v_add_f32 v{vAcc+i}, v{vAcc+i}, v{vF+i}")
    for d in range(4):
        a(f"v_cvt_pk_bf16_f32 v{vXr+d}, v{vAcc+2*d}, v{vAcc+2*d+1}")
    a(f"buffer_store_dwordx4 v[{vXr}:{vXr+3}], v{v_cxo}, s[{sO}:{sO+3}], s{s_xo} offen")
    if STAMP:
        a("s_waitcnt vmcnt(0)")
        st("end", wait=True); st("rt", rt=True, wait=True)
        st.finish()
        if DBGST:
            a("s_load_dwordx2 s[4:5], s[82:83], 64")
            a(f"v_sub_u32 v{v_stamp}, v{v_stamp}, v{v_non}")
            a(f"v_lshlrev_b32 v{tt}, 2, v{v_lane}")
            a(f"v_add_u32 v{tt}, 8, v{tt}")
            a("s_waitcnt lgkmcnt(0)")
            A(srd(8, 4, 5, 64))
            a(f"s_lshl3_add_u32 s3, s2, s{s_w}")
            a(f"s_cmp_lg_u32 s3, {37*8+4}")
            a("s_cbranch_scc1 L_end")
            a(f"buffer_store_dword v{v_stamp}, v{tt}, s[8:11], 0 offen")
            a("s_branch L_end")
        a(f"s_lshl3_add_u32 s3, s2, s{s_w}")
        a("s_lshl_b32 s3, s3, 7")
        a(f"s_add_u32 s3, s3, {STAMP_OFF}")
        a(f"v_lshlrev_b32 v{tt}, 2, v{v_lane}")
        a(f"v_cmp_gt_u32 vcc, {st.n}, v{v_lane}")
        a("s_and_saveexec_b64 s[4:5], vcc")
        a(f"buffer_store_dword v{v_stamp}, v{tt}, s[{sWS}:{sWS+3}], s3 offen")
        a.raw("; STAMPS " + " ".join(st.names))
        assert st.n <= 32
    a("L_end:")
    a("s_endpgm")
    return a


HEADER = """; Fused persistent kernel: LN + QKV/gate/up GEMM -> sliding-window attention -> [H|O] @ [w_down; wo] + x
;   0 A_x, 8 A_wqkv, 16 A_wo, 24 B_x, 32 B_w_gate, 40 B_w_up, 48 B_w_down, 56 d_out, 64 d_debug, 72 d_ws
; @launch grid=(256,1,1) block=(512,1,1) lds=163840
.amdgcn_target "amdgcn-amd-amdhsa--gfx950"
"""

def build():
    a = gen()
    print("instrs", a.nins, "nops", a.nnop, file=sys.stderr)
    return HEADER + a.text() + kernel_desc(NAME, 256)

if __name__ == "__main__":
    path = sys.argv[1] if len(sys.argv) > 1 else "parallel_sum__sliding_block__geglu_ffn__prompt.s"
    for arg in sys.argv[2:]:
        if arg == "stamp":
            STAMP = True
        elif arg == "dbgst":
            STAMP = True; DBGST = True
        else:
            k, v = arg.split("=")
            assert k in OPT, k
            OPT[k] = int(v)
    open(path, "w").write(build())
```

```python
import sys, struct, math, copy, os
sys.path.insert(0, "dev")
from asmlib import Asm, kernel_header, kernel_desc

NAME = "parallel_sum__sliding_block__geglu_ffn__prompt_kernel"

def f2u(f):
    return struct.unpack("<I", struct.pack("<f", f))[0]

QF = 0
KF = 2 << 20
VF = 4 << 20
FL = 6 << 20
HF = 8 << 20
WS_BYTES = 268435456
NKS = 144
F_QK, F_H, F_O, F_V = 0, 1, 2, 3
OOB = 0x7FFFFF00

X_BYTES = 2048 * 896
WQKV_BYTES = 448 * 2688
WG_BYTES = 448 * 3584
WD_BYTES = 1792 * 896
WO_BYTES = 448 * 896

LOG2E = 1.4426950408889634
QSCALE = (28 ** -0.5) * LOG2E
GC1 = -2.0 * 0.7978845608028654 * LOG2E
GC2 = GC1 * 0.044715

STAMP = False
DBGST = False
DBGN = ['t0','setup','x00','lnend','B1','m28','m84','T','Sdone','BV','Ost','C0','Cend','end']
STAMP_OFF = 200 << 20
CST = [int(x) for x in os.environ.get('CST', '4,9,14').split(',')]
STM = [int(x) for x in os.environ.get('STM', '11,28,56,84,112').split(',')]
OPT = dict(NH=4, NW=7, LH=5, opos=12, hl=4, wpre=4, wpre2=4, we=7, stl=0, arr=1, arrA=1, vrate=30, rot=0, rt=2, rn=1, wr=8, wq=0, pubm1=132, e1=16, e2=12, ptail=60, ob=2, pl=1, q0=5, q1=13, q2=17, mlead=1, vis=1, visage=2, nv0=4, rotc=1, b2=10, bgp=1, qkst=44, pubm=112, pk=1, w2s=60, l2n=0, mprio=1, sprio=0, xnf=0, xns=0, xnsc=0, l2s=64, l2d=9,
           wfirst=4, wspread=16, pubo=3, p1=1, slp=4, hst0=102, hst1=118, qkgap=0, d7=0, d8=0, d9=0,
           c1e=3, xr=3, xf=9, qkn=1, hn=1, hgap=0, tq=7, lnm=1, dmae=7, xil=1, pubqk=5, kq=8, kqlead=12, vpos=8)


class Cnt:
    def __init__(self, cap):
        self.ops = []
        self.cap = cap
    def issue(self, tag):
        self.ops.append(tag)
    def wait_n(self, *tags):
        idx = max(i for i, t in enumerate(self.ops) if t in tags)
        n = len(self.ops) - 1 - idx
        return min(n, self.cap)
    def has(self, tag):
        return tag in self.ops

def VM():
    return Cnt(63)


class Stamps:
    def __init__(self, a, vreg, base=98):
        self.a = a; self.base = base; self.n = 0; self.names = []; self.vreg = vreg
    def _flush_prev(self):
        if self.n >= 1:
            k = self.n - 1
            self.a(f"v_writelane_b32 v{self.vreg}, s{self.base + 2*(k % 2)}, {k}")
    def __call__(self, name="", rt=False, wait=False):
        if not STAMP: return
        p = self.base + 2 * (self.n % 2)
        if DBGST and name not in DBGN: return
        self.a(f"{'s_memrealtime' if (rt or DBGST) else 's_memtime'} s[{p}:{p+1}]")
        if wait:
            self.a("s_waitcnt lgkmcnt(0)")
        self._flush_prev()
        self.n += 1
        self.names.append(name)
    def finish(self):
        self.a("s_waitcnt lgkmcnt(0)")
        self._flush_prev()


def srd(d, lo, hi, nbytes):
    return [f"s_mov_b32 s{d}, s{lo}", f"s_and_b32 s{d+1}, s{hi}, 0xffff",
            f"s_mov_b32 s{d+2}, {nbytes}", f"s_mov_b32 s{d+3}, 0x00020000"]

SLOT = 28672
XBASE = 49152
RB = 49152
NR = 6
RING = NR * 4096
CNT_LDS = RB + 4 * RING


def gen():
    a = Asm()
    a.raw(kernel_header(NAME))
    def A(lst):
        for x in lst:
            a(x)
    NH, NW = OPT["NH"], OPT["NW"]
    sX, sWq, sWg, sWS, sWd, sWo, sO, sDbg = 36, 40, 44, 48, 52, 56, 60, 64
    s_w, s_tb, s_cb, s_g, s_mt = 68, 69, 70, 71, 72
    s_t0, s_t1, s_t2 = 74, 75, 76
    s_hst = 77
    s_n0 = 78
    s_q0, s_q3, s_v0, s_v3, s_g0, s_g3 = 4, 5, 6, 7, 8, 9
    s_m0, s_m3, s_scale, s_tg, s_qkst, s_vst = 10, 11, 12, 13, 14, 15
    s_wr = 3
    s_b1 = 73
    s_b2 = 0
    s_d0, s_d1 = 96, 97
    s_one = 16
    s_h, s_qb, s_fp, s_tch = 18, 19, 20, 21
    s_mq0, s_mq3 = 22, 23
    sTch = 24
    s_xr, s_xr1, s_tr, s_tqk = 80, 81, 82, 83
    s_kv, s_par, s_bd, s_ost = 84, 85, 86, 87
    s_tb64, s_nb, s_kh, s_cmt, s_nt = 88, 89, 90, 91, 92
    s_hb, s_hr, s_wb = 93, 94, 95
    s_wob, s_m0h, s_m0w, s_xo = 28, 29, 30, 31
    s_fo = 80
    MK = [24, 26, 16, 64, 32, 34, 40, 42]
    vX = 128
    ACC = [64, 96]
    vW = 48
    vT = 16
    v_lane, v_dq, v_dg, v_rdA, v_rdB, v_st, v_msk = 1, 2, 3, 4, 5, 6, 7
    v_bqk, v_bg0, v_bg1 = 9, 11, 12
    v_c1, v_c2, v_k1 = 8, 10, 14
    v_stk = 13
    v_stamp = 15
    v_xa = 32
    v_xw = 40
    v_xo = 44
    v_dv, v_dvh, v_bv0, v_bv1 = 40, 41, 42, 43
    v_tg, v_tq = 46, 47
    v_dw, v_d = 44, 45
    v_paH = 46
    v_paV = 47
    vQ = 240
    v_qa = 244
    v_one = 245
    v_e0, v_td = 246, 247
    v_non = 248
    v_e1, v_zero = 250, 251
    v_fa = 252
    v_pa = 253
    v_pf = 254
    t = vT

    st = Stamps(a, v_stamp)
    a("s_cmp_ge_u32 s2, 256")
    a("s_cbranch_scc1 L_end")
    st("rt", rt=True); st("t0", wait=True)
    if DBGST:
        a("s_mov_b64 s[82:83], s[0:1]")
    a("s_load_dwordx16 s[16:31], s[0:1], 0")
    a("s_load_dwordx4 s[32:35], s[0:1], 64")
    a(f"s_memrealtime s[{s_n0}:{s_n0+1}]")
    a(f"v_and_b32 v{v_lane}, 63, v0")
    a(f"v_lshrrev_b32 v{t}, 6, v0")
    a(f"v_readfirstlane_b32 s{s_w}, v{t}")
    a(f"s_and_b32 s{s_tb}, s2, 3")
    a(f"s_bfe_u32 s{s_t2}, s2, 0x20003")
    a(f"s_lshl2_add_u32 s{s_tb}, s{s_tb}, s{s_t2}")
    a(f"s_bfe_u32 s{s_cb}, s2, 0x10002")
    a(f"s_lshr_b32 s{s_t1}, s2, 5")
    a(f"s_lshl3_add_u32 s{s_cb}, s{s_cb}, s{s_t1}")
    a(f"s_lshr_b32 s{s_g}, s{s_w}, 2")
    a(f"s_and_b32 s{s_mt}, s{s_w}, 3")
    a(f"s_and_b32 s{s_t0}, s{s_cb}, 1")
    a(f"s_and_b32 s{s_t1}, s{s_cb}, 2")
    a(f"s_lshl2_add_u32 s{s_t0}, s{s_t1}, s{s_t0}")
    a(f"s_lshl_b32 s{s_wr}, s{s_w}, 1")
    a(f"s_xor_b32 s{s_wr}, s{s_wr}, s{s_t0}")
    a(f"v_lshrrev_b32 v{t}, 3, v{v_lane}")
    a(f"v_and_b32 v{t+1}, 7, v{v_lane}")
    a(f"v_mul_u32_u24 v{v_xo}, 896, v{t}")
    a(f"v_lshl_add_u32 v{v_xo}, v{t+1}, 4, v{v_xo}")
    a(f"s_lshl4_add_u32 s{s_t0}, s{s_tb}, s{s_wr}")
    a(f"s_mul_i32 s{s_xr}, s{s_t0}, {8*896}")
    a(f"s_xor_b32 s{s_t0}, s{s_t0}, 1")
    a(f"s_mul_i32 s{s_xr1}, s{s_t0}, {8*896}")
    a(f"v_mov_b32 v{v_e1}, {OOB}")
    a("s_waitcnt lgkmcnt(0)")
    A(srd(sX, 16, 17, X_BYTES))
    vm = VM()
    def raw(e, i):
        return ACC[0] + 28 * e + 4 * i
    def xload(e, j, track=True):
        r = raw(e, j)
        a(f"buffer_load_dwordx4 v[{r}:{r+3}], v{v_xo}, s[{sX}:{sX+3}], s{s_xr1 if e else s_xr} offen offset:{128*j}")
        if track:
            vm.issue(f"x{e}{j}")
    def gtouch(sr, nl, per_wg8, vt, vmx=None):
        if per_wg8:
            a(f"s_lshl3_add_u32 s{s_t0}, s2, s{s_w}")
        else:
            a(f"s_lshl2_add_u32 s{s_t0}, s2, s{s_mt}")
        a(f"s_mul_i32 s{s_t0}, s{s_t0}, {nl}")
        a(f"v_min_u32 v{vt}, {nl-1}, v{v_lane}")
        a(f"v_add_lshl_u32 v{vt}, v{vt}, s{s_t0}, 7")
        a(f"s_mov_b64 exec, {(1 << nl) - 1}")
        a(f"buffer_load_dword v{v_td}, v{vt}, s[{sr}:{sr+3}], 0 offen")
        a(f"s_mov_b64 exec, -1")
        if vmx is not None:
            vmx.issue("t")
    XF = OPT["xf"]
    xorder = [(0, j) for j in range(7)] + [(1, j) for j in range(7)]
    A(srd(sWq, 18, 19, WQKV_BYTES))
    a(f"s_cmp_lg_u32 s{s_g}, 0")
    a("s_cbranch_scc1 L_x0skip")
    for k, (e, j) in enumerate(xorder[:XF]):
        if k == OPT["tq"]:
            gtouch(sWq, 10, False, t + 10)
        xload(e, j, False)
    a("L_x0skip:")
    a(f"s_cmp_eq_u32 s{s_g}, 0")
    a(f"s_cselect_b32 s{sWg}, s24, s26")
    a(f"s_cselect_b32 s{sWg+1}, s25, s27")
    a(f"s_and_b32 s{sWg+1}, s{sWg+1}, 0xffff")
    a(f"s_mov_b32 s{sWg+2}, {WG_BYTES}")
    a(f"s_mov_b32 s{sWg+3}, 0x00020000")
    A(srd(sDbg, 32, 33, 256))
    a(f"s_or_b32 s{s_n0}, s{s_n0}, 1")
    a(f"v_mov_b32 v{v_non}, s{s_n0}")
    a(f"v_mov_b32 v{v_non+1}, s{s_n0+1}")
    a(f"v_cmp_eq_u32 s[{s_d0}:{s_d0+1}], 0, v0")
    a(f"v_cndmask_b32 v{v_fa}, v{v_e1}, 0, s[{s_d0}:{s_d0+1}]")
    a(f"s_cmp_eq_u32 s2, 0")
    a(f"s_cselect_b64 s[{s_d0}:{s_d0+1}], s[{s_d0}:{s_d0+1}], 0")
    a(f"v_cndmask_b32 v{v_e0}, v{v_e1}, 0, s[{s_d0}:{s_d0+1}]")
    a(f"v_mov_b32 v{v_zero}, 0")
    a(f"v_bfe_u32 v{t+2}, v{v_lane}, 4, 1")
    a(f"v_lshlrev_b32 v{t+3}, 2, v{t+2}")
    a(f"v_xor_b32 v{t+3}, v{t+3}, v{t+1}")
    a(f"v_mul_u32_u24 v{v_dq}, 2688, v{t}")
    a(f"v_lshl_add_u32 v{v_dq}, v{t+3}, 4, v{v_dq}")
    a(f"v_lshlrev_b32 v{t+3}, 1, v{t+2}")
    a(f"v_xor_b32 v{t+3}, v{t+3}, v{t+1}")
    a(f"s_lshl_b32 s{s_t1}, s{s_g}, 2")
    a(f"v_xor_b32 v{t+3}, s{s_t1}, v{t+3}")
    a(f"v_mul_u32_u24 v{v_dg}, 3584, v{t}")
    a(f"v_lshl_add_u32 v{v_dg}, v{t+3}, 4, v{v_dg}")
    a(f"s_lshl_b32 s{s_t0}, s{s_wr}, 3")
    for e in range(2):
        a(f"v_add_u32 v{t+2}, s{s_t0}, v{t}")
        if e:
            a(f"v_xor_b32 v{t+2}, 8, v{t+2}")
        a(f"v_bfe_u32 v{t+3}, v{t+2}, 1, 3")
        a(f"v_xor_b32 v{t+3}, v{t+3}, v{t+1}")
        a(f"v_lshlrev_b32 v{t+2}, 7, v{t+2}")
        a(f"v_lshl_add_u32 v{t+2}, v{t+3}, 4, v{t+2}")
        a(f"v_add_u32 v{v_xw+e}, {XBASE}, v{t+2}")
        a(f"v_add_u32 v{v_xw+2+e}, {XBASE+65536}, v{t+2}")
    a(f"s_mul_i32 s{s_g0}, s{s_mt}, {8*3584}")
    a(f"s_mul_i32 s{s_g3}, s{s_mt}, {4*3584}")
    a(f"s_add_u32 s{s_g3}, s{s_g3}, {96*3584}")
    a(f"s_mul_i32 s{s_q0}, s{s_w}, {8*2688}")
    a(f"s_mul_i32 s{s_v0}, s{s_w}, {4*2688}")
    a(f"s_add_u32 s{s_q3}, s{s_v0}, {128*2688}")
    a(f"s_lshr_b32 s{s_t0}, s{s_cb}, 2")
    a(f"s_mul_i32 s{s_t1}, s{s_t0}, 224")
    a(f"s_add_u32 s{s_t1}, s{s_t1}, {56*32}")
    a(f"s_mul_i32 s{s_v3}, s{s_w}, {2*2688}")
    a(f"s_add_u32 s{s_v0}, s{s_v0}, s{s_t1}")
    a(f"s_add_u32 s{s_v3}, s{s_v3}, s{s_t1}")
    a(f"s_add_u32 s{s_v3}, s{s_v3}, {96*2688}")
    a(f"s_mul_i32 s{s_t1}, s{s_cb}, 112")
    a(f"s_add_u32 s{s_q0}, s{s_q0}, s{s_t1}")
    a(f"s_add_u32 s{s_q3}, s{s_q3}, s{s_t1}")
    a(f"s_mul_i32 s{s_t1}, s{s_t0}, 448")
    a(f"s_and_b32 s{s_t0}, s{s_cb}, 3")
    a(f"s_lshl_b32 s{s_hst}, s{s_t0}, 7")
    a(f"s_add_u32 s{s_t1}, s{s_t1}, s{s_hst}")
    a(f"s_lshl1_add_u32 s{s_g0}, s{s_t1}, s{s_g0}")
    a(f"s_lshl1_add_u32 s{s_g3}, s{s_t1}, s{s_g3}")
    a(f"s_lshl_b32 s{s_hst}, s{s_t1}, 6")
    a(f"s_mul_i32 s{s_m0}, s{s_g}, {112*128}")
    a(f"s_lshl_b32 s{s_t1}, s{s_mt}, 9")
    a(f"s_add_u32 s{s_m3}, s{s_m0}, s{s_t1}")
    a(f"s_add_u32 s{s_m3}, s{s_m3}, {96*128}")
    a(f"s_lshl1_add_u32 s{s_m0}, s{s_t1}, s{s_m0}")
    a(f"s_lshl_b32 s{s_mq0}, s{s_w}, 10")
    a(f"s_lshl_b32 s{s_mq3}, s{s_w}, 9")
    a(f"s_add_u32 s{s_mq3}, s{s_mq3}, {128*128}")
    a(f"v_bfe_u32 v{t}, v{v_lane}, 2, 2")
    a(f"v_and_b32 v{t+1}, 3, v{v_lane}")
    a(f"v_bfe_u32 v{t+2}, v{v_lane}, 4, 1")
    a(f"v_lshrrev_b32 v{t+3}, 5, v{v_lane}")
    a(f"v_lshrrev_b32 v{t+4}, 1, v{t+1}")
    a(f"v_and_b32 v{t+5}, 1, v{t+1}")
    a(f"v_lshl_or_b32 v{t+4}, v{t+5}, 1, v{t+4}")
    a(f"v_lshl_add_u32 v{t+5}, v{t+3}, 3, v{t}")
    a(f"v_lshlrev_b32 v{t+5}, 7, v{t+5}")
    a(f"v_lshrrev_b32 v{t+6}, 1, v{t}")
    a(f"s_mul_i32 s{s_t0}, s{s_g}, 56")
    a(f"v_lshlrev_b32 v{t+7}, 5, v{t+2}")
    a(f"v_lshl_add_u32 v{t+7}, v{t+4}, 3, v{t+7}")
    a(f"v_add_u32 v{t+7}, s{s_t0}, v{t+7}")
    a(f"v_lshlrev_b32 v{t+8}, 6, v{t+6}")
    a(f"v_xor_b32 v{t+7}, v{t+7}, v{t+8}")
    a(f"v_add_u32 v{v_bqk}, v{t+7}, v{t+5}")
    a(f"v_lshl_or_b32 v{t+7}, v{t+2}, 1, v{t+6}")
    a(f"s_lshl_b32 s{s_t0}, s{s_g}, 1")
    a(f"v_xor_b32 v{t+7}, s{s_t0}, v{t+7}")
    a(f"v_mul_u32_u24 v{t+8}, 14336, v{t+2}")
    a(f"v_add_u32 v{t+8}, v{t+8}, v{t+5}")
    a(f"v_lshl_add_u32 v{t+8}, v{t+4}, 3, v{t+8}")
    a(f"v_lshl_add_u32 v{v_bg0}, v{t+7}, 5, v{t+8}")
    a(f"v_xor_b32 v{v_bg1}, 32, v{v_bg0}")
    a(f"v_and_b32 v{t}, 0x13, v{v_lane}")
    a(f"v_bfe_u32 v{t+1}, v{v_lane}, 2, 1")
    a(f"v_lshl_or_b32 v{t}, v{t+1}, 3, v{t}")
    a(f"v_bfe_u32 v{t+1}, v{v_lane}, 3, 1")
    a(f"v_lshl_or_b32 v{t}, v{t+1}, 2, v{t}")
    a(f"s_lshl_b32 s{s_t0}, s{s_mt}, 5")
    a(f"v_add_u32 v{t}, s{s_t0}, v{t}")
    a(f"v_bfe_u32 v{t+1}, v{t}, 1, 3")
    a(f"v_xor_b32 v{t+1}, v{t+1}, v{t+3}")
    a(f"v_lshlrev_b32 v{t}, 7, v{t}")
    a(f"v_lshl_add_u32 v{t}, v{t+1}, 4, v{t}")
    a(f"v_add_u32 v{v_xa}, {XBASE}, v{t}")
    for s2 in range(1, 4):
        a(f"v_xor_b32 v{v_xa+s2}, {32*s2}, v{v_xa}")
    for s2 in range(4):
        a(f"v_add_u32 v{v_xa+4+s2}, 65536, v{v_xa+s2}")

    def dmaA(chunk, slot, tag):
        kind, idx, part = chunk
        G = []
        for jj in range(4):
            g = []
            rowb = 128
            m3x = 0
            if kind == "qk":
                b0, b3 = s_q0, s_q3
                stride = 2688
                off = 224 * part * stride
                sr, vo = sWq, v_dq
                rows = [0, 64, None, 160][jj]
                m0r, m3r = s_mq0, s_mq3
            elif kind == "v":
                b0, b3 = s_v0, s_v3
                stride = 2688
                off = 112 * part * stride
                rows = [0, 32, 64, None][jj]
                sr, vo = sWq, (v_dvh if rows is None else v_dv)
                m0r, m3r = s_mq0, s_mq3
                rowb = 256
                m3x = 8192
            else:
                b0, b3 = s_g0, s_g3
                stride = 3584
                off = 112 * part * stride + 128 * idx
                sr, vo = sWg, v_dg
                rows = [0, 32, 64, None][jj]
                m0r, m3r = s_m0, s_m3
            half = rows is None
            if not half:
                g.append(f"s_add_u32 m0, s{m0r}, {slot*SLOT + rows*rowb}")
                g.append(f"s_add_u32 s{s_b1}, s{b0}, {off + rows*stride}")
            else:
                g.append(f"s_add_u32 m0, s{m3r}, {slot*SLOT + m3x}")
                g.append(f"s_add_u32 s{s_b1}, s{b3}, {off}")
                g.append("s_mov_b32 exec_hi, 0")
            g.append(f"buffer_load_dwordx4 v{vo}, s[{sr}:{sr+3}], s{s_b1} offen lds")
            if half:
                g.append("s_mov_b32 exec_hi, -1")
            G.append((g, tag))
        return G

    def emit_group(vm, grp):
        g, tag = grp
        for ins in g:
            a(ins)
            if ins.startswith("buffer_"):
                vm.issue(tag)

    seq1 = [("qk", 0, 0), ("qk", 0, 1)] + [("gu", 0, p) for p in range(4)] + [("gu", 1, p) for p in range(4)]
    seq2 = [("qk", 0, 0), ("qk", 0, 1)] + [("v", 0, p) for p in range(4)] + [("gu", 0, p) for p in range(4)]
    c1groups = dmaA(seq1[1], 1, "c1")
    early = dmaA(seq1[0], 0, "c0") + c1groups[:OPT["c1e"]]
    c1b = (c1groups[3][0], "c1b")
    def deferred(is2):
        D = []
        S = D.append
        tt = vT
        d0, d1 = s_d0, s_d1
        if is2:
            S(f"v_lshrrev_b32 v{tt}, 4, v{v_lane}")
            S(f"v_and_b32 v{tt+1}, 15, v{v_lane}")
            S(f"v_mul_u32_u24 v{tt+2}, 2688, v{tt}")
            S(f"v_lshlrev_b32 v{tt+3}, 2, v{tt}")
            S(f"v_xor_b32 v{tt+3}, v{tt+3}, v{tt+1}")
            S(f"v_lshl_add_u32 v{v_dv}, v{tt+3}, 4, v{tt+2}")
            S(f"s_and_b32 s{d0}, s{s_w}, 1")
            S(f"s_lshl_b32 s{d0}, s{d0}, 7")
            S(f"v_lshlrev_b32 v{tt+3}, 4, v{tt+3}")
            S(f"v_xor_b32 v{tt+3}, s{d0}, v{tt+3}")
            S(f"v_add_u32 v{v_dvh}, v{tt+3}, v{tt+2}")
            S(f"v_bfe_u32 v{tt}, v{v_lane}, 2, 2")
            S(f"v_and_b32 v{tt+1}, 3, v{v_lane}")
            S(f"v_bfe_u32 v{tt+2}, v{v_lane}, 4, 1")
            S(f"v_lshrrev_b32 v{tt+3}, 5, v{v_lane}")
            S(f"v_lshl_add_u32 v{tt+3}, v{tt+3}, 3, v{tt}")
            S(f"v_lshlrev_b32 v{tt+3}, 8, v{tt+3}")
            S(f"v_lshlrev_b32 v{tt+1}, 4, v{tt+1}")
            S(f"v_lshl_add_u32 v{tt+1}, v{tt+2}, 3, v{tt+1}")
            S(f"s_mul_i32 s{d0}, s{s_g}, 112")
            S(f"v_add_u32 v{tt+1}, s{d0}, v{tt+1}")
            S(f"v_lshlrev_b32 v{tt}, 6, v{tt}")
            S(f"v_xor_b32 v{tt+2}, v{tt+1}, v{tt}")
            S(f"v_add_u32 v{v_bv0}, v{tt+2}, v{tt+3}")
            S(f"v_add_u32 v{tt+1}, 56, v{tt+1}")
            S(f"v_xor_b32 v{tt+2}, v{tt+1}, v{tt}")
            S(f"v_add_u32 v{v_bv1}, v{tt+2}, v{tt+3}")
        return D

    def deferred_common():
        D = []
        S = D.append
        tt = vT
        d0, d1 = s_d0, s_d1
        is2 = True
        D += srd(sWS, 34, 35, WS_BYTES) + srd(sWd, 28, 29, WD_BYTES) + srd(sWo, 20, 21, WO_BYTES) + srd(sO, 30, 31, X_BYTES)
        S(f"s_cmp_lt_u32 s{s_cb}, 8\ns_cselect_b32 s{s_scale}, 0x{f2u(QSCALE):08x}, 1.0")
        S(f"s_lshl1_add_u32 s{s_qkst}, s{s_cb}, s{s_g}")
        S(f"s_lshl_b32 s{s_qkst}, s{s_qkst}, 17")
        S(f"s_lshl2_add_u32 s{d0}, s{s_tb}, s{s_mt}")
        S(f"s_mul_i32 s{d1}, s{d0}, {NKS*1024}")
        S(f"s_add_u32 s{s_hst}, s{s_hst}, s{d1}")
        S(f"s_lshl_b32 s{d1}, s{s_g}, 11")
        S(f"s_add_u32 s{s_hst}, s{s_hst}, s{d1}")
        S(f"s_add_u32 s{s_hst}, s{s_hst}, {HF}")
        S(f"s_lshl_b32 s{d0}, s{d0}, 11")
        S(f"s_add_u32 s{s_qkst}, s{s_qkst}, s{d0}")
        if is2:
            S(f"s_and_b32 s{s_vst}, s{s_cb}, 12")
            S(f"s_lshl1_add_u32 s{s_vst}, s{s_g}, s{s_vst}")
            S(f"s_lshl_b32 s{s_vst}, s{s_vst}, 17")
            S(f"s_add_u32 s{s_vst}, s{s_vst}, s{d0}")
            S(f"s_add_u32 s{s_vst}, s{s_vst}, {VF}")
            S(f"v_and_b32 v{tt}, 31, v{v_lane}")
            S(f"v_cmp_eq_u32 s[{s_one}:{s_one+1}], 28, v{tt}")
            S(f"v_mov_b32 v{v_one}, 0x3f803f80")
        S(f"s_and_b32 s{s_wr}, s{s_tb}, 3")
        S(f"v_mov_b32 v{v_c1}, 0x{f2u(GC1):08x}")
        S(f"v_mov_b32 v{v_c2}, 0x{f2u(GC2):08x}")
        S(f"v_mov_b32 v{v_k1}, 1.0")
        S(f"v_lshlrev_b32 v{v_st}, 4, v{v_lane}")
        S(f"v_bfe_u32 v{tt}, v{v_lane}, 3, 1")
        S(f"v_lshlrev_b32 v{tt}, 4, v{tt}")
        S(f"v_bfe_u32 v{tt+1}, v{v_lane}, 4, 1")
        S(f"v_lshl_or_b32 v{tt}, v{tt+1}, 3, v{tt}")
        S(f"v_and_b32 v{tt+1}, 0x27, v{v_lane}")
        S(f"v_or_b32 v{tt}, v{tt}, v{tt+1}")
        S(f"v_lshlrev_b32 v{v_stk}, 4, v{tt}")
        S(f"s_cmp_lt_u32 s{s_cb}, 8\ns_cselect_b64 s[{d0}:{d0+1}], -1, 0")
        S(f"v_cndmask_b32 v{v_stk}, v{v_stk}, v{v_st}, s[{d0}:{d0+1}]")
        S(f"v_cmp_gt_u32 s[{d0}:{d0+1}], 32, v{v_lane}")
        S(f"v_cndmask_b32 v{v_msk}, 0, -1, s[{d0}:{d0+1}]")
        return D

    for x in deferred_common():
        a(x)
    st("setup")

    F = vX
    a(f"s_cmp_eq_u32 s{s_g}, 0")
    a("s_cbranch_scc1 L_x0skip2")
    for (e, j) in xorder[:XF]:
        xload(e, j, False)
    a("L_x0skip2:")
    for (e, j) in xorder[:XF]:
        vm.issue(f"x{e}{j}")
    xrest = list(xorder[XF:])
    if not OPT["xil"]:
        while xrest:
            xload(*xrest.pop(0))
    def qdma(i0_, i1_, lab):
        a(f"s_cmp_lg_u32 s{s_g}, 0")
        a(f"s_cbranch_scc1 L_nodma{lab}")
        for i in range(i0_, i1_):
            a(f"s_add_u32 m0, s{s_mq0}, {32*i*128}")
            a(f"s_add_u32 s{s_b1}, s{s_q0}, {32*i*2688}")
            a(f"buffer_load_dwordx4 v{v_dq}, s[{sWq}:{sWq+3}], s{s_b1} offen lds")
            vm.issue("c0" if i < 7 else "c1")
        a(f"L_nodma{lab}:")
    if OPT["lnm"]:
        MF = "v_mfma_f32_4x4x4_16b_bf16"
        vOnes, vM = t, t + 2
        vAh, vAl, vB = t + 4, t + 6, t + 8
        S_, Q_, R_, U_ = t + 12, t + 13, t + 14, t + 15
        SA = [F, F + 4]
        QA = [F + 8, F + 12]
        D0 = F + 16
        sJ = [4, 6, 8]
        a(f"v_mov_b32 v{vOnes}, 0x3f803f80")
        a(f"v_mov_b32 v{vOnes+1}, 0x3f803f80")
        a(f"v_and_b32 v{U_}, 3, v{v_lane}")
        a(f"v_and_b32 v{R_}, 1, v{v_lane}")
        a(f"v_lshlrev_b32 v{R_}, 4, v{R_}")
        a(f"v_mov_b32 v{S_}, 0xffff")
        a(f"v_lshlrev_b32 v{S_}, v{R_}, v{S_}")
        a(f"v_cmp_gt_u32 s[{s_kv}:{s_kv+1}], 2, v{U_}")
        a(f"v_cmp_eq_u32 s[{s_bd}:{s_bd+1}], 0, v{R_}")
        a(f"v_cndmask_b32 v{vM}, 0, v{S_}, s[{s_kv}:{s_kv+1}]")
        a(f"v_cndmask_b32 v{vM+1}, v{S_}, 0, s[{s_kv}:{s_kv+1}]")
        Q4 = lambda r: f"v[{r}:{r+3}]"
        P2 = lambda r: f"v[{r}:{r+1}]"
        for e in range(2):
            for j in range(7):
                if xrest:
                    xload(*xrest.pop(0))
                a(f"s_waitcnt vmcnt({vm.wait_n(f'x{e}{j}')})")
                if (e, j) in ((0, 0), (1, 6)):
                    st(f"x{e}{j}")
                r = raw(e, j)
                for h2 in range(2):
                    cs = "0" if j == 0 else Q4(SA[h2])
                    a(f"{MF} {Q4(SA[h2])}, {P2(vOnes)}, {P2(r+2*h2)}, {cs}")
                    cq = "0" if j == 0 else Q4(QA[h2])
                    a(f"{MF} {Q4(QA[h2])}, {P2(r+2*h2)}, {P2(r+2*h2)}, {cq}")
            if e == 1 and OPT["dmae"]:
                qdma(0, OPT["dmae"], "a")
            a(f"v_add_f32 v{S_}, v{SA[0]}, v{SA[1]}")
            for k in range(0, 4, 2):
                a(f"v_pk_add_f32 {P2(QA[0]+k)}, {P2(QA[0]+k)}, {P2(QA[1]+k)}")
            a(f"v_cndmask_b32 v{QA[0]}, v{QA[0]+1}, v{QA[0]}, s[{s_bd}:{s_bd+1}]")
            a(f"v_cndmask_b32 v{QA[0]+2}, v{QA[0]+3}, v{QA[0]+2}, s[{s_bd}:{s_bd+1}]")
            a(f"v_cndmask_b32 v{Q_}, v{QA[0]+2}, v{QA[0]}, s[{s_kv}:{s_kv+1}]")
            for pat in ("quad_perm:[1,0,3,2]", "quad_perm:[2,3,0,1]", "row_half_mirror"):
                for r in (S_, Q_):
                    a(f"v_add_f32_dpp v{r}, v{r}, v{r} {pat} row_mask:0xf bank_mask:0xf")
            a(f"v_mul_f32 v{S_}, 0x{f2u(1.0/448):08x}, v{S_}")
            a(f"v_mul_f32 v{Q_}, 0x{f2u(1.0/448):08x}, v{Q_}")
            a(f"v_fma_f32 v{Q_}, -v{S_}, v{S_}, v{Q_}")
            a(f"v_max_f32 v{Q_}, 0, v{Q_}")
            a(f"v_add_f32 v{Q_}, 0x{f2u(1e-5):08x}, v{Q_}")
            a(f"v_rsq_f32 v{R_}, v{Q_}")
            a(f"v_cvt_pk_bf16_f32 v{U_}, v{R_}, v{R_}")
            a(f"v_mul_f32 v{vB}, -v{S_}, v{R_}")
            a(f"v_and_b32 v{Q_}, 0xffff0000, v{U_}")
            a(f"v_and_b32 v{vAh}, v{U_}, v{vM}")
            a(f"v_and_b32 v{vAh+1}, v{U_}, v{vM+1}")
            a(f"v_sub_f32 v{Q_}, v{R_}, v{Q_}")
            a(f"v_cvt_pk_bf16_f32 v{U_}, v{Q_}, v{Q_}")
            for k in range(1, 4):
                a(f"v_mov_b32 v{vB+k}, v{vB}")
            a(f"v_and_b32 v{vAl}, v{U_}, v{vM}")
            a(f"v_and_b32 v{vAl+1}, v{U_}, v{vM+1}")
            def nm(j):
                r = raw(e, j)
                d = D0 + 8 * (j % 4)
                for h2 in range(2):
                    a(f"{MF} {Q4(d+4*h2)}, {P2(vAh)}, {P2(r+2*h2)}, {Q4(vB)}")
                for h2 in range(2):
                    a(f"{MF} {Q4(d+4*h2)}, {P2(vAl)}, {P2(r+2*h2)}, {Q4(d+4*h2)}")
            def cv(j):
                r = raw(e, j)
                d = D0 + 8 * (j % 4)
                for k in range(4):
                    a(f"v_cvt_pk_bf16_f32 v{r+k}, v{d+2*k}, v{d+2*k+1}")
                a(f"ds_write_b128 v{v_xw + e + (2 if j >= 4 else 0)}, v[{r}:{r+3}] offset:{(j % 4)*16384}")
            nm(0); nm(1)
            for j in range(7):
                if j + 2 < 7:
                    nm(j + 2)
                cv(j)
    else:
        S_, Q_, R_ = t, t + 2, t + 4
        for e in range(2):
            for j in range(7):
                if xrest:
                    xload(*xrest.pop(0))
                a(f"s_waitcnt vmcnt({vm.wait_n(f'x{e}{j}')})")
                if (e, j) in ((0, 0), (1, 6)):
                    st(f"x{e}{j}")
                for d in range(4):
                    r = raw(e, j) + d
                    f = F + 8 * j + 2 * d
                    a(f"v_lshlrev_b32 v{f}, 16, v{r}")
                    a(f"v_and_b32 v{f+1}, 0xffff0000, v{r}")
                for d in range(4):
                    f = F + 8 * j + 2 * d
                    if j == 0 and d == 0:
                        a(f"v_pk_mul_f32 v[{Q_}:{Q_+1}], v[{f}:{f+1}], v[{f}:{f+1}]")
                    elif j == 0 and d == 1:
                        a(f"v_pk_add_f32 v[{S_}:{S_+1}], v[{f-2}:{f-1}], v[{f}:{f+1}]")
                        a(f"v_pk_fma_f32 v[{Q_}:{Q_+1}], v[{f}:{f+1}], v[{f}:{f+1}], v[{Q_}:{Q_+1}]")
                    else:
                        a(f"v_pk_add_f32 v[{S_}:{S_+1}], v[{S_}:{S_+1}], v[{f}:{f+1}]")
                        a(f"v_pk_fma_f32 v[{Q_}:{Q_+1}], v[{f}:{f+1}], v[{f}:{f+1}], v[{Q_}:{Q_+1}]")
            if e == 1 and OPT["dmae"]:
                qdma(0, OPT["dmae"], "a")
            for r in (S_, Q_):
                a(f"v_add_f32 v{r}, v{r}, v{r+1}")
            for pat in ("quad_perm:[1,0,3,2]", "quad_perm:[2,3,0,1]", "row_half_mirror"):
                for r in (S_, Q_):
                    a(f"v_add_f32_dpp v{r}, v{r}, v{r} {pat} row_mask:0xf bank_mask:0xf")
            a(f"v_mul_f32 v{S_}, 0x{f2u(1.0/448):08x}, v{S_}")
            a(f"v_mul_f32 v{Q_}, 0x{f2u(1.0/448):08x}, v{Q_}")
            a(f"v_fma_f32 v{Q_}, -v{S_}, v{S_}, v{Q_}")
            a(f"v_max_f32 v{Q_}, 0, v{Q_}")
            a(f"v_add_f32 v{Q_}, 0x{f2u(1e-5):08x}, v{Q_}")
            a(f"v_rsq_f32 v{R_}, v{Q_}")
            a(f"v_mul_f32 v{R_+2}, -v{S_}, v{R_}")
            for j in range(7):
                for d in range(4):
                    f = F + 8 * j + 2 * d
                    a(f"v_pk_fma_f32 v[{f}:{f+1}], v[{f}:{f+1}], v[{R_}:{R_+1}], v[{R_+2}:{R_+3}] op_sel_hi:[1,0,0]")
                for d in range(4):
                    f = F + 8 * j + 2 * d
                    a(f"v_cvt_pk_bf16_f32 v{raw(e, j)+d}, v{f}, v{f+1}")
                r = raw(e, j)
                a(f"ds_write_b128 v{v_xw + e + (2 if j >= 4 else 0)}, v[{r}:{r+3}] offset:{(j % 4)*16384}")
    st("lnend")
    qdma(OPT["dmae"], 12, "b")
    gtouch(sWg, 13, False, t + 10, vm)
    a(f"buffer_store_dwordx2 v[{v_non}:{v_non+1}], v{v_e0}, s[{sDbg}:{sDbg+3}], 0 offen sc1")
    vm.issue("t")
    a(f"s_waitcnt vmcnt({vm.wait_n('c0')}) lgkmcnt(0)")
    a("s_barrier")
    st("B1")
    if OPT["mprio"]:
        a(f"s_cmp_eq_u32 s{s_g}, 0")
        a("s_cbranch_scc1 L_noprio")
        a("s_setprio 1")
        a("L_noprio:")
    a(f"s_and_b32 s{s_t0}, s{s_cb}, 3")
    a(f"s_cmp_eq_u32 s{s_t0}, 3")
    a("s_cbranch_scc1 L_type2")

    def deferred2():
        D = []
        S = D.append
        tt = vT + 8
        d0, d1 = s_d0, s_d1
        S(f"s_and_b32 s{d0}, s2, 7")
        S(f"s_lshr_b32 s{d1}, s2, 7")
        S(f"s_lshl1_add_u32 s{s_h}, s{d0}, s{d1}")
        S(f"s_bfe_u32 s{s_qb}, s2, 0x40003")
        S(f"s_bfe_u32 s{d1}, s2, 0x20003")
        S(f"s_lshl2_add_u32 s{s_tb64}, s{d0}, s{d1}")
        S(f"s_lshr_b32 s{s_nb}, s2, 5")
        S(f"s_lshr_b32 s{d0}, s{s_h}, 1")
        S(f"s_or_b32 s{d1}, s{s_h}, 3")
        S(f"v_min_u32 v{tt}, 1, v{v_lane}")
        S(f"v_sub_u32 v{tt+1}, v{v_lane}, v{tt}")
        S(f"v_sub_u32 v{tt+1}, s{s_qb}, v{tt+1}")
        S(f"v_max_i32 v{tt+1}, 0, v{tt+1}")
        S(f"v_lshl_add_u32 v{tt}, v{tt}, 3, s{d0}")
        S(f"v_lshl_add_u32 v{tt}, v{tt+1}, 4, v{tt}")
        S(f"v_lshlrev_b32 v{tt}, 3, v{tt}")
        S(f"v_add_u32 v{tt}, {FL + F_QK*2048}, v{tt}")
        S(f"v_subrev_u32 v{tt+1}, 16, v{v_lane}")
        S(f"v_sub_u32 v{tt+1}, s{s_qb}, v{tt+1}")
        S(f"v_max_i32 v{tt+1}, 0, v{tt+1}")
        S(f"v_lshl_add_u32 v{tt+1}, v{tt+1}, 4, s{d1}")
        S(f"v_lshlrev_b32 v{tt+1}, 3, v{tt+1}")
        S(f"v_add_u32 v{tt+1}, {FL + F_V*2048}, v{tt+1}")
        S(f"v_mov_b32 v{tt+2}, {OOB}")
        S(f"v_cmp_gt_u32 s[{d0}:{d0+1}], 4, v0")
        S(f"v_cndmask_b32 v{v_pa}, v{tt+2}, v{tt}, s[{d0}:{d0+1}]")
        S(f"v_cmp_gt_u32 s[{d0}:{d0+1}], 19, v{v_lane}")
        S(f"v_cndmask_b32 v{v_paV}, v{tt+2}, v{tt+1}, s[{d0}:{d0+1}]")
        S(f"s_lshr_b32 s{d0}, s{s_tb64}, 1")
        S(f"s_lshl_b32 s{d0}, s{d0}, 7")
        S(f"s_add_u32 s{d0}, s{d0}, {FL + F_H*2048}")
        S(f"v_lshl_add_u32 v{tt}, v{v_lane}, 3, s{d0}")
        S(f"v_cmp_gt_u32 s[{d0}:{d0+1}], 16, v{v_lane}")
        S(f"v_cndmask_b32 v{v_paH}, v{tt+2}, v{tt}, s[{d0}:{d0+1}]")
        S(f"v_add_u32 v{tt}, {(F_V-F_H)*2048}, v{tt}")
        S(f"v_cndmask_b32 v{v_paV}, v{v_paV}, v{tt}, s[{d0}:{d0+1}]")
        S(f"s_lshl4_add_u32 s{s_fp}, s{s_tb}, s{s_cb}")
        S(f"s_lshl_b32 s{s_fp}, s{s_fp}, 3")
        S(f"s_add_u32 s{s_fp}, s{s_fp}, {FL}")
        S(f"s_lshl4_add_u32 s{s_fo}, s{s_qb}, s{s_h}")
        S(f"s_lshl_b32 s{s_fo}, s{s_fo}, 3")
        S(f"s_add_u32 s{s_fo}, s{s_fo}, {FL}")
        S(f"s_lshl_b32 s{s_kv}, s{s_h}, 17")
        S(f"s_lshl_b32 s{d0}, s{s_qb}, 13")
        S(f"s_add_u32 s{s_kv}, s{s_kv}, s{d0}")
        S(f"v_and_b32 v{tt}, 15, v{v_lane}")
        S(f"v_lshrrev_b32 v{tt+1}, 4, v{v_lane}")
        S(f"v_lshlrev_b32 v{v_qa}, 9, v{tt+1}")
        S(f"v_lshl_add_u32 v{v_qa}, v{tt}, 4, v{v_qa}")
        S(f"s_lshl2_add_u32 s{s_bd}, s{s_qb}, s{s_mt}")
        S(f"s_mul_i32 s{s_ost}, s{s_bd}, {NKS*1024}")
        S(f"s_lshl_b32 s{d0}, s{s_h}, 11")
        S(f"s_add_u32 s{s_ost}, s{s_ost}, s{d0}")
        S(f"s_add_u32 s{s_ost}, s{s_ost}, {HF + 112*1024}")
        S(f"v_and_b32 v{v_d}, 3, v{v_lane}")
        S(f"v_bfe_u32 v{tt}, v{v_lane}, 2, 1")
        S(f"v_lshl_or_b32 v{v_d}, v{tt}, 3, v{v_d}")
        S(f"v_bfe_u32 v{tt}, v{v_lane}, 3, 1")
        S(f"v_lshl_or_b32 v{v_d}, v{tt}, 2, v{v_d}")
        S(f"v_lshlrev_b32 v{tt}, 3, v{tt+1}")
        S(f"v_sub_u32 v{v_d}, v{v_d}, v{tt}")
        S(f"v_lshrrev_b32 v{tt}, 3, v{v_lane}")
        S(f"v_and_b32 v{tt+1}, 7, v{v_lane}")
        S(f"v_bfe_u32 v{tt+2}, v{v_lane}, 4, 1")
        S(f"v_lshlrev_b32 v{tt+3}, 2, v{tt+2}")
        S(f"v_xor_b32 v{tt+3}, v{tt+3}, v{tt+1}")
        S(f"v_mul_u32_u24 v{v_dw}, 896, v{tt}")
        S(f"v_lshl_add_u32 v{v_dw}, v{tt+3}, 4, v{v_dw}")
        S(f"s_mul_i32 s{s_m0w}, s{s_mt}, {RING}")
        S(f"s_add_u32 s{s_m0w}, s{s_m0w}, {RB}")
        S(f"s_lshr_b32 s{s_kh}, s{s_mt}, 1")
        S(f"s_and_b32 s{s_nt}, s{s_mt}, 1")
        S(f"s_mul_i32 s{s_wb}, s{s_kh}, {896*896}")
        S(f"s_mul_i32 s{d0}, s{s_nt}, {32*896}")
        S(f"s_add_u32 s{s_wb}, s{s_wb}, s{d0}")
        S(f"s_lshl_b32 s{d0}, s{s_nb}, 7")
        S(f"s_add_u32 s{s_wb}, s{s_wb}, s{d0}")
        S(f"s_mul_i32 s{s_wob}, s{s_mt}, {28*896}")
        S(f"s_add_u32 s{s_wob}, s{s_wob}, s{d0}")
        S(f"s_lshl1_add_u32 s{d1}, s{s_tb64}, s{s_nt}")
        S(f"s_mul_i32 s{s_xo}, s{d1}, {32*896}")
        S(f"s_add_u32 s{s_xo}, s{s_xo}, s{d0}")
        S(f"s_lshl_b32 s{d0}, s{s_kh}, 6")
        S(f"s_add_u32 s{s_xo}, s{s_xo}, s{d0}")
        S(f"s_lshl_b32 s{d0}, s{s_g}, 5")
        S(f"s_add_u32 s{s_xo}, s{s_xo}, s{d0}")
        S(f"s_mul_i32 s{s_hb}, s{s_tb64}, {2*NKS*1024}")
        S(f"s_add_u32 s{s_hb}, s{s_hb}, {HF}")
        S(f"s_lshl_b32 s{d0}, s{s_mt}, 11")
        S(f"s_add_u32 s{s_hr}, s{s_hb}, s{d0}")
        S(f"s_add_u32 s{s_hr}, s{s_hr}, {112*1024}")
        S(f"s_mul_i32 s{d0}, s{s_kh}, {56*1024}")
        S(f"s_add_u32 s{s_hb}, s{s_hb}, s{d0}")
        S(f"s_lshl_b32 s{d0}, s{s_nt}, 11")
        S(f"s_add_u32 s{s_hb}, s{s_hb}, s{d0}")
        return D

    SC = "sc1"
    def epi_qk(acc):
        E = []
        for r in range(16):
            E.append(f"v_mul_f32 v{acc+r}, s{s_scale}, v{acc+r}")
        for d in range(8):
            E.append(f"v_cvt_pk_bf16_f32 v{vT+d}, v{acc+2*d}, v{acc+2*d+1}")
        E.append(f"v_and_b32 v{vT+6}, v{vT+6}, v{v_msk}")
        E.append(f"v_and_b32 v{vT+7}, v{vT+7}, v{v_msk}")
        return E
    qk_stores = [f"buffer_store_dwordx4 v[{vT}:{vT+3}], v{v_stk}, s[{sWS}:{sWS+3}], s{s_qkst} offen {SC}",
                 f"buffer_store_dwordx4 v[{vT+4}:{vT+7}], v{v_stk}, s[{sWS}:{sWS+3}], s{s_qkst} offen offset:1024 {SC}"]

    def epi_v(acc):
        E = []
        for jj in range(2):
            Ac = acc + 16 * jj
            T = vT + 8 * jj
            for d in range(8):
                E.append(f"v_cvt_pk_bf16_f32 v{T+d}, v{Ac+2*d}, v{Ac+2*d+1}")
            for d in range(8):
                E.append(f"v_cndmask_b32 v{T+d}, v{T+d}, v{v_one}, s[{s_one}:{s_one+1}]")
            if jj:
                E.append(f"s_add_u32 s{s_vst}, s{s_vst}, {1 << 17}")
            E.append(f"buffer_store_dwordx4 v[{T}:{T+3}], v{v_st}, s[{sWS}:{sWS+3}], s{s_vst} offen {SC}")
            E.append(f"buffer_store_dwordx4 v[{T+4}:{T+7}], v{v_st}, s[{sWS}:{sWS+3}], s{s_vst} offen offset:1024 {SC}")
        return E

    def epi_gu_tile(acc, jj, pk):
        E = []
        Ac = acc + 16 * jj
        T = vT + 12 * jj
        P = lambda r: f"v[{r}:{r+1}]"
        if pk:
            for i in range(0, 8, 2):
                E.append(f"v_pk_mul_f32 {P(T+i)}, {P(Ac+i)}, {P(Ac+i)}")
            for i in range(0, 8, 2):
                E.append(f"v_pk_fma_f32 {P(T+i)}, {P(T+i)}, {P(v_c2)}, {P(v_c1)} op_sel_hi:[1,0,0]")
            for i in range(0, 8, 2):
                E.append(f"v_pk_mul_f32 {P(T+i)}, {P(T+i)}, {P(Ac+i)}")
            for i in range(8):
                E.append(f"v_exp_f32 v{T+i}, v{T+i}")
                if i % 2:
                    E.append(f"v_pk_mul_f32 {P(Ac+i-1)}, {P(Ac+i-1)}, {P(Ac+8+i-1)}")
            for i in range(0, 8, 2):
                E.append(f"v_pk_add_f32 {P(T+i)}, {P(T+i)}, {P(v_k1)} op_sel_hi:[1,0]")
            for i in range(8):
                E.append(f"v_rcp_f32 v{T+i}, v{T+i}")
            for i in range(0, 8, 2):
                E.append(f"v_pk_mul_f32 {P(Ac+i)}, {P(Ac+i)}, {P(T+i)}")
        else:
            for i in range(8):
                E.append(f"v_mul_f32 v{T+i}, v{Ac+i}, v{Ac+i}")
            for i in range(8):
                E.append(f"v_fma_f32 v{T+i}, v{T+i}, v{v_c2}, v{v_c1}")
            for i in range(8):
                E.append(f"v_mul_f32 v{T+i}, v{T+i}, v{Ac+i}")
            for i in range(8):
                E.append(f"v_exp_f32 v{T+i}, v{T+i}")
                E.append(f"v_mul_f32 v{Ac+i}, v{Ac+i}, v{Ac+8+i}")
            for i in range(8):
                E.append(f"v_add_f32 v{T+i}, 1.0, v{T+i}")
            for i in range(8):
                E.append(f"v_rcp_f32 v{T+i}, v{T+i}")
            for i in range(8):
                E.append(f"v_mul_f32 v{Ac+i}, v{Ac+i}, v{T+i}")
        for d in range(4):
            E.append(f"v_cvt_pk_bf16_f32 v{T+8+d}, v{Ac+2*d}, v{Ac+2*d+1}")
        E.append(f"buffer_store_dwordx4 v[{T+8}:{T+11}], v{v_st}, s[{sWS}:{sWS+3}], s{s_hst} offen offset:{1024*jj} {SC}")
        return E

    def publish(vm, kind, s_base):
        a(f"s_add_u32 s{s_t1}, s{s_base}, {kind*2048}")
        a(f"buffer_store_dwordx2 v[{v_non}:{v_non+1}], v{v_fa}, s[{sWS}:{sWS+3}], s{s_t1} offen sc1")
        vm.issue("flag")

    def poll(vm, vaddr):
        a(f"buffer_load_dwordx2 v[{v_pf}:{v_pf+1}], v{vaddr}, s[{sWS}:{sWS+3}], 0 offen sc1")
        if vm is not None:
            vm.issue("poll")

    spin_id = [0]
    def wait_flags(vm, vaddr, nlanes, mask=None, allw=False):
        if OPT["xnf"] and allw:
            return
        i = spin_id[0]; spin_id[0] += 1
        if mask is None:
            mask = (1 << nlanes) - 1
        if not allw:
            a(f"s_cmp_lg_u32 s{s_w}, 0")
            a(f"s_cbranch_scc1 L_wf_done{i}")
        a(f"s_mov_b32 s{s_t2}, 0")
        a(f"s_waitcnt vmcnt({vm.wait_n('poll')})")
        a(f"L_wf{i}:")
        a(f"v_cmp_eq_u64 vcc, v[{v_pf}:{v_pf+1}], v[{v_non}:{v_non+1}]")
        a(f"s_and_b32 s{s_t1}, vcc_lo, {mask}")
        a(f"s_cmp_eq_u32 s{s_t1}, {mask}")
        a(f"s_cbranch_scc1 L_wf_done{i}")
        a(f"s_add_u32 s{s_t2}, s{s_t2}, 1")
        a(f"s_cmp_gt_u32 s{s_t2}, 100000")
        a(f"s_cbranch_scc1 L_wf_done{i}")
        a(f"s_sleep {OPT['slp']}")
        poll(None, vaddr)
        a("s_waitcnt vmcnt(0)")
        a(f"s_branch L_wf{i}")
        a(f"L_wf_done{i}:")

    def kq_groups():
        g = [f"s_mul_i32 s{s_b2}, s{s_w}, 3072",
             f"s_mov_b32 m0, s{s_b2}",
             f"s_add_u32 s{s_b1}, s{s_kv}, s{s_b2}",
             f"s_add_u32 s{s_b1}, s{s_b1}, {KF - 16384}"]
        for j in range(3):
            g.append(f"buffer_load_dwordx4 v{v_st}, s[{sWS}:{sWS+3}], s{s_b1} offen offset:{1024*j} sc1 lds")
        g2 = [f"s_lshl_b32 s{s_b2}, s{s_mt}, 11",
              f"s_add_u32 s{s_b2}, s{s_b2}, s{s_kv}",
              f"buffer_load_dwordx4 v[{vQ}:{vQ+3}], v{v_qa}, s[{sWS}:{sWS+3}], s{s_b2} offen sc1",
              f"buffer_load_dwordx4 v[40:43], v{v_qa}, s[{sWS}:{sWS+3}], s{s_b2} offen offset:256 sc1"]
        return [(g, "k"), (g2, "k")]
    tailk = {}
    st_state = (st.n, list(st.names))
    def main(seq, vm):
        st.n, st.names = st_state[0], list(st_state[1])
        is2 = seq[2][0] == "v"
        lg = Cnt(15)
        M = []
        sp = -1
        prev = None
        for c, (kind, idx, part) in enumerate(seq):
            if (kind, idx) != prev:
                sp += 1
                prev = (kind, idx)
            if kind == "qk":
                for s in range(14):
                    M.append(dict(c=c, kind=kind, idx=idx, ks=14 * part + s, sl=s, jj=0, first=(part == 0 and s == 0), sp=sp))
            else:
                for s in range(7):
                    for jj in range(2):
                        M.append(dict(c=c, kind=kind, idx=idx, ks=7 * part + s, sl=s, jj=jj, first=(part == 0 and s == 0), sp=sp))
        LA = 3
        cur = [-1]
        def reads(m):
            mm = M[m]
            c = mm["c"]
            if cur[0] != c:
                cur[0] = c
                so = (c % 5) * SLOT
                if mm["kind"] == "qk":
                    a(f"v_add_u32 v{v_rdA}, {so}, v{v_bqk}")
                elif mm["kind"] == "v":
                    a(f"v_add_u32 v{v_rdA}, {so}, v{v_bv0}")
                    a(f"v_add_u32 v{v_rdB}, {so}, v{v_bv1}")
                else:
                    a(f"v_add_u32 v{v_rdA}, {so}, v{v_bg0}")
                    a(f"v_add_u32 v{v_rdB}, {so}, v{v_bg1}")
            b = vW + 4 * (m % 4)
            ad = v_rdB if mm["jj"] else v_rdA
            rb = 2 if mm["kind"] == "v" else 1
            o = mm["sl"] * 2048 * rb
            a(f"ds_read_b64_tr_b16 v[{b}:{b+1}], v{ad} offset:{o}")
            a(f"ds_read_b64_tr_b16 v[{b+2}:{b+3}], v{ad} offset:{o+512*rb}")
            lg.issue(f"w{m}"); lg.issue(f"w{m}")
        xn = [0]
        def xread(k=1):
            for _ in range(k):
                ks = xn[0]
                if ks >= 28:
                    return
                xn[0] += 1
                j, s2 = divmod(ks, 4)
                r = vX + 4 * ks
                a(f"ds_read_b128 v[{r}:{r+3}], v{v_xa + s2 + (4 if j >= 4 else 0)} offset:{(j % 4)*16384}")
                lg.issue(f"x{ks}")
        for m in range(LA):
            xread(1)
            reads(m)
        xread(3)
        pend = deferred(is2)
        D2 = deferred2()
        n2 = 60
        pend += D2[:n2]
        pend_tag = "st"
        rate = len(pend) / 26.0
        accum = 0.0
        hold = 0
        n = len(M)
        bg = []
        B2 = OPT["b2"]
        def emit_pend():
            ins = pend.pop(0)
            a(ins)
            if ins.startswith("buffer_"):
                vm.issue(pend_tag)
        w2k = [0]
        def slot_store(stores, vaddr, k, nk, tag):
            if nk > 1:
                if nk == 2:
                    a(f"s_bitcmp{k}_b32 s{s_wr}, 0")
                else:
                    a(f"s_cmp_eq_u32 s{s_wr}, {k}")
                a(f"s_cselect_b64 s[{s_t0}:{s_t0+1}], -1, 0")
                a(f"v_cndmask_b32 v{v_e0}, v{v_e1}, v{vaddr}, s[{s_t0}:{s_t0+1}]")
                stores = [x.replace(f", v{vaddr},", f", v{v_e0},") for x in stores]
            for x in stores:
                a(x); vm.issue(tag)
        late = {}
        dsched = {}
        for m in range(n):
            mm = M[m]
            c = mm["c"]
            if m in STM:
                st(f"m{m}")
            if m == 4:
                assert xn[0] >= 12
                a(f"s_waitcnt lgkmcnt({lg.wait_n('x11')})")
                a("s_barrier")
                emit_group(vm, c1b)
                bg += dmaA(seq[2], 2, "c2")
            if m == B2:
                assert xn[0] >= 28 and B2 <= 11
                a(f"s_waitcnt vmcnt({vm.wait_n('c1')}) lgkmcnt({lg.wait_n('x27')})")
                a("s_barrier")
                bg += dmaA(seq[3], 3, "c3") + dmaA(seq[4], 4, "c4")
                bg.append(([f"buffer_load_dwordx2 v[{v_non}:{v_non+1}], v{v_zero}, s[{sDbg}:{sDbg+3}], 0 offen sc1"], "nonce"))
            if m == 20:
                a(f"s_waitcnt vmcnt({vm.wait_n('c1b')})")
                a("s_barrier")
            if m % 14 == (8 if c != 1 else 10) and 1 <= c < len(seq) - 1:
                tags = [f"c{c+1}"]
                while not vm.has(tags[0]) or any(g[1] == tags[0] for g in bg):
                    emit_group(vm, bg.pop(0))
                if c == OPT["pubqk"]:
                    tags.append("st_qk")
                if c == OPT["kq"]:
                    wait_flags(vm, v_pa, 4)
                a(f"s_waitcnt vmcnt({vm.wait_n(*tags)})")
                a("s_barrier")
                if c == OPT["pubqk"]:
                    publish(vm, F_QK, s_fp)
                if c == OPT["kq"]:
                    bg += kq_groups()
                if c + 4 < len(seq):
                    dl = OPT.get(f"d{c+4}", 0)
                    if dl > m:
                        dsched[dl] = c + 4
                    else:
                        bg += dmaA(seq[c + 4], (c + 4) % 5, f"c{c+4}")
                if c == 4:
                    i = spin_id[0]; spin_id[0] += 1
                    a(f"s_mov_b32 s{s_t2}, 0")
                    a(f"L_nz{i}:")
                    a(f"v_readfirstlane_b32 s{s_t1}, v{v_non}")
                    a(f"s_cmp_lg_u32 s{s_t1}, 0")
                    a(f"s_cbranch_scc1 L_nz_done{i}")
                    a(f"s_add_u32 s{s_t2}, s{s_t2}, 1")
                    a(f"s_cmp_gt_u32 s{s_t2}, 100000")
                    a(f"s_cbranch_scc1 L_nz_done{i}")
                    a("s_sleep 2")
                    a(f"buffer_load_dwordx2 v[{v_non}:{v_non+1}], v{v_zero}, s[{sDbg}:{sDbg+3}], 0 offen sc1")
                    a("s_waitcnt vmcnt(0)")
                    a(f"s_branch L_nz{i}")
                    a(f"L_nz_done{i}:")
            if m in dsched:
                k = dsched[m]
                bg += dmaA(seq[k], k % 5, f"c{k}")
            for k in range(OPT["qkn"]):
                if m == OPT["qkst"] + k * OPT["qkgap"]:
                    slot_store(qk_stores, v_stk, k, OPT["qkn"], "st_qk")
            if m == (OPT["pubm"] if is2 else OPT["pubm1"]):
                a(f"s_waitcnt vmcnt({vm.wait_n('st_qkv' if is2 else 'st_h0')})")
                a("s_barrier")
                publish(vm, F_V, s_fp)
            if m == 14 * OPT["kq"] + 8 - OPT["kqlead"]:
                poll(vm, v_pa)
            if m == 100:
                a(f"v_mov_b32 v{v_e0}, {CNT_LDS}")
                for off in (0, 4, 8):
                    a(f"ds_write_b32 v{v_e0}, v{v_zero} offset:{off}")
                    lg.issue("z")
            if m in late:
                for (ins, k, nk, flush) in late[m]:
                    if flush:
                        while pend:
                            emit_pend()
                    if ins.startswith("buffer_"):
                        slot_store([ins], v_st, k, nk, "st_h0")
                    else:
                        a(ins)
            if m == OPT["w2s"]:
                gtouch(sWd, 7, True, v_e0, vm)
                gtouch(sWo, 2, True, v_e0, vm)
            if OPT["l2n"] and m >= OPT["l2s"] and (m - OPT["l2s"]) % OPT["l2d"] == 0 and (m - OPT["l2s"]) // OPT["l2d"] < OPT["l2n"] + 1:
                k = (m - OPT["l2s"]) // OPT["l2d"]
                nl = -(-49 // OPT["l2n"])
                isw = k == OPT["l2n"]
                a(f"s_lshr_b32 s{s_t0}, s2, 3")
                a(f"s_lshl3_add_u32 s{s_t0}, s{s_t0}, s{s_w}")
                if isw:
                    nl = 13
                    a(f"s_mul_i32 s{s_t0}, s{s_t0}, 13")
                else:
                    a(f"s_mul_i32 s{s_t0}, s{s_t0}, {nl}")
                    a(f"s_add_u32 s{s_t0}, s{s_t0}, {k*nl*256}")
                a(f"v_add_lshl_u32 v{v_e0}, v{v_lane}, s{s_t0}, 7")
                a(f"s_mov_b64 exec, {(1 << nl) - 1}")
                sr = sWo if isw else sWd
                a(f"buffer_load_dword v{v_td}, v{v_e0}, s[{sr}:{sr+3}], 0 offen")
                a(f"s_mov_b64 exec, -1")
                vm.issue("t")
            if m + LA < n:
                reads(m + LA)
            xread(OPT["xr"])
            tags = [f"w{m}"]
            if mm["sp"] == 0:
                tags.append(f"x{mm['ks']}")
            a(f"s_waitcnt lgkmcnt({lg.wait_n(*tags)})")
            accb = ACC[(mm["sp"] + 1) % 2]
            acc = accb + 16 * mm["jj"]
            b = vW + 4 * (m % 4)
            x = vX + 4 * mm["ks"]
            csrc = "0" if mm["first"] else f"v[{acc}:{acc+15}]"
            if mm["kind"] == "v":
                a(f"v_mfma_f32_32x32x16_bf16 v[{acc}:{acc+15}], v[{x}:{x+3}], v[{b}:{b+3}], {csrc}")
            else:
                a(f"v_mfma_f32_32x32x16_bf16 v[{acc}:{acc+15}], v[{b}:{b+3}], v[{x}:{x+3}], {csrc}")
            if bg and (m % OPT["bgp"] == 0 or len(bg) > 4):
                emit_group(vm, bg.pop(0))
            last_of_sp = (m + 1 == n) or (M[m + 1]["sp"] != mm["sp"])
            if pend and not hold:
                accum += rate
                while accum >= 1.0 and pend:
                    emit_pend()
                    accum -= 1.0
            if hold:
                hold -= 1
            if last_of_sp:
                while pend:
                    emit_pend()
                if m + 1 < n:
                    nsp = sum(1 for q in M if q["sp"] == mm["sp"] + 1)
                    if mm["kind"] == "qk":
                        pend = epi_qk(accb) + D2[n2:]
                        rate = max(len(pend) / (nsp - 8), 27.0 / max(1, OPT["qkst"] - 31))
                    elif mm["kind"] == "v":
                        pend = epi_v(accb)
                        pend_tag = "st_qkv"
                        rate = OPT["vrate"] / 10.0
                    else:
                        e0 = epi_gu_tile(accb, 0, OPT["pk"] & 2); e1 = epi_gu_tile(accb, 1, OPT["pk"] & 2)
                        if OPT["hst0"]:
                            s0_, s1_ = e0.pop(), e1.pop()
                            nk = OPT["hn"]
                            for k in range(nk):
                                late.setdefault(OPT["hst0"] + k * OPT["hgap"], []).append((s0_, k, nk, False))
                                late.setdefault(OPT["hst1"] + k * OPT["hgap"], []).append((s1_, k, nk, True))
                            late.setdefault(139, []).append((f"s_add_u32 s{s_hst}, s{s_hst}, 4096", 0, 1, False))
                            assert OPT["hst1"] + (nk - 1) * OPT["hgap"] <= 139
                            assert (OPT["hst0"] - 86) * 2 >= (OPT["hst1"] - 88)
                            pend = e0 + e1
                            rate = len(pend) / (OPT["hst1"] - 84 - 4)
                        else:
                            pend = e0 + e1 + [f"s_add_u32 s{s_hst}, s{s_hst}, 4096"]
                            rate = len(pend) / (nsp - 8)
                        pend_tag = "st_h0"
                    accum = 0.0
                    hold = 2
                else:
                    assert accb == ACC[1]
        assert not bg
        tailk[is2] = vm.wait_n('k')

    main(seq1, copy.deepcopy(vm))
    a("s_branch L_postA")
    a("L_type2:")
    main(seq2, copy.deepcopy(vm))
    a("L_postA:")
    st("T")
    vm = VM()

    NC = 18
    PIECE = [0, 2, 4, 7, 9, 11, 1, 3, 5, 6, 8, 10, 12, 13]
    v_cnt, v_one1, v_fl = 5, 7, 9

    s_pe, s_pl, s_po = 82, 66, 81
    ROT = OPT["rot"]
    def piece(c):
        if c < 6:
            return [f"s_bfe_u32 s{s_b2}, s{s_pe}, 0x{(4 << 16) | (4*c):x}"]
        if c < 14:
            return [f"s_bfe_u32 s{s_b2}, s{s_pl}, 0x{(4 << 16) | (4*(c-6)):x}"]
        return [f"s_bfe_u32 s{s_b2}, s{s_po}, 0x{(2 << 16) | (2*(c-14)):x}"]
    def dmaW(c):
        G = []
        for jj in range(4):
            g = [f"s_add_u32 m0, s{s_m0w}, {(c % NR)*4096 + 1024*jj}"]
            sr, base, mul = (sWd, s_wb, 64*896) if c < 14 else (sWo, s_wob, 112*896)
            if ROT:
                if jj == 0:
                    g += piece(c) + [f"s_mul_i32 s{s_b2}, s{s_b2}, {mul}", f"s_add_u32 s{s_cmt}, s{s_b2}, s{base}"]
                    g.append(f"buffer_load_dwordx4 v{v_dw}, s[{sr}:{sr+3}], s{s_cmt} offen lds")
                else:
                    g.append(f"s_add_u32 s{s_b1}, s{s_cmt}, {8*jj*896}")
                    g.append(f"buffer_load_dwordx4 v{v_dw}, s[{sr}:{sr+3}], s{s_b1} offen lds")
            else:
                p = PIECE[c] if c < 14 else c - 14
                g.append(f"s_add_u32 s{s_b1}, s{base}, {p*mul + 8*jj*896}")
                g.append(f"buffer_load_dwordx4 v{v_dw}, s[{sr}:{sr+3}], s{s_b1} offen lds")
            G.append((g, f"w{c}"))
        return G
    HREG = [128, 144, 160, 176, 48, 16]
    def dmaH(c):
        G = []
        r = HREG[c % 6]
        base, sh = (s_hb, 12) if c < 14 else (s_hr, 13)
        for mt in range(2):
            if ROT:
                g = piece(c) + [f"s_lshl_b32 s{s_b2}, s{s_b2}, {sh}", f"s_add_u32 s{s_b1}, s{s_b2}, s{base}"]
                if mt:
                    g.append(f"s_add_u32 s{s_b1}, s{s_b1}, {NKS*1024}")
            else:
                p = PIECE[c] if c < 14 else c - 14
                g = [f"s_add_u32 s{s_b1}, s{base}, {(p << sh) + mt*NKS*1024}"]
            for i in range(2):
                q = r + 8 * mt + 4 * i
                g.append(f"buffer_load_dwordx4 v[{q}:{q+3}], v{v_st}, s[{sWS}:{sWS+3}], s{s_b1} offen offset:{1024*i} {'' if OPT['xnsc'] else 'sc1'}")
            G.append((g, f"h{c}"))
        return G
    if ROT:
        def pack(lst):
            v = 0
            for i, x in enumerate(lst):
                v |= x << (4 * i)
            return v
        ce = pack(PIECE[:6] * 2 + PIECE[:4]); cl = pack(PIECE[6:14] * 2)
        a(f"s_and_b32 s{s_t0}, s{s_tb64}, 3")
        a(f"s_mul_i32 s{s_t0}, s{s_t0}, {OPT['rt']}")
        a(f"s_mul_i32 s{s_t1}, s{s_nb}, {OPT['rn']}")
        a(f"s_add_u32 s{s_t0}, s{s_t0}, s{s_t1}")
        a(f"s_mul_i32 s{s_t1}, s{s_t0}, 43")
        a(f"s_lshr_b32 s{s_t1}, s{s_t1}, 8")
        a(f"s_mul_i32 s{s_t1}, s{s_t1}, 6")
        a(f"s_sub_u32 s{s_t1}, s{s_t0}, s{s_t1}")
        a(f"s_lshl_b32 s{s_t1}, s{s_t1}, 2")
        a(f"s_mov_b32 s{s_pe}, 0x{ce & 0xffffffff:x}")
        a(f"s_mov_b32 s{s_pe+1}, 0x{ce >> 32:x}")
        a(f"s_lshr_b64 s[{s_pe}:{s_pe+1}], s[{s_pe}:{s_pe+1}], s{s_t1}")
        a(f"s_and_b32 s{s_t1}, s{s_t0}, 7")
        a(f"s_lshl_b32 s{s_t1}, s{s_t1}, 2")
        a(f"s_mov_b32 s{s_pl}, 0x{cl & 0xffffffff:x}")
        a(f"s_mov_b32 s{s_pl+1}, 0x{cl >> 32:x}")
        a(f"s_lshr_b64 s[{s_pl}:{s_pl+1}], s[{s_pl}:{s_pl+1}], s{s_t1}")
        a(f"s_and_b32 s{s_t1}, s{s_t0}, 3")
        a(f"s_lshl_b32 s{s_t1}, s{s_t1}, 1")
        a(f"s_lshr_b32 s{s_po}, 0xe4e4, s{s_t1}")

    a(f"v_mov_b32 v{v_cnt}, {CNT_LDS}")
    a(f"v_mov_b32 v{v_one1}, 1")
    a(f"v_cmp_eq_u32 s[{s_d0}:{s_d0+1}], 0, v{v_lane}")
    a(f"v_cndmask_b32 v{v_fl}, v{v_e1}, 0, s[{s_d0}:{s_d0+1}]")
    a("s_barrier")
    vmS = VM()
    EPI = epi_gu_tile(ACC[1], 0, OPT["pk"] & 1) + epi_gu_tile(ACC[1], 1, OPT["pk"] & 1)
    if OPT["xns"]:
        EPI = [x.replace(f", v{v_st},", f", v{v_e1},") if x.startswith("buffer_") else x for x in EPI]
    st_save = (st.n, list(st.names))
    a(f"s_cmp_eq_u32 s{s_g}, 0")
    a("s_cbranch_scc0 L_stream")
    for ins in EPI:
        a(ins)
    st("E1")
    a(f"s_waitcnt vmcnt({min(tailk.values()) + 2})")
    a("s_barrier")

    def arrive(off, total, kind, s_base, lab):
        a(f"s_mov_b64 exec, 1")
        a(f"ds_add_rtn_u32 v{v_td}, v{v_cnt}, v{v_one1} offset:{off}")
        a(f"s_mov_b64 exec, -1")
        a("s_waitcnt lgkmcnt(0)")
        a(f"v_readfirstlane_b32 s{s_t1}, v{v_td}")
        a(f"s_cmp_lg_u32 s{s_t1}, {total-1}")
        a(f"s_cbranch_scc1 L_arr{lab}")
        a(f"s_add_u32 s{s_t1}, s{s_base}, {kind*2048}")
        a(f"buffer_store_dwordx2 v[{v_non}:{v_non+1}], v{v_fl}, s[{sWS}:{sWS+3}], s{s_t1} offen sc1")
        a(f"L_arr{lab}:")

    vSu = [132, 48]
    vKF = 204
    vQu = [vQ, 40]
    vOq = [[120, 124], [128, 236]]
    v_ka, v_va, u = 3, 4, 16
    v_mu = [2, 8]
    MKu = [[24, 26, 16, 64, 32, 34, 40, 42], [4, 6, 8, 10, 12, 14, 44, 46]]
    a(f"s_lshl_b32 s{s_t2}, s{s_mt}, 11")
    a(f"v_add_u32 v{v_ka}, s{s_t2}, v{v_qa}")
    a(f"v_add_u32 v{v_va}, 24576, v{v_ka}")
    def kread(i):
        b, t2 = divmod(i, 2)
        r = vKF + 4 * (i % 8)
        a(f"ds_read_b128 v[{r}:{r+3}], v{v_ka} offset:{b*2048 + t2*256}")
    LA = 6
    for i in range(LA):
        kread(i)
    st("BK")
    side = [f"v_cmp_le_i32 s[{MKu[0][i]}:{MKu[0][i]+1}], {i}, v{v_d}" for i in range(8)]
    side += [f"v_cmp_le_i32 s[{MKu[1][i]}:{MKu[1][i]+1}], {i-16}, v{v_d}" for i in range(8)]
    for i in range(18):
        if i + LA < 18:
            kread(i + LA)
            a(f"s_waitcnt lgkmcnt({LA})")
        else:
            a(f"s_waitcnt lgkmcnt({17-i})")
        r = vKF + 4 * (i % 8)
        for un in range(2):
            a(f"v_mfma_f32_16x16x32_bf16 v[{vSu[un]+4*i}:{vSu[un]+4*i+3}], v[{r}:{r+3}], v[{vQu[un]}:{vQu[un]+3}], 0")
        if side:
            a(side.pop(0))
    st("Sdone")
    if OPT["arrA"] == 0:
        a("s_waitcnt vmcnt(0)")
        arrive(4, 8, F_H, s_fp, "h0")
    a(f"s_cmp_ge_u32 s{s_bd}, 8")
    a("s_cbranch_scc1 L_allvalid")
    for b in range(8):
        a(f"s_cmp_ge_u32 s{s_bd}, {8-b}")
        a("s_cbranch_scc1 L_allvalid")
        for un in range(2):
            for i in range(8):
                a(f"v_mov_b32 v{vSu[un]+8*b+i}, 0xf149f2ca")
    a("L_allvalid:")
    order = [1, 2, 3, 4, 5, 6, 7, 0, 8]
    def vread(i):
        b = order[i // 2]
        r = vKF + 4 * (i % 8)
        a(f"ds_read_b128 v[{r}:{r+3}], v{v_va} offset:{b*2048 + (i % 2)*256}")
    for un in range(2):
        vS, MK = vSu[un], MKu[un]
        for i in range(8):
            a(f"v_cndmask_b32 v{vS+i}, v{vS+i}, v{vS+64+i}, s[{MK[i]}:{MK[i]+1}]")
    for un in range(2):
        vS = vSu[un]
        a(f"v_max3_f32 v{v_mu[un]}, v{vS+8}, v{vS+9}, v{vS+10}")
    for k in list(range(11, 63, 2)) + [63] + list(range(1, 8, 2)):
        for un in range(2):
            vS = vSu[un]
            k2 = 0 if k == 63 else k + 1
            a(f"v_max3_f32 v{v_mu[un]}, v{v_mu[un]}, v{vS+k}, v{vS+(k2 if k2 != 8 else 7)}")
    for un in range(2):
        a(f"v_mov_b32 v{u+un}, v{v_mu[un]}")
    for un in range(2):
        a(f"v_permlane32_swap_b32 v{v_mu[un]}, v{u+un}")
    for un in range(2):
        a(f"v_max_f32 v{v_mu[un]}, v{v_mu[un]}, v{u+un}")
    for un in range(2):
        a(f"v_mov_b32 v{u+un}, v{v_mu[un]}")
    for un in range(2):
        a(f"v_permlane16_swap_b32 v{v_mu[un]}, v{u+un}")
    for un in range(2):
        a(f"v_max_f32 v{v_mu[un]}, v{v_mu[un]}, v{u+un}")
    if OPT["arrA"] == 1:
        a("s_waitcnt vmcnt(0)")
        arrive(4, 8, F_H, s_fp, "h0")
    st("pubH")
    def softmax_block(b):
        for un in range(2):
            vS, MK, v_m = vSu[un], MKu[un], v_mu[un]
            for i in range(0, 8, 2):
                r = vS + 8 * b + i
                a(f"v_pk_add_f32 v[{r}:{r+1}], v[{r}:{r+1}], v[{v_m}:{v_m+1}] op_sel_hi:[1,0] neg_lo:[0,1] neg_hi:[0,1]")
            for i in range(8):
                a(f"v_exp_f32 v{vS+8*b+i}, v{vS+8*b+i}")
            if b == 0:
                for i in range(8):
                    a(f"v_cndmask_b32 v{vS+64+i}, 0, v{vS+i}, s[{MK[i]}:{MK[i]+1}]")
                for i in range(8):
                    a(f"v_cndmask_b32 v{vS+i}, v{vS+i}, 0, s[{MK[i]}:{MK[i]+1}]")
                for d in range(4):
                    a(f"v_cvt_pk_bf16_f32 v{vS+64+d}, v{vS+64+2*d}, v{vS+64+2*d+1}")
            for d in range(4):
                a(f"v_cvt_pk_bf16_f32 v{vS+8*b+d}, v{vS+8*b+2*d}, v{vS+8*b+2*d+1}")
    softmax_block(order[0])
    a(f"s_mov_b32 s{s_t2}, 0")
    a("L_vw:")
    a(f"ds_read_b32 v{v_td}, v{v_cnt}")
    a("s_waitcnt lgkmcnt(0)")
    a(f"v_readfirstlane_b32 s{s_t1}, v{v_td}")
    a(f"s_cmp_ge_u32 s{s_t1}, 4")
    a("s_cbranch_scc1 L_vw_done")
    a(f"s_add_u32 s{s_t2}, s{s_t2}, 1")
    a(f"s_cmp_gt_u32 s{s_t2}, 2000000")
    a("s_cbranch_scc1 L_vw_done")
    a("s_sleep 1")
    a("s_branch L_vw")
    a("L_vw_done:")
    st("Vok")
    for i in range(LA):
        vread(i)
    for bi in range(9):
        b = order[bi]
        if bi + 1 < 8:
            softmax_block(order[bi + 1])
        for t2 in range(2):
            i = 2 * bi + t2
            if i + LA < 18:
                vread(i + LA)
                a(f"s_waitcnt lgkmcnt({LA})")
            else:
                a(f"s_waitcnt lgkmcnt({17-i})")
            r = vKF + 4 * (i % 8)
            for un in range(2):
                o = vOq[un][t2]
                cs = "0" if bi == 0 else f"v[{o}:{o+3}]"
                a(f"v_mfma_f32_16x16x32_bf16 v[{o}:{o+3}], v[{r}:{r+3}], v[{vSu[un]+8*b}:{vSu[un]+8*b+3}], {cs}")
    a(f"v_cmp_gt_u32 s[{s_d0}:{s_d0+1}], 48, v{v_lane}")
    for un in range(2):
        x0, x1 = u + 2 * un, u + 2 * un + 1
        a(f"v_mov_b32 v{x0}, v{vOq[un][1]}")
        a(f"v_mov_b32 v{x1}, v{vOq[un][1]}")
    for un in range(2):
        x0, x1 = u + 2 * un, u + 2 * un + 1
        a(f"v_permlane32_swap_b32 v{x0}, v{x1}")
        a(f"v_mov_b32 v{x0}, v{x1}")
    for un in range(2):
        x0, x1 = u + 2 * un, u + 2 * un + 1
        a(f"v_permlane16_swap_b32 v{x0}, v{x1}")
        a(f"v_rcp_f32 v{x1}, v{x1}")
    for un in range(2):
        x1 = u + 2 * un + 1
        q = vQu[un]
        for t2 in range(2):
            for i in range(4):
                a(f"v_mul_f32 v{vOq[un][t2]+i}, v{vOq[un][t2]+i}, v{x1}")
        for d in range(4):
            o = vOq[un][d // 2] + 2 * (d % 2)
            a(f"v_cvt_pk_bf16_f32 v{q+d}, v{o}, v{o+1}")
        a(f"v_cndmask_b32 v{q+2}, 0, v{q+2}, s[{s_d0}:{s_d0+1}]")
        a(f"v_cndmask_b32 v{q+3}, 0, v{q+3}, s[{s_d0}:{s_d0+1}]")
        a(f"buffer_store_dwordx4 v[{q}:{q+3}], v{v_e1 if OPT['xns'] else v_qa}, s[{sWS}:{sWS+3}], s{s_ost} offen offset:{256*un} sc1")
    st("Ost")
    a("s_waitcnt vmcnt(0)")
    arrive(8, 4, F_O, s_fo, "o")
    st("pubO")
    a(f"s_cmp_ge_u32 s{s_nb}, 7")
    a("s_cbranch_scc1 L_end")
    a("s_branch L_final")

    a("L_stream:")
    st.n, st.names = st_save[0], list(st_save[1])
    vm = vmS
    lg = Cnt(15)
    vAcc = 64
    vFs = [204, 220]
    v_aw = [2, 3]
    tt = 32
    poll(vm, v_paV)
    wq = []
    for c in range(OPT["wpre2"]):
        wq += dmaW(c)
    for _ in range(OPT["wpre"]):
        emit_group(vm, wq.pop(0))
    stores = []
    k = 0
    for ins in EPI:
        if ins.startswith("buffer_") and OPT["stl"]:
            stores.append(ins); continue
        a(ins)
        if ins.startswith("buffer_"):
            vm.issue("st_h")
        k += 1
        if k % OPT["we"] == 0 and wq:
            emit_group(vm, wq.pop(0))
    st("E1")
    a(f"s_waitcnt vmcnt({vm.wait_n('poll')})")
    a("s_barrier")
    a(f"s_setprio {OPT['sprio']}")
    wait_flags(vm, v_paV, 0, 0x70000, allw=True)
    a(f"s_mul_i32 s{s_t0}, s{s_mt}, 6144")
    a(f"s_add_u32 s{s_t1}, s{s_kv}, s{s_t0}")
    for hh in range(2):
        a(f"s_add_u32 m0, s{s_t0}, {24576 + 3072*hh}")
        a(f"s_add_u32 s{s_t2}, s{s_t1}, {VF - 16384 + 3072*hh}")
        for j in range(3):
            a(f"buffer_load_dwordx4 v{v_st}, s[{sWS}:{sWS+3}], s{s_t2} offen offset:{1024*j} sc1 lds")
            vm.issue("v")
    for ins in stores:
        a(ins); vm.issue("st_h")
    while wq:
        emit_group(vm, wq.pop(0))
    a(f"s_cmp_lt_u32 s{s_nb}, 7")
    a("s_cbranch_scc1 L_stream2")
    a("s_waitcnt vmcnt(0)")
    a(f"s_mov_b64 exec, 1")
    a(f"ds_add_u32 v{v_cnt}, v{v_one1}")
    a(f"s_mov_b64 exec, -1")
    arrive(4, 8, F_H, s_fp, "h1")
    a("s_branch L_end")
    a("L_stream2:")
    wait_flags(vm, v_paV, 0, 0x7777, allw=True)
    LH = OPT["LH"]
    for c in range(LH):
        for g_ in dmaH(c):
            emit_group(vm, g_)
        if OPT["wpre2"] <= c < NR:
            for g_ in dmaW(c):
                emit_group(vm, g_)
        if c == OPT["arr"]:
            a(f"s_waitcnt vmcnt({vm.wait_n('v', 'st_h')})")
            a(f"s_mov_b64 exec, 1")
            a(f"ds_add_u32 v{v_cnt}, v{v_one1}")
            a(f"s_mov_b64 exec, -1")
            arrive(4, 8, F_H, s_fp, "h2")
        if c == 0:
            for x in [f"v_bfe_u32 v{tt}, v{v_lane}, 2, 2",
                      f"v_and_b32 v{tt+1}, 3, v{v_lane}",
                      f"v_lshrrev_b32 v{tt+2}, 1, v{tt+1}",
                      f"v_and_b32 v{tt+1}, 1, v{tt+1}",
                      f"v_lshl_or_b32 v{tt+2}, v{tt+1}, 1, v{tt+2}",
                      f"v_lshrrev_b32 v{tt+1}, 5, v{v_lane}",
                      f"v_lshl_add_u32 v{tt+1}, v{tt+1}, 3, v{tt}",
                      f"v_lshlrev_b32 v{tt+1}, 7, v{tt+1}",
                      f"v_lshrrev_b32 v{tt}, 1, v{tt}",
                      f"v_lshl_add_u32 v{tt+1}, v{tt}, 6, v{tt+1}",
                      f"v_bfe_u32 v{tt}, v{v_lane}, 4, 1",
                      f"v_lshl_add_u32 v{tt+1}, v{tt}, 5, v{tt+1}",
                      f"v_lshl_add_u32 v{tt+1}, v{tt+2}, 3, v{tt+1}",
                      f"v_add_u32 v{v_aw[0]}, s{s_m0w}, v{tt+1}",
                      f"v_xor_b32 v{v_aw[1]}, 64, v{v_aw[0]}"]:
                a(x)
    for c in range(max(LH, OPT["wpre2"]), NR):
        for g_ in dmaW(c):
            emit_group(vm, g_)
    st("Siss")
    def creads(c):
        base = vFs[c & 1]
        for i in range(2):
            for nt in range(2):
                f = base + 8 * i + 4 * nt
                o = (c % NR) * 4096 + 2048 * i
                a(f"ds_read_b64_tr_b16 v[{f}:{f+1}], v{v_aw[nt]} offset:{o}")
                a(f"ds_read_b64_tr_b16 v[{f+2}:{f+3}], v{v_aw[nt]} offset:{o + 512}")
                lg.issue(f"cr{c}"); lg.issue(f"cr{c}")
    a(f"s_waitcnt vmcnt({vm.wait_n('w0')})")
    creads(0)
    HL, OPOS = OPT["hl"], OPT["opos"]
    hs = {}
    for k in range(LH, NC):
        it = k - LH
        if k >= 6:
            it = max(it, HL)
        if k >= 14:
            it = max(it, OPOS)
        assert it <= k - 1
        hs.setdefault(it, []).append(k)
    for c in range(NC):
        if c == HL or c == OPOS:
            if c == HL: st("preHL")
            wait_flags(vm, v_paH, 16, allw=True)
        if c in CST:
            st(f"c{c}")
        G = []
        for k in hs.get(c, []):
            G += dmaH(k)
        if c + NR < NC:
            G += dmaW(c + NR)
        if c == HL - OPT["pl"] or c == OPOS - OPT["pl"]:
            if c == OPOS - OPT["pl"]:
                a(f"v_add_u32 v{v_paH}, {(F_O-F_H)*2048}, v{v_paH}")
            G.insert(0, ([f"buffer_load_dwordx2 v[{v_pf}:{v_pf+1}], v{v_paH}, s[{sWS}:{sWS+3}], 0 offen sc1"], "poll"))
        a(f"s_waitcnt vmcnt({vm.wait_n(f'h{c}')}) lgkmcnt({lg.wait_n(f'cr{c}')})")
        base = vFs[c & 1]
        hb = HREG[c % 6]
        k = 0
        for i in range(2):
            for nt in range(2):
                for mt in range(2):
                    f = base + 8 * i + 4 * nt
                    ac = vAcc + 16 * (2 * mt + nt)
                    q = hb + 8 * mt + 4 * i
                    cs = "0" if (c == 0 and i == 0) else f"v[{ac}:{ac+15}]"
                    a(f"v_mfma_f32_32x32x16_bf16 v[{ac}:{ac+15}], v[{f}:{f+3}], v[{q}:{q+3}], {cs}")
                    if k == 0 and c + 1 < NC:
                        a(f"s_waitcnt vmcnt({vm.wait_n(f'w{c+1}')})")
                        creads(c + 1)
                    elif G:
                        emit_group(vm, G.pop(0))
                    k += 1
        while G:
            emit_group(vm, G.pop(0))
    st("Cend")
    a(f"v_add_u32 v{tt}, s{s_m0w}, v{v_st}")
    for q in range(16):
        a(f"ds_write_b128 v{tt}, v[{vAcc+4*q}:{vAcc+4*q+3}] offset:{1024*q}")
    a("L_final:")
    tt = 32
    v_cxo, vXr, vR = 36, 240, 128
    a(f"v_and_b32 v{tt+1}, 0x13, v{v_lane}")
    a(f"v_bfe_u32 v{tt+2}, v{v_lane}, 2, 1")
    a(f"v_lshl_or_b32 v{tt+1}, v{tt+2}, 3, v{tt+1}")
    a(f"v_bfe_u32 v{tt+2}, v{v_lane}, 3, 1")
    a(f"v_lshl_or_b32 v{tt+1}, v{tt+2}, 2, v{tt+1}")
    a(f"v_mul_u32_u24 v{v_cxo}, 896, v{tt+1}")
    a(f"v_lshrrev_b32 v{tt+2}, 5, v{v_lane}")
    a(f"v_lshl_add_u32 v{v_cxo}, v{tt+2}, 4, v{v_cxo}")
    a(f"buffer_load_dwordx4 v[{vXr}:{vXr+3}], v{v_cxo}, s[{sX}:{sX+3}], s{s_xo} offen")
    a(f"s_lshl1_add_u32 s{s_t0}, s{s_nt}, s{s_kh}")
    a(f"s_lshl1_add_u32 s{s_t0}, s{s_t0}, s{s_g}")
    a(f"s_lshl_b32 s{s_t0}, s{s_t0}, 11")
    a(f"s_add_u32 s{s_t0}, s{s_t0}, {RB}")
    a(f"v_add_u32 v{tt+1}, s{s_t0}, v{v_st}")
    a(f"v_add_u32 v{tt+2}, {2*RING}, v{tt+1}")
    a("s_waitcnt vmcnt(0)")
    for d in range(4):
        a(f"v_lshlrev_b32 v{vR+32+2*d}, 16, v{vXr+d}")
        a(f"v_and_b32 v{vR+33+2*d}, 0xffff0000, v{vXr+d}")
    a("s_waitcnt lgkmcnt(0)")
    a("s_barrier")
    for k in range(4):
        for hh in range(2):
            a(f"ds_read_b128 v[{vR+8*k+4*hh}:{vR+8*k+4*hh+3}], v{tt+1+(k//2)} offset:{RING*(k%2) + 1024*hh}")
    for k in range(4):
        a(f"s_waitcnt lgkmcnt({2*(3-k)})")
        for i in range(0, 8, 2):
            a(f"v_pk_add_f32 v[{vR+32+i}:{vR+33+i}], v[{vR+32+i}:{vR+33+i}], v[{vR+8*k+i}:{vR+8*k+i+1}]")
    for d in range(4):
        a(f"v_cvt_pk_bf16_f32 v{vXr+d}, v{vR+32+2*d}, v{vR+33+2*d}")
    a(f"buffer_store_dwordx4 v[{vXr}:{vXr+3}], v{v_cxo}, s[{sO}:{sO+3}], s{s_xo} offen")
    tt = 20
    if STAMP:
        a("s_waitcnt vmcnt(0)")
        st("end", wait=True); st("rt", rt=True, wait=True)
        st.finish()
        if DBGST:
            a("s_load_dwordx2 s[4:5], s[82:83], 64")
            a(f"v_sub_u32 v{v_stamp}, v{v_stamp}, v{v_non}")
            a(f"v_lshlrev_b32 v{tt}, 2, v{v_lane}")
            a(f"v_add_u32 v{tt}, 8, v{tt}")
            a("s_waitcnt lgkmcnt(0)")
            A(srd(8, 4, 5, 64))
            a(f"s_lshl3_add_u32 s3, s2, s{s_w}")
            a(f"s_cmp_lg_u32 s3, {37*8+4}")
            a("s_cbranch_scc1 L_end")
            a(f"buffer_store_dword v{v_stamp}, v{tt}, s[8:11], 0 offen")
            a("s_branch L_end")
        a(f"s_lshl3_add_u32 s3, s2, s{s_w}")
        a("s_lshl_b32 s3, s3, 7")
        a(f"s_add_u32 s3, s3, {STAMP_OFF}")
        a(f"v_lshlrev_b32 v{tt}, 2, v{v_lane}")
        a(f"v_cmp_gt_u32 vcc, {st.n}, v{v_lane}")
        a("s_and_saveexec_b64 s[4:5], vcc")
        a(f"buffer_store_dword v{v_stamp}, v{tt}, s[{sWS}:{sWS+3}], s3 offen")
        a.raw("; STAMPS " + " ".join(st.names))
        assert st.n <= 32
    a("L_end:")
    a("s_endpgm")
    return a


HEADER = """; Fused persistent kernel: LN + QKV/gate/up GEMM -> sliding-window attention -> [H|O] @ [w_down; wo] + x
;   0 A_x, 8 A_wqkv, 16 A_wo, 24 B_x, 32 B_w_gate, 40 B_w_up, 48 B_w_down, 56 d_out, 64 d_debug, 72 d_ws
; @launch grid=(256,1,1) block=(512,1,1) lds=163840
.amdgcn_target "amdgcn-amd-amdhsa--gfx950"
"""

def build():
    a = gen()
    print("instrs", a.nins, "nops", a.nnop, file=sys.stderr)
    return HEADER + a.text() + kernel_desc(NAME, 256)

if __name__ == "__main__":
    path = sys.argv[1] if len(sys.argv) > 1 else "parallel_sum__sliding_block__geglu_ffn__prompt.s"
    for arg in sys.argv[2:]:
        if arg == "stamp":
            STAMP = True
        elif arg == "dbgst":
            STAMP = True; DBGST = True
        else:
            k, v = arg.split("=")
            assert k in OPT, k
            OPT[k] = int(v)
    open(path, "w").write(build())
```

```python
import sys, struct, math, copy, os
sys.path.insert(0, "dev")
from asmlib import Asm, kernel_header, kernel_desc

NAME = "parallel_sum__sliding_block__geglu_ffn__prompt_kernel"

def f2u(f):
    return struct.unpack("<I", struct.pack("<f", f))[0]

QF = 0
KF = 2 << 20
VF = 4 << 20
FL = 6 << 20
HF = 8 << 20
WS_BYTES = 268435456
NKS = 144
F_QK, F_H, F_O, F_V = 0, 1, 2, 3
OOB = 0x7FFFFF00

X_BYTES = 2048 * 896
WQKV_BYTES = 448 * 2688
WG_BYTES = 448 * 3584
WD_BYTES = 1792 * 896
WO_BYTES = 448 * 896

LOG2E = 1.4426950408889634
QSCALE = (28 ** -0.5) * LOG2E
GC1 = -2.0 * 0.7978845608028654 * LOG2E
GC2 = GC1 * 0.044715

STAMP = False
DBGST = False
DBGN = ['t0','setup','x00','lnend','B1','m28','m84','T','Sdone','BV','Ost','C0','Cend','end']
STAMP_OFF = 200 << 20
CST = [int(x) for x in os.environ.get('CST', '4,9,14').split(',')]
STM = [int(x) for x in os.environ.get('STM', '11,28,56,84,112').split(',')]
OPT = dict(NH=4, NW=7, LH=5, opos=12, hl=4, wpre=4, wpre2=4, we=7, stl=0, arr=1, arrA=1, vrate=30, rot=0, rt=2, rn=1, wr=8, wq=0, pubm1=132, e1=16, e2=12, ptail=60, ob=2, pl=1, q0=5, q1=13, q2=17, mlead=1, vis=1, visage=2, nv0=4, rotc=1, b2=10, bgp=1, qkst=44, pubm=112, pk=1, w2s=60, l2n=0, mprio=1, ctouch=1, sprio=0, xnf=0, xns=0, xnsc=0, l2s=64, l2d=9,
           wfirst=4, wspread=16, pubo=3, p1=1, slp=4, hst0=102, hst1=118, qkgap=0, d7=0, d8=0, d9=0,
           c1e=3, xr=3, xf=9, qkn=1, hn=1, hgap=0, tq=7, lnm=1, dmae=7, xil=1, pubqk=5, kq=8, kqlead=12, vpos=8)


class Cnt:
    def __init__(self, cap):
        self.ops = []
        self.cap = cap
    def issue(self, tag):
        self.ops.append(tag)
    def wait_n(self, *tags):
        idx = max(i for i, t in enumerate(self.ops) if t in tags)
        n = len(self.ops) - 1 - idx
        return min(n, self.cap)
    def has(self, tag):
        return tag in self.ops

def VM():
    return Cnt(63)


class Stamps:
    def __init__(self, a, vreg, base=98):
        self.a = a; self.base = base; self.n = 0; self.names = []; self.vreg = vreg
    def _flush_prev(self):
        if self.n >= 1:
            k = self.n - 1
            self.a(f"v_writelane_b32 v{self.vreg}, s{self.base + 2*(k % 2)}, {k}")
    def __call__(self, name="", rt=False, wait=False):
        if not STAMP: return
        p = self.base + 2 * (self.n % 2)
        if DBGST and name not in DBGN: return
        self.a(f"{'s_memrealtime' if (rt or DBGST) else 's_memtime'} s[{p}:{p+1}]")
        if wait:
            self.a("s_waitcnt lgkmcnt(0)")
        self._flush_prev()
        self.n += 1
        self.names.append(name)
    def finish(self):
        self.a("s_waitcnt lgkmcnt(0)")
        self._flush_prev()


def srd(d, lo, hi, nbytes):
    return [f"s_mov_b32 s{d}, s{lo}", f"s_and_b32 s{d+1}, s{hi}, 0xffff",
            f"s_mov_b32 s{d+2}, {nbytes}", f"s_mov_b32 s{d+3}, 0x00020000"]

SLOT = 28672
XBASE = 49152
RB = 49152
NR = 6
RING = NR * 4096
CNT_LDS = RB + 4 * RING


def gen():
    a = Asm()
    a.raw(kernel_header(NAME))
    def A(lst):
        for x in lst:
            a(x)
    NH, NW = OPT["NH"], OPT["NW"]
    sX, sWq, sWg, sWS, sWd, sWo, sO, sDbg = 36, 40, 44, 48, 52, 56, 60, 64
    s_w, s_tb, s_cb, s_g, s_mt = 68, 69, 70, 71, 72
    s_t0, s_t1, s_t2 = 74, 75, 76
    s_hst = 77
    s_n0 = 78
    s_q0, s_q3, s_v0, s_v3, s_g0, s_g3 = 4, 5, 6, 7, 8, 9
    s_m0, s_m3, s_scale, s_tg, s_qkst, s_vst = 10, 11, 12, 13, 14, 15
    s_wr = 3
    s_b1 = 73
    s_b2 = 0
    s_d0, s_d1 = 96, 97
    s_one = 16
    s_h, s_qb, s_fp, s_tch = 18, 19, 20, 21
    s_mq0, s_mq3 = 22, 23
    sTch = 24
    s_xr, s_xr1, s_tr, s_tqk = 80, 81, 82, 83
    s_kv, s_par, s_bd, s_ost = 84, 85, 86, 87
    s_tb64, s_nb, s_kh, s_cmt, s_nt = 88, 89, 90, 91, 92
    s_hb, s_hr, s_wb = 93, 94, 95
    s_wob, s_m0h, s_m0w, s_xo = 28, 29, 30, 31
    s_fo = 80
    MK = [24, 26, 16, 64, 32, 34, 40, 42]
    vX = 128
    ACC = [64, 96]
    vW = 48
    vT = 16
    v_lane, v_dq, v_dg, v_rdA, v_rdB, v_st, v_msk = 1, 2, 3, 4, 5, 6, 7
    v_bqk, v_bg0, v_bg1 = 9, 11, 12
    v_c1, v_c2, v_k1 = 8, 10, 14
    v_stk = 13
    v_stamp = 15
    v_xa = 32
    v_xw = 40
    v_xo = 44
    v_dv, v_dvh, v_bv0, v_bv1 = 40, 41, 42, 43
    v_tg, v_tq = 46, 47
    v_dw, v_d = 44, 45
    v_paH = 46
    v_paV = 47
    vQ = 240
    v_qa = 244
    v_one = 245
    v_e0, v_td = 246, 247
    v_non = 248
    v_e1, v_zero = 250, 251
    v_fa = 252
    v_pa = 253
    v_pf = 254
    t = vT

    st = Stamps(a, v_stamp)
    a("s_cmp_ge_u32 s2, 256")
    a("s_cbranch_scc1 L_end")
    st("rt", rt=True); st("t0", wait=True)
    if DBGST:
        a("s_mov_b64 s[82:83], s[0:1]")
    a("s_load_dwordx16 s[16:31], s[0:1], 0")
    a("s_load_dwordx4 s[32:35], s[0:1], 64")
    a(f"s_memrealtime s[{s_n0}:{s_n0+1}]")
    if OPT["ctouch"]:
        a(f"s_getpc_b64 s[{s_d0}:{s_d0+1}]")
        a(f"s_and_b32 s{s_t0}, s2, 0xf8")
        a(f"v_add_lshl_u32 v{t+10}, v0, s{s_t0}, 7")
        a(f"v_min_u32 v{t+10}, 29000, v{t+10}")
        a(f"v_cmp_gt_u32 vcc, 8, v0")
        a(f"s_and_saveexec_b64 s[{s_t0}:{s_t0+1}], vcc")
        a("s_cbranch_execz L_noct")
        a(f"global_load_dword v{v_td}, v{t+10}, s[{s_d0}:{s_d0+1}]")
        a("L_noct:")
        a(f"s_mov_b64 exec, -1")
    a(f"v_and_b32 v{v_lane}, 63, v0")
    a(f"v_lshrrev_b32 v{t}, 6, v0")
    a(f"v_readfirstlane_b32 s{s_w}, v{t}")
    a(f"s_and_b32 s{s_tb}, s2, 3")
    a(f"s_bfe_u32 s{s_t2}, s2, 0x20003")
    a(f"s_lshl2_add_u32 s{s_tb}, s{s_tb}, s{s_t2}")
    a(f"s_bfe_u32 s{s_cb}, s2, 0x10002")
    a(f"s_lshr_b32 s{s_t1}, s2, 5")
    a(f"s_lshl3_add_u32 s{s_cb}, s{s_cb}, s{s_t1}")
    a(f"s_lshr_b32 s{s_g}, s{s_w}, 2")
    a(f"s_and_b32 s{s_mt}, s{s_w}, 3")
    a(f"s_and_b32 s{s_t0}, s{s_cb}, 1")
    a(f"s_and_b32 s{s_t1}, s{s_cb}, 2")
    a(f"s_lshl2_add_u32 s{s_t0}, s{s_t1}, s{s_t0}")
    a(f"s_lshl_b32 s{s_wr}, s{s_w}, 1")
    a(f"s_xor_b32 s{s_wr}, s{s_wr}, s{s_t0}")
    a(f"v_lshrrev_b32 v{t}, 3, v{v_lane}")
    a(f"v_and_b32 v{t+1}, 7, v{v_lane}")
    a(f"v_mul_u32_u24 v{v_xo}, 896, v{t}")
    a(f"v_lshl_add_u32 v{v_xo}, v{t+1}, 4, v{v_xo}")
    a(f"s_lshl4_add_u32 s{s_t0}, s{s_tb}, s{s_wr}")
    a(f"s_mul_i32 s{s_xr}, s{s_t0}, {8*896}")
    a(f"s_xor_b32 s{s_t0}, s{s_t0}, 1")
    a(f"s_mul_i32 s{s_xr1}, s{s_t0}, {8*896}")
    a(f"v_mov_b32 v{v_e1}, {OOB}")
    a("s_waitcnt lgkmcnt(0)")
    A(srd(sX, 16, 17, X_BYTES))
    vm = VM()
    def raw(e, i):
        return ACC[0] + 28 * e + 4 * i
    def xload(e, j, track=True):
        r = raw(e, j)
        a(f"buffer_load_dwordx4 v[{r}:{r+3}], v{v_xo}, s[{sX}:{sX+3}], s{s_xr1 if e else s_xr} offen offset:{128*j}")
        if track:
            vm.issue(f"x{e}{j}")
    def gtouch(sr, nl, per_wg8, vt, vmx=None):
        if per_wg8:
            a(f"s_lshl3_add_u32 s{s_t0}, s2, s{s_w}")
        else:
            a(f"s_lshl2_add_u32 s{s_t0}, s2, s{s_mt}")
        a(f"s_mul_i32 s{s_t0}, s{s_t0}, {nl}")
        a(f"v_min_u32 v{vt}, {nl-1}, v{v_lane}")
        a(f"v_add_lshl_u32 v{vt}, v{vt}, s{s_t0}, 7")
        a(f"s_mov_b64 exec, {(1 << nl) - 1}")
        a(f"buffer_load_dword v{v_td}, v{vt}, s[{sr}:{sr+3}], 0 offen")
        a(f"s_mov_b64 exec, -1")
        if vmx is not None:
            vmx.issue("t")
    XF = OPT["xf"]
    xorder = [(0, j) for j in range(7)] + [(1, j) for j in range(7)]
    A(srd(sWq, 18, 19, WQKV_BYTES))
    a(f"s_cmp_lg_u32 s{s_g}, 0")
    a("s_cbranch_scc1 L_x0skip")
    for k, (e, j) in enumerate(xorder[:XF]):
        if k == OPT["tq"]:
            gtouch(sWq, 10, False, t + 10)
        xload(e, j, False)
    a("L_x0skip:")
    a(f"s_cmp_eq_u32 s{s_g}, 0")
    a(f"s_cselect_b32 s{sWg}, s24, s26")
    a(f"s_cselect_b32 s{sWg+1}, s25, s27")
    a(f"s_and_b32 s{sWg+1}, s{sWg+1}, 0xffff")
    a(f"s_mov_b32 s{sWg+2}, {WG_BYTES}")
    a(f"s_mov_b32 s{sWg+3}, 0x00020000")
    A(srd(sDbg, 32, 33, 256))
    a(f"s_or_b32 s{s_n0}, s{s_n0}, 1")
    a(f"v_mov_b32 v{v_non}, s{s_n0}")
    a(f"v_mov_b32 v{v_non+1}, s{s_n0+1}")
    a(f"v_cmp_eq_u32 s[{s_d0}:{s_d0+1}], 0, v0")
    a(f"v_cndmask_b32 v{v_fa}, v{v_e1}, 0, s[{s_d0}:{s_d0+1}]")
    a(f"s_cmp_eq_u32 s2, 0")
    a(f"s_cselect_b64 s[{s_d0}:{s_d0+1}], s[{s_d0}:{s_d0+1}], 0")
    a(f"v_cndmask_b32 v{v_e0}, v{v_e1}, 0, s[{s_d0}:{s_d0+1}]")
    a(f"v_mov_b32 v{v_zero}, 0")
    a(f"v_bfe_u32 v{t+2}, v{v_lane}, 4, 1")
    a(f"v_lshlrev_b32 v{t+3}, 2, v{t+2}")
    a(f"v_xor_b32 v{t+3}, v{t+3}, v{t+1}")
    a(f"v_mul_u32_u24 v{v_dq}, 2688, v{t}")
    a(f"v_lshl_add_u32 v{v_dq}, v{t+3}, 4, v{v_dq}")
    a(f"v_lshlrev_b32 v{t+3}, 1, v{t+2}")
    a(f"v_xor_b32 v{t+3}, v{t+3}, v{t+1}")
    a(f"s_lshl_b32 s{s_t1}, s{s_g}, 2")
    a(f"v_xor_b32 v{t+3}, s{s_t1}, v{t+3}")
    a(f"v_mul_u32_u24 v{v_dg}, 3584, v{t}")
    a(f"v_lshl_add_u32 v{v_dg}, v{t+3}, 4, v{v_dg}")
    a(f"s_lshl_b32 s{s_t0}, s{s_wr}, 3")
    for e in range(2):
        a(f"v_add_u32 v{t+2}, s{s_t0}, v{t}")
        if e:
            a(f"v_xor_b32 v{t+2}, 8, v{t+2}")
        a(f"v_bfe_u32 v{t+3}, v{t+2}, 1, 3")
        a(f"v_xor_b32 v{t+3}, v{t+3}, v{t+1}")
        a(f"v_lshlrev_b32 v{t+2}, 7, v{t+2}")
        a(f"v_lshl_add_u32 v{t+2}, v{t+3}, 4, v{t+2}")
        a(f"v_add_u32 v{v_xw+e}, {XBASE}, v{t+2}")
        a(f"v_add_u32 v{v_xw+2+e}, {XBASE+65536}, v{t+2}")
    a(f"s_mul_i32 s{s_g0}, s{s_mt}, {8*3584}")
    a(f"s_mul_i32 s{s_g3}, s{s_mt}, {4*3584}")
    a(f"s_add_u32 s{s_g3}, s{s_g3}, {96*3584}")
    a(f"s_mul_i32 s{s_q0}, s{s_w}, {8*2688}")
    a(f"s_mul_i32 s{s_v0}, s{s_w}, {4*2688}")
    a(f"s_add_u32 s{s_q3}, s{s_v0}, {128*2688}")
    a(f"s_lshr_b32 s{s_t0}, s{s_cb}, 2")
    a(f"s_mul_i32 s{s_t1}, s{s_t0}, 224")
    a(f"s_add_u32 s{s_t1}, s{s_t1}, {56*32}")
    a(f"s_mul_i32 s{s_v3}, s{s_w}, {2*2688}")
    a(f"s_add_u32 s{s_v0}, s{s_v0}, s{s_t1}")
    a(f"s_add_u32 s{s_v3}, s{s_v3}, s{s_t1}")
    a(f"s_add_u32 s{s_v3}, s{s_v3}, {96*2688}")
    a(f"s_mul_i32 s{s_t1}, s{s_cb}, 112")
    a(f"s_add_u32 s{s_q0}, s{s_q0}, s{s_t1}")
    a(f"s_add_u32 s{s_q3}, s{s_q3}, s{s_t1}")
    a(f"s_mul_i32 s{s_t1}, s{s_t0}, 448")
    a(f"s_and_b32 s{s_t0}, s{s_cb}, 3")
    a(f"s_lshl_b32 s{s_hst}, s{s_t0}, 7")
    a(f"s_add_u32 s{s_t1}, s{s_t1}, s{s_hst}")
    a(f"s_lshl1_add_u32 s{s_g0}, s{s_t1}, s{s_g0}")
    a(f"s_lshl1_add_u32 s{s_g3}, s{s_t1}, s{s_g3}")
    a(f"s_lshl_b32 s{s_hst}, s{s_t1}, 6")
    a(f"s_mul_i32 s{s_m0}, s{s_g}, {112*128}")
    a(f"s_lshl_b32 s{s_t1}, s{s_mt}, 9")
    a(f"s_add_u32 s{s_m3}, s{s_m0}, s{s_t1}")
    a(f"s_add_u32 s{s_m3}, s{s_m3}, {96*128}")
    a(f"s_lshl1_add_u32 s{s_m0}, s{s_t1}, s{s_m0}")
    a(f"s_lshl_b32 s{s_mq0}, s{s_w}, 10")
    a(f"s_lshl_b32 s{s_mq3}, s{s_w}, 9")
    a(f"s_add_u32 s{s_mq3}, s{s_mq3}, {128*128}")
    a(f"v_bfe_u32 v{t}, v{v_lane}, 2, 2")
    a(f"v_and_b32 v{t+1}, 3, v{v_lane}")
    a(f"v_bfe_u32 v{t+2}, v{v_lane}, 4, 1")
    a(f"v_lshrrev_b32 v{t+3}, 5, v{v_lane}")
    a(f"v_lshrrev_b32 v{t+4}, 1, v{t+1}")
    a(f"v_and_b32 v{t+5}, 1, v{t+1}")
    a(f"v_lshl_or_b32 v{t+4}, v{t+5}, 1, v{t+4}")
    a(f"v_lshl_add_u32 v{t+5}, v{t+3}, 3, v{t}")
    a(f"v_lshlrev_b32 v{t+5}, 7, v{t+5}")
    a(f"v_lshrrev_b32 v{t+6}, 1, v{t}")
    a(f"s_mul_i32 s{s_t0}, s{s_g}, 56")
    a(f"v_lshlrev_b32 v{t+7}, 5, v{t+2}")
    a(f"v_lshl_add_u32 v{t+7}, v{t+4}, 3, v{t+7}")
    a(f"v_add_u32 v{t+7}, s{s_t0}, v{t+7}")
    a(f"v_lshlrev_b32 v{t+8}, 6, v{t+6}")
    a(f"v_xor_b32 v{t+7}, v{t+7}, v{t+8}")
    a(f"v_add_u32 v{v_bqk}, v{t+7}, v{t+5}")
    a(f"v_lshl_or_b32 v{t+7}, v{t+2}, 1, v{t+6}")
    a(f"s_lshl_b32 s{s_t0}, s{s_g}, 1")
    a(f"v_xor_b32 v{t+7}, s{s_t0}, v{t+7}")
    a(f"v_mul_u32_u24 v{t+8}, 14336, v{t+2}")
    a(f"v_add_u32 v{t+8}, v{t+8}, v{t+5}")
    a(f"v_lshl_add_u32 v{t+8}, v{t+4}, 3, v{t+8}")
    a(f"v_lshl_add_u32 v{v_bg0}, v{t+7}, 5, v{t+8}")
    a(f"v_xor_b32 v{v_bg1}, 32, v{v_bg0}")
    a(f"v_and_b32 v{t}, 0x13, v{v_lane}")
    a(f"v_bfe_u32 v{t+1}, v{v_lane}, 2, 1")
    a(f"v_lshl_or_b32 v{t}, v{t+1}, 3, v{t}")
    a(f"v_bfe_u32 v{t+1}, v{v_lane}, 3, 1")
    a(f"v_lshl_or_b32 v{t}, v{t+1}, 2, v{t}")
    a(f"s_lshl_b32 s{s_t0}, s{s_mt}, 5")
    a(f"v_add_u32 v{t}, s{s_t0}, v{t}")
    a(f"v_bfe_u32 v{t+1}, v{t}, 1, 3")
    a(f"v_xor_b32 v{t+1}, v{t+1}, v{t+3}")
    a(f"v_lshlrev_b32 v{t}, 7, v{t}")
    a(f"v_lshl_add_u32 v{t}, v{t+1}, 4, v{t}")
    a(f"v_add_u32 v{v_xa}, {XBASE}, v{t}")
    for s2 in range(1, 4):
        a(f"v_xor_b32 v{v_xa+s2}, {32*s2}, v{v_xa}")
    for s2 in range(4):
        a(f"v_add_u32 v{v_xa+4+s2}, 65536, v{v_xa+s2}")

    def dmaA(chunk, slot, tag):
        kind, idx, part = chunk
        G = []
        for jj in range(4):
            g = []
            rowb = 128
            m3x = 0
            if kind == "qk":
                b0, b3 = s_q0, s_q3
                stride = 2688
                off = 224 * part * stride
                sr, vo = sWq, v_dq
                rows = [0, 64, None, 160][jj]
                m0r, m3r = s_mq0, s_mq3
            elif kind == "v":
                b0, b3 = s_v0, s_v3
                stride = 2688
                off = 112 * part * stride
                rows = [0, 32, 64, None][jj]
                sr, vo = sWq, (v_dvh if rows is None else v_dv)
                m0r, m3r = s_mq0, s_mq3
                rowb = 256
                m3x = 8192
            else:
                b0, b3 = s_g0, s_g3
                stride = 3584
                off = 112 * part * stride + 128 * idx
                sr, vo = sWg, v_dg
                rows = [0, 32, 64, None][jj]
                m0r, m3r = s_m0, s_m3
            half = rows is None
            if not half:
                g.append(f"s_add_u32 m0, s{m0r}, {slot*SLOT + rows*rowb}")
                g.append(f"s_add_u32 s{s_b1}, s{b0}, {off + rows*stride}")
            else:
                g.append(f"s_add_u32 m0, s{m3r}, {slot*SLOT + m3x}")
                g.append(f"s_add_u32 s{s_b1}, s{b3}, {off}")
                g.append("s_mov_b32 exec_hi, 0")
            g.append(f"buffer_load_dwordx4 v{vo}, s[{sr}:{sr+3}], s{s_b1} offen lds")
            if half:
                g.append("s_mov_b32 exec_hi, -1")
            G.append((g, tag))
        return G

    def emit_group(vm, grp):
        g, tag = grp
        for ins in g:
            a(ins)
            if ins.startswith("buffer_"):
                vm.issue(tag)

    seq1 = [("qk", 0, 0), ("qk", 0, 1)] + [("gu", 0, p) for p in range(4)] + [("gu", 1, p) for p in range(4)]
    seq2 = [("qk", 0, 0), ("qk", 0, 1)] + [("v", 0, p) for p in range(4)] + [("gu", 0, p) for p in range(4)]
    c1groups = dmaA(seq1[1], 1, "c1")
    early = dmaA(seq1[0], 0, "c0") + c1groups[:OPT["c1e"]]
    c1b = (c1groups[3][0], "c1b")
    def deferred(is2):
        D = []
        S = D.append
        tt = vT
        d0, d1 = s_d0, s_d1
        if is2:
            S(f"v_lshrrev_b32 v{tt}, 4, v{v_lane}")
            S(f"v_and_b32 v{tt+1}, 15, v{v_lane}")
            S(f"v_mul_u32_u24 v{tt+2}, 2688, v{tt}")
            S(f"v_lshlrev_b32 v{tt+3}, 2, v{tt}")
            S(f"v_xor_b32 v{tt+3}, v{tt+3}, v{tt+1}")
            S(f"v_lshl_add_u32 v{v_dv}, v{tt+3}, 4, v{tt+2}")
            S(f"s_and_b32 s{d0}, s{s_w}, 1")
            S(f"s_lshl_b32 s{d0}, s{d0}, 7")
            S(f"v_lshlrev_b32 v{tt+3}, 4, v{tt+3}")
            S(f"v_xor_b32 v{tt+3}, s{d0}, v{tt+3}")
            S(f"v_add_u32 v{v_dvh}, v{tt+3}, v{tt+2}")
            S(f"v_bfe_u32 v{tt}, v{v_lane}, 2, 2")
            S(f"v_and_b32 v{tt+1}, 3, v{v_lane}")
            S(f"v_bfe_u32 v{tt+2}, v{v_lane}, 4, 1")
            S(f"v_lshrrev_b32 v{tt+3}, 5, v{v_lane}")
            S(f"v_lshl_add_u32 v{tt+3}, v{tt+3}, 3, v{tt}")
            S(f"v_lshlrev_b32 v{tt+3}, 8, v{tt+3}")
            S(f"v_lshlrev_b32 v{tt+1}, 4, v{tt+1}")
            S(f"v_lshl_add_u32 v{tt+1}, v{tt+2}, 3, v{tt+1}")
            S(f"s_mul_i32 s{d0}, s{s_g}, 112")
            S(f"v_add_u32 v{tt+1}, s{d0}, v{tt+1}")
            S(f"v_lshlrev_b32 v{tt}, 6, v{tt}")
            S(f"v_xor_b32 v{tt+2}, v{tt+1}, v{tt}")
            S(f"v_add_u32 v{v_bv0}, v{tt+2}, v{tt+3}")
            S(f"v_add_u32 v{tt+1}, 56, v{tt+1}")
            S(f"v_xor_b32 v{tt+2}, v{tt+1}, v{tt}")
            S(f"v_add_u32 v{v_bv1}, v{tt+2}, v{tt+3}")
        return D

    def deferred_common():
        D = []
        S = D.append
        tt = vT
        d0, d1 = s_d0, s_d1
        is2 = True
        D += srd(sWS, 34, 35, WS_BYTES) + srd(sWd, 28, 29, WD_BYTES) + srd(sWo, 20, 21, WO_BYTES) + srd(sO, 30, 31, X_BYTES)
        S(f"s_cmp_lt_u32 s{s_cb}, 8\ns_cselect_b32 s{s_scale}, 0x{f2u(QSCALE):08x}, 1.0")
        S(f"s_lshl1_add_u32 s{s_qkst}, s{s_cb}, s{s_g}")
        S(f"s_lshl_b32 s{s_qkst}, s{s_qkst}, 17")
        S(f"s_lshl2_add_u32 s{d0}, s{s_tb}, s{s_mt}")
        S(f"s_mul_i32 s{d1}, s{d0}, {NKS*1024}")
        S(f"s_add_u32 s{s_hst}, s{s_hst}, s{d1}")
        S(f"s_lshl_b32 s{d1}, s{s_g}, 11")
        S(f"s_add_u32 s{s_hst}, s{s_hst}, s{d1}")
        S(f"s_add_u32 s{s_hst}, s{s_hst}, {HF}")
        S(f"s_lshl_b32 s{d0}, s{d0}, 11")
        S(f"s_add_u32 s{s_qkst}, s{s_qkst}, s{d0}")
        if is2:
            S(f"s_and_b32 s{s_vst}, s{s_cb}, 12")
            S(f"s_lshl1_add_u32 s{s_vst}, s{s_g}, s{s_vst}")
            S(f"s_lshl_b32 s{s_vst}, s{s_vst}, 17")
            S(f"s_add_u32 s{s_vst}, s{s_vst}, s{d0}")
            S(f"s_add_u32 s{s_vst}, s{s_vst}, {VF}")
            S(f"v_and_b32 v{tt}, 31, v{v_lane}")
            S(f"v_cmp_eq_u32 s[{s_one}:{s_one+1}], 28, v{tt}")
            S(f"v_mov_b32 v{v_one}, 0x3f803f80")
        S(f"s_and_b32 s{s_wr}, s{s_tb}, 3")
        S(f"v_mov_b32 v{v_c1}, 0x{f2u(GC1):08x}")
        S(f"v_mov_b32 v{v_c2}, 0x{f2u(GC2):08x}")
        S(f"v_mov_b32 v{v_k1}, 1.0")
        S(f"v_lshlrev_b32 v{v_st}, 4, v{v_lane}")
        S(f"v_bfe_u32 v{tt}, v{v_lane}, 3, 1")
        S(f"v_lshlrev_b32 v{tt}, 4, v{tt}")
        S(f"v_bfe_u32 v{tt+1}, v{v_lane}, 4, 1")
        S(f"v_lshl_or_b32 v{tt}, v{tt+1}, 3, v{tt}")
        S(f"v_and_b32 v{tt+1}, 0x27, v{v_lane}")
        S(f"v_or_b32 v{tt}, v{tt}, v{tt+1}")
        S(f"v_lshlrev_b32 v{v_stk}, 4, v{tt}")
        S(f"s_cmp_lt_u32 s{s_cb}, 8\ns_cselect_b64 s[{d0}:{d0+1}], -1, 0")
        S(f"v_cndmask_b32 v{v_stk}, v{v_stk}, v{v_st}, s[{d0}:{d0+1}]")
        S(f"v_cmp_gt_u32 s[{d0}:{d0+1}], 32, v{v_lane}")
        S(f"v_cndmask_b32 v{v_msk}, 0, -1, s[{d0}:{d0+1}]")
        return D

    for x in deferred_common():
        a(x)
    st("setup")

    F = vX
    a(f"s_cmp_eq_u32 s{s_g}, 0")
    a("s_cbranch_scc1 L_x0skip2")
    for (e, j) in xorder[:XF]:
        xload(e, j, False)
    a("L_x0skip2:")
    for (e, j) in xorder[:XF]:
        vm.issue(f"x{e}{j}")
    xrest = list(xorder[XF:])
    if not OPT["xil"]:
        while xrest:
            xload(*xrest.pop(0))
    def qdma(i0_, i1_, lab):
        a(f"s_cmp_lg_u32 s{s_g}, 0")
        a(f"s_cbranch_scc1 L_nodma{lab}")
        for i in range(i0_, i1_):
            a(f"s_add_u32 m0, s{s_mq0}, {32*i*128}")
            a(f"s_add_u32 s{s_b1}, s{s_q0}, {32*i*2688}")
            a(f"buffer_load_dwordx4 v{v_dq}, s[{sWq}:{sWq+3}], s{s_b1} offen lds")
            vm.issue("c0" if i < 7 else "c1")
        a(f"L_nodma{lab}:")
    if OPT["lnm"]:
        MF = "v_mfma_f32_4x4x4_16b_bf16"
        vOnes, vM = t, t + 2
        vAh, vAl, vB = t + 4, t + 6, t + 8
        S_, Q_, R_, U_ = t + 12, t + 13, t + 14, t + 15
        SA = [F, F + 4]
        QA = [F + 8, F + 12]
        D0 = F + 16
        sJ = [4, 6, 8]
        a(f"v_mov_b32 v{vOnes}, 0x3f803f80")
        a(f"v_mov_b32 v{vOnes+1}, 0x3f803f80")
        a(f"v_and_b32 v{U_}, 3, v{v_lane}")
        a(f"v_and_b32 v{R_}, 1, v{v_lane}")
        a(f"v_lshlrev_b32 v{R_}, 4, v{R_}")
        a(f"v_mov_b32 v{S_}, 0xffff")
        a(f"v_lshlrev_b32 v{S_}, v{R_}, v{S_}")
        a(f"v_cmp_gt_u32 s[{s_kv}:{s_kv+1}], 2, v{U_}")
        a(f"v_cmp_eq_u32 s[{s_bd}:{s_bd+1}], 0, v{R_}")
        a(f"v_cndmask_b32 v{vM}, 0, v{S_}, s[{s_kv}:{s_kv+1}]")
        a(f"v_cndmask_b32 v{vM+1}, v{S_}, 0, s[{s_kv}:{s_kv+1}]")
        Q4 = lambda r: f"v[{r}:{r+3}]"
        P2 = lambda r: f"v[{r}:{r+1}]"
        for e in range(2):
            for j in range(7):
                if xrest:
                    xload(*xrest.pop(0))
                a(f"s_waitcnt vmcnt({vm.wait_n(f'x{e}{j}')})")
                if (e, j) in ((0, 0), (1, 6)):
                    st(f"x{e}{j}")
                r = raw(e, j)
                for h2 in range(2):
                    cs = "0" if j == 0 else Q4(SA[h2])
                    a(f"{MF} {Q4(SA[h2])}, {P2(vOnes)}, {P2(r+2*h2)}, {cs}")
                    cq = "0" if j == 0 else Q4(QA[h2])
                    a(f"{MF} {Q4(QA[h2])}, {P2(r+2*h2)}, {P2(r+2*h2)}, {cq}")
            if e == 1 and OPT["dmae"]:
                qdma(0, OPT["dmae"], "a")
            a(f"v_add_f32 v{S_}, v{SA[0]}, v{SA[1]}")
            for k in range(0, 4, 2):
                a(f"v_pk_add_f32 {P2(QA[0]+k)}, {P2(QA[0]+k)}, {P2(QA[1]+k)}")
            a(f"v_cndmask_b32 v{QA[0]}, v{QA[0]+1}, v{QA[0]}, s[{s_bd}:{s_bd+1}]")
            a(f"v_cndmask_b32 v{QA[0]+2}, v{QA[0]+3}, v{QA[0]+2}, s[{s_bd}:{s_bd+1}]")
            a(f"v_cndmask_b32 v{Q_}, v{QA[0]+2}, v{QA[0]}, s[{s_kv}:{s_kv+1}]")
            for pat in ("quad_perm:[1,0,3,2]", "quad_perm:[2,3,0,1]", "row_half_mirror"):
                for r in (S_, Q_):
                    a(f"v_add_f32_dpp v{r}, v{r}, v{r} {pat} row_mask:0xf bank_mask:0xf")
            a(f"v_mul_f32 v{S_}, 0x{f2u(1.0/448):08x}, v{S_}")
            a(f"v_mul_f32 v{Q_}, 0x{f2u(1.0/448):08x}, v{Q_}")
            a(f"v_fma_f32 v{Q_}, -v{S_}, v{S_}, v{Q_}")
            a(f"v_max_f32 v{Q_}, 0, v{Q_}")
            a(f"v_add_f32 v{Q_}, 0x{f2u(1e-5):08x}, v{Q_}")
            a(f"v_rsq_f32 v{R_}, v{Q_}")
            a(f"v_cvt_pk_bf16_f32 v{U_}, v{R_}, v{R_}")
            a(f"v_mul_f32 v{vB}, -v{S_}, v{R_}")
            a(f"v_and_b32 v{Q_}, 0xffff0000, v{U_}")
            a(f"v_and_b32 v{vAh}, v{U_}, v{vM}")
            a(f"v_and_b32 v{vAh+1}, v{U_}, v{vM+1}")
            a(f"v_sub_f32 v{Q_}, v{R_}, v{Q_}")
            a(f"v_cvt_pk_bf16_f32 v{U_}, v{Q_}, v{Q_}")
            for k in range(1, 4):
                a(f"v_mov_b32 v{vB+k}, v{vB}")
            a(f"v_and_b32 v{vAl}, v{U_}, v{vM}")
            a(f"v_and_b32 v{vAl+1}, v{U_}, v{vM+1}")
            def nm(j):
                r = raw(e, j)
                d = D0 + 8 * (j % 4)
                for h2 in range(2):
                    a(f"{MF} {Q4(d+4*h2)}, {P2(vAh)}, {P2(r+2*h2)}, {Q4(vB)}")
                for h2 in range(2):
                    a(f"{MF} {Q4(d+4*h2)}, {P2(vAl)}, {P2(r+2*h2)}, {Q4(d+4*h2)}")
            def cv(j):
                r = raw(e, j)
                d = D0 + 8 * (j % 4)
                for k in range(4):
                    a(f"v_cvt_pk_bf16_f32 v{r+k}, v{d+2*k}, v{d+2*k+1}")
                a(f"ds_write_b128 v{v_xw + e + (2 if j >= 4 else 0)}, v[{r}:{r+3}] offset:{(j % 4)*16384}")
            nm(0); nm(1)
            for j in range(7):
                if j + 2 < 7:
                    nm(j + 2)
                cv(j)
    else:
        S_, Q_, R_ = t, t + 2, t + 4
        for e in range(2):
            for j in range(7):
                if xrest:
                    xload(*xrest.pop(0))
                a(f"s_waitcnt vmcnt({vm.wait_n(f'x{e}{j}')})")
                if (e, j) in ((0, 0), (1, 6)):
                    st(f"x{e}{j}")
                for d in range(4):
                    r = raw(e, j) + d
                    f = F + 8 * j + 2 * d
                    a(f"v_lshlrev_b32 v{f}, 16, v{r}")
                    a(f"v_and_b32 v{f+1}, 0xffff0000, v{r}")
                for d in range(4):
                    f = F + 8 * j + 2 * d
                    if j == 0 and d == 0:
                        a(f"v_pk_mul_f32 v[{Q_}:{Q_+1}], v[{f}:{f+1}], v[{f}:{f+1}]")
                    elif j == 0 and d == 1:
                        a(f"v_pk_add_f32 v[{S_}:{S_+1}], v[{f-2}:{f-1}], v[{f}:{f+1}]")
                        a(f"v_pk_fma_f32 v[{Q_}:{Q_+1}], v[{f}:{f+1}], v[{f}:{f+1}], v[{Q_}:{Q_+1}]")
                    else:
                        a(f"v_pk_add_f32 v[{S_}:{S_+1}], v[{S_}:{S_+1}], v[{f}:{f+1}]")
                        a(f"v_pk_fma_f32 v[{Q_}:{Q_+1}], v[{f}:{f+1}], v[{f}:{f+1}], v[{Q_}:{Q_+1}]")
            if e == 1 and OPT["dmae"]:
                qdma(0, OPT["dmae"], "a")
            for r in (S_, Q_):
                a(f"v_add_f32 v{r}, v{r}, v{r+1}")
            for pat in ("quad_perm:[1,0,3,2]", "quad_perm:[2,3,0,1]", "row_half_mirror"):
                for r in (S_, Q_):
                    a(f"v_add_f32_dpp v{r}, v{r}, v{r} {pat} row_mask:0xf bank_mask:0xf")
            a(f"v_mul_f32 v{S_}, 0x{f2u(1.0/448):08x}, v{S_}")
            a(f"v_mul_f32 v{Q_}, 0x{f2u(1.0/448):08x}, v{Q_}")
            a(f"v_fma_f32 v{Q_}, -v{S_}, v{S_}, v{Q_}")
            a(f"v_max_f32 v{Q_}, 0, v{Q_}")
            a(f"v_add_f32 v{Q_}, 0x{f2u(1e-5):08x}, v{Q_}")
            a(f"v_rsq_f32 v{R_}, v{Q_}")
            a(f"v_mul_f32 v{R_+2}, -v{S_}, v{R_}")
            for j in range(7):
                for d in range(4):
                    f = F + 8 * j + 2 * d
                    a(f"v_pk_fma_f32 v[{f}:{f+1}], v[{f}:{f+1}], v[{R_}:{R_+1}], v[{R_+2}:{R_+3}] op_sel_hi:[1,0,0]")
                for d in range(4):
                    f = F + 8 * j + 2 * d
                    a(f"v_cvt_pk_bf16_f32 v{raw(e, j)+d}, v{f}, v{f+1}")
                r = raw(e, j)
                a(f"ds_write_b128 v{v_xw + e + (2 if j >= 4 else 0)}, v[{r}:{r+3}] offset:{(j % 4)*16384}")
    st("lnend")
    qdma(OPT["dmae"], 12, "b")
    gtouch(sWg, 13, False, t + 10, vm)
    a(f"buffer_store_dwordx2 v[{v_non}:{v_non+1}], v{v_e0}, s[{sDbg}:{sDbg+3}], 0 offen sc1")
    vm.issue("t")
    a(f"s_waitcnt vmcnt({vm.wait_n('c0')}) lgkmcnt(0)")
    a("s_barrier")
    st("B1")
    if OPT["mprio"]:
        a(f"s_cmp_eq_u32 s{s_g}, 0")
        a("s_cbranch_scc1 L_noprio")
        a("s_setprio 1")
        a("L_noprio:")
    a(f"s_and_b32 s{s_t0}, s{s_cb}, 3")
    a(f"s_cmp_eq_u32 s{s_t0}, 3")
    a("s_cbranch_scc1 L_type2")

    def deferred2():
        D = []
        S = D.append
        tt = vT + 8
        d0, d1 = s_d0, s_d1
        S(f"s_and_b32 s{d0}, s2, 7")
        S(f"s_lshr_b32 s{d1}, s2, 7")
        S(f"s_lshl1_add_u32 s{s_h}, s{d0}, s{d1}")
        S(f"s_bfe_u32 s{s_qb}, s2, 0x40003")
        S(f"s_bfe_u32 s{d1}, s2, 0x20003")
        S(f"s_lshl2_add_u32 s{s_tb64}, s{d0}, s{d1}")
        S(f"s_lshr_b32 s{s_nb}, s2, 5")
        S(f"s_lshr_b32 s{d0}, s{s_h}, 1")
        S(f"s_or_b32 s{d1}, s{s_h}, 3")
        S(f"v_min_u32 v{tt}, 1, v{v_lane}")
        S(f"v_sub_u32 v{tt+1}, v{v_lane}, v{tt}")
        S(f"v_sub_u32 v{tt+1}, s{s_qb}, v{tt+1}")
        S(f"v_max_i32 v{tt+1}, 0, v{tt+1}")
        S(f"v_lshl_add_u32 v{tt}, v{tt}, 3, s{d0}")
        S(f"v_lshl_add_u32 v{tt}, v{tt+1}, 4, v{tt}")
        S(f"v_lshlrev_b32 v{tt}, 3, v{tt}")
        S(f"v_add_u32 v{tt}, {FL + F_QK*2048}, v{tt}")
        S(f"v_subrev_u32 v{tt+1}, 16, v{v_lane}")
        S(f"v_sub_u32 v{tt+1}, s{s_qb}, v{tt+1}")
        S(f"v_max_i32 v{tt+1}, 0, v{tt+1}")
        S(f"v_lshl_add_u32 v{tt+1}, v{tt+1}, 4, s{d1}")
        S(f"v_lshlrev_b32 v{tt+1}, 3, v{tt+1}")
        S(f"v_add_u32 v{tt+1}, {FL + F_V*2048}, v{tt+1}")
        S(f"v_mov_b32 v{tt+2}, {OOB}")
        S(f"v_cmp_gt_u32 s[{d0}:{d0+1}], 4, v0")
        S(f"v_cndmask_b32 v{v_pa}, v{tt+2}, v{tt}, s[{d0}:{d0+1}]")
        S(f"v_cmp_gt_u32 s[{d0}:{d0+1}], 19, v{v_lane}")
        S(f"v_cndmask_b32 v{v_paV}, v{tt+2}, v{tt+1}, s[{d0}:{d0+1}]")
        S(f"s_lshr_b32 s{d0}, s{s_tb64}, 1")
        S(f"s_lshl_b32 s{d0}, s{d0}, 7")
        S(f"s_add_u32 s{d0}, s{d0}, {FL + F_H*2048}")
        S(f"v_lshl_add_u32 v{tt}, v{v_lane}, 3, s{d0}")
        S(f"v_cmp_gt_u32 s[{d0}:{d0+1}], 16, v{v_lane}")
        S(f"v_cndmask_b32 v{v_paH}, v{tt+2}, v{tt}, s[{d0}:{d0+1}]")
        S(f"v_add_u32 v{tt}, {(F_V-F_H)*2048}, v{tt}")
        S(f"v_cndmask_b32 v{v_paV}, v{v_paV}, v{tt}, s[{d0}:{d0+1}]")
        S(f"s_lshl4_add_u32 s{s_fp}, s{s_tb}, s{s_cb}")
        S(f"s_lshl_b32 s{s_fp}, s{s_fp}, 3")
        S(f"s_add_u32 s{s_fp}, s{s_fp}, {FL}")
        S(f"s_lshl4_add_u32 s{s_fo}, s{s_qb}, s{s_h}")
        S(f"s_lshl_b32 s{s_fo}, s{s_fo}, 3")
        S(f"s_add_u32 s{s_fo}, s{s_fo}, {FL}")
        S(f"s_lshl_b32 s{s_kv}, s{s_h}, 17")
        S(f"s_lshl_b32 s{d0}, s{s_qb}, 13")
        S(f"s_add_u32 s{s_kv}, s{s_kv}, s{d0}")
        S(f"v_and_b32 v{tt}, 15, v{v_lane}")
        S(f"v_lshrrev_b32 v{tt+1}, 4, v{v_lane}")
        S(f"v_lshlrev_b32 v{v_qa}, 9, v{tt+1}")
        S(f"v_lshl_add_u32 v{v_qa}, v{tt}, 4, v{v_qa}")
        S(f"s_lshl2_add_u32 s{s_bd}, s{s_qb}, s{s_mt}")
        S(f"s_mul_i32 s{s_ost}, s{s_bd}, {NKS*1024}")
        S(f"s_lshl_b32 s{d0}, s{s_h}, 11")
        S(f"s_add_u32 s{s_ost}, s{s_ost}, s{d0}")
        S(f"s_add_u32 s{s_ost}, s{s_ost}, {HF + 112*1024}")
        S(f"v_and_b32 v{v_d}, 3, v{v_lane}")
        S(f"v_bfe_u32 v{tt}, v{v_lane}, 2, 1")
        S(f"v_lshl_or_b32 v{v_d}, v{tt}, 3, v{v_d}")
        S(f"v_bfe_u32 v{tt}, v{v_lane}, 3, 1")
        S(f"v_lshl_or_b32 v{v_d}, v{tt}, 2, v{v_d}")
        S(f"v_lshlrev_b32 v{tt}, 3, v{tt+1}")
        S(f"v_sub_u32 v{v_d}, v{v_d}, v{tt}")
        S(f"v_lshrrev_b32 v{tt}, 3, v{v_lane}")
        S(f"v_and_b32 v{tt+1}, 7, v{v_lane}")
        S(f"v_bfe_u32 v{tt+2}, v{v_lane}, 4, 1")
        S(f"v_lshlrev_b32 v{tt+3}, 2, v{tt+2}")
        S(f"v_xor_b32 v{tt+3}, v{tt+3}, v{tt+1}")
        S(f"v_mul_u32_u24 v{v_dw}, 896, v{tt}")
        S(f"v_lshl_add_u32 v{v_dw}, v{tt+3}, 4, v{v_dw}")
        S(f"s_mul_i32 s{s_m0w}, s{s_mt}, {RING}")
        S(f"s_add_u32 s{s_m0w}, s{s_m0w}, {RB}")
        S(f"s_lshr_b32 s{s_kh}, s{s_mt}, 1")
        S(f"s_and_b32 s{s_nt}, s{s_mt}, 1")
        S(f"s_mul_i32 s{s_wb}, s{s_kh}, {896*896}")
        S(f"s_mul_i32 s{d0}, s{s_nt}, {32*896}")
        S(f"s_add_u32 s{s_wb}, s{s_wb}, s{d0}")
        S(f"s_lshl_b32 s{d0}, s{s_nb}, 7")
        S(f"s_add_u32 s{s_wb}, s{s_wb}, s{d0}")
        S(f"s_mul_i32 s{s_wob}, s{s_mt}, {28*896}")
        S(f"s_add_u32 s{s_wob}, s{s_wob}, s{d0}")
        S(f"s_lshl1_add_u32 s{d1}, s{s_tb64}, s{s_nt}")
        S(f"s_mul_i32 s{s_xo}, s{d1}, {32*896}")
        S(f"s_add_u32 s{s_xo}, s{s_xo}, s{d0}")
        S(f"s_lshl_b32 s{d0}, s{s_kh}, 6")
        S(f"s_add_u32 s{s_xo}, s{s_xo}, s{d0}")
        S(f"s_lshl_b32 s{d0}, s{s_g}, 5")
        S(f"s_add_u32 s{s_xo}, s{s_xo}, s{d0}")
        S(f"s_mul_i32 s{s_hb}, s{s_tb64}, {2*NKS*1024}")
        S(f"s_add_u32 s{s_hb}, s{s_hb}, {HF}")
        S(f"s_lshl_b32 s{d0}, s{s_mt}, 11")
        S(f"s_add_u32 s{s_hr}, s{s_hb}, s{d0}")
        S(f"s_add_u32 s{s_hr}, s{s_hr}, {112*1024}")
        S(f"s_mul_i32 s{d0}, s{s_kh}, {56*1024}")
        S(f"s_add_u32 s{s_hb}, s{s_hb}, s{d0}")
        S(f"s_lshl_b32 s{d0}, s{s_nt}, 11")
        S(f"s_add_u32 s{s_hb}, s{s_hb}, s{d0}")
        return D

    SC = "sc1"
    def epi_qk(acc):
        E = []
        for r in range(16):
            E.append(f"v_mul_f32 v{acc+r}, s{s_scale}, v{acc+r}")
        for d in range(8):
            E.append(f"v_cvt_pk_bf16_f32 v{vT+d}, v{acc+2*d}, v{acc+2*d+1}")
        E.append(f"v_and_b32 v{vT+6}, v{vT+6}, v{v_msk}")
        E.append(f"v_and_b32 v{vT+7}, v{vT+7}, v{v_msk}")
        return E
    qk_stores = [f"buffer_store_dwordx4 v[{vT}:{vT+3}], v{v_stk}, s[{sWS}:{sWS+3}], s{s_qkst} offen {SC}",
                 f"buffer_store_dwordx4 v[{vT+4}:{vT+7}], v{v_stk}, s[{sWS}:{sWS+3}], s{s_qkst} offen offset:1024 {SC}"]

    def epi_v(acc):
        E = []
        for jj in range(2):
            Ac = acc + 16 * jj
            T = vT + 8 * jj
            for d in range(8):
                E.append(f"v_cvt_pk_bf16_f32 v{T+d}, v{Ac+2*d}, v{Ac+2*d+1}")
            for d in range(8):
                E.append(f"v_cndmask_b32 v{T+d}, v{T+d}, v{v_one}, s[{s_one}:{s_one+1}]")
            if jj:
                E.append(f"s_add_u32 s{s_vst}, s{s_vst}, {1 << 17}")
            E.append(f"buffer_store_dwordx4 v[{T}:{T+3}], v{v_st}, s[{sWS}:{sWS+3}], s{s_vst} offen {SC}")
            E.append(f"buffer_store_dwordx4 v[{T+4}:{T+7}], v{v_st}, s[{sWS}:{sWS+3}], s{s_vst} offen offset:1024 {SC}")
        return E

    def epi_gu_tile(acc, jj, pk):
        E = []
        Ac = acc + 16 * jj
        T = vT + 12 * jj
        P = lambda r: f"v[{r}:{r+1}]"
        if pk:
            for i in range(0, 8, 2):
                E.append(f"v_pk_mul_f32 {P(T+i)}, {P(Ac+i)}, {P(Ac+i)}")
            for i in range(0, 8, 2):
                E.append(f"v_pk_fma_f32 {P(T+i)}, {P(T+i)}, {P(v_c2)}, {P(v_c1)} op_sel_hi:[1,0,0]")
            for i in range(0, 8, 2):
                E.append(f"v_pk_mul_f32 {P(T+i)}, {P(T+i)}, {P(Ac+i)}")
            for i in range(8):
                E.append(f"v_exp_f32 v{T+i}, v{T+i}")
                if i % 2:
                    E.append(f"v_pk_mul_f32 {P(Ac+i-1)}, {P(Ac+i-1)}, {P(Ac+8+i-1)}")
            for i in range(0, 8, 2):
                E.append(f"v_pk_add_f32 {P(T+i)}, {P(T+i)}, {P(v_k1)} op_sel_hi:[1,0]")
            for i in range(8):
                E.append(f"v_rcp_f32 v{T+i}, v{T+i}")
            for i in range(0, 8, 2):
                E.append(f"v_pk_mul_f32 {P(Ac+i)}, {P(Ac+i)}, {P(T+i)}")
        else:
            for i in range(8):
                E.append(f"v_mul_f32 v{T+i}, v{Ac+i}, v{Ac+i}")
            for i in range(8):
                E.append(f"v_fma_f32 v{T+i}, v{T+i}, v{v_c2}, v{v_c1}")
            for i in range(8):
                E.append(f"v_mul_f32 v{T+i}, v{T+i}, v{Ac+i}")
            for i in range(8):
                E.append(f"v_exp_f32 v{T+i}, v{T+i}")
                E.append(f"v_mul_f32 v{Ac+i}, v{Ac+i}, v{Ac+8+i}")
            for i in range(8):
                E.append(f"v_add_f32 v{T+i}, 1.0, v{T+i}")
            for i in range(8):
                E.append(f"v_rcp_f32 v{T+i}, v{T+i}")
            for i in range(8):
                E.append(f"v_mul_f32 v{Ac+i}, v{Ac+i}, v{T+i}")
        for d in range(4):
            E.append(f"v_cvt_pk_bf16_f32 v{T+8+d}, v{Ac+2*d}, v{Ac+2*d+1}")
        E.append(f"buffer_store_dwordx4 v[{T+8}:{T+11}], v{v_st}, s[{sWS}:{sWS+3}], s{s_hst} offen offset:{1024*jj} {SC}")
        return E

    def publish(vm, kind, s_base):
        a(f"s_add_u32 s{s_t1}, s{s_base}, {kind*2048}")
        a(f"buffer_store_dwordx2 v[{v_non}:{v_non+1}], v{v_fa}, s[{sWS}:{sWS+3}], s{s_t1} offen sc1")
        vm.issue("flag")

    def poll(vm, vaddr):
        a(f"buffer_load_dwordx2 v[{v_pf}:{v_pf+1}], v{vaddr}, s[{sWS}:{sWS+3}], 0 offen sc1")
        if vm is not None:
            vm.issue("poll")

    spin_id = [0]
    def wait_flags(vm, vaddr, nlanes, mask=None, allw=False):
        if OPT["xnf"] and allw:
            return
        i = spin_id[0]; spin_id[0] += 1
        if mask is None:
            mask = (1 << nlanes) - 1
        if not allw:
            a(f"s_cmp_lg_u32 s{s_w}, 0")
            a(f"s_cbranch_scc1 L_wf_done{i}")
        a(f"s_mov_b32 s{s_t2}, 0")
        a(f"s_waitcnt vmcnt({vm.wait_n('poll')})")
        a(f"L_wf{i}:")
        a(f"v_cmp_eq_u64 vcc, v[{v_pf}:{v_pf+1}], v[{v_non}:{v_non+1}]")
        a(f"s_and_b32 s{s_t1}, vcc_lo, {mask}")
        a(f"s_cmp_eq_u32 s{s_t1}, {mask}")
        a(f"s_cbranch_scc1 L_wf_done{i}")
        a(f"s_add_u32 s{s_t2}, s{s_t2}, 1")
        a(f"s_cmp_gt_u32 s{s_t2}, 100000")
        a(f"s_cbranch_scc1 L_wf_done{i}")
        a(f"s_sleep {OPT['slp']}")
        poll(None, vaddr)
        a("s_waitcnt vmcnt(0)")
        a(f"s_branch L_wf{i}")
        a(f"L_wf_done{i}:")

    def kq_groups():
        g = [f"s_mul_i32 s{s_b2}, s{s_w}, 3072",
             f"s_mov_b32 m0, s{s_b2}",
             f"s_add_u32 s{s_b1}, s{s_kv}, s{s_b2}",
             f"s_add_u32 s{s_b1}, s{s_b1}, {KF - 16384}"]
        for j in range(3):
            g.append(f"buffer_load_dwordx4 v{v_st}, s[{sWS}:{sWS+3}], s{s_b1} offen offset:{1024*j} sc1 lds")
        g2 = [f"s_lshl_b32 s{s_b2}, s{s_mt}, 11",
              f"s_add_u32 s{s_b2}, s{s_b2}, s{s_kv}",
              f"buffer_load_dwordx4 v[{vQ}:{vQ+3}], v{v_qa}, s[{sWS}:{sWS+3}], s{s_b2} offen sc1",
              f"buffer_load_dwordx4 v[40:43], v{v_qa}, s[{sWS}:{sWS+3}], s{s_b2} offen offset:256 sc1"]
        return [(g, "k"), (g2, "k")]
    tailk = {}
    st_state = (st.n, list(st.names))
    def main(seq, vm):
        st.n, st.names = st_state[0], list(st_state[1])
        is2 = seq[2][0] == "v"
        lg = Cnt(15)
        M = []
        sp = -1
        prev = None
        for c, (kind, idx, part) in enumerate(seq):
            if (kind, idx) != prev:
                sp += 1
                prev = (kind, idx)
            if kind == "qk":
                for s in range(14):
                    M.append(dict(c=c, kind=kind, idx=idx, ks=14 * part + s, sl=s, jj=0, first=(part == 0 and s == 0), sp=sp))
            else:
                for s in range(7):
                    for jj in range(2):
                        M.append(dict(c=c, kind=kind, idx=idx, ks=7 * part + s, sl=s, jj=jj, first=(part == 0 and s == 0), sp=sp))
        LA = 3
        cur = [-1]
        def reads(m):
            mm = M[m]
            c = mm["c"]
            if cur[0] != c:
                cur[0] = c
                so = (c % 5) * SLOT
                if mm["kind"] == "qk":
                    a(f"v_add_u32 v{v_rdA}, {so}, v{v_bqk}")
                elif mm["kind"] == "v":
                    a(f"v_add_u32 v{v_rdA}, {so}, v{v_bv0}")
                    a(f"v_add_u32 v{v_rdB}, {so}, v{v_bv1}")
                else:
                    a(f"v_add_u32 v{v_rdA}, {so}, v{v_bg0}")
                    a(f"v_add_u32 v{v_rdB}, {so}, v{v_bg1}")
            b = vW + 4 * (m % 4)
            ad = v_rdB if mm["jj"] else v_rdA
            rb = 2 if mm["kind"] == "v" else 1
            o = mm["sl"] * 2048 * rb
            a(f"ds_read_b64_tr_b16 v[{b}:{b+1}], v{ad} offset:{o}")
            a(f"ds_read_b64_tr_b16 v[{b+2}:{b+3}], v{ad} offset:{o+512*rb}")
            lg.issue(f"w{m}"); lg.issue(f"w{m}")
        xn = [0]
        def xread(k=1):
            for _ in range(k):
                ks = xn[0]
                if ks >= 28:
                    return
                xn[0] += 1
                j, s2 = divmod(ks, 4)
                r = vX + 4 * ks
                a(f"ds_read_b128 v[{r}:{r+3}], v{v_xa + s2 + (4 if j >= 4 else 0)} offset:{(j % 4)*16384}")
                lg.issue(f"x{ks}")
        for m in range(LA):
            xread(1)
            reads(m)
        xread(3)
        pend = deferred(is2)
        D2 = deferred2()
        n2 = 60
        pend += D2[:n2]
        pend_tag = "st"
        rate = len(pend) / 26.0
        accum = 0.0
        hold = 0
        n = len(M)
        bg = []
        B2 = OPT["b2"]
        def emit_pend():
            ins = pend.pop(0)
            a(ins)
            if ins.startswith("buffer_"):
                vm.issue(pend_tag)
        w2k = [0]
        def slot_store(stores, vaddr, k, nk, tag):
            if nk > 1:
                if nk == 2:
                    a(f"s_bitcmp{k}_b32 s{s_wr}, 0")
                else:
                    a(f"s_cmp_eq_u32 s{s_wr}, {k}")
                a(f"s_cselect_b64 s[{s_t0}:{s_t0+1}], -1, 0")
                a(f"v_cndmask_b32 v{v_e0}, v{v_e1}, v{vaddr}, s[{s_t0}:{s_t0+1}]")
                stores = [x.replace(f", v{vaddr},", f", v{v_e0},") for x in stores]
            for x in stores:
                a(x); vm.issue(tag)
        late = {}
        dsched = {}
        for m in range(n):
            mm = M[m]
            c = mm["c"]
            if m in STM:
                st(f"m{m}")
            if m == 4:
                assert xn[0] >= 12
                a(f"s_waitcnt lgkmcnt({lg.wait_n('x11')})")
                a("s_barrier")
                emit_group(vm, c1b)
                bg += dmaA(seq[2], 2, "c2")
            if m == B2:
                assert xn[0] >= 28 and B2 <= 11
                a(f"s_waitcnt vmcnt({vm.wait_n('c1')}) lgkmcnt({lg.wait_n('x27')})")
                a("s_barrier")
                bg += dmaA(seq[3], 3, "c3") + dmaA(seq[4], 4, "c4")
                bg.append(([f"buffer_load_dwordx2 v[{v_non}:{v_non+1}], v{v_zero}, s[{sDbg}:{sDbg+3}], 0 offen sc1"], "nonce"))
            if m == 20:
                a(f"s_waitcnt vmcnt({vm.wait_n('c1b')})")
                a("s_barrier")
            if m % 14 == (8 if c != 1 else 10) and 1 <= c < len(seq) - 1:
                tags = [f"c{c+1}"]
                while not vm.has(tags[0]) or any(g[1] == tags[0] for g in bg):
                    emit_group(vm, bg.pop(0))
                if c == OPT["pubqk"]:
                    tags.append("st_qk")
                if c == OPT["kq"]:
                    wait_flags(vm, v_pa, 4)
                a(f"s_waitcnt vmcnt({vm.wait_n(*tags)})")
                a("s_barrier")
                if c == OPT["pubqk"]:
                    publish(vm, F_QK, s_fp)
                if c == OPT["kq"]:
                    bg += kq_groups()
                if c + 4 < len(seq):
                    dl = OPT.get(f"d{c+4}", 0)
                    if dl > m:
                        dsched[dl] = c + 4
                    else:
                        bg += dmaA(seq[c + 4], (c + 4) % 5, f"c{c+4}")
                if c == 4:
                    i = spin_id[0]; spin_id[0] += 1
                    a(f"s_mov_b32 s{s_t2}, 0")
                    a(f"L_nz{i}:")
                    a(f"v_readfirstlane_b32 s{s_t1}, v{v_non}")
                    a(f"s_cmp_lg_u32 s{s_t1}, 0")
                    a(f"s_cbranch_scc1 L_nz_done{i}")
                    a(f"s_add_u32 s{s_t2}, s{s_t2}, 1")
                    a(f"s_cmp_gt_u32 s{s_t2}, 100000")
                    a(f"s_cbranch_scc1 L_nz_done{i}")
                    a("s_sleep 2")
                    a(f"buffer_load_dwordx2 v[{v_non}:{v_non+1}], v{v_zero}, s[{sDbg}:{sDbg+3}], 0 offen sc1")
                    a("s_waitcnt vmcnt(0)")
                    a(f"s_branch L_nz{i}")
                    a(f"L_nz_done{i}:")
            if m in dsched:
                k = dsched[m]
                bg += dmaA(seq[k], k % 5, f"c{k}")
            for k in range(OPT["qkn"]):
                if m == OPT["qkst"] + k * OPT["qkgap"]:
                    slot_store(qk_stores, v_stk, k, OPT["qkn"], "st_qk")
            if m == (OPT["pubm"] if is2 else OPT["pubm1"]):
                a(f"s_waitcnt vmcnt({vm.wait_n('st_qkv' if is2 else 'st_h0')})")
                a("s_barrier")
                publish(vm, F_V, s_fp)
            if m == 14 * OPT["kq"] + 8 - OPT["kqlead"]:
                poll(vm, v_pa)
            if m == 100:
                a(f"v_mov_b32 v{v_e0}, {CNT_LDS}")
                for off in (0, 4, 8):
                    a(f"ds_write_b32 v{v_e0}, v{v_zero} offset:{off}")
                    lg.issue("z")
            if m in late:
                for (ins, k, nk, flush) in late[m]:
                    if flush:
                        while pend:
                            emit_pend()
                    if ins.startswith("buffer_"):
                        slot_store([ins], v_st, k, nk, "st_h0")
                    else:
                        a(ins)
            if m == OPT["w2s"]:
                gtouch(sWd, 7, True, v_e0, vm)
                gtouch(sWo, 2, True, v_e0, vm)
            if OPT["l2n"] and m >= OPT["l2s"] and (m - OPT["l2s"]) % OPT["l2d"] == 0 and (m - OPT["l2s"]) // OPT["l2d"] < OPT["l2n"] + 1:
                k = (m - OPT["l2s"]) // OPT["l2d"]
                nl = -(-49 // OPT["l2n"])
                isw = k == OPT["l2n"]
                a(f"s_lshr_b32 s{s_t0}, s2, 3")
                a(f"s_lshl3_add_u32 s{s_t0}, s{s_t0}, s{s_w}")
                if isw:
                    nl = 13
                    a(f"s_mul_i32 s{s_t0}, s{s_t0}, 13")
                else:
                    a(f"s_mul_i32 s{s_t0}, s{s_t0}, {nl}")
                    a(f"s_add_u32 s{s_t0}, s{s_t0}, {k*nl*256}")
                a(f"v_add_lshl_u32 v{v_e0}, v{v_lane}, s{s_t0}, 7")
                a(f"s_mov_b64 exec, {(1 << nl) - 1}")
                sr = sWo if isw else sWd
                a(f"buffer_load_dword v{v_td}, v{v_e0}, s[{sr}:{sr+3}], 0 offen")
                a(f"s_mov_b64 exec, -1")
                vm.issue("t")
            if m + LA < n:
                reads(m + LA)
            xread(OPT["xr"])
            tags = [f"w{m}"]
            if mm["sp"] == 0:
                tags.append(f"x{mm['ks']}")
            a(f"s_waitcnt lgkmcnt({lg.wait_n(*tags)})")
            accb = ACC[(mm["sp"] + 1) % 2]
            acc = accb + 16 * mm["jj"]
            b = vW + 4 * (m % 4)
            x = vX + 4 * mm["ks"]
            csrc = "0" if mm["first"] else f"v[{acc}:{acc+15}]"
            if mm["kind"] == "v":
                a(f"v_mfma_f32_32x32x16_bf16 v[{acc}:{acc+15}], v[{x}:{x+3}], v[{b}:{b+3}], {csrc}")
            else:
                a(f"v_mfma_f32_32x32x16_bf16 v[{acc}:{acc+15}], v[{b}:{b+3}], v[{x}:{x+3}], {csrc}")
            if bg and (m % OPT["bgp"] == 0 or len(bg) > 4):
                emit_group(vm, bg.pop(0))
            last_of_sp = (m + 1 == n) or (M[m + 1]["sp"] != mm["sp"])
            if pend and not hold:
                accum += rate
                while accum >= 1.0 and pend:
                    emit_pend()
                    accum -= 1.0
            if hold:
                hold -= 1
            if last_of_sp:
                while pend:
                    emit_pend()
                if m + 1 < n:
                    nsp = sum(1 for q in M if q["sp"] == mm["sp"] + 1)
                    if mm["kind"] == "qk":
                        pend = epi_qk(accb) + D2[n2:]
                        rate = max(len(pend) / (nsp - 8), 27.0 / max(1, OPT["qkst"] - 31))
                    elif mm["kind"] == "v":
                        pend = epi_v(accb)
                        pend_tag = "st_qkv"
                        rate = OPT["vrate"] / 10.0
                    else:
                        e0 = epi_gu_tile(accb, 0, OPT["pk"] & 2); e1 = epi_gu_tile(accb, 1, OPT["pk"] & 2)
                        if OPT["hst0"]:
                            s0_, s1_ = e0.pop(), e1.pop()
                            nk = OPT["hn"]
                            for k in range(nk):
                                late.setdefault(OPT["hst0"] + k * OPT["hgap"], []).append((s0_, k, nk, False))
                                late.setdefault(OPT["hst1"] + k * OPT["hgap"], []).append((s1_, k, nk, True))
                            late.setdefault(139, []).append((f"s_add_u32 s{s_hst}, s{s_hst}, 4096", 0, 1, False))
                            assert OPT["hst1"] + (nk - 1) * OPT["hgap"] <= 139
                            assert (OPT["hst0"] - 86) * 2 >= (OPT["hst1"] - 88)
                            pend = e0 + e1
                            rate = len(pend) / (OPT["hst1"] - 84 - 4)
                        else:
                            pend = e0 + e1 + [f"s_add_u32 s{s_hst}, s{s_hst}, 4096"]
                            rate = len(pend) / (nsp - 8)
                        pend_tag = "st_h0"
                    accum = 0.0
                    hold = 2
                else:
                    assert accb == ACC[1]
        assert not bg
        tailk[is2] = vm.wait_n('k')

    main(seq1, copy.deepcopy(vm))
    a("s_branch L_postA")
    a("L_type2:")
    main(seq2, copy.deepcopy(vm))
    a("L_postA:")
    st("T")
    vm = VM()

    NC = 18
    PIECE = [0, 2, 4, 7, 9, 11, 1, 3, 5, 6, 8, 10, 12, 13]
    v_cnt, v_one1, v_fl = 5, 7, 9

    s_pe, s_pl, s_po = 82, 66, 81
    ROT = OPT["rot"]
    def piece(c):
        if c < 6:
            return [f"s_bfe_u32 s{s_b2}, s{s_pe}, 0x{(4 << 16) | (4*c):x}"]
        if c < 14:
            return [f"s_bfe_u32 s{s_b2}, s{s_pl}, 0x{(4 << 16) | (4*(c-6)):x}"]
        return [f"s_bfe_u32 s{s_b2}, s{s_po}, 0x{(2 << 16) | (2*(c-14)):x}"]
    def dmaW(c):
        G = []
        for jj in range(4):
            g = [f"s_add_u32 m0, s{s_m0w}, {(c % NR)*4096 + 1024*jj}"]
            sr, base, mul = (sWd, s_wb, 64*896) if c < 14 else (sWo, s_wob, 112*896)
            if ROT:
                if jj == 0:
                    g += piece(c) + [f"s_mul_i32 s{s_b2}, s{s_b2}, {mul}", f"s_add_u32 s{s_cmt}, s{s_b2}, s{base}"]
                    g.append(f"buffer_load_dwordx4 v{v_dw}, s[{sr}:{sr+3}], s{s_cmt} offen lds")
                else:
                    g.append(f"s_add_u32 s{s_b1}, s{s_cmt}, {8*jj*896}")
                    g.append(f"buffer_load_dwordx4 v{v_dw}, s[{sr}:{sr+3}], s{s_b1} offen lds")
            else:
                p = PIECE[c] if c < 14 else c - 14
                g.append(f"s_add_u32 s{s_b1}, s{base}, {p*mul + 8*jj*896}")
                g.append(f"buffer_load_dwordx4 v{v_dw}, s[{sr}:{sr+3}], s{s_b1} offen lds")
            G.append((g, f"w{c}"))
        return G
    HREG = [128, 144, 160, 176, 48, 16]
    def dmaH(c):
        G = []
        r = HREG[c % 6]
        base, sh = (s_hb, 12) if c < 14 else (s_hr, 13)
        for mt in range(2):
            if ROT:
                g = piece(c) + [f"s_lshl_b32 s{s_b2}, s{s_b2}, {sh}", f"s_add_u32 s{s_b1}, s{s_b2}, s{base}"]
                if mt:
                    g.append(f"s_add_u32 s{s_b1}, s{s_b1}, {NKS*1024}")
            else:
                p = PIECE[c] if c < 14 else c - 14
                g = [f"s_add_u32 s{s_b1}, s{base}, {(p << sh) + mt*NKS*1024}"]
            for i in range(2):
                q = r + 8 * mt + 4 * i
                g.append(f"buffer_load_dwordx4 v[{q}:{q+3}], v{v_st}, s[{sWS}:{sWS+3}], s{s_b1} offen offset:{1024*i} {'' if OPT['xnsc'] else 'sc1'}")
            G.append((g, f"h{c}"))
        return G
    if ROT:
        def pack(lst):
            v = 0
            for i, x in enumerate(lst):
                v |= x << (4 * i)
            return v
        ce = pack(PIECE[:6] * 2 + PIECE[:4]); cl = pack(PIECE[6:14] * 2)
        a(f"s_and_b32 s{s_t0}, s{s_tb64}, 3")
        a(f"s_mul_i32 s{s_t0}, s{s_t0}, {OPT['rt']}")
        a(f"s_mul_i32 s{s_t1}, s{s_nb}, {OPT['rn']}")
        a(f"s_add_u32 s{s_t0}, s{s_t0}, s{s_t1}")
        a(f"s_mul_i32 s{s_t1}, s{s_t0}, 43")
        a(f"s_lshr_b32 s{s_t1}, s{s_t1}, 8")
        a(f"s_mul_i32 s{s_t1}, s{s_t1}, 6")
        a(f"s_sub_u32 s{s_t1}, s{s_t0}, s{s_t1}")
        a(f"s_lshl_b32 s{s_t1}, s{s_t1}, 2")
        a(f"s_mov_b32 s{s_pe}, 0x{ce & 0xffffffff:x}")
        a(f"s_mov_b32 s{s_pe+1}, 0x{ce >> 32:x}")
        a(f"s_lshr_b64 s[{s_pe}:{s_pe+1}], s[{s_pe}:{s_pe+1}], s{s_t1}")
        a(f"s_and_b32 s{s_t1}, s{s_t0}, 7")
        a(f"s_lshl_b32 s{s_t1}, s{s_t1}, 2")
        a(f"s_mov_b32 s{s_pl}, 0x{cl & 0xffffffff:x}")
        a(f"s_mov_b32 s{s_pl+1}, 0x{cl >> 32:x}")
        a(f"s_lshr_b64 s[{s_pl}:{s_pl+1}], s[{s_pl}:{s_pl+1}], s{s_t1}")
        a(f"s_and_b32 s{s_t1}, s{s_t0}, 3")
        a(f"s_lshl_b32 s{s_t1}, s{s_t1}, 1")
        a(f"s_lshr_b32 s{s_po}, 0xe4e4, s{s_t1}")

    a(f"v_mov_b32 v{v_cnt}, {CNT_LDS}")
    a(f"v_mov_b32 v{v_one1}, 1")
    a(f"v_cmp_eq_u32 s[{s_d0}:{s_d0+1}], 0, v{v_lane}")
    a(f"v_cndmask_b32 v{v_fl}, v{v_e1}, 0, s[{s_d0}:{s_d0+1}]")
    a("s_barrier")
    vmS = VM()
    EPI = epi_gu_tile(ACC[1], 0, OPT["pk"] & 1) + epi_gu_tile(ACC[1], 1, OPT["pk"] & 1)
    if OPT["xns"]:
        EPI = [x.replace(f", v{v_st},", f", v{v_e1},") if x.startswith("buffer_") else x for x in EPI]
    st_save = (st.n, list(st.names))
    a(f"s_cmp_eq_u32 s{s_g}, 0")
    a("s_cbranch_scc0 L_stream")
    for ins in EPI:
        a(ins)
    st("E1")
    a(f"s_waitcnt vmcnt({min(tailk.values()) + 2})")
    a("s_barrier")

    def arrive(off, total, kind, s_base, lab):
        a(f"s_mov_b64 exec, 1")
        a(f"ds_add_rtn_u32 v{v_td}, v{v_cnt}, v{v_one1} offset:{off}")
        a(f"s_mov_b64 exec, -1")
        a("s_waitcnt lgkmcnt(0)")
        a(f"v_readfirstlane_b32 s{s_t1}, v{v_td}")
        a(f"s_cmp_lg_u32 s{s_t1}, {total-1}")
        a(f"s_cbranch_scc1 L_arr{lab}")
        a(f"s_add_u32 s{s_t1}, s{s_base}, {kind*2048}")
        a(f"buffer_store_dwordx2 v[{v_non}:{v_non+1}], v{v_fl}, s[{sWS}:{sWS+3}], s{s_t1} offen sc1")
        a(f"L_arr{lab}:")

    vSu = [132, 48]
    vKF = 204
    vQu = [vQ, 40]
    vOq = [[120, 124], [128, 236]]
    v_ka, v_va, u = 3, 4, 16
    v_mu = [2, 8]
    MKu = [[24, 26, 16, 64, 32, 34, 40, 42], [4, 6, 8, 10, 12, 14, 44, 46]]
    a(f"s_lshl_b32 s{s_t2}, s{s_mt}, 11")
    a(f"v_add_u32 v{v_ka}, s{s_t2}, v{v_qa}")
    a(f"v_add_u32 v{v_va}, 24576, v{v_ka}")
    def kread(i):
        b, t2 = divmod(i, 2)
        r = vKF + 4 * (i % 8)
        a(f"ds_read_b128 v[{r}:{r+3}], v{v_ka} offset:{b*2048 + t2*256}")
    LA = 6
    for i in range(LA):
        kread(i)
    st("BK")
    side = [f"v_cmp_le_i32 s[{MKu[0][i]}:{MKu[0][i]+1}], {i}, v{v_d}" for i in range(8)]
    side += [f"v_cmp_le_i32 s[{MKu[1][i]}:{MKu[1][i]+1}], {i-16}, v{v_d}" for i in range(8)]
    for i in range(18):
        if i + LA < 18:
            kread(i + LA)
            a(f"s_waitcnt lgkmcnt({LA})")
        else:
            a(f"s_waitcnt lgkmcnt({17-i})")
        r = vKF + 4 * (i % 8)
        for un in range(2):
            a(f"v_mfma_f32_16x16x32_bf16 v[{vSu[un]+4*i}:{vSu[un]+4*i+3}], v[{r}:{r+3}], v[{vQu[un]}:{vQu[un]+3}], 0")
        if side:
            a(side.pop(0))
    st("Sdone")
    if OPT["arrA"] == 0:
        a("s_waitcnt vmcnt(0)")
        arrive(4, 8, F_H, s_fp, "h0")
    a(f"s_cmp_ge_u32 s{s_bd}, 8")
    a("s_cbranch_scc1 L_allvalid")
    for b in range(8):
        a(f"s_cmp_ge_u32 s{s_bd}, {8-b}")
        a("s_cbranch_scc1 L_allvalid")
        for un in range(2):
            for i in range(8):
                a(f"v_mov_b32 v{vSu[un]+8*b+i}, 0xf149f2ca")
    a("L_allvalid:")
    order = [1, 2, 3, 4, 5, 6, 7, 0, 8]
    def vread(i):
        b = order[i // 2]
        r = vKF + 4 * (i % 8)
        a(f"ds_read_b128 v[{r}:{r+3}], v{v_va} offset:{b*2048 + (i % 2)*256}")
    for un in range(2):
        vS, MK = vSu[un], MKu[un]
        for i in range(8):
            a(f"v_cndmask_b32 v{vS+i}, v{vS+i}, v{vS+64+i}, s[{MK[i]}:{MK[i]+1}]")
    for un in range(2):
        vS = vSu[un]
        a(f"v_max3_f32 v{v_mu[un]}, v{vS+8}, v{vS+9}, v{vS+10}")
    for k in list(range(11, 63, 2)) + [63] + list(range(1, 8, 2)):
        for un in range(2):
            vS = vSu[un]
            k2 = 0 if k == 63 else k + 1
            a(f"v_max3_f32 v{v_mu[un]}, v{v_mu[un]}, v{vS+k}, v{vS+(k2 if k2 != 8 else 7)}")
    for un in range(2):
        a(f"v_mov_b32 v{u+un}, v{v_mu[un]}")
    for un in range(2):
        a(f"v_permlane32_swap_b32 v{v_mu[un]}, v{u+un}")
    for un in range(2):
        a(f"v_max_f32 v{v_mu[un]}, v{v_mu[un]}, v{u+un}")
    for un in range(2):
        a(f"v_mov_b32 v{u+un}, v{v_mu[un]}")
    for un in range(2):
        a(f"v_permlane16_swap_b32 v{v_mu[un]}, v{u+un}")
    for un in range(2):
        a(f"v_max_f32 v{v_mu[un]}, v{v_mu[un]}, v{u+un}")
    if OPT["arrA"] == 1:
        a("s_waitcnt vmcnt(0)")
        arrive(4, 8, F_H, s_fp, "h0")
    st("pubH")
    def softmax_block(b):
        for un in range(2):
            vS, MK, v_m = vSu[un], MKu[un], v_mu[un]
            for i in range(0, 8, 2):
                r = vS + 8 * b + i
                a(f"v_pk_add_f32 v[{r}:{r+1}], v[{r}:{r+1}], v[{v_m}:{v_m+1}] op_sel_hi:[1,0] neg_lo:[0,1] neg_hi:[0,1]")
            for i in range(8):
                a(f"v_exp_f32 v{vS+8*b+i}, v{vS+8*b+i}")
            if b == 0:
                for i in range(8):
                    a(f"v_cndmask_b32 v{vS+64+i}, 0, v{vS+i}, s[{MK[i]}:{MK[i]+1}]")
                for i in range(8):
                    a(f"v_cndmask_b32 v{vS+i}, v{vS+i}, 0, s[{MK[i]}:{MK[i]+1}]")
                for d in range(4):
                    a(f"v_cvt_pk_bf16_f32 v{vS+64+d}, v{vS+64+2*d}, v{vS+64+2*d+1}")
            for d in range(4):
                a(f"v_cvt_pk_bf16_f32 v{vS+8*b+d}, v{vS+8*b+2*d}, v{vS+8*b+2*d+1}")
    softmax_block(order[0])
    a(f"s_mov_b32 s{s_t2}, 0")
    a("L_vw:")
    a(f"ds_read_b32 v{v_td}, v{v_cnt}")
    a("s_waitcnt lgkmcnt(0)")
    a(f"v_readfirstlane_b32 s{s_t1}, v{v_td}")
    a(f"s_cmp_ge_u32 s{s_t1}, 4")
    a("s_cbranch_scc1 L_vw_done")
    a(f"s_add_u32 s{s_t2}, s{s_t2}, 1")
    a(f"s_cmp_gt_u32 s{s_t2}, 2000000")
    a("s_cbranch_scc1 L_vw_done")
    a("s_sleep 1")
    a("s_branch L_vw")
    a("L_vw_done:")
    st("Vok")
    for i in range(LA):
        vread(i)
    for bi in range(9):
        b = order[bi]
        if bi + 1 < 8:
            softmax_block(order[bi + 1])
        for t2 in range(2):
            i = 2 * bi + t2
            if i + LA < 18:
                vread(i + LA)
                a(f"s_waitcnt lgkmcnt({LA})")
            else:
                a(f"s_waitcnt lgkmcnt({17-i})")
            r = vKF + 4 * (i % 8)
            for un in range(2):
                o = vOq[un][t2]
                cs = "0" if bi == 0 else f"v[{o}:{o+3}]"
                a(f"v_mfma_f32_16x16x32_bf16 v[{o}:{o+3}], v[{r}:{r+3}], v[{vSu[un]+8*b}:{vSu[un]+8*b+3}], {cs}")
    a(f"v_cmp_gt_u32 s[{s_d0}:{s_d0+1}], 48, v{v_lane}")
    for un in range(2):
        x0, x1 = u + 2 * un, u + 2 * un + 1
        a(f"v_mov_b32 v{x0}, v{vOq[un][1]}")
        a(f"v_mov_b32 v{x1}, v{vOq[un][1]}")
    for un in range(2):
        x0, x1 = u + 2 * un, u + 2 * un + 1
        a(f"v_permlane32_swap_b32 v{x0}, v{x1}")
        a(f"v_mov_b32 v{x0}, v{x1}")
    for un in range(2):
        x0, x1 = u + 2 * un, u + 2 * un + 1
        a(f"v_permlane16_swap_b32 v{x0}, v{x1}")
        a(f"v_rcp_f32 v{x1}, v{x1}")
    for un in range(2):
        x1 = u + 2 * un + 1
        q = vQu[un]
        for t2 in range(2):
            for i in range(4):
                a(f"v_mul_f32 v{vOq[un][t2]+i}, v{vOq[un][t2]+i}, v{x1}")
        for d in range(4):
            o = vOq[un][d // 2] + 2 * (d % 2)
            a(f"v_cvt_pk_bf16_f32 v{q+d}, v{o}, v{o+1}")
        a(f"v_cndmask_b32 v{q+2}, 0, v{q+2}, s[{s_d0}:{s_d0+1}]")
        a(f"v_cndmask_b32 v{q+3}, 0, v{q+3}, s[{s_d0}:{s_d0+1}]")
        a(f"buffer_store_dwordx4 v[{q}:{q+3}], v{v_e1 if OPT['xns'] else v_qa}, s[{sWS}:{sWS+3}], s{s_ost} offen offset:{256*un} sc1")
    st("Ost")
    a("s_waitcnt vmcnt(0)")
    arrive(8, 4, F_O, s_fo, "o")
    st("pubO")
    a(f"s_cmp_ge_u32 s{s_nb}, 7")
    a("s_cbranch_scc1 L_end")
    a("s_branch L_final")

    a("L_stream:")
    st.n, st.names = st_save[0], list(st_save[1])
    vm = vmS
    lg = Cnt(15)
    vAcc = 64
    vFs = [204, 220]
    v_aw = [2, 3]
    tt = 32
    poll(vm, v_paV)
    wq = []
    for c in range(OPT["wpre2"]):
        wq += dmaW(c)
    for _ in range(OPT["wpre"]):
        emit_group(vm, wq.pop(0))
    stores = []
    k = 0
    for ins in EPI:
        if ins.startswith("buffer_") and OPT["stl"]:
            stores.append(ins); continue
        a(ins)
        if ins.startswith("buffer_"):
            vm.issue("st_h")
        k += 1
        if k % OPT["we"] == 0 and wq:
            emit_group(vm, wq.pop(0))
    st("E1")
    a(f"s_waitcnt vmcnt({vm.wait_n('poll')})")
    a("s_barrier")
    a(f"s_setprio {OPT['sprio']}")
    wait_flags(vm, v_paV, 0, 0x70000, allw=True)
    a(f"s_mul_i32 s{s_t0}, s{s_mt}, 6144")
    a(f"s_add_u32 s{s_t1}, s{s_kv}, s{s_t0}")
    for hh in range(2):
        a(f"s_add_u32 m0, s{s_t0}, {24576 + 3072*hh}")
        a(f"s_add_u32 s{s_t2}, s{s_t1}, {VF - 16384 + 3072*hh}")
        for j in range(3):
            a(f"buffer_load_dwordx4 v{v_st}, s[{sWS}:{sWS+3}], s{s_t2} offen offset:{1024*j} sc1 lds")
            vm.issue("v")
    for ins in stores:
        a(ins); vm.issue("st_h")
    while wq:
        emit_group(vm, wq.pop(0))
    a(f"s_cmp_lt_u32 s{s_nb}, 7")
    a("s_cbranch_scc1 L_stream2")
    a("s_waitcnt vmcnt(0)")
    a(f"s_mov_b64 exec, 1")
    a(f"ds_add_u32 v{v_cnt}, v{v_one1}")
    a(f"s_mov_b64 exec, -1")
    arrive(4, 8, F_H, s_fp, "h1")
    a("s_branch L_end")
    a("L_stream2:")
    wait_flags(vm, v_paV, 0, 0x7777, allw=True)
    LH = OPT["LH"]
    for c in range(LH):
        for g_ in dmaH(c):
            emit_group(vm, g_)
        if OPT["wpre2"] <= c < NR:
            for g_ in dmaW(c):
                emit_group(vm, g_)
        if c == OPT["arr"]:
            a(f"s_waitcnt vmcnt({vm.wait_n('v', 'st_h')})")
            a(f"s_mov_b64 exec, 1")
            a(f"ds_add_u32 v{v_cnt}, v{v_one1}")
            a(f"s_mov_b64 exec, -1")
            arrive(4, 8, F_H, s_fp, "h2")
        if c == 0:
            for x in [f"v_bfe_u32 v{tt}, v{v_lane}, 2, 2",
                      f"v_and_b32 v{tt+1}, 3, v{v_lane}",
                      f"v_lshrrev_b32 v{tt+2}, 1, v{tt+1}",
                      f"v_and_b32 v{tt+1}, 1, v{tt+1}",
                      f"v_lshl_or_b32 v{tt+2}, v{tt+1}, 1, v{tt+2}",
                      f"v_lshrrev_b32 v{tt+1}, 5, v{v_lane}",
                      f"v_lshl_add_u32 v{tt+1}, v{tt+1}, 3, v{tt}",
                      f"v_lshlrev_b32 v{tt+1}, 7, v{tt+1}",
                      f"v_lshrrev_b32 v{tt}, 1, v{tt}",
                      f"v_lshl_add_u32 v{tt+1}, v{tt}, 6, v{tt+1}",
                      f"v_bfe_u32 v{tt}, v{v_lane}, 4, 1",
                      f"v_lshl_add_u32 v{tt+1}, v{tt}, 5, v{tt+1}",
                      f"v_lshl_add_u32 v{tt+1}, v{tt+2}, 3, v{tt+1}",
                      f"v_add_u32 v{v_aw[0]}, s{s_m0w}, v{tt+1}",
                      f"v_xor_b32 v{v_aw[1]}, 64, v{v_aw[0]}"]:
                a(x)
    for c in range(max(LH, OPT["wpre2"]), NR):
        for g_ in dmaW(c):
            emit_group(vm, g_)
    st("Siss")
    def creads(c):
        base = vFs[c & 1]
        for i in range(2):
            for nt in range(2):
                f = base + 8 * i + 4 * nt
                o = (c % NR) * 4096 + 2048 * i
                a(f"ds_read_b64_tr_b16 v[{f}:{f+1}], v{v_aw[nt]} offset:{o}")
                a(f"ds_read_b64_tr_b16 v[{f+2}:{f+3}], v{v_aw[nt]} offset:{o + 512}")
                lg.issue(f"cr{c}"); lg.issue(f"cr{c}")
    a(f"s_waitcnt vmcnt({vm.wait_n('w0')})")
    creads(0)
    HL, OPOS = OPT["hl"], OPT["opos"]
    hs = {}
    for k in range(LH, NC):
        it = k - LH
        if k >= 6:
            it = max(it, HL)
        if k >= 14:
            it = max(it, OPOS)
        assert it <= k - 1
        hs.setdefault(it, []).append(k)
    for c in range(NC):
        if c == HL or c == OPOS:
            if c == HL: st("preHL")
            wait_flags(vm, v_paH, 16, allw=True)
        if c in CST:
            st(f"c{c}")
        G = []
        for k in hs.get(c, []):
            G += dmaH(k)
        if c + NR < NC:
            G += dmaW(c + NR)
        if c == HL - OPT["pl"] or c == OPOS - OPT["pl"]:
            if c == OPOS - OPT["pl"]:
                a(f"v_add_u32 v{v_paH}, {(F_O-F_H)*2048}, v{v_paH}")
            G.insert(0, ([f"buffer_load_dwordx2 v[{v_pf}:{v_pf+1}], v{v_paH}, s[{sWS}:{sWS+3}], 0 offen sc1"], "poll"))
        a(f"s_waitcnt vmcnt({vm.wait_n(f'h{c}')}) lgkmcnt({lg.wait_n(f'cr{c}')})")
        base = vFs[c & 1]
        hb = HREG[c % 6]
        k = 0
        for i in range(2):
            for nt in range(2):
                for mt in range(2):
                    f = base + 8 * i + 4 * nt
                    ac = vAcc + 16 * (2 * mt + nt)
                    q = hb + 8 * mt + 4 * i
                    cs = "0" if (c == 0 and i == 0) else f"v[{ac}:{ac+15}]"
                    a(f"v_mfma_f32_32x32x16_bf16 v[{ac}:{ac+15}], v[{f}:{f+3}], v[{q}:{q+3}], {cs}")
                    if k == 0 and c + 1 < NC:
                        a(f"s_waitcnt vmcnt({vm.wait_n(f'w{c+1}')})")
                        creads(c + 1)
                    elif G:
                        emit_group(vm, G.pop(0))
                    k += 1
        while G:
            emit_group(vm, G.pop(0))
    st("Cend")
    a(f"v_add_u32 v{tt}, s{s_m0w}, v{v_st}")
    for q in range(16):
        a(f"ds_write_b128 v{tt}, v[{vAcc+4*q}:{vAcc+4*q+3}] offset:{1024*q}")
    a("L_final:")
    tt = 32
    v_cxo, vXr, vR = 36, 240, 128
    a(f"v_and_b32 v{tt+1}, 0x13, v{v_lane}")
    a(f"v_bfe_u32 v{tt+2}, v{v_lane}, 2, 1")
    a(f"v_lshl_or_b32 v{tt+1}, v{tt+2}, 3, v{tt+1}")
    a(f"v_bfe_u32 v{tt+2}, v{v_lane}, 3, 1")
    a(f"v_lshl_or_b32 v{tt+1}, v{tt+2}, 2, v{tt+1}")
    a(f"v_mul_u32_u24 v{v_cxo}, 896, v{tt+1}")
    a(f"v_lshrrev_b32 v{tt+2}, 5, v{v_lane}")
    a(f"v_lshl_add_u32 v{v_cxo}, v{tt+2}, 4, v{v_cxo}")
    a(f"buffer_load_dwordx4 v[{vXr}:{vXr+3}], v{v_cxo}, s[{sX}:{sX+3}], s{s_xo} offen")
    a(f"s_lshl1_add_u32 s{s_t0}, s{s_nt}, s{s_kh}")
    a(f"s_lshl1_add_u32 s{s_t0}, s{s_t0}, s{s_g}")
    a(f"s_lshl_b32 s{s_t0}, s{s_t0}, 11")
    a(f"s_add_u32 s{s_t0}, s{s_t0}, {RB}")
    a(f"v_add_u32 v{tt+1}, s{s_t0}, v{v_st}")
    a(f"v_add_u32 v{tt+2}, {2*RING}, v{tt+1}")
    a("s_waitcnt vmcnt(0)")
    for d in range(4):
        a(f"v_lshlrev_b32 v{vR+32+2*d}, 16, v{vXr+d}")
        a(f"v_and_b32 v{vR+33+2*d}, 0xffff0000, v{vXr+d}")
    a("s_waitcnt lgkmcnt(0)")
    a("s_barrier")
    for k in range(4):
        for hh in range(2):
            a(f"ds_read_b128 v[{vR+8*k+4*hh}:{vR+8*k+4*hh+3}], v{tt+1+(k//2)} offset:{RING*(k%2) + 1024*hh}")
    for k in range(4):
        a(f"s_waitcnt lgkmcnt({2*(3-k)})")
        for i in range(0, 8, 2):
            a(f"v_pk_add_f32 v[{vR+32+i}:{vR+33+i}], v[{vR+32+i}:{vR+33+i}], v[{vR+8*k+i}:{vR+8*k+i+1}]")
    for d in range(4):
        a(f"v_cvt_pk_bf16_f32 v{vXr+d}, v{vR+32+2*d}, v{vR+33+2*d}")
    a(f"buffer_store_dwordx4 v[{vXr}:{vXr+3}], v{v_cxo}, s[{sO}:{sO+3}], s{s_xo} offen")
    tt = 20
    if STAMP:
        a("s_waitcnt vmcnt(0)")
        st("end", wait=True); st("rt", rt=True, wait=True)
        st.finish()
        if DBGST:
            a("s_load_dwordx2 s[4:5], s[82:83], 64")
            a(f"v_sub_u32 v{v_stamp}, v{v_stamp}, v{v_non}")
            a(f"v_lshlrev_b32 v{tt}, 2, v{v_lane}")
            a(f"v_add_u32 v{tt}, 8, v{tt}")
            a("s_waitcnt lgkmcnt(0)")
            A(srd(8, 4, 5, 64))
            a(f"s_lshl3_add_u32 s3, s2, s{s_w}")
            a(f"s_cmp_lg_u32 s3, {37*8+4}")
            a("s_cbranch_scc1 L_end")
            a(f"buffer_store_dword v{v_stamp}, v{tt}, s[8:11], 0 offen")
            a("s_branch L_end")
        a(f"s_lshl3_add_u32 s3, s2, s{s_w}")
        a("s_lshl_b32 s3, s3, 7")
        a(f"s_add_u32 s3, s3, {STAMP_OFF}")
        a(f"v_lshlrev_b32 v{tt}, 2, v{v_lane}")
        a(f"v_cmp_gt_u32 vcc, {st.n}, v{v_lane}")
        a("s_and_saveexec_b64 s[4:5], vcc")
        a(f"buffer_store_dword v{v_stamp}, v{tt}, s[{sWS}:{sWS+3}], s3 offen")
        a.raw("; STAMPS " + " ".join(st.names))
        assert st.n <= 32
    a("L_end:")
    a("s_endpgm")
    return a


HEADER = """; Fused persistent kernel: LN + QKV/gate/up GEMM -> sliding-window attention -> [H|O] @ [w_down; wo] + x
;   0 A_x, 8 A_wqkv, 16 A_wo, 24 B_x, 32 B_w_gate, 40 B_w_up, 48 B_w_down, 56 d_out, 64 d_debug, 72 d_ws
; @launch grid=(256,1,1) block=(512,1,1) lds=163840
.amdgcn_target "amdgcn-amd-amdhsa--gfx950"
"""

def build():
    a = gen()
    print("instrs", a.nins, "nops", a.nnop, file=sys.stderr)
    return HEADER + a.text() + kernel_desc(NAME, 256)

if __name__ == "__main__":
    path = sys.argv[1] if len(sys.argv) > 1 else "parallel_sum__sliding_block__geglu_ffn__prompt.s"
    for arg in sys.argv[2:]:
        if arg == "stamp":
            STAMP = True
        elif arg == "dbgst":
            STAMP = True; DBGST = True
        else:
            k, v = arg.split("=")
            assert k in OPT, k
            OPT[k] = int(v)
    open(path, "w").write(build())
```

```python
import sys, struct, math, copy, os
sys.path.insert(0, "dev")
from asmlib import Asm, kernel_header, kernel_desc

NAME = "parallel_sum__sliding_block__geglu_ffn__prompt_kernel"

def f2u(f):
    return struct.unpack("<I", struct.pack("<f", f))[0]

QF = 0
KF = 2 << 20
VF = 4 << 20
FL = 6 << 20
HF = 8 << 20
WS_BYTES = 268435456
NKS = 144
F_QK, F_H, F_O, F_V = 0, 1, 2, 3
OOB = 0x7FFFFF00

X_BYTES = 2048 * 896
WQKV_BYTES = 448 * 2688
WG_BYTES = 448 * 3584
WD_BYTES = 1792 * 896
WO_BYTES = 448 * 896

LOG2E = 1.4426950408889634
QSCALE = (28 ** -0.5) * LOG2E
GC1 = -2.0 * 0.7978845608028654 * LOG2E
GC2 = GC1 * 0.044715

STAMP = False
DBGST = False
DBGN = ['t0','setup','x00','lnend','B1','m28','m84','T','Sdone','BV','Ost','C0','Cend','end']
STAMP_OFF = 200 << 20
STM = [int(x) for x in os.environ.get('STM', '11,28,56,84,112').split(',')]
OPT = dict(NH=4, NW=6, rotc=1, b2=10, bgp=1, qkst=44, pubm=112, pk=1, w2s=60, l2n=0, mprio=1, rda=0, b2a=4, d2n=60, kqm=122, aend=138, per=6, osc=0, we=4, dcl=0, ctouch=1, ra=1, mf=1, gf=1, l2s=64, l2d=9,
           wfirst=4, wspread=16, pubo=2, p1=1, slp=4, hst0=104, hst1=122, qkgap=0, d7=0, d8=0, d9=0,
           c1e=3, xr=3, xf=9, qkn=1, hn=1, hgap=0, tq=7, lnm=1, dmae=7, xil=1, pubqk=5, kq=8, kqlead=12, vpos=5)


class Cnt:
    def __init__(self, cap):
        self.ops = []
        self.cap = cap
    def issue(self, tag):
        self.ops.append(tag)
    def wait_n(self, *tags):
        idx = max(i for i, t in enumerate(self.ops) if t in tags)
        n = len(self.ops) - 1 - idx
        return min(n, self.cap)
    def has(self, tag):
        return tag in self.ops

def VM():
    return Cnt(63)


class Stamps:
    def __init__(self, a, vreg, base=98):
        self.a = a; self.base = base; self.n = 0; self.names = []; self.vreg = vreg
    def _flush_prev(self):
        if self.n >= 1:
            k = self.n - 1
            self.a(f"v_writelane_b32 v{self.vreg}, s{self.base + 2*(k % 2)}, {k}")
    def __call__(self, name="", rt=False, wait=False):
        if not STAMP: return
        p = self.base + 2 * (self.n % 2)
        if DBGST and name not in DBGN: return
        self.a(f"{'s_memrealtime' if (rt or DBGST or os.environ.get('RTST')) else 's_memtime'} s[{p}:{p+1}]")
        if wait:
            self.a("s_waitcnt lgkmcnt(0)")
        self._flush_prev()
        self.n += 1
        self.names.append(name)
    def finish(self):
        self.a("s_waitcnt lgkmcnt(0)")
        self._flush_prev()


def srd(d, lo, hi, nbytes):
    return [f"s_mov_b32 s{d}, s{lo}", f"s_and_b32 s{d+1}, s{hi}, 0xffff",
            f"s_mov_b32 s{d+2}, {nbytes}", f"s_mov_b32 s{d+3}, 0x00020000"]

SLOT = 28672
XBASE = 49152


def gen():
    a = Asm()
    a.raw(kernel_header(NAME))
    def A(lst):
        for x in lst:
            a(x)
    NH, NW = OPT["NH"], OPT["NW"]
    sX, sWq, sWg, sWS, sWd, sWo, sO, sDbg = 36, 40, 44, 48, 52, 56, 60, 64
    s_w, s_tb, s_cb, s_g, s_mt = 68, 69, 70, 71, 72
    s_t0, s_t1, s_t2 = 74, 75, 76
    s_hst = 77
    s_n0 = 78
    s_q0, s_q3, s_v0, s_v3, s_g0, s_g3 = 4, 5, 6, 7, 8, 9
    s_m0, s_m3, s_scale, s_tg, s_qkst, s_vst = 10, 11, 12, 13, 14, 15
    s_wr = 3
    s_b1 = 73
    s_b2 = 0
    s_d0, s_d1 = 96, 97
    s_one = 16
    s_h, s_qb, s_fp, s_tch = 18, 19, 20, 21
    s_mq0, s_mq3 = 22, 23
    sTch = 24
    s_xr, s_xr1, s_tr, s_tqk = 80, 81, 82, 83
    s_kv, s_par, s_bd, s_ost = 84, 85, 86, 87
    s_tb64, s_nb, s_kh, s_cmt, s_nt = 88, 89, 90, 91, 92
    s_hb, s_hr, s_wb = 93, 94, 95
    s_wob, s_m0h, s_m0w, s_xo = 28, 29, 30, 31
    s_fo = 80
    MK = [24, 26, 16, 64, 32, 34, 40, 42]
    vX = 128
    ACC = [64, 96]
    vW = 48
    vT = 16
    v_lane, v_dq, v_dg, v_rdA, v_rdB, v_st, v_msk = 1, 2, 3, 4, 5, 6, 7
    v_bqk, v_bg0, v_bg1 = 9, 11, 12
    v_c1, v_c2, v_k1 = 8, 10, 14
    v_stk = 13
    v_stamp = 15
    v_xa = 32
    v_xw = 40
    v_xo = 44
    v_dv, v_dvh, v_bv0, v_bv1 = 40, 41, 42, 43
    v_tg, v_tq = 46, 47
    v_dw, v_d = 44, 45
    v_paH = 46
    v_paV = 47
    vQ = 240
    v_qa = 244
    v_one = 245
    v_e0, v_td = 246, 247
    v_non = 248
    v_e1, v_zero = 250, 251
    v_fa = 252
    v_pa = 253
    v_pf = 254
    t = vT

    st = Stamps(a, v_stamp)
    a("s_cmp_ge_u32 s2, 256")
    a("s_cbranch_scc1 L_end")
    st("rt", rt=True); st("t0", wait=True)
    if DBGST:
        a("s_mov_b64 s[82:83], s[0:1]")
    a("s_load_dwordx16 s[16:31], s[0:1], 0")
    a("s_load_dwordx4 s[32:35], s[0:1], 64")
    a(f"s_memrealtime s[{s_n0}:{s_n0+1}]")
    if OPT["ctouch"]:
        a(f"s_getpc_b64 s[{s_d0}:{s_d0+1}]")
        a(f"s_and_b32 s{s_t0}, s2, 0xf8")
        a(f"v_add_lshl_u32 v{t+10}, v0, s{s_t0}, 7")
        a(f"v_min_u32 v{t+10}, 26000, v{t+10}")
        a(f"v_cmp_gt_u32 vcc, 8, v0")
        a(f"s_and_saveexec_b64 s[{s_t0}:{s_t0+1}], vcc")
        a("s_cbranch_execz L_noct")
        a(f"global_load_dword v{v_td}, v{t+10}, s[{s_d0}:{s_d0+1}]")
        a("L_noct:")
        a(f"s_mov_b64 exec, -1")
    a(f"v_and_b32 v{v_lane}, 63, v0")
    a(f"v_lshrrev_b32 v{t}, 6, v0")
    a(f"v_readfirstlane_b32 s{s_w}, v{t}")
    a(f"s_and_b32 s{s_tb}, s2, 3")
    a(f"s_bfe_u32 s{s_t2}, s2, 0x20003")
    a(f"s_lshl2_add_u32 s{s_tb}, s{s_tb}, s{s_t2}")
    a(f"s_bfe_u32 s{s_cb}, s2, 0x10002")
    a(f"s_lshr_b32 s{s_t1}, s2, 5")
    a(f"s_lshl3_add_u32 s{s_cb}, s{s_cb}, s{s_t1}")
    a(f"s_lshr_b32 s{s_g}, s{s_w}, 2")
    a(f"s_and_b32 s{s_mt}, s{s_w}, 3")
    if OPT["we"] == 4:
        a(f"s_and_b32 s{s_t0}, s{s_cb}, 1")
        a(f"s_and_b32 s{s_t1}, s{s_cb}, 2")
        a(f"s_lshl2_add_u32 s{s_t0}, s{s_t1}, s{s_t0}")
    elif OPT["we"] == 2:
        a(f"s_and_b32 s{s_t0}, s{s_cb}, 1")
        a(f"s_and_b32 s{s_t1}, s{s_cb}, 6")
        a(f"s_lshl1_add_u32 s{s_t0}, s{s_t1}, s{s_t0}")
    else:
        a(f"s_and_b32 s{s_t0}, s{s_cb}, 7")
        a(f"s_lshl_b32 s{s_t0}, s{s_t0}, 1")
    a(f"s_lshl_b32 s{s_wr}, s{s_w}, 1")
    a(f"s_xor_b32 s{s_wr}, s{s_wr}, s{s_t0}")
    a(f"v_lshrrev_b32 v{t}, 3, v{v_lane}")
    a(f"v_and_b32 v{t+1}, 7, v{v_lane}")
    a(f"v_mul_u32_u24 v{v_xo}, 896, v{t}")
    a(f"v_lshl_add_u32 v{v_xo}, v{t+1}, 4, v{v_xo}")
    a(f"s_lshl4_add_u32 s{s_t0}, s{s_tb}, s{s_wr}")
    a(f"s_mul_i32 s{s_xr}, s{s_t0}, {8*896}")
    a(f"s_xor_b32 s{s_t0}, s{s_t0}, 1")
    a(f"s_mul_i32 s{s_xr1}, s{s_t0}, {8*896}")
    a(f"v_mov_b32 v{v_e1}, {OOB}")
    a("s_waitcnt lgkmcnt(0)")
    A(srd(sX, 16, 17, X_BYTES))
    vm = VM()
    def raw(e, i):
        return ACC[0] + 28 * e + 4 * i
    def xload(e, j, track=True):
        r = raw(e, j)
        a(f"buffer_load_dwordx4 v[{r}:{r+3}], v{v_xo}, s[{sX}:{sX+3}], s{s_xr1 if e else s_xr} offen offset:{128*j}")
        if track:
            vm.issue(f"x{e}{j}")
    def gtouch(sr, nl, per_wg8, vt, vmx=None):
        if per_wg8:
            a(f"s_lshl3_add_u32 s{s_t0}, s2, s{s_w}")
        else:
            a(f"s_lshl2_add_u32 s{s_t0}, s2, s{s_mt}")
        a(f"s_mul_i32 s{s_t0}, s{s_t0}, {nl}")
        a(f"v_min_u32 v{vt}, {nl-1}, v{v_lane}")
        a(f"v_add_lshl_u32 v{vt}, v{vt}, s{s_t0}, 7")
        a(f"s_mov_b64 exec, {(1 << nl) - 1}")
        a(f"buffer_load_dword v{v_td}, v{vt}, s[{sr}:{sr+3}], 0 offen")
        a(f"s_mov_b64 exec, -1")
        if vmx is not None:
            vmx.issue("t")
    XF = OPT["xf"]
    xorder = [(0, j) for j in range(7)] + [(1, j) for j in range(7)]
    A(srd(sWq, 18, 19, WQKV_BYTES))
    a(f"s_cmp_ge_u32 s{s_w}, {OPT['we']}")
    a("s_cbranch_scc1 L_x0skip0")
    for k, (e, j) in enumerate(xorder[:XF]):
        xload(e, j, False)
    a("L_x0skip0:")
    a(f"s_cmp_lg_u32 s{s_g}, 0")
    a("s_cbranch_scc1 L_x0skip")
    gtouch(sWq, 10, False, t + 10)
    a("L_x0skip:")
    a(f"s_cmp_eq_u32 s{s_g}, 0")
    a(f"s_cselect_b32 s{sWg}, s24, s26")
    a(f"s_cselect_b32 s{sWg+1}, s25, s27")
    a(f"s_and_b32 s{sWg+1}, s{sWg+1}, 0xffff")
    a(f"s_mov_b32 s{sWg+2}, {WG_BYTES}")
    a(f"s_mov_b32 s{sWg+3}, 0x00020000")
    A(srd(sDbg, 32, 33, 256))
    a(f"s_or_b32 s{s_n0}, s{s_n0}, 1")
    a(f"v_mov_b32 v{v_non}, s{s_n0}")
    a(f"v_mov_b32 v{v_non+1}, s{s_n0+1}")
    a(f"v_cmp_eq_u32 s[{s_d0}:{s_d0+1}], 0, v0")
    a(f"v_cndmask_b32 v{v_fa}, v{v_e1}, 0, s[{s_d0}:{s_d0+1}]")
    a(f"s_cmp_eq_u32 s2, 0")
    a(f"s_cselect_b64 s[{s_d0}:{s_d0+1}], s[{s_d0}:{s_d0+1}], 0")
    a(f"v_cndmask_b32 v{v_e0}, v{v_e1}, 0, s[{s_d0}:{s_d0+1}]")
    a(f"v_mov_b32 v{v_zero}, 0")
    a(f"v_bfe_u32 v{t+2}, v{v_lane}, 4, 1")
    a(f"v_lshlrev_b32 v{t+3}, 2, v{t+2}")
    a(f"v_xor_b32 v{t+3}, v{t+3}, v{t+1}")
    a(f"v_mul_u32_u24 v{v_dq}, 2688, v{t}")
    a(f"v_lshl_add_u32 v{v_dq}, v{t+3}, 4, v{v_dq}")
    a(f"v_lshlrev_b32 v{t+3}, 1, v{t+2}")
    a(f"v_xor_b32 v{t+3}, v{t+3}, v{t+1}")
    a(f"s_lshl_b32 s{s_t1}, s{s_g}, 2")
    a(f"v_xor_b32 v{t+3}, s{s_t1}, v{t+3}")
    a(f"v_mul_u32_u24 v{v_dg}, 3584, v{t}")
    a(f"v_lshl_add_u32 v{v_dg}, v{t+3}, 4, v{v_dg}")
    a(f"s_lshl_b32 s{s_t0}, s{s_wr}, 3")
    for e in range(2):
        a(f"v_add_u32 v{t+2}, s{s_t0}, v{t}")
        if e:
            a(f"v_xor_b32 v{t+2}, 8, v{t+2}")
        a(f"v_bfe_u32 v{t+3}, v{t+2}, 1, 3")
        a(f"v_xor_b32 v{t+3}, v{t+3}, v{t+1}")
        a(f"v_lshlrev_b32 v{t+2}, 7, v{t+2}")
        a(f"v_lshl_add_u32 v{t+2}, v{t+3}, 4, v{t+2}")
        a(f"v_add_u32 v{v_xw+e}, {XBASE}, v{t+2}")
        a(f"v_add_u32 v{v_xw+2+e}, {XBASE+65536}, v{t+2}")
    a(f"s_mul_i32 s{s_g0}, s{s_mt}, {8*3584}")
    a(f"s_mul_i32 s{s_g3}, s{s_mt}, {4*3584}")
    a(f"s_add_u32 s{s_g3}, s{s_g3}, {96*3584}")
    a(f"s_mul_i32 s{s_q0}, s{s_w}, {8*2688}")
    a(f"s_mul_i32 s{s_v0}, s{s_w}, {4*2688}")
    a(f"s_add_u32 s{s_q3}, s{s_v0}, {128*2688}")
    a(f"s_lshr_b32 s{s_t0}, s{s_cb}, 2")
    a(f"s_mul_i32 s{s_t1}, s{s_t0}, 224")
    a(f"s_add_u32 s{s_t1}, s{s_t1}, {56*32}")
    a(f"s_mul_i32 s{s_v3}, s{s_w}, {2*2688}")
    a(f"s_add_u32 s{s_v0}, s{s_v0}, s{s_t1}")
    a(f"s_add_u32 s{s_v3}, s{s_v3}, s{s_t1}")
    a(f"s_add_u32 s{s_v3}, s{s_v3}, {96*2688}")
    a(f"s_mul_i32 s{s_t1}, s{s_cb}, 112")
    a(f"s_add_u32 s{s_q0}, s{s_q0}, s{s_t1}")
    a(f"s_add_u32 s{s_q3}, s{s_q3}, s{s_t1}")
    a(f"s_mul_i32 s{s_t1}, s{s_t0}, 448")
    a(f"s_and_b32 s{s_t0}, s{s_cb}, 3")
    a(f"s_lshl_b32 s{s_hst}, s{s_t0}, 7")
    a(f"s_add_u32 s{s_t1}, s{s_t1}, s{s_hst}")
    a(f"s_lshl1_add_u32 s{s_g0}, s{s_t1}, s{s_g0}")
    a(f"s_lshl1_add_u32 s{s_g3}, s{s_t1}, s{s_g3}")
    a(f"s_lshl_b32 s{s_hst}, s{s_t1}, 6")
    a(f"s_mul_i32 s{s_m0}, s{s_g}, {112*128}")
    a(f"s_lshl_b32 s{s_t1}, s{s_mt}, 9")
    a(f"s_add_u32 s{s_m3}, s{s_m0}, s{s_t1}")
    a(f"s_add_u32 s{s_m3}, s{s_m3}, {96*128}")
    a(f"s_lshl1_add_u32 s{s_m0}, s{s_t1}, s{s_m0}")
    a(f"s_lshl_b32 s{s_mq0}, s{s_w}, 10")
    a(f"s_lshl_b32 s{s_mq3}, s{s_w}, 9")
    a(f"s_add_u32 s{s_mq3}, s{s_mq3}, {128*128}")
    a(f"v_bfe_u32 v{t}, v{v_lane}, 2, 2")
    a(f"v_and_b32 v{t+1}, 3, v{v_lane}")
    a(f"v_bfe_u32 v{t+2}, v{v_lane}, 4, 1")
    a(f"v_lshrrev_b32 v{t+3}, 5, v{v_lane}")
    a(f"v_lshrrev_b32 v{t+4}, 1, v{t+1}")
    a(f"v_and_b32 v{t+5}, 1, v{t+1}")
    a(f"v_lshl_or_b32 v{t+4}, v{t+5}, 1, v{t+4}")
    a(f"v_lshl_add_u32 v{t+5}, v{t+3}, 3, v{t}")
    a(f"v_lshlrev_b32 v{t+5}, 7, v{t+5}")
    a(f"v_lshrrev_b32 v{t+6}, 1, v{t}")
    a(f"s_mul_i32 s{s_t0}, s{s_g}, 56")
    a(f"v_lshlrev_b32 v{t+7}, 5, v{t+2}")
    a(f"v_lshl_add_u32 v{t+7}, v{t+4}, 3, v{t+7}")
    a(f"v_add_u32 v{t+7}, s{s_t0}, v{t+7}")
    a(f"v_lshlrev_b32 v{t+8}, 6, v{t+6}")
    a(f"v_xor_b32 v{t+7}, v{t+7}, v{t+8}")
    a(f"v_add_u32 v{v_bqk}, v{t+7}, v{t+5}")
    a(f"v_lshl_or_b32 v{t+7}, v{t+2}, 1, v{t+6}")
    a(f"s_lshl_b32 s{s_t0}, s{s_g}, 1")
    a(f"v_xor_b32 v{t+7}, s{s_t0}, v{t+7}")
    a(f"v_mul_u32_u24 v{t+8}, 14336, v{t+2}")
    a(f"v_add_u32 v{t+8}, v{t+8}, v{t+5}")
    a(f"v_lshl_add_u32 v{t+8}, v{t+4}, 3, v{t+8}")
    a(f"v_lshl_add_u32 v{v_bg0}, v{t+7}, 5, v{t+8}")
    a(f"v_xor_b32 v{v_bg1}, 32, v{v_bg0}")
    a(f"v_and_b32 v{t}, 0x13, v{v_lane}")
    a(f"v_bfe_u32 v{t+1}, v{v_lane}, 2, 1")
    a(f"v_lshl_or_b32 v{t}, v{t+1}, 3, v{t}")
    a(f"v_bfe_u32 v{t+1}, v{v_lane}, 3, 1")
    a(f"v_lshl_or_b32 v{t}, v{t+1}, 2, v{t}")
    a(f"s_lshl_b32 s{s_t0}, s{s_mt}, 5")
    a(f"v_add_u32 v{t}, s{s_t0}, v{t}")
    a(f"v_bfe_u32 v{t+1}, v{t}, 1, 3")
    a(f"v_xor_b32 v{t+1}, v{t+1}, v{t+3}")
    a(f"v_lshlrev_b32 v{t}, 7, v{t}")
    a(f"v_lshl_add_u32 v{t}, v{t+1}, 4, v{t}")
    a(f"v_add_u32 v{v_xa}, {XBASE}, v{t}")
    for s2 in range(1, 4):
        a(f"v_xor_b32 v{v_xa+s2}, {32*s2}, v{v_xa}")
    for s2 in range(4):
        a(f"v_add_u32 v{v_xa+4+s2}, 65536, v{v_xa+s2}")

    def dmaA(chunk, slot, tag):
        kind, idx, part = chunk
        G = []
        for jj in range(4):
            g = []
            rowb = 128
            m3x = 0
            if kind == "qk":
                b0, b3 = s_q0, s_q3
                stride = 2688
                off = 224 * part * stride
                sr, vo = sWq, v_dq
                rows = [0, 64, None, 160][jj]
                m0r, m3r = s_mq0, s_mq3
            elif kind == "v":
                b0, b3 = s_v0, s_v3
                stride = 2688
                off = 112 * part * stride
                rows = [0, 32, 64, None][jj]
                sr, vo = sWq, (v_dvh if rows is None else v_dv)
                m0r, m3r = s_mq0, s_mq3
                rowb = 256
                m3x = 8192
            else:
                b0, b3 = s_g0, s_g3
                stride = 3584
                off = 112 * part * stride + 128 * idx
                sr, vo = sWg, v_dg
                rows = [0, 32, 64, None][jj]
                m0r, m3r = s_m0, s_m3
            half = rows is None
            if not half:
                g.append(f"s_add_u32 m0, s{m0r}, {slot*SLOT + rows*rowb}")
                g.append(f"s_add_u32 s{s_b1}, s{b0}, {off + rows*stride}")
            else:
                g.append(f"s_add_u32 m0, s{m3r}, {slot*SLOT + m3x}")
                g.append(f"s_add_u32 s{s_b1}, s{b3}, {off}")
                g.append("s_mov_b32 exec_hi, 0")
            g.append(f"buffer_load_dwordx4 v{vo}, s[{sr}:{sr+3}], s{s_b1} offen lds")
            if half:
                g.append("s_mov_b32 exec_hi, -1")
            G.append((g, tag))
        return G

    def emit_group(vm, grp):
        g, tag = grp
        for ins in g:
            a(ins)
            if ins.startswith("buffer_"):
                vm.issue(tag)

    seq1 = [("qk", 0, 0), ("qk", 0, 1)] + [("gu", 0, p) for p in range(4)] + [("gu", 1, p) for p in range(4)]
    seq2 = [("qk", 0, 0), ("qk", 0, 1)] + [("v", 0, p) for p in range(4)] + [("gu", 0, p) for p in range(4)]
    c1groups = dmaA(seq1[1], 1, "c1")
    early = dmaA(seq1[0], 0, "c0") + c1groups[:OPT["c1e"]]
    c1b = (c1groups[3][0], "c1b")
    def deferred(is2):
        D = []
        S = D.append
        tt = vT
        d0, d1 = s_d0, s_d1
        if is2:
            S(f"v_lshrrev_b32 v{tt}, 4, v{v_lane}")
            S(f"v_and_b32 v{tt+1}, 15, v{v_lane}")
            S(f"v_mul_u32_u24 v{tt+2}, 2688, v{tt}")
            S(f"v_lshlrev_b32 v{tt+3}, 2, v{tt}")
            S(f"v_xor_b32 v{tt+3}, v{tt+3}, v{tt+1}")
            S(f"v_lshl_add_u32 v{v_dv}, v{tt+3}, 4, v{tt+2}")
            S(f"s_and_b32 s{d0}, s{s_w}, 1")
            S(f"s_lshl_b32 s{d0}, s{d0}, 7")
            S(f"v_lshlrev_b32 v{tt+3}, 4, v{tt+3}")
            S(f"v_xor_b32 v{tt+3}, s{d0}, v{tt+3}")
            S(f"v_add_u32 v{v_dvh}, v{tt+3}, v{tt+2}")
            S(f"v_bfe_u32 v{tt}, v{v_lane}, 2, 2")
            S(f"v_and_b32 v{tt+1}, 3, v{v_lane}")
            S(f"v_bfe_u32 v{tt+2}, v{v_lane}, 4, 1")
            S(f"v_lshrrev_b32 v{tt+3}, 5, v{v_lane}")
            S(f"v_lshl_add_u32 v{tt+3}, v{tt+3}, 3, v{tt}")
            S(f"v_lshlrev_b32 v{tt+3}, 8, v{tt+3}")
            S(f"v_lshlrev_b32 v{tt+1}, 4, v{tt+1}")
            S(f"v_lshl_add_u32 v{tt+1}, v{tt+2}, 3, v{tt+1}")
            S(f"s_mul_i32 s{d0}, s{s_g}, 112")
            S(f"v_add_u32 v{tt+1}, s{d0}, v{tt+1}")
            S(f"v_lshlrev_b32 v{tt}, 6, v{tt}")
            S(f"v_xor_b32 v{tt+2}, v{tt+1}, v{tt}")
            S(f"v_add_u32 v{v_bv0}, v{tt+2}, v{tt+3}")
            S(f"v_add_u32 v{tt+1}, 56, v{tt+1}")
            S(f"v_xor_b32 v{tt+2}, v{tt+1}, v{tt}")
            S(f"v_add_u32 v{v_bv1}, v{tt+2}, v{tt+3}")
        return D

    def deferred_common():
        D = []
        S = D.append
        tt = vT
        d0, d1 = s_d0, s_d1
        is2 = True
        D += srd(sWS, 34, 35, WS_BYTES) + srd(sWd, 28, 29, WD_BYTES) + srd(sWo, 20, 21, WO_BYTES) + srd(sO, 30, 31, X_BYTES)
        S(f"s_cmp_lt_u32 s{s_cb}, 8\ns_cselect_b32 s{s_scale}, 0x{f2u(QSCALE):08x}, 1.0")
        S(f"s_lshl1_add_u32 s{s_qkst}, s{s_cb}, s{s_g}")
        S(f"s_lshl_b32 s{s_qkst}, s{s_qkst}, 17")
        S(f"s_lshl2_add_u32 s{d0}, s{s_tb}, s{s_mt}")
        S(f"s_mul_i32 s{d1}, s{d0}, {NKS*1024}")
        S(f"s_add_u32 s{s_hst}, s{s_hst}, s{d1}")
        S(f"s_lshl_b32 s{d1}, s{s_g}, 11")
        S(f"s_add_u32 s{s_hst}, s{s_hst}, s{d1}")
        S(f"s_add_u32 s{s_hst}, s{s_hst}, {HF}")
        S(f"s_lshl_b32 s{d0}, s{d0}, 11")
        S(f"s_add_u32 s{s_qkst}, s{s_qkst}, s{d0}")
        if is2:
            S(f"s_and_b32 s{s_vst}, s{s_cb}, 12")
            S(f"s_lshl1_add_u32 s{s_vst}, s{s_g}, s{s_vst}")
            S(f"s_lshl_b32 s{s_vst}, s{s_vst}, 17")
            S(f"s_add_u32 s{s_vst}, s{s_vst}, s{d0}")
            S(f"s_add_u32 s{s_vst}, s{s_vst}, {VF}")
            S(f"v_and_b32 v{tt}, 31, v{v_lane}")
            S(f"v_cmp_eq_u32 s[{s_one}:{s_one+1}], 28, v{tt}")
            S(f"v_mov_b32 v{v_one}, 0x3f803f80")
        S(f"s_and_b32 s{s_wr}, s{s_tb}, 3")
        S(f"v_mov_b32 v{v_c1}, 0x{f2u(GC1):08x}")
        S(f"v_mov_b32 v{v_c2}, 0x{f2u(GC2):08x}")
        S(f"v_mov_b32 v{v_k1}, 1.0")
        S(f"v_lshlrev_b32 v{v_st}, 4, v{v_lane}")
        S(f"v_bfe_u32 v{tt}, v{v_lane}, 3, 1")
        S(f"v_lshlrev_b32 v{tt}, 4, v{tt}")
        S(f"v_bfe_u32 v{tt+1}, v{v_lane}, 4, 1")
        S(f"v_lshl_or_b32 v{tt}, v{tt+1}, 3, v{tt}")
        S(f"v_and_b32 v{tt+1}, 0x27, v{v_lane}")
        S(f"v_or_b32 v{tt}, v{tt}, v{tt+1}")
        S(f"v_lshlrev_b32 v{v_stk}, 4, v{tt}")
        S(f"s_cmp_lt_u32 s{s_cb}, 8\ns_cselect_b64 s[{d0}:{d0+1}], -1, 0")
        S(f"v_cndmask_b32 v{v_stk}, v{v_stk}, v{v_st}, s[{d0}:{d0+1}]")
        S(f"v_cmp_gt_u32 s[{d0}:{d0+1}], 32, v{v_lane}")
        S(f"v_cndmask_b32 v{v_msk}, 0, -1, s[{d0}:{d0+1}]")
        return D

    if not OPT["dcl"]:
        for x in deferred_common():
            a(x)
    st("setup")

    F = vX
    a(f"s_cmp_lt_u32 s{s_w}, {OPT['we']}")
    a("s_cbranch_scc1 L_x0skip2")
    for (e, j) in xorder[:XF]:
        xload(e, j, False)
    a("L_x0skip2:")
    for (e, j) in xorder[:XF]:
        vm.issue(f"x{e}{j}")
    if OPT["dcl"]:
        for x in deferred_common():
            a(x)
    xrest = list(xorder[XF:])
    if not OPT["xil"]:
        while xrest:
            xload(*xrest.pop(0))
    def qdma(i0_, i1_, lab):
        a(f"s_cmp_lg_u32 s{s_g}, 0")
        a(f"s_cbranch_scc1 L_nodma{lab}")
        for i in range(i0_, i1_):
            a(f"s_add_u32 m0, s{s_mq0}, {32*i*128}")
            a(f"s_add_u32 s{s_b1}, s{s_q0}, {32*i*2688}")
            a(f"buffer_load_dwordx4 v{v_dq}, s[{sWq}:{sWq+3}], s{s_b1} offen lds")
            vm.issue("c0" if i < 7 else "c1")
        a(f"L_nodma{lab}:")
    if OPT["lnm"]:
        MF = "v_mfma_f32_4x4x4_16b_bf16"
        vOnes, vM = t, t + 2
        vAh, vAl, vB = t + 4, t + 6, t + 8
        S_, Q_, R_, U_ = t + 12, t + 13, t + 14, t + 15
        SA = [F, F + 4]
        QA = [F + 8, F + 12]
        D0 = F + 16
        sJ = [4, 6, 8]
        a(f"v_mov_b32 v{vOnes}, 0x3f803f80")
        a(f"v_mov_b32 v{vOnes+1}, 0x3f803f80")
        a(f"v_and_b32 v{U_}, 3, v{v_lane}")
        a(f"v_and_b32 v{R_}, 1, v{v_lane}")
        a(f"v_lshlrev_b32 v{R_}, 4, v{R_}")
        a(f"v_mov_b32 v{S_}, 0xffff")
        a(f"v_lshlrev_b32 v{S_}, v{R_}, v{S_}")
        a(f"v_cmp_gt_u32 s[{s_kv}:{s_kv+1}], 2, v{U_}")
        a(f"v_cmp_eq_u32 s[{s_bd}:{s_bd+1}], 0, v{R_}")
        a(f"v_cndmask_b32 v{vM}, 0, v{S_}, s[{s_kv}:{s_kv+1}]")
        a(f"v_cndmask_b32 v{vM+1}, v{S_}, 0, s[{s_kv}:{s_kv+1}]")
        Q4 = lambda r: f"v[{r}:{r+3}]"
        P2 = lambda r: f"v[{r}:{r+1}]"
        for e in range(2):
            for j in range(7):
                if xrest:
                    xload(*xrest.pop(0))
                a(f"s_waitcnt vmcnt({vm.wait_n(f'x{e}{j}')})")
                if (e, j) in ((0, 0), (1, 6)):
                    st(f"x{e}{j}")
                r = raw(e, j)
                for h2 in range(2):
                    cs = "0" if j == 0 else Q4(SA[h2])
                    a(f"{MF} {Q4(SA[h2])}, {P2(vOnes)}, {P2(r+2*h2)}, {cs}")
                    cq = "0" if j == 0 else Q4(QA[h2])
                    a(f"{MF} {Q4(QA[h2])}, {P2(r+2*h2)}, {P2(r+2*h2)}, {cq}")
            if e == 1 and OPT["dmae"]:
                qdma(0, OPT["dmae"], "a")
            a(f"v_add_f32 v{S_}, v{SA[0]}, v{SA[1]}")
            for k in range(0, 4, 2):
                a(f"v_pk_add_f32 {P2(QA[0]+k)}, {P2(QA[0]+k)}, {P2(QA[1]+k)}")
            a(f"v_cndmask_b32 v{QA[0]}, v{QA[0]+1}, v{QA[0]}, s[{s_bd}:{s_bd+1}]")
            a(f"v_cndmask_b32 v{QA[0]+2}, v{QA[0]+3}, v{QA[0]+2}, s[{s_bd}:{s_bd+1}]")
            a(f"v_cndmask_b32 v{Q_}, v{QA[0]+2}, v{QA[0]}, s[{s_kv}:{s_kv+1}]")
            for pat in ("quad_perm:[1,0,3,2]", "quad_perm:[2,3,0,1]", "row_half_mirror"):
                for r in (S_, Q_):
                    a(f"v_add_f32_dpp v{r}, v{r}, v{r} {pat} row_mask:0xf bank_mask:0xf")
            a(f"v_mul_f32 v{S_}, 0x{f2u(1.0/448):08x}, v{S_}")
            a(f"v_mul_f32 v{Q_}, 0x{f2u(1.0/448):08x}, v{Q_}")
            a(f"v_fma_f32 v{Q_}, -v{S_}, v{S_}, v{Q_}")
            a(f"v_max_f32 v{Q_}, 0, v{Q_}")
            a(f"v_add_f32 v{Q_}, 0x{f2u(1e-5):08x}, v{Q_}")
            a(f"v_rsq_f32 v{R_}, v{Q_}")
            a(f"v_cvt_pk_bf16_f32 v{U_}, v{R_}, v{R_}")
            a(f"v_mul_f32 v{vB}, -v{S_}, v{R_}")
            a(f"v_and_b32 v{Q_}, 0xffff0000, v{U_}")
            a(f"v_and_b32 v{vAh}, v{U_}, v{vM}")
            a(f"v_and_b32 v{vAh+1}, v{U_}, v{vM+1}")
            a(f"v_sub_f32 v{Q_}, v{R_}, v{Q_}")
            a(f"v_cvt_pk_bf16_f32 v{U_}, v{Q_}, v{Q_}")
            for k in range(1, 4):
                a(f"v_mov_b32 v{vB+k}, v{vB}")
            a(f"v_and_b32 v{vAl}, v{U_}, v{vM}")
            a(f"v_and_b32 v{vAl+1}, v{U_}, v{vM+1}")
            def hi(j, h2):
                r = raw(e, j); d = D0 + 8 * (j % 4)
                return f"{MF} {Q4(d+4*h2)}, {P2(vAh)}, {P2(r+2*h2)}, {Q4(vB)}"
            def lo(j, h2):
                r = raw(e, j); d = D0 + 8 * (j % 4)
                return f"{MF} {Q4(d+4*h2)}, {P2(vAl)}, {P2(r+2*h2)}, {Q4(d+4*h2)}"
            def cv(j, k):
                r = raw(e, j); d = D0 + 8 * (j % 4)
                return f"v_cvt_pk_bf16_f32 v{r+k}, v{d+2*k}, v{d+2*k+1}"
            for j in range(-3, 7):
                mf = []
                if 0 <= j + 3 < 7:
                    mf += [hi(j + 3, 0), hi(j + 3, 1)]
                if 0 <= j + 2 < 7:
                    mf += [lo(j + 2, 0), lo(j + 2, 1)]
                for k in range(4):
                    if k < len(mf):
                        a(mf[k])
                    if j >= 0:
                        a(cv(j, k))
                if j >= 0:
                    r = raw(e, j)
                    a(f"ds_write_b128 v{v_xw + e + (2 if j >= 4 else 0)}, v[{r}:{r+3}] offset:{(j % 4)*16384}")
    else:
        S_, Q_, R_ = t, t + 2, t + 4
        for e in range(2):
            for j in range(7):
                if xrest:
                    xload(*xrest.pop(0))
                a(f"s_waitcnt vmcnt({vm.wait_n(f'x{e}{j}')})")
                if (e, j) in ((0, 0), (1, 6)):
                    st(f"x{e}{j}")
                for d in range(4):
                    r = raw(e, j) + d
                    f = F + 8 * j + 2 * d
                    a(f"v_lshlrev_b32 v{f}, 16, v{r}")
                    a(f"v_and_b32 v{f+1}, 0xffff0000, v{r}")
                for d in range(4):
                    f = F + 8 * j + 2 * d
                    if j == 0 and d == 0:
                        a(f"v_pk_mul_f32 v[{Q_}:{Q_+1}], v[{f}:{f+1}], v[{f}:{f+1}]")
                    elif j == 0 and d == 1:
                        a(f"v_pk_add_f32 v[{S_}:{S_+1}], v[{f-2}:{f-1}], v[{f}:{f+1}]")
                        a(f"v_pk_fma_f32 v[{Q_}:{Q_+1}], v[{f}:{f+1}], v[{f}:{f+1}], v[{Q_}:{Q_+1}]")
                    else:
                        a(f"v_pk_add_f32 v[{S_}:{S_+1}], v[{S_}:{S_+1}], v[{f}:{f+1}]")
                        a(f"v_pk_fma_f32 v[{Q_}:{Q_+1}], v[{f}:{f+1}], v[{f}:{f+1}], v[{Q_}:{Q_+1}]")
            if e == 1 and OPT["dmae"]:
                qdma(0, OPT["dmae"], "a")
            for r in (S_, Q_):
                a(f"v_add_f32 v{r}, v{r}, v{r+1}")
            for pat in ("quad_perm:[1,0,3,2]", "quad_perm:[2,3,0,1]", "row_half_mirror"):
                for r in (S_, Q_):
                    a(f"v_add_f32_dpp v{r}, v{r}, v{r} {pat} row_mask:0xf bank_mask:0xf")
            a(f"v_mul_f32 v{S_}, 0x{f2u(1.0/448):08x}, v{S_}")
            a(f"v_mul_f32 v{Q_}, 0x{f2u(1.0/448):08x}, v{Q_}")
            a(f"v_fma_f32 v{Q_}, -v{S_}, v{S_}, v{Q_}")
            a(f"v_max_f32 v{Q_}, 0, v{Q_}")
            a(f"v_add_f32 v{Q_}, 0x{f2u(1e-5):08x}, v{Q_}")
            a(f"v_rsq_f32 v{R_}, v{Q_}")
            a(f"v_mul_f32 v{R_+2}, -v{S_}, v{R_}")
            for j in range(7):
                for d in range(4):
                    f = F + 8 * j + 2 * d
                    a(f"v_pk_fma_f32 v[{f}:{f+1}], v[{f}:{f+1}], v[{R_}:{R_+1}], v[{R_+2}:{R_+3}] op_sel_hi:[1,0,0]")
                for d in range(4):
                    f = F + 8 * j + 2 * d
                    a(f"v_cvt_pk_bf16_f32 v{raw(e, j)+d}, v{f}, v{f+1}")
                r = raw(e, j)
                a(f"ds_write_b128 v{v_xw + e + (2 if j >= 4 else 0)}, v[{r}:{r+3}] offset:{(j % 4)*16384}")
    st("lnend")
    qdma(OPT["dmae"], 12, "b")
    gtouch(sWg, 13, False, t + 10, vm)
    a(f"buffer_store_dwordx2 v[{v_non}:{v_non+1}], v{v_e0}, s[{sDbg}:{sDbg+3}], 0 offen sc1")
    vm.issue("t")
    a(f"s_waitcnt vmcnt({vm.wait_n('c0')}) lgkmcnt(0)")
    a("s_barrier")
    st("B1")
    if OPT["mprio"]:
        a(f"s_cmp_eq_u32 s{s_g}, 0")
        a("s_cbranch_scc1 L_noprio")
        a("s_setprio 1")
        a("L_noprio:")
    a(f"s_and_b32 s{s_t0}, s{s_cb}, 3")
    a(f"s_cmp_eq_u32 s{s_t0}, 3")
    a("s_cbranch_scc1 L_type2")

    def deferred2():
        D = []
        S = D.append
        tt = vT + 8
        d0, d1 = s_d0, s_d1
        S(f"s_and_b32 s{d0}, s2, 7")
        S(f"s_lshr_b32 s{d1}, s2, 7")
        S(f"s_lshl1_add_u32 s{s_h}, s{d0}, s{d1}")
        S(f"s_bfe_u32 s{s_qb}, s2, 0x40003")
        S(f"s_bfe_u32 s{d1}, s2, 0x20003")
        S(f"s_lshl2_add_u32 s{s_tb64}, s{d0}, s{d1}")
        S(f"s_lshr_b32 s{s_nb}, s2, 5")
        S(f"s_lshr_b32 s{d0}, s{s_h}, 1")
        S(f"s_or_b32 s{d1}, s{s_h}, 3")
        S(f"v_min_u32 v{tt}, 1, v{v_lane}")
        S(f"v_sub_u32 v{tt+1}, v{v_lane}, v{tt}")
        S(f"v_sub_u32 v{tt+1}, s{s_qb}, v{tt+1}")
        S(f"v_max_i32 v{tt+1}, 0, v{tt+1}")
        S(f"v_lshl_add_u32 v{tt}, v{tt}, 3, s{d0}")
        S(f"v_lshl_add_u32 v{tt}, v{tt+1}, 4, v{tt}")
        S(f"v_lshlrev_b32 v{tt}, 3, v{tt}")
        S(f"v_add_u32 v{tt}, {FL + F_QK*2048}, v{tt}")
        S(f"v_sub_u32 v{tt+1}, s{s_qb}, v{v_lane}")
        S(f"v_max_i32 v{tt+1}, 0, v{tt+1}")
        S(f"v_lshl_add_u32 v{tt+1}, v{tt+1}, 4, s{d1}")
        S(f"v_lshlrev_b32 v{tt+1}, 3, v{tt+1}")
        S(f"v_add_u32 v{tt+1}, {FL + F_V*2048}, v{tt+1}")
        S(f"v_mov_b32 v{tt+2}, {OOB}")
        S(f"v_cmp_gt_u32 s[{d0}:{d0+1}], 4, v0")
        S(f"v_cndmask_b32 v{v_pa}, v{tt+2}, v{tt}, s[{d0}:{d0+1}]")
        S(f"v_cndmask_b32 v{v_paV}, v{tt+2}, v{tt+1}, s[{d0}:{d0+1}]")
        S(f"s_lshr_b32 s{d0}, s{s_tb64}, 1")
        S(f"s_lshl_b32 s{d0}, s{d0}, 7")
        S(f"s_add_u32 s{d0}, s{d0}, {FL + F_H*2048}")
        S(f"v_lshl_add_u32 v{tt}, v{v_lane}, 3, s{d0}")
        S(f"v_cmp_gt_u32 s[{d0}:{d0+1}], 16, v{0 if OPT['p1'] else v_lane}")
        S(f"v_cndmask_b32 v{v_paH}, v{tt+2}, v{tt}, s[{d0}:{d0+1}]")
        S(f"s_lshl4_add_u32 s{s_fp}, s{s_tb}, s{s_cb}")
        S(f"s_lshl_b32 s{s_fp}, s{s_fp}, 3")
        S(f"s_add_u32 s{s_fp}, s{s_fp}, {FL}")
        S(f"s_lshl4_add_u32 s{s_fo}, s{s_qb}, s{s_h}")
        S(f"s_lshl_b32 s{s_fo}, s{s_fo}, 3")
        S(f"s_add_u32 s{s_fo}, s{s_fo}, {FL}")
        S(f"s_lshl_b32 s{s_kv}, s{s_h}, 17")
        S(f"s_lshl_b32 s{d0}, s{s_qb}, 13")
        S(f"s_mul_i32 s{d1}, s{s_w}, 3072")
        S(f"s_add_u32 s{d1}, s{d1}, s{d0}")
        for j in range(3):
            S(f"s_sub_u32 s{81+j}, s{d1}, {16384 - 1024*j}")
            S(f"s_max_i32 s{81+j}, s{81+j}, 0")
            S(f"s_add_u32 s{81+j}, s{81+j}, s{s_kv}")
        S(f"s_add_u32 s{s_kv}, s{s_kv}, s{d0}")
        S(f"v_and_b32 v{tt}, 15, v{v_lane}")
        S(f"v_lshrrev_b32 v{tt+1}, 4, v{v_lane}")
        S(f"v_lshlrev_b32 v{v_qa}, 9, v{tt+1}")
        S(f"v_lshl_add_u32 v{v_qa}, v{tt}, 4, v{v_qa}")
        S(f"s_and_b32 s{s_nt}, s{s_w}, 1")
        S(f"s_lshl_b32 s{s_par}, s{s_nt}, 8")
        S(f"s_lshr_b32 s{s_bd}, s{s_w}, 1")
        S(f"s_lshl2_add_u32 s{s_bd}, s{s_qb}, s{s_bd}")
        S(f"s_mul_i32 s{s_ost}, s{s_bd}, {NKS*1024}")
        S(f"s_lshl_b32 s{d0}, s{s_h}, 11")
        S(f"s_add_u32 s{s_ost}, s{s_ost}, s{d0}")
        S(f"s_add_u32 s{s_ost}, s{s_ost}, s{s_par}")
        S(f"s_add_u32 s{s_ost}, s{s_ost}, {HF + 112*1024}")
        S(f"v_and_b32 v{v_d}, 3, v{v_lane}")
        S(f"v_bfe_u32 v{tt}, v{v_lane}, 2, 1")
        S(f"v_lshl_or_b32 v{v_d}, v{tt}, 3, v{v_d}")
        S(f"v_bfe_u32 v{tt}, v{v_lane}, 3, 1")
        S(f"v_lshl_or_b32 v{v_d}, v{tt}, 2, v{v_d}")
        S(f"s_lshl_b32 s{d0}, s{s_nt}, 4")
        S(f"v_add_u32 v{v_d}, s{d0}, v{v_d}")
        S(f"v_lshlrev_b32 v{tt}, 3, v{tt+1}")
        S(f"v_sub_u32 v{v_d}, v{v_d}, v{tt}")
        S(f"s_lshr_b32 s{s_kh}, s{s_w}, 2")
        S(f"s_bfe_u32 s{s_cmt}, s{s_w}, 0x10001")
        S(f"v_lshrrev_b32 v{tt}, 3, v{v_lane}")
        S(f"v_and_b32 v{tt+1}, 7, v{v_lane}")
        S(f"v_bfe_u32 v{tt+2}, v{v_lane}, 4, 1")
        S(f"v_lshlrev_b32 v{tt+3}, 2, v{tt+2}")
        S(f"v_xor_b32 v{tt+3}, v{tt+3}, v{tt+1}")
        S(f"v_mul_u32_u24 v{v_dw}, 896, v{tt}")
        S(f"v_lshl_add_u32 v{v_dw}, v{tt+3}, 4, v{v_dw}")
        S(f"s_lshl_b32 s{s_m0h}, s{s_w}, 11")
        S(f"s_add_u32 s{s_m0w}, s{s_m0h}, {NH*16384}")
        S(f"s_mul_i32 s{s_wb}, s{s_w}, {16*896}")
        S(f"s_lshl_b32 s{d0}, s{s_nb}, 7")
        S(f"s_add_u32 s{s_wb}, s{s_wb}, s{d0}")
        S(f"s_lshr_b32 s{s_wob}, s{s_w}, 1")
        S(f"s_mul_i32 s{s_wob}, s{s_wob}, 28")
        S(f"s_lshl4_add_u32 s{s_wob}, s{s_nt}, s{s_wob}")
        S(f"s_mul_i32 s{s_wob}, s{s_wob}, 896")
        S(f"s_add_u32 s{s_wob}, s{s_wob}, s{d0}")
        S(f"s_lshl1_add_u32 s{d1}, s{s_tb64}, s{s_cmt}")
        S(f"s_mul_i32 s{s_xo}, s{d1}, {32*896}")
        S(f"s_add_u32 s{s_xo}, s{s_xo}, s{d0}")
        S(f"s_lshl_b32 s{d0}, s{s_nt}, 6")
        S(f"s_add_u32 s{s_xo}, s{s_xo}, s{d0}")
        S(f"s_lshl_b32 s{d0}, s{s_kh}, 5")
        S(f"s_add_u32 s{s_xo}, s{s_xo}, s{d0}")
        if OPT["rotc"]:
            S(f"s_lshl_b32 s{s_hr}, s{s_nb}, 14")
            S(f"s_mul_i32 s{d0}, s{s_nb}, {2*128*896}")
            S(f"s_add_u32 s{s_wb}, s{s_wb}, s{d0}")
        else:
            S(f"s_mov_b32 s{s_hr}, 0")
        S(f"s_lshl1_add_u32 s{s_hb}, s{s_tb64}, s{s_kh}")
        S(f"s_mul_i32 s{s_hb}, s{s_hb}, {NKS*1024}")
        S(f"s_lshl_b32 s{d0}, s{s_mt}, 11")
        S(f"s_add_u32 s{s_hb}, s{s_hb}, s{d0}")
        S(f"s_add_u32 s{s_hb}, s{s_hb}, {HF}")
        return D

    def split_hoist(D, n):
        return D[:n], D[n:]
    SC = "sc1"
    def epi_qk(acc):
        E = []
        for r in range(16):
            E.append(f"v_mul_f32 v{acc+r}, s{s_scale}, v{acc+r}")
        for d in range(8):
            E.append(f"v_cvt_pk_bf16_f32 v{vT+d}, v{acc+2*d}, v{acc+2*d+1}")
        E.append(f"v_and_b32 v{vT+6}, v{vT+6}, v{v_msk}")
        E.append(f"v_and_b32 v{vT+7}, v{vT+7}, v{v_msk}")
        return E
    qk_stores = [f"buffer_store_dwordx4 v[{vT}:{vT+3}], v{v_stk}, s[{sWS}:{sWS+3}], s{s_qkst} offen {SC}",
                 f"buffer_store_dwordx4 v[{vT+4}:{vT+7}], v{v_stk}, s[{sWS}:{sWS+3}], s{s_qkst} offen offset:1024 {SC}"]

    def epi_v(acc):
        E = []
        for jj in range(2):
            Ac = acc + 16 * jj
            T = vT + 8 * jj
            for d in range(8):
                E.append(f"v_cvt_pk_bf16_f32 v{T+d}, v{Ac+2*d}, v{Ac+2*d+1}")
            for d in range(8):
                E.append(f"v_cndmask_b32 v{T+d}, v{T+d}, v{v_one}, s[{s_one}:{s_one+1}]")
            if jj:
                E.append(f"s_add_u32 s{s_vst}, s{s_vst}, {1 << 17}")
            E.append(f"buffer_store_dwordx4 v[{T}:{T+3}], v{v_st}, s[{sWS}:{sWS+3}], s{s_vst} offen {SC}")
            E.append(f"buffer_store_dwordx4 v[{T+4}:{T+7}], v{v_st}, s[{sWS}:{sWS+3}], s{s_vst} offen offset:1024 {SC}")
        return E

    def epi_gu_tile(acc, jj, pk):
        E = []
        Ac = acc + 16 * jj
        T = vT + 12 * jj
        P = lambda r: f"v[{r}:{r+1}]"
        if pk:
            for i in range(0, 8, 2):
                E.append(f"v_pk_mul_f32 {P(T+i)}, {P(Ac+i)}, {P(Ac+i)}")
            for i in range(0, 8, 2):
                E.append(f"v_pk_fma_f32 {P(T+i)}, {P(T+i)}, {P(v_c2)}, {P(v_c1)} op_sel_hi:[1,0,0]")
            for i in range(0, 8, 2):
                E.append(f"v_pk_mul_f32 {P(T+i)}, {P(T+i)}, {P(Ac+i)}")
            for i in range(8):
                E.append(f"v_exp_f32 v{T+i}, v{T+i}")
                if i % 2:
                    E.append(f"v_pk_mul_f32 {P(Ac+i-1)}, {P(Ac+i-1)}, {P(Ac+8+i-1)}")
            for i in range(0, 8, 2):
                E.append(f"v_pk_add_f32 {P(T+i)}, {P(T+i)}, {P(v_k1)} op_sel_hi:[1,0]")
            for i in range(8):
                E.append(f"v_rcp_f32 v{T+i}, v{T+i}")
            for i in range(0, 8, 2):
                E.append(f"v_pk_mul_f32 {P(Ac+i)}, {P(Ac+i)}, {P(T+i)}")
        else:
            for i in range(8):
                E.append(f"v_mul_f32 v{T+i}, v{Ac+i}, v{Ac+i}")
            for i in range(8):
                E.append(f"v_fma_f32 v{T+i}, v{T+i}, v{v_c2}, v{v_c1}")
            for i in range(8):
                E.append(f"v_mul_f32 v{T+i}, v{T+i}, v{Ac+i}")
            for i in range(8):
                E.append(f"v_exp_f32 v{T+i}, v{T+i}")
                E.append(f"v_mul_f32 v{Ac+i}, v{Ac+i}, v{Ac+8+i}")
            for i in range(8):
                E.append(f"v_add_f32 v{T+i}, 1.0, v{T+i}")
            for i in range(8):
                E.append(f"v_rcp_f32 v{T+i}, v{T+i}")
            for i in range(8):
                E.append(f"v_mul_f32 v{Ac+i}, v{Ac+i}, v{T+i}")
        for d in range(4):
            E.append(f"v_cvt_pk_bf16_f32 v{T+8+d}, v{Ac+2*d}, v{Ac+2*d+1}")
        E.append(f"buffer_store_dwordx4 v[{T+8}:{T+11}], v{v_st}, s[{sWS}:{sWS+3}], s{s_hst} offen offset:{1024*jj} {SC}")
        return E

    def publish(vm, kind, s_base):
        a(f"s_add_u32 s{s_t1}, s{s_base}, {kind*2048}")
        a(f"buffer_store_dwordx2 v[{v_non}:{v_non+1}], v{v_fa}, s[{sWS}:{sWS+3}], s{s_t1} offen sc1")
        vm.issue("flag")

    def poll(vm, vaddr):
        a(f"buffer_load_dwordx2 v[{v_pf}:{v_pf+1}], v{vaddr}, s[{sWS}:{sWS+3}], 0 offen sc1")
        if vm is not None:
            vm.issue("poll")

    spin_id = [0]
    def wait_flags(vm, vaddr, nlanes):
        i = spin_id[0]; spin_id[0] += 1
        mask = (1 << nlanes) - 1
        if OPT["p1"]:
            a(f"s_cmp_lg_u32 s{s_w}, 0")
            a(f"s_cbranch_scc1 L_wf_done{i}")
        a(f"s_mov_b32 s{s_t2}, 0")
        a(f"s_waitcnt vmcnt({vm.wait_n('poll')})")
        a(f"L_wf{i}:")
        a(f"v_cmp_eq_u64 vcc, v[{v_pf}:{v_pf+1}], v[{v_non}:{v_non+1}]")
        a(f"s_and_b32 s{s_t1}, vcc_lo, {mask}")
        a(f"s_cmp_eq_u32 s{s_t1}, {mask}")
        a(f"s_cbranch_scc1 L_wf_done{i}")
        a(f"s_add_u32 s{s_t2}, s{s_t2}, 1")
        a(f"s_cmp_gt_u32 s{s_t2}, 100000")
        a(f"s_cbranch_scc1 L_wf_done{i}")
        a(f"s_sleep {OPT['slp']}")
        poll(None, vaddr)
        a("s_waitcnt vmcnt(0)")
        a(f"s_branch L_wf{i}")
        a(f"L_wf_done{i}:")

    def kq_groups():
        g = [f"s_mul_i32 s{s_b2}, s{s_w}, 3072",
             f"s_mov_b32 m0, s{s_b2}",
             ]
        for j in range(3):
            g.append(f"s_add_u32 s{s_b1}, s{81+j}, {KF - 1024*j}")
            g.append(f"buffer_load_dwordx4 v{v_st}, s[{sWS}:{sWS+3}], s{s_b1} offen offset:{1024*j} sc1 lds")
        g2 = [f"s_lshr_b32 s{s_b2}, s{s_w}, 1",
              f"s_lshl_b32 s{s_b2}, s{s_b2}, 11",
              f"s_add_u32 s{s_b2}, s{s_b2}, s{s_par}",
              f"s_add_u32 s{s_b2}, s{s_b2}, s{s_kv}",
              f"buffer_load_dwordx4 v[{vQ}:{vQ+3}], v{v_qa}, s[{sWS}:{sWS+3}], s{s_b2} offen sc1"]
        return [(g, "k"), (g2, "k")]
    tailk = {}
    st_state = (st.n, list(st.names))
    def main(seq, vm):
        st.n, st.names = st_state[0], list(st_state[1])
        is2 = seq[2][0] == "v"
        lg = Cnt(15)
        M = []
        sp = -1
        prev = None
        for c, (kind, idx, part) in enumerate(seq):
            if (kind, idx) != prev:
                sp += 1
                prev = (kind, idx)
            if kind == "qk":
                for s in range(14):
                    M.append(dict(c=c, kind=kind, idx=idx, ks=14 * part + s, sl=s, jj=0, first=(part == 0 and s == 0), sp=sp))
            else:
                for s in range(7):
                    for jj in range(2):
                        M.append(dict(c=c, kind=kind, idx=idx, ks=7 * part + s, sl=s, jj=jj, first=(part == 0 and s == 0), sp=sp))
        last = [q for q in M if q["sp"] == 2]
        M = [q for q in M if q["sp"] < 2] + [q for q in last if q["jj"] == 0] + [q for q in last if q["jj"] == 1]
        LA = 3
        cur = [-1]
        def reads(m):
            mm = M[m]
            c = mm["c"]
            if cur[0] != c and mm["sp"] == 2:
                cur[0] = c
                so = (c % 5) * SLOT
                if mm["jj"]:
                    a(f"v_add_u32 v{v_rdB}, {so}, v{v_bg1}")
                else:
                    a(f"v_add_u32 v{v_rdA}, {so}, v{v_bg0}")
            if cur[0] != c:
                cur[0] = c
                so = (c % 5) * SLOT
                if mm["kind"] == "qk":
                    a(f"v_add_u32 v{v_rdA}, {so}, v{v_bqk}")
                elif mm["kind"] == "v":
                    a(f"v_add_u32 v{v_rdA}, {so}, v{v_bv0}")
                    a(f"v_add_u32 v{v_rdB}, {so}, v{v_bv1}")
                else:
                    a(f"v_add_u32 v{v_rdA}, {so}, v{v_bg0}")
                    a(f"v_add_u32 v{v_rdB}, {so}, v{v_bg1}")
            b = vW + 4 * (m % 4)
            ad = v_rdB if mm["jj"] else v_rdA
            rb = 2 if mm["kind"] == "v" else 1
            o = mm["sl"] * 2048 * rb
            a(f"ds_read_b64_tr_b16 v[{b}:{b+1}], v{ad} offset:{o}")
            a(f"ds_read_b64_tr_b16 v[{b+2}:{b+3}], v{ad} offset:{o+512*rb}")
            lg.issue(f"w{m}"); lg.issue(f"w{m}")
        xn = [0]
        def xread(k=1):
            for _ in range(k):
                ks = xn[0]
                if ks >= 28:
                    return
                xn[0] += 1
                j, s2 = divmod(ks, 4)
                r = vX + 4 * ks
                a(f"ds_read_b128 v[{r}:{r+3}], v{v_xa + s2 + (4 if j >= 4 else 0)} offset:{(j % 4)*16384}")
                lg.issue(f"x{ks}")
        for m in range(LA):
            xread(1)
            reads(m)
        if OPT["rda"]:
            reads(LA)
        xread(3)
        pend = deferred(is2)
        D2 = deferred2()
        n2 = OPT["d2n"]
        pend += D2[:n2]
        pend_tag = "st"
        rate = len(pend) / 26.0
        accum = 0.0
        hold = 0
        n = len(M)
        bg = []
        B2 = OPT["b2"]
        def emit_pend():
            ins = pend.pop(0)
            a(ins)
            if ins.startswith("buffer_"):
                vm.issue(pend_tag)
        w2k = [0]
        def slot_store(stores, vaddr, k, nk, tag):
            if nk > 1:
                if nk == 2:
                    a(f"s_bitcmp{k}_b32 s{s_wr}, 0")
                else:
                    a(f"s_cmp_eq_u32 s{s_wr}, {k}")
                a(f"s_cselect_b64 s[{s_t0}:{s_t0+1}], -1, 0")
                a(f"v_cndmask_b32 v{v_e0}, v{v_e1}, v{vaddr}, s[{s_t0}:{s_t0+1}]")
                stores = [x.replace(f", v{vaddr},", f", v{v_e0},") for x in stores]
            for x in stores:
                a(x); vm.issue(tag)
        late = {}
        dsched = {}
        for m in range(n):
            mm = M[m]
            c = mm["c"]
            if m in STM:
                st(f"m{m}")
            if OPT["b2a"] and m == OPT["b2a"]:
                assert xn[0] >= 12
                a(f"s_waitcnt lgkmcnt({lg.wait_n('x11')})")
                a("s_barrier")
                emit_group(vm, c1b)
                bg += dmaA(seq[2], 2, "c2")
            if m == B2:
                assert xn[0] >= 28 and B2 <= 11
                a(f"s_waitcnt vmcnt({vm.wait_n('c1')}) lgkmcnt({lg.wait_n('x27')})")
                a("s_barrier")
                if not OPT["b2a"]:
                    emit_group(vm, c1b)
                    bg += dmaA(seq[2], 2, "c2")
                bg += dmaA(seq[3], 3, "c3") + dmaA(seq[4], 4, "c4")
                bg.append(([f"buffer_load_dwordx2 v[{v_non}:{v_non+1}], v{v_zero}, s[{sDbg}:{sDbg+3}], 0 offen sc1"], "nonce"))
            if m == 20:
                a(f"s_waitcnt vmcnt({vm.wait_n('c1b')})")
                a("s_barrier")
            if m in (87, 94, 101):
                a(f"s_waitcnt vmcnt({vm.wait_n(f'c{7 + (m - 87)//7}')})")
                a("s_barrier")
            if m == OPT["kqm"]:
                wait_flags(vm, v_pa, 4)
                a("s_barrier")
                bg += kq_groups()
            if m == OPT["kqm"] - OPT["kqlead"]:
                poll(vm, v_pa)
            if m == 114:
                pend.extend(epi_gu_tile(ACC[1], 0, 0))
                rate = max(rate, len(pend) / (OPT["aend"] - 114))
                if is2:
                    pend_tag = "st_a"
            if m % 14 == (8 if c != 1 else 10) and 1 <= c <= 5:
                tags = [f"c{c+1}"]
                while not vm.has(tags[0]) or any(g[1] == tags[0] for g in bg):
                    emit_group(vm, bg.pop(0))
                if c == OPT["pubqk"]:
                    tags.append("st_qk")
                if c == OPT["kq"]:
                    wait_flags(vm, v_pa, 4)
                a(f"s_waitcnt vmcnt({vm.wait_n(*tags)})")
                a("s_barrier")
                if c == OPT["pubqk"]:
                    publish(vm, F_QK, s_fp)
                if c == OPT["kq"]:
                    bg += kq_groups()
                if c + 4 < len(seq):
                    dl = OPT.get(f"d{c+4}", 0)
                    if dl > m:
                        dsched[dl] = c + 4
                    else:
                        bg += dmaA(seq[c + 4], (c + 4) % 5, f"c{c+4}")
                if c == 4:
                    i = spin_id[0]; spin_id[0] += 1
                    a(f"s_mov_b32 s{s_t2}, 0")
                    a(f"L_nz{i}:")
                    a(f"v_readfirstlane_b32 s{s_t1}, v{v_non}")
                    a(f"s_cmp_lg_u32 s{s_t1}, 0")
                    a(f"s_cbranch_scc1 L_nz_done{i}")
                    a(f"s_add_u32 s{s_t2}, s{s_t2}, 1")
                    a(f"s_cmp_gt_u32 s{s_t2}, 100000")
                    a(f"s_cbranch_scc1 L_nz_done{i}")
                    a("s_sleep 2")
                    a(f"buffer_load_dwordx2 v[{v_non}:{v_non+1}], v{v_zero}, s[{sDbg}:{sDbg+3}], 0 offen sc1")
                    a("s_waitcnt vmcnt(0)")
                    a(f"s_branch L_nz{i}")
                    a(f"L_nz_done{i}:")
            if m in dsched:
                k = dsched[m]
                bg += dmaA(seq[k], k % 5, f"c{k}")
            for k in range(OPT["qkn"]):
                if m == OPT["qkst"] + k * OPT["qkgap"]:
                    slot_store(qk_stores, v_stk, k, OPT["qkn"], "st_qk")
            if m == OPT["pubm"] and is2:
                a(f"s_waitcnt vmcnt({vm.wait_n('st_qkv')})")
                a("s_barrier")
                publish(vm, F_V, s_fp)
            if m in late:
                for (ins, k, nk, flush) in late[m]:
                    if flush:
                        while pend:
                            emit_pend()
                    if ins.startswith("buffer_"):
                        slot_store([ins], v_st, k, nk, "st_h0")
                    else:
                        a(ins)
            if m == OPT["w2s"]:
                gtouch(sWd, 7, True, v_e0, vm)
                gtouch(sWo, 2, True, v_e0, vm)
            if OPT["l2n"] and m >= OPT["l2s"] and (m - OPT["l2s"]) % OPT["l2d"] == 0 and (m - OPT["l2s"]) // OPT["l2d"] < OPT["l2n"] + 1:
                k = (m - OPT["l2s"]) // OPT["l2d"]
                nl = -(-49 // OPT["l2n"])
                isw = k == OPT["l2n"]
                a(f"s_lshr_b32 s{s_t0}, s2, 3")
                a(f"s_lshl3_add_u32 s{s_t0}, s{s_t0}, s{s_w}")
                if isw:
                    nl = 13
                    a(f"s_mul_i32 s{s_t0}, s{s_t0}, 13")
                else:
                    a(f"s_mul_i32 s{s_t0}, s{s_t0}, {nl}")
                    a(f"s_add_u32 s{s_t0}, s{s_t0}, {k*nl*256}")
                a(f"v_add_lshl_u32 v{v_e0}, v{v_lane}, s{s_t0}, 7")
                a(f"s_mov_b64 exec, {(1 << nl) - 1}")
                sr = sWo if isw else sWd
                a(f"buffer_load_dword v{v_td}, v{v_e0}, s[{sr}:{sr+3}], 0 offen")
                a(f"s_mov_b64 exec, -1")
                vm.issue("t")
            if m + LA < n and not OPT["rda"]:
                reads(m + LA)
            xread(OPT["xr"])
            tags = [f"w{m}"]
            if mm["sp"] == 0:
                tags.append(f"x{mm['ks']}")
            a(f"s_waitcnt lgkmcnt({lg.wait_n(*tags)})")
            accb = ACC[(mm["sp"] + 1) % 2]
            acc = accb + 16 * mm["jj"]
            b = vW + 4 * (m % 4)
            x = vX + 4 * mm["ks"]
            csrc = "0" if mm["first"] else f"v[{acc}:{acc+15}]"
            if mm["kind"] == "v":
                a(f"v_mfma_f32_32x32x16_bf16 v[{acc}:{acc+15}], v[{x}:{x+3}], v[{b}:{b+3}], {csrc}")
            else:
                a(f"v_mfma_f32_32x32x16_bf16 v[{acc}:{acc+15}], v[{b}:{b+3}], v[{x}:{x+3}], {csrc}")
            if OPT["rda"] and m + LA + 1 < n:
                reads(m + LA + 1)
            if bg and (m % OPT["bgp"] == 0 or len(bg) > 4):
                emit_group(vm, bg.pop(0))
            last_of_sp = (m + 1 == n) or (M[m + 1]["sp"] != mm["sp"])
            if pend and not hold:
                accum += rate
                while accum >= 1.0 and pend:
                    emit_pend()
                    accum -= 1.0
            if hold:
                hold -= 1
            if last_of_sp:
                while pend:
                    emit_pend()
                if m + 1 < n:
                    nsp = sum(1 for q in M if q["sp"] == mm["sp"] + 1)
                    if mm["kind"] == "qk":
                        pend = epi_qk(accb) + D2[n2:]
                        rate = max(len(pend) / (nsp - 8), 27.0 / max(1, OPT["qkst"] - 31))
                    elif mm["kind"] == "v":
                        pend = epi_v(accb)
                        pend_tag = "st_qkv"
                        rate = 3.0
                    else:
                        e0 = epi_gu_tile(accb, 0, OPT["pk"] & 2); e1 = epi_gu_tile(accb, 1, OPT["pk"] & 2)
                        pend = e0 + e1 + [f"s_add_u32 s{s_hst}, s{s_hst}, 4096"]
                        rate = 207.0 / (OPT["aend"] - 86)
                        pend_tag = "st_h0"
                    accum = 0.0
                    hold = 2
                else:
                    assert accb == ACC[1]
        assert not bg
        poll(vm, v_paV)
        a(f"s_waitcnt vmcnt({vm.wait_n('k')})")

    main(seq1, copy.deepcopy(vm))
    a("s_branch L_postA")
    a("L_type2:")
    main(seq2, copy.deepcopy(vm))
    a("L_postA:")
    st("T")
    vm = VM()

    vS = 132
    vKF = 204
    vP = 64
    vO = 100
    v_ka, v_va, v_m, v_u = 3, 4, 2, 128
    u = v_u

    def dmaW(c):
        slot = (c % NW) * 16384
        G = []
        for jj in range(2):
            g = [f"s_add_u32 m0, s{s_m0w}, {slot + 1024*jj}"]
            if c < 14:
                g.append(f"s_add_u32 s{s_b1}, s{s_wb}, {(128*c + 8*jj)*896}")
                g.append(f"s_sub_u32 s{s_b2}, s{s_b1}, {WD_BYTES}")
                g.append(f"s_min_u32 s{s_b1}, s{s_b1}, s{s_b2}")
                g.append(f"buffer_load_dwordx4 v{v_dw}, s[{sWd}:{sWd+3}], s{s_b1} offen lds")
            else:
                g.append(f"s_add_u32 s{s_b1}, s{s_nb}, {c-14}")
                g.append(f"s_and_b32 s{s_b1}, s{s_b1}, 3")
                g.append(f"s_mul_i32 s{s_b1}, s{s_b1}, {112*896}")
                g.append(f"s_add_u32 s{s_b1}, s{s_b1}, s{s_wob}")
                if jj:
                    g.append(f"s_add_u32 s{s_b1}, s{s_b1}, {8*896}")
                g.append(f"buffer_load_dwordx4 v{v_dw}, s[{sWo}:{sWo+3}], s{s_b1} offen lds")
            G.append((g, f"w{c}"))
        return G

    def dmaH(c):
        slot = (c % NH) * 16384
        g = [f"s_add_u32 m0, s{s_m0h}, {slot}"]
        if c < 14:
            g.append(f"s_add_u32 s{s_b1}, s{s_hr}, {8192*c}")
            g.append(f"s_sub_u32 s{s_b2}, s{s_b1}, {14*8192}")
            g.append(f"s_min_u32 s{s_b1}, s{s_b1}, s{s_b2}")
        else:
            g.append(f"s_add_u32 s{s_b1}, s{s_nb}, {c-14}")
            g.append(f"s_and_b32 s{s_b1}, s{s_b1}, 3")
            g.append(f"s_lshl_b32 s{s_b1}, s{s_b1}, 13")
            g.append(f"s_add_u32 s{s_b1}, s{s_b1}, {14*8192}")
        g.append(f"s_add_u32 s{s_b1}, s{s_b1}, s{s_hb}")
        for jj in range(2):
            g.append(f"buffer_load_dwordx4 v{v_st}, s[{sWS}:{sWS+3}], s{s_b1} offen offset:{1024*jj} sc1 lds")
        return (g, f"h{c}")

    wq = []
    for c in range(NW):
        wq += dmaW(c)
    cnt = [0]
    def e(ins, every=OPT["wspread"]):
        a(ins)
        cnt[0] += 1
        if cnt[0] % every == 0 and wq:
            emit_group(vm, wq.pop(0))

    vm.issue("poll")
    a(f"s_lshr_b32 s{s_t2}, s{s_w}, 1")
    a(f"s_lshl_b32 s{s_t2}, s{s_t2}, 11")
    a(f"v_add_u32 v{v_ka}, s{s_t2}, v{v_qa}")
    a(f"v_add_u32 v{v_va}, 24576, v{v_ka}")
    a("s_barrier")
    st("BK")
    E0 = epi_gu_tile(ACC[1], 0, OPT["pk"] & 1)
    E1 = epi_gu_tile(ACC[1], 1, OPT["pk"] & 1)
    side = E1[:-1] + [f"v_cmp_le_i32 s[{MK[i]}:{MK[i]+1}], {i}, v{v_d}" for i in range(8)]

    def kread(i):
        b, tt = divmod(i, 2)
        r = vKF + 4 * (i % 8)
        a(f"ds_read_b128 v[{r}:{r+3}], v{v_ka} offset:{b*2048 + tt*256}")
    LA = 6
    per = OPT["per"]
    e1done = [False]
    nf = OPT["wfirst"]
    for i in range(LA):
        kread(i)
    for i in range(18):
        if i + LA < 18:
            kread(i + LA)
            a(f"s_waitcnt lgkmcnt({LA})")
        else:
            a(f"s_waitcnt lgkmcnt({17-i})")
        r = vKF + 4 * (i % 8)
        a(f"v_mfma_f32_16x16x32_bf16 v[{vS+4*i}:{vS+4*i+3}], v[{r}:{r+3}], v[{vQ}:{vQ+3}], 0")
        for _ in range(per):
            if side:
                a(side.pop(0))
        if len(side) <= 8 and not e1done[0] and i > OPT["vpos"]:
            e1done[0] = True
            a(E1[-1]); vm.issue("st_h")
        if i == OPT["vpos"]:
            st("preV")
            wait_flags(vm, v_paV, 3)
            a("s_barrier")
            st("fV")
            a(f"s_mul_i32 s{s_t0}, s{s_w}, 3072")
            a(f"s_add_u32 m0, s{s_t0}, 24576")
            for j in range(3):
                a(f"s_add_u32 s{s_t2}, s{81+j}, {VF - 1024*j}")
                a(f"buffer_load_dwordx4 v{v_st}, s[{sWS}:{sWS+3}], s{s_t2} offen offset:{1024*j} sc1 lds")
                vm.issue("v")
        if i < OPT["vpos"] and i % 2 == 1 and nf:
            emit_group(vm, wq.pop(0)); nf -= 1
    if not e1done[0]:
        a(E1[-1]); vm.issue("st_h")
    st("Sdone")
    a(f"s_cmp_ge_u32 s{s_bd}, 8")
    a("s_cbranch_scc1 L_allvalid")
    for b in range(8):
        a(f"s_cmp_ge_u32 s{s_bd}, {8-b}")
        a("s_cbranch_scc1 L_allvalid")
        for i in range(8):
            a(f"v_mov_b32 v{vS+8*b+i}, 0xf149f2ca")
    a("L_allvalid:")
    for i in range(8):
        e(f"v_cndmask_b32 v{vS+i}, v{vS+i}, v{vS+64+i}, s[{MK[i]}:{MK[i]+1}]")
    e(f"v_max3_f32 v{v_m}, v{vS+8}, v{vS+9}, v{vS+10}")
    e(f"v_max3_f32 v{u}, v{vS+11}, v{vS+12}, v{vS+13}")
    ks = list(range(14, 64, 2)) + list(range(0, 8, 2))
    tog = 0
    for k in ks:
        d = v_m if tog == 0 else u
        e(f"v_max3_f32 v{d}, v{d}, v{vS+k}, v{vS+k+1}")
        tog ^= 1
    a(f"v_max_f32 v{v_m}, v{v_m}, v{u}")
    a(f"v_mov_b32 v{u}, v{v_m}")
    a(f"v_permlane32_swap_b32 v{v_m}, v{u}")
    a(f"v_max_f32 v{v_m}, v{v_m}, v{u}")
    a(f"v_mov_b32 v{u}, v{v_m}")
    a(f"v_permlane16_swap_b32 v{v_m}, v{u}")
    a(f"v_max_f32 v{v_m}, v{v_m}, v{u}")
    order = [1, 2, 3, 4, 5, 6, 7, 0, 8]
    def softmax_block(b):
        for i in range(0, 8, 2):
            r = vS + 8 * b + i
            e(f"v_pk_add_f32 v[{r}:{r+1}], v[{r}:{r+1}], v[{v_m}:{v_m+1}] op_sel_hi:[1,0] neg_lo:[0,1] neg_hi:[0,1]")
        for i in range(8):
            e(f"v_exp_f32 v{vS+8*b+i}, v{vS+8*b+i}")
        if b == 0:
            for i in range(8):
                e(f"v_cndmask_b32 v{vS+64+i}, 0, v{vS+i}, s[{MK[i]}:{MK[i]+1}]")
            for i in range(8):
                e(f"v_cndmask_b32 v{vS+i}, v{vS+i}, 0, s[{MK[i]}:{MK[i]+1}]")
            for d in range(4):
                e(f"v_cvt_pk_bf16_f32 v{vP+32+d}, v{vS+64+2*d}, v{vS+64+2*d+1}")
        for d in range(4):
            e(f"v_cvt_pk_bf16_f32 v{vP+4*b+d}, v{vS+8*b+2*d}, v{vS+8*b+2*d+1}")
    softmax_block(order[0])
    st("preBV")
    a(f"s_waitcnt vmcnt({vm.wait_n('st_h', 'v')})")
    a("s_barrier")
    publish(vm, F_H, s_fp)
    st("BV")
    def vread(i):
        b = order[i // 2]
        tt = i % 2
        r = vKF + 4 * (i % 8)
        a(f"ds_read_b128 v[{r}:{r+3}], v{v_va} offset:{b*2048 + tt*256}")
    for i in range(LA):
        vread(i)
    for bi in range(9):
        b = order[bi]
        if bi == 4:
            while wq:
                emit_group(vm, wq.pop(0))
            poll(vm, v_paH)
        if bi + 1 < 8:
            softmax_block(order[bi + 1])
        if bi == 6:
            a("s_waitcnt lgkmcnt(0)")
            st("preH")
            a(f"s_cmp_ge_u32 s{s_nb}, 7")
            a("s_cbranch_scc1 L_noC1")
            wait_flags(vm, v_paH, 16)
            a("s_barrier")
            for c in range(NH):
                emit_group(vm, dmaH(c))
            a("L_noC1:")
            st("Hiss")
        for tt in range(2):
            i = 2 * bi + tt
            if i + LA < 18:
                vread(i + LA)
                a(f"s_waitcnt lgkmcnt({LA})")
            elif bi < 6:
                a(f"s_waitcnt lgkmcnt({17-i})")
            r = vKF + 4 * (i % 8)
            cs = "0" if bi == 0 else f"v[{vO+4*tt}:{vO+4*tt+3}]"
            a(f"v_mfma_f32_16x16x32_bf16 v[{vO+4*tt}:{vO+4*tt+3}], v[{r}:{r+3}], v[{vP+4*b}:{vP+4*b+3}], {cs}")
    a(f"v_mov_b32 v{u}, v{vO+4}")
    a(f"v_mov_b32 v{u+1}, v{vO+4}")
    a(f"v_permlane32_swap_b32 v{u}, v{u+1}")
    a(f"v_mov_b32 v{u}, v{u+1}")
    a(f"v_permlane16_swap_b32 v{u}, v{u+1}")
    a(f"v_rcp_f32 v{u+1}, v{u+1}")
    for i in range(8):
        a(f"v_mul_f32 v{vO+i}, v{vO+i}, v{u+1}")
    for d in range(4):
        a(f"v_cvt_pk_bf16_f32 v{vQ+d}, v{vO+2*d}, v{vO+2*d+1}")
    a(f"v_cmp_gt_u32 s[{s_d0}:{s_d0+1}], 48, v{v_lane}")
    a(f"v_cndmask_b32 v{vQ+2}, 0, v{vQ+2}, s[{s_d0}:{s_d0+1}]")
    a(f"v_cndmask_b32 v{vQ+3}, 0, v{vQ+3}, s[{s_d0}:{s_d0+1}]")
    a(f"buffer_store_dwordx4 v[{vQ}:{vQ+3}], v{v_qa}, s[{sWS}:{sWS+3}], s{s_ost} offen sc1")
    vm.issue("st_o")
    st("Ost")
    a(f"s_cmp_lt_u32 s{s_nb}, 7")
    a("s_cbranch_scc1 L_phaseC")
    a("s_waitcnt vmcnt(0)")
    a("s_barrier")
    publish(VM(), F_O, s_fo)
    a("s_branch L_end")
    a("L_phaseC:")

    v_ah, v_aw, v_cxo = 2, 3, 4
    v_awB = 5
    vXr = 16
    vAcc = 48
    vF = 64
    tt = 20
    a(f"v_add_u32 v{v_paH}, {(F_O-F_H)*2048}, v{v_paH}")
    a(f"v_and_b32 v{tt}, 0x13, v{v_lane}")
    a(f"v_bfe_u32 v{tt+1}, v{v_lane}, 2, 1")
    a(f"v_lshl_or_b32 v{tt}, v{tt+1}, 3, v{tt}")
    a(f"v_bfe_u32 v{tt+1}, v{v_lane}, 3, 1")
    a(f"v_lshl_or_b32 v{tt}, v{tt+1}, 2, v{tt}")
    a(f"v_mul_u32_u24 v{v_cxo}, 896, v{tt}")
    a(f"v_lshrrev_b32 v{tt+1}, 5, v{v_lane}")
    a(f"v_lshl_add_u32 v{v_cxo}, v{tt+1}, 4, v{v_cxo}")
    a(f"s_lshl_b32 s{s_t0}, s{s_cmt}, 13")
    a(f"s_lshl_b32 s{s_t1}, s{s_kh}, 12")
    a(f"s_add_u32 s{s_t0}, s{s_t0}, s{s_t1}")
    a(f"v_add_u32 v{v_ah}, s{s_t0}, v{v_st}")
    a(f"v_bfe_u32 v{tt}, v{v_lane}, 2, 2")
    a(f"v_and_b32 v{tt+2}, 3, v{v_lane}")
    a(f"v_bfe_u32 v{tt+3}, v{v_lane}, 4, 1")
    a(f"v_lshrrev_b32 v{tt+4}, 1, v{tt+2}")
    a(f"v_and_b32 v{tt+5}, 1, v{tt+2}")
    a(f"v_lshl_or_b32 v{tt+4}, v{tt+5}, 1, v{tt+4}")
    a(f"v_lshl_add_u32 v{tt+5}, v{tt+1}, 3, v{tt}")
    a(f"v_lshlrev_b32 v{tt+5}, 7, v{tt+5}")
    a(f"v_lshrrev_b32 v{tt+6}, 1, v{tt}")
    a(f"v_xor_b32 v{tt+6}, s{s_nt}, v{tt+6}")
    a(f"v_lshl_add_u32 v{tt+5}, v{tt+6}, 6, v{tt+5}")
    a(f"v_lshl_add_u32 v{tt+5}, v{tt+3}, 5, v{tt+5}")
    a(f"v_lshl_add_u32 v{tt+5}, v{tt+4}, 3, v{tt+5}")
    a(f"s_lshl_b32 s{s_t0}, s{s_kh}, 13")
    a(f"s_add_u32 s{s_t0}, s{s_t0}, {NH*16384}")
    a(f"v_add_u32 v{v_aw}, s{s_t0}, v{tt+5}")
    a(f"v_add_u32 v{v_awB}, 65536, v{v_aw}")
    v_ahB = 7
    a(f"v_add_u32 v{v_ahB}, 65536, v{v_ah}")
    assert NH <= 8 and NW <= 8 and NH + NW <= 10
    NC = 18
    RA = OPT["ra"]
    NS = RA + 1
    def creads(c):
        sh = ((c % NH) % 4) * 16384
        ah = v_ah if (c % NH) < 4 else v_ahB
        sw = (c % NW)
        aw = v_aw if sw < 4 else v_awB
        swo = (sw % 4) * 16384
        base = vF + 32 * (c % NS)
        for i in range(4):
            f = base + 8 * i
            a(f"ds_read_b128 v[{f}:{f+3}], v{ah} offset:{sh + 1024*i}")
            a(f"ds_read_b64_tr_b16 v[{f+4}:{f+5}], v{aw} offset:{swo + 2048*i}")
            a(f"ds_read_b64_tr_b16 v[{f+6}:{f+7}], v{aw} offset:{swo + 2048*i + 512}")
    a(f"s_waitcnt vmcnt({vm.wait_n(*([f'h{k}' for k in range(RA)] + [f'w{k}' for k in range(RA)]))})")
    a("s_barrier")
    st("C0")
    for k in range(RA):
        creads(k)
    PUB_O = OPT["pubo"]
    POLL_O = 14 - NH - 2
    wsched = {}
    nW = 2 * (NC - NW)
    last_it = NC - 1 - 2 - RA
    for q in range(nW):
        k = NW + q // 2
        it = int(q * (last_it + 1) / nW)
        it = max(it, k - NW)
        it = min(it, k - 2 - RA)
        wsched.setdefault(it, []).append((k, q % 2))
    for c in range(NC):
        lgn = 12 * (min(NC, c + RA) - c - 1)
        if c + RA < NC:
            tags = [f"h{c+RA}", f"w{c+RA}"]
            if c == PUB_O:
                tags.append("st_o")
            if c + NH == 14:
                wait_flags(vm, v_paH, 16)
            a(f"s_waitcnt vmcnt({vm.wait_n(*tags)}) lgkmcnt({lgn})")
            a("s_barrier")
            if c in (4, 9, 13):
                st(f"c{c}")
            if not OPT["mf"]:
                creads(c + RA)
            if c == PUB_O:
                publish(vm, F_O, s_fo)
        else:
            a(f"s_waitcnt lgkmcnt({lgn})")
        G = []
        if c + NH < NC:
            G.append(dmaH(c + NH))
        for (k, jj) in wsched.get(c, []):
            G.append(dmaW(k)[jj])
        if c == POLL_O:
            G.append(([f"buffer_load_dwordx2 v[{v_pf}:{v_pf+1}], v{v_paH}, s[{sWS}:{sWS+3}], 0 offen sc1"], "poll"))
        if c == 12:
            G.append(([f"buffer_load_dwordx4 v[{vXr}:{vXr+3}], v{v_cxo}, s[{sX}:{sX+3}], s{s_xo} offen"], "xr"))
        base = vF + 32 * (c % NS)
        if OPT["gf"] and G:
            emit_group(vm, G.pop(0))
        for i in range(4):
            f = base + 8 * i
            cs = "0" if (c == 0 and i == 0) else f"v[{vAcc}:{vAcc+15}]"
            a(f"v_mfma_f32_32x32x16_bf16 v[{vAcc}:{vAcc+15}], v[{f+4}:{f+7}], v[{f}:{f+3}], {cs}")
            if i == 0 and OPT["mf"] and c + RA < NC:
                creads(c + RA)
            elif G:
                emit_group(vm, G.pop(0))
        while G:
            emit_group(vm, G.pop(0))
    st("Cend")
    a("s_barrier")
    a(f"s_lshl_b32 s{s_t0}, s{s_w}, 11")
    a(f"v_add_u32 v{tt+1}, s{s_t0}, v{v_st}")
    a(f"v_xor_b32 v{tt+2}, 8192, v{tt+1}")
    a(f"s_cmp_eq_u32 s{s_kh}, 0")
    a("s_cbranch_scc1 L_k0")
    a(f"ds_write_b128 v{tt+1}, v[{vAcc}:{vAcc+3}]")
    a(f"ds_write_b128 v{tt+1}, v[{vAcc+4}:{vAcc+7}] offset:1024")
    for i in range(8):
        a(f"v_mov_b32 v{vAcc+i}, v{vAcc+8+i}")
    a("s_branch L_k1")
    a("L_k0:")
    a(f"ds_write_b128 v{tt+1}, v[{vAcc+8}:{vAcc+11}]")
    a(f"ds_write_b128 v{tt+1}, v[{vAcc+12}:{vAcc+15}] offset:1024")
    a("L_k1:")
    a("s_waitcnt vmcnt(0) lgkmcnt(0)")
    a("s_barrier")
    a(f"ds_read_b128 v[{vF}:{vF+3}], v{tt+2}")
    a(f"ds_read_b128 v[{vF+4}:{vF+7}], v{tt+2} offset:1024")
    for d in range(4):
        a(f"v_lshlrev_b32 v{vF+8+2*d}, 16, v{vXr+d}")
        a(f"v_and_b32 v{vF+9+2*d}, 0xffff0000, v{vXr+d}")
    for i in range(8):
        a(f"v_add_f32 v{vAcc+i}, v{vAcc+i}, v{vF+8+i}")
    a("s_waitcnt lgkmcnt(0)")
    for i in range(8):
        a(f"v_add_f32 v{vAcc+i}, v{vAcc+i}, v{vF+i}")
    for d in range(4):
        a(f"v_cvt_pk_bf16_f32 v{vXr+d}, v{vAcc+2*d}, v{vAcc+2*d+1}")
    a(f"buffer_store_dwordx4 v[{vXr}:{vXr+3}], v{v_cxo}, s[{sO}:{sO+3}], s{s_xo} offen {['', 'sc1', 'nt', 'sc0 sc1'][OPT['osc']]}")
    if STAMP:
        a("s_waitcnt vmcnt(0)")
        st("end", wait=True); st("rt", rt=True, wait=True)
        st.finish()
        if DBGST:
            a("s_load_dwordx2 s[4:5], s[82:83], 64")
            a(f"v_sub_u32 v{v_stamp}, v{v_stamp}, v{v_non}")
            a(f"v_lshlrev_b32 v{tt}, 2, v{v_lane}")
            a(f"v_add_u32 v{tt}, 8, v{tt}")
            a("s_waitcnt lgkmcnt(0)")
            A(srd(8, 4, 5, 64))
            a(f"s_lshl3_add_u32 s3, s2, s{s_w}")
            a(f"s_cmp_lg_u32 s3, {37*8+4}")
            a("s_cbranch_scc1 L_end")
            a(f"buffer_store_dword v{v_stamp}, v{tt}, s[8:11], 0 offen")
            a("s_branch L_end")
        a(f"s_lshl3_add_u32 s3, s2, s{s_w}")
        a("s_lshl_b32 s3, s3, 7")
        a(f"s_add_u32 s3, s3, {STAMP_OFF}")
        a(f"v_lshlrev_b32 v{tt}, 2, v{v_lane}")
        a(f"v_cmp_gt_u32 vcc, {st.n}, v{v_lane}")
        a("s_and_saveexec_b64 s[4:5], vcc")
        a(f"buffer_store_dword v{v_stamp}, v{tt}, s[{sWS}:{sWS+3}], s3 offen")
        a.raw("; STAMPS " + " ".join(st.names))
        assert st.n <= 32
    a("L_end:")
    a("s_endpgm")
    return a


HEADER = """; Fused persistent kernel: LN + QKV/gate/up GEMM -> sliding-window attention -> [H|O] @ [w_down; wo] + x
;   0 A_x, 8 A_wqkv, 16 A_wo, 24 B_x, 32 B_w_gate, 40 B_w_up, 48 B_w_down, 56 d_out, 64 d_debug, 72 d_ws
; @launch grid=(256,1,1) block=(512,1,1) lds=163840
.amdgcn_target "amdgcn-amd-amdhsa--gfx950"
"""

def build():
    a = gen()
    print("instrs", a.nins, "nops", a.nnop, file=sys.stderr)
    return HEADER + a.text() + kernel_desc(NAME, 256)

if __name__ == "__main__":
    path = sys.argv[1] if len(sys.argv) > 1 else "parallel_sum__sliding_block__geglu_ffn__prompt.s"
    for arg in sys.argv[2:]:
        if arg == "stamp":
            STAMP = True
        elif arg == "dbgst":
            STAMP = True; DBGST = True
        else:
            k, v = arg.split("=")
            assert k in OPT, k
            OPT[k] = int(v)
    open(path, "w").write(build())
```

```python
import sys, struct, math, copy, os
sys.path.insert(0, "dev")
from asmlib import Asm, kernel_header, kernel_desc

NAME = "parallel_sum__sliding_block__geglu_ffn__prompt_kernel"

def f2u(f):
    return struct.unpack("<I", struct.pack("<f", f))[0]

QF = 0
KF = 2 << 20
VF = 4 << 20
FL = 6 << 20
HF = 8 << 20
WS_BYTES = 268435456
NKS = 144
F_QK, F_H, F_O, F_V = 0, 1, 2, 3
OOB = 0x7FFFFF00

X_BYTES = 2048 * 896
WQKV_BYTES = 448 * 2688
WG_BYTES = 448 * 3584
WD_BYTES = 1792 * 896
WO_BYTES = 448 * 896

LOG2E = 1.4426950408889634
QSCALE = (28 ** -0.5) * LOG2E
GC1 = -2.0 * 0.7978845608028654 * LOG2E
GC2 = GC1 * 0.044715

STAMP = False
DBGST = False
DBGN = ['t0','setup','x00','lnend','B1','m28','m84','T','Sdone','BV','Ost','C0','Cend','end']
STAMP_OFF = 200 << 20
STM = [int(x) for x in os.environ.get('STM', '11,28,56,84,112').split(',')]
OPT = dict(NH=4, NW=6, rotc=1, b2=10, bgp=1, qkst=44, pubm=112, pk=1, w2s=60, l2n=0, mprio=1, rda=0, b2a=4, d2n=60, kqm=122, aend=138, per=6, tlb=0, osc=0, we=4, dcl=0, ctouch=1, ra=1, mf=1, gf=1, l2s=64, l2d=9,
           wfirst=4, wspread=16, pubo=2, p1=1, slp=4, hst0=104, hst1=122, qkgap=0, d7=0, d8=0, d9=0,
           c1e=3, xr=3, xf=9, qkn=1, hn=1, hgap=0, tq=7, lnm=1, dmae=7, xil=1, pubqk=5, kq=8, kqlead=12, vpos=5)


class Cnt:
    def __init__(self, cap):
        self.ops = []
        self.cap = cap
    def issue(self, tag):
        self.ops.append(tag)
    def wait_n(self, *tags):
        idx = max(i for i, t in enumerate(self.ops) if t in tags)
        n = len(self.ops) - 1 - idx
        return min(n, self.cap)
    def has(self, tag):
        return tag in self.ops

def VM():
    return Cnt(63)


class Stamps:
    def __init__(self, a, vreg, base=98):
        self.a = a; self.base = base; self.n = 0; self.names = []; self.vreg = vreg
    def _flush_prev(self):
        if self.n >= 1:
            k = self.n - 1
            self.a(f"v_writelane_b32 v{self.vreg}, s{self.base + 2*(k % 2)}, {k}")
    def __call__(self, name="", rt=False, wait=False):
        if not STAMP: return
        p = self.base + 2 * (self.n % 2)
        if DBGST and name not in DBGN: return
        self.a(f"{'s_memrealtime' if (rt or DBGST or os.environ.get('RTST')) else 's_memtime'} s[{p}:{p+1}]")
        if wait:
            self.a("s_waitcnt lgkmcnt(0)")
        self._flush_prev()
        self.n += 1
        self.names.append(name)
    def finish(self):
        self.a("s_waitcnt lgkmcnt(0)")
        self._flush_prev()


def srd(d, lo, hi, nbytes):
    return [f"s_mov_b32 s{d}, s{lo}", f"s_and_b32 s{d+1}, s{hi}, 0xffff",
            f"s_mov_b32 s{d+2}, {nbytes}", f"s_mov_b32 s{d+3}, 0x00020000"]

SLOT = 28672
XBASE = 49152


def gen():
    a = Asm()
    a.raw(kernel_header(NAME))
    def A(lst):
        for x in lst:
            a(x)
    NH, NW = OPT["NH"], OPT["NW"]
    sX, sWq, sWg, sWS, sWd, sWo, sO, sDbg = 36, 40, 44, 48, 52, 56, 60, 64
    s_w, s_tb, s_cb, s_g, s_mt = 68, 69, 70, 71, 72
    s_t0, s_t1, s_t2 = 74, 75, 76
    s_hst = 77
    s_n0 = 78
    s_q0, s_q3, s_v0, s_v3, s_g0, s_g3 = 4, 5, 6, 7, 8, 9
    s_m0, s_m3, s_scale, s_tg, s_qkst, s_vst = 10, 11, 12, 13, 14, 15
    s_wr = 3
    s_b1 = 73
    s_b2 = 0
    s_d0, s_d1 = 96, 97
    s_one = 16
    s_h, s_qb, s_fp, s_tch = 18, 19, 20, 21
    s_mq0, s_mq3 = 22, 23
    sTch = 24
    s_xr, s_xr1, s_tr, s_tqk = 80, 81, 82, 83
    s_kv, s_par, s_bd, s_ost = 84, 85, 86, 87
    s_tb64, s_nb, s_kh, s_cmt, s_nt = 88, 89, 90, 91, 92
    s_hb, s_hr, s_wb = 93, 94, 95
    s_wob, s_m0h, s_m0w, s_xo = 28, 29, 30, 31
    s_fo = 80
    MK = [24, 26, 16, 64, 32, 34, 40, 42]
    vX = 128
    ACC = [64, 96]
    vW = 48
    vT = 16
    v_lane, v_dq, v_dg, v_rdA, v_rdB, v_st, v_msk = 1, 2, 3, 4, 5, 6, 7
    v_bqk, v_bg0, v_bg1 = 9, 11, 12
    v_c1, v_c2, v_k1 = 8, 10, 14
    v_stk = 13
    v_stamp = 15
    v_xa = 32
    v_xw = 40
    v_xo = 44
    v_dv, v_dvh, v_bv0, v_bv1 = 40, 41, 42, 43
    v_tg, v_tq = 46, 47
    v_dw, v_d = 44, 45
    v_paH = 46
    v_paV = 47
    vQ = 240
    v_qa = 244
    v_one = 245
    v_e0, v_td = 246, 247
    v_non = 248
    v_e1, v_zero = 250, 251
    v_fa = 252
    v_pa = 253
    v_pf = 254
    t = vT

    st = Stamps(a, v_stamp)
    a("s_cmp_ge_u32 s2, 256")
    a("s_cbranch_scc1 L_end")
    st("rt", rt=True); st("t0", wait=True)
    if DBGST:
        a("s_mov_b64 s[82:83], s[0:1]")
    a("s_load_dwordx16 s[16:31], s[0:1], 0")
    a("s_load_dwordx4 s[32:35], s[0:1], 64")
    a(f"s_memrealtime s[{s_n0}:{s_n0+1}]")
    if OPT["ctouch"]:
        a(f"s_getpc_b64 s[{s_d0}:{s_d0+1}]")
        a(f"s_and_b32 s{s_t0}, s2, 0xf8")
        a(f"v_add_lshl_u32 v{t+10}, v0, s{s_t0}, 7")
        a(f"v_min_u32 v{t+10}, 26000, v{t+10}")
        a(f"v_cmp_gt_u32 vcc, 8, v0")
        a(f"s_and_saveexec_b64 s[{s_t0}:{s_t0+1}], vcc")
        a("s_cbranch_execz L_noct")
        a(f"global_load_dword v{v_td}, v{t+10}, s[{s_d0}:{s_d0+1}]")
        a("L_noct:")
        a(f"s_mov_b64 exec, -1")
    a(f"v_and_b32 v{v_lane}, 63, v0")
    a(f"v_lshrrev_b32 v{t}, 6, v0")
    a(f"v_readfirstlane_b32 s{s_w}, v{t}")
    a(f"s_and_b32 s{s_tb}, s2, 3")
    a(f"s_bfe_u32 s{s_t2}, s2, 0x20003")
    a(f"s_lshl2_add_u32 s{s_tb}, s{s_tb}, s{s_t2}")
    a(f"s_bfe_u32 s{s_cb}, s2, 0x10002")
    a(f"s_lshr_b32 s{s_t1}, s2, 5")
    a(f"s_lshl3_add_u32 s{s_cb}, s{s_cb}, s{s_t1}")
    a(f"s_lshr_b32 s{s_g}, s{s_w}, 2")
    a(f"s_and_b32 s{s_mt}, s{s_w}, 3")
    if OPT["we"] == 4:
        a(f"s_and_b32 s{s_t0}, s{s_cb}, 1")
        a(f"s_and_b32 s{s_t1}, s{s_cb}, 2")
        a(f"s_lshl2_add_u32 s{s_t0}, s{s_t1}, s{s_t0}")
    elif OPT["we"] == 2:
        a(f"s_and_b32 s{s_t0}, s{s_cb}, 1")
        a(f"s_and_b32 s{s_t1}, s{s_cb}, 6")
        a(f"s_lshl1_add_u32 s{s_t0}, s{s_t1}, s{s_t0}")
    else:
        a(f"s_and_b32 s{s_t0}, s{s_cb}, 7")
        a(f"s_lshl_b32 s{s_t0}, s{s_t0}, 1")
    a(f"s_lshl_b32 s{s_wr}, s{s_w}, 1")
    a(f"s_xor_b32 s{s_wr}, s{s_wr}, s{s_t0}")
    a(f"v_lshrrev_b32 v{t}, 3, v{v_lane}")
    a(f"v_and_b32 v{t+1}, 7, v{v_lane}")
    a(f"v_mul_u32_u24 v{v_xo}, 896, v{t}")
    a(f"v_lshl_add_u32 v{v_xo}, v{t+1}, 4, v{v_xo}")
    a(f"s_lshl4_add_u32 s{s_t0}, s{s_tb}, s{s_wr}")
    a(f"s_mul_i32 s{s_xr}, s{s_t0}, {8*896}")
    a(f"s_xor_b32 s{s_t0}, s{s_t0}, 1")
    a(f"s_mul_i32 s{s_xr1}, s{s_t0}, {8*896}")
    a(f"v_mov_b32 v{v_e1}, {OOB}")
    a("s_waitcnt lgkmcnt(0)")
    A(srd(sX, 16, 17, X_BYTES))
    vm = VM()
    def raw(e, i):
        return ACC[0] + 28 * e + 4 * i
    def xload(e, j, track=True):
        r = raw(e, j)
        a(f"buffer_load_dwordx4 v[{r}:{r+3}], v{v_xo}, s[{sX}:{sX+3}], s{s_xr1 if e else s_xr} offen offset:{128*j}")
        if track:
            vm.issue(f"x{e}{j}")
    def gtouch(sr, nl, per_wg8, vt, vmx=None):
        if per_wg8:
            a(f"s_lshl3_add_u32 s{s_t0}, s2, s{s_w}")
        else:
            a(f"s_lshl2_add_u32 s{s_t0}, s2, s{s_mt}")
        a(f"s_mul_i32 s{s_t0}, s{s_t0}, {nl}")
        a(f"v_min_u32 v{vt}, {nl-1}, v{v_lane}")
        a(f"v_add_lshl_u32 v{vt}, v{vt}, s{s_t0}, 7")
        a(f"s_mov_b64 exec, {(1 << nl) - 1}")
        a(f"buffer_load_dword v{v_td}, v{vt}, s[{sr}:{sr+3}], 0 offen")
        a(f"s_mov_b64 exec, -1")
        if vmx is not None:
            vmx.issue("t")
    XF = OPT["xf"]
    xorder = [(0, j) for j in range(7)] + [(1, j) for j in range(7)]
    A(srd(sWq, 18, 19, WQKV_BYTES))
    a(f"s_cmp_ge_u32 s{s_w}, {OPT['we']}")
    a("s_cbranch_scc1 L_x0skip0")
    for k, (e, j) in enumerate(xorder[:XF]):
        xload(e, j, False)
    a("L_x0skip0:")
    a(f"s_cmp_lg_u32 s{s_g}, 0")
    a("s_cbranch_scc1 L_x0skip")
    gtouch(sWq, 10, False, t + 10)
    if OPT["tlb"]:
        a(f"s_cmp_lg_u32 s{s_w}, 3")
        a("s_cbranch_scc1 L_x0skip")
        a(f"v_lshlrev_b32 v{t+10}, {OPT['tlb']}, v{v_lane}")
        a(f"s_mov_b64 exec, {(1 << min(32, (18 << 20) >> OPT['tlb'])) - 1}")
        a(f"global_load_dword v{v_td}, v{t+10}, s[34:35] sc1")
        a(f"s_mov_b64 exec, 1")
        for p in (20, 24, 26, 28, 30, 32):
            a(f"global_load_dword v{v_td}, v{t+10}, s[{p}:{p+1}] sc1")
        a(f"s_mov_b64 exec, -1")
    a("L_x0skip:")
    a(f"s_cmp_eq_u32 s{s_g}, 0")
    a(f"s_cselect_b32 s{sWg}, s24, s26")
    a(f"s_cselect_b32 s{sWg+1}, s25, s27")
    a(f"s_and_b32 s{sWg+1}, s{sWg+1}, 0xffff")
    a(f"s_mov_b32 s{sWg+2}, {WG_BYTES}")
    a(f"s_mov_b32 s{sWg+3}, 0x00020000")
    A(srd(sDbg, 32, 33, 256))
    a(f"s_or_b32 s{s_n0}, s{s_n0}, 1")
    a(f"v_mov_b32 v{v_non}, s{s_n0}")
    a(f"v_mov_b32 v{v_non+1}, s{s_n0+1}")
    a(f"v_cmp_eq_u32 s[{s_d0}:{s_d0+1}], 0, v0")
    a(f"v_cndmask_b32 v{v_fa}, v{v_e1}, 0, s[{s_d0}:{s_d0+1}]")
    a(f"s_cmp_eq_u32 s2, 0")
    a(f"s_cselect_b64 s[{s_d0}:{s_d0+1}], s[{s_d0}:{s_d0+1}], 0")
    a(f"v_cndmask_b32 v{v_e0}, v{v_e1}, 0, s[{s_d0}:{s_d0+1}]")
    a(f"v_mov_b32 v{v_zero}, 0")
    a(f"v_bfe_u32 v{t+2}, v{v_lane}, 4, 1")
    a(f"v_lshlrev_b32 v{t+3}, 2, v{t+2}")
    a(f"v_xor_b32 v{t+3}, v{t+3}, v{t+1}")
    a(f"v_mul_u32_u24 v{v_dq}, 2688, v{t}")
    a(f"v_lshl_add_u32 v{v_dq}, v{t+3}, 4, v{v_dq}")
    a(f"v_lshlrev_b32 v{t+3}, 1, v{t+2}")
    a(f"v_xor_b32 v{t+3}, v{t+3}, v{t+1}")
    a(f"s_lshl_b32 s{s_t1}, s{s_g}, 2")
    a(f"v_xor_b32 v{t+3}, s{s_t1}, v{t+3}")
    a(f"v_mul_u32_u24 v{v_dg}, 3584, v{t}")
    a(f"v_lshl_add_u32 v{v_dg}, v{t+3}, 4, v{v_dg}")
    a(f"s_lshl_b32 s{s_t0}, s{s_wr}, 3")
    for e in range(2):
        a(f"v_add_u32 v{t+2}, s{s_t0}, v{t}")
        if e:
            a(f"v_xor_b32 v{t+2}, 8, v{t+2}")
        a(f"v_bfe_u32 v{t+3}, v{t+2}, 1, 3")
        a(f"v_xor_b32 v{t+3}, v{t+3}, v{t+1}")
        a(f"v_lshlrev_b32 v{t+2}, 7, v{t+2}")
        a(f"v_lshl_add_u32 v{t+2}, v{t+3}, 4, v{t+2}")
        a(f"v_add_u32 v{v_xw+e}, {XBASE}, v{t+2}")
        a(f"v_add_u32 v{v_xw+2+e}, {XBASE+65536}, v{t+2}")
    a(f"s_mul_i32 s{s_g0}, s{s_mt}, {8*3584}")
    a(f"s_mul_i32 s{s_g3}, s{s_mt}, {4*3584}")
    a(f"s_add_u32 s{s_g3}, s{s_g3}, {96*3584}")
    a(f"s_mul_i32 s{s_q0}, s{s_w}, {8*2688}")
    a(f"s_mul_i32 s{s_v0}, s{s_w}, {4*2688}")
    a(f"s_add_u32 s{s_q3}, s{s_v0}, {128*2688}")
    a(f"s_lshr_b32 s{s_t0}, s{s_cb}, 2")
    a(f"s_mul_i32 s{s_t1}, s{s_t0}, 224")
    a(f"s_add_u32 s{s_t1}, s{s_t1}, {56*32}")
    a(f"s_mul_i32 s{s_v3}, s{s_w}, {2*2688}")
    a(f"s_add_u32 s{s_v0}, s{s_v0}, s{s_t1}")
    a(f"s_add_u32 s{s_v3}, s{s_v3}, s{s_t1}")
    a(f"s_add_u32 s{s_v3}, s{s_v3}, {96*2688}")
    a(f"s_mul_i32 s{s_t1}, s{s_cb}, 112")
    a(f"s_add_u32 s{s_q0}, s{s_q0}, s{s_t1}")
    a(f"s_add_u32 s{s_q3}, s{s_q3}, s{s_t1}")
    a(f"s_mul_i32 s{s_t1}, s{s_t0}, 448")
    a(f"s_and_b32 s{s_t0}, s{s_cb}, 3")
    a(f"s_lshl_b32 s{s_hst}, s{s_t0}, 7")
    a(f"s_add_u32 s{s_t1}, s{s_t1}, s{s_hst}")
    a(f"s_lshl1_add_u32 s{s_g0}, s{s_t1}, s{s_g0}")
    a(f"s_lshl1_add_u32 s{s_g3}, s{s_t1}, s{s_g3}")
    a(f"s_lshl_b32 s{s_hst}, s{s_t1}, 6")
    a(f"s_mul_i32 s{s_m0}, s{s_g}, {112*128}")
    a(f"s_lshl_b32 s{s_t1}, s{s_mt}, 9")
    a(f"s_add_u32 s{s_m3}, s{s_m0}, s{s_t1}")
    a(f"s_add_u32 s{s_m3}, s{s_m3}, {96*128}")
    a(f"s_lshl1_add_u32 s{s_m0}, s{s_t1}, s{s_m0}")
    a(f"s_lshl_b32 s{s_mq0}, s{s_w}, 10")
    a(f"s_lshl_b32 s{s_mq3}, s{s_w}, 9")
    a(f"s_add_u32 s{s_mq3}, s{s_mq3}, {128*128}")
    a(f"v_bfe_u32 v{t}, v{v_lane}, 2, 2")
    a(f"v_and_b32 v{t+1}, 3, v{v_lane}")
    a(f"v_bfe_u32 v{t+2}, v{v_lane}, 4, 1")
    a(f"v_lshrrev_b32 v{t+3}, 5, v{v_lane}")
    a(f"v_lshrrev_b32 v{t+4}, 1, v{t+1}")
    a(f"v_and_b32 v{t+5}, 1, v{t+1}")
    a(f"v_lshl_or_b32 v{t+4}, v{t+5}, 1, v{t+4}")
    a(f"v_lshl_add_u32 v{t+5}, v{t+3}, 3, v{t}")
    a(f"v_lshlrev_b32 v{t+5}, 7, v{t+5}")
    a(f"v_lshrrev_b32 v{t+6}, 1, v{t}")
    a(f"s_mul_i32 s{s_t0}, s{s_g}, 56")
    a(f"v_lshlrev_b32 v{t+7}, 5, v{t+2}")
    a(f"v_lshl_add_u32 v{t+7}, v{t+4}, 3, v{t+7}")
    a(f"v_add_u32 v{t+7}, s{s_t0}, v{t+7}")
    a(f"v_lshlrev_b32 v{t+8}, 6, v{t+6}")
    a(f"v_xor_b32 v{t+7}, v{t+7}, v{t+8}")
    a(f"v_add_u32 v{v_bqk}, v{t+7}, v{t+5}")
    a(f"v_lshl_or_b32 v{t+7}, v{t+2}, 1, v{t+6}")
    a(f"s_lshl_b32 s{s_t0}, s{s_g}, 1")
    a(f"v_xor_b32 v{t+7}, s{s_t0}, v{t+7}")
    a(f"v_mul_u32_u24 v{t+8}, 14336, v{t+2}")
    a(f"v_add_u32 v{t+8}, v{t+8}, v{t+5}")
    a(f"v_lshl_add_u32 v{t+8}, v{t+4}, 3, v{t+8}")
    a(f"v_lshl_add_u32 v{v_bg0}, v{t+7}, 5, v{t+8}")
    a(f"v_xor_b32 v{v_bg1}, 32, v{v_bg0}")
    a(f"v_and_b32 v{t}, 0x13, v{v_lane}")
    a(f"v_bfe_u32 v{t+1}, v{v_lane}, 2, 1")
    a(f"v_lshl_or_b32 v{t}, v{t+1}, 3, v{t}")
    a(f"v_bfe_u32 v{t+1}, v{v_lane}, 3, 1")
    a(f"v_lshl_or_b32 v{t}, v{t+1}, 2, v{t}")
    a(f"s_lshl_b32 s{s_t0}, s{s_mt}, 5")
    a(f"v_add_u32 v{t}, s{s_t0}, v{t}")
    a(f"v_bfe_u32 v{t+1}, v{t}, 1, 3")
    a(f"v_xor_b32 v{t+1}, v{t+1}, v{t+3}")
    a(f"v_lshlrev_b32 v{t}, 7, v{t}")
    a(f"v_lshl_add_u32 v{t}, v{t+1}, 4, v{t}")
    a(f"v_add_u32 v{v_xa}, {XBASE}, v{t}")
    for s2 in range(1, 4):
        a(f"v_xor_b32 v{v_xa+s2}, {32*s2}, v{v_xa}")
    for s2 in range(4):
        a(f"v_add_u32 v{v_xa+4+s2}, 65536, v{v_xa+s2}")

    def dmaA(chunk, slot, tag):
        kind, idx, part = chunk
        G = []
        for jj in range(4):
            g = []
            rowb = 128
            m3x = 0
            if kind == "qk":
                b0, b3 = s_q0, s_q3
                stride = 2688
                off = 224 * part * stride
                sr, vo = sWq, v_dq
                rows = [0, 64, None, 160][jj]
                m0r, m3r = s_mq0, s_mq3
            elif kind == "v":
                b0, b3 = s_v0, s_v3
                stride = 2688
                off = 112 * part * stride
                rows = [0, 32, 64, None][jj]
                sr, vo = sWq, (v_dvh if rows is None else v_dv)
                m0r, m3r = s_mq0, s_mq3
                rowb = 256
                m3x = 8192
            else:
                b0, b3 = s_g0, s_g3
                stride = 3584
                off = 112 * part * stride + 128 * idx
                sr, vo = sWg, v_dg
                rows = [0, 32, 64, None][jj]
                m0r, m3r = s_m0, s_m3
            half = rows is None
            if not half:
                g.append(f"s_add_u32 m0, s{m0r}, {slot*SLOT + rows*rowb}")
                g.append(f"s_add_u32 s{s_b1}, s{b0}, {off + rows*stride}")
            else:
                g.append(f"s_add_u32 m0, s{m3r}, {slot*SLOT + m3x}")
                g.append(f"s_add_u32 s{s_b1}, s{b3}, {off}")
                g.append("s_mov_b32 exec_hi, 0")
            g.append(f"buffer_load_dwordx4 v{vo}, s[{sr}:{sr+3}], s{s_b1} offen lds")
            if half:
                g.append("s_mov_b32 exec_hi, -1")
            G.append((g, tag))
        return G

    def emit_group(vm, grp):
        g, tag = grp
        for ins in g:
            a(ins)
            if ins.startswith("buffer_"):
                vm.issue(tag)

    seq1 = [("qk", 0, 0), ("qk", 0, 1)] + [("gu", 0, p) for p in range(4)] + [("gu", 1, p) for p in range(4)]
    seq2 = [("qk", 0, 0), ("qk", 0, 1)] + [("v", 0, p) for p in range(4)] + [("gu", 0, p) for p in range(4)]
    c1groups = dmaA(seq1[1], 1, "c1")
    early = dmaA(seq1[0], 0, "c0") + c1groups[:OPT["c1e"]]
    c1b = (c1groups[3][0], "c1b")
    def deferred(is2):
        D = []
        S = D.append
        tt = vT
        d0, d1 = s_d0, s_d1
        if is2:
            S(f"v_lshrrev_b32 v{tt}, 4, v{v_lane}")
            S(f"v_and_b32 v{tt+1}, 15, v{v_lane}")
            S(f"v_mul_u32_u24 v{tt+2}, 2688, v{tt}")
            S(f"v_lshlrev_b32 v{tt+3}, 2, v{tt}")
            S(f"v_xor_b32 v{tt+3}, v{tt+3}, v{tt+1}")
            S(f"v_lshl_add_u32 v{v_dv}, v{tt+3}, 4, v{tt+2}")
            S(f"s_and_b32 s{d0}, s{s_w}, 1")
            S(f"s_lshl_b32 s{d0}, s{d0}, 7")
            S(f"v_lshlrev_b32 v{tt+3}, 4, v{tt+3}")
            S(f"v_xor_b32 v{tt+3}, s{d0}, v{tt+3}")
            S(f"v_add_u32 v{v_dvh}, v{tt+3}, v{tt+2}")
            S(f"v_bfe_u32 v{tt}, v{v_lane}, 2, 2")
            S(f"v_and_b32 v{tt+1}, 3, v{v_lane}")
            S(f"v_bfe_u32 v{tt+2}, v{v_lane}, 4, 1")
            S(f"v_lshrrev_b32 v{tt+3}, 5, v{v_lane}")
            S(f"v_lshl_add_u32 v{tt+3}, v{tt+3}, 3, v{tt}")
            S(f"v_lshlrev_b32 v{tt+3}, 8, v{tt+3}")
            S(f"v_lshlrev_b32 v{tt+1}, 4, v{tt+1}")
            S(f"v_lshl_add_u32 v{tt+1}, v{tt+2}, 3, v{tt+1}")
            S(f"s_mul_i32 s{d0}, s{s_g}, 112")
            S(f"v_add_u32 v{tt+1}, s{d0}, v{tt+1}")
            S(f"v_lshlrev_b32 v{tt}, 6, v{tt}")
            S(f"v_xor_b32 v{tt+2}, v{tt+1}, v{tt}")
            S(f"v_add_u32 v{v_bv0}, v{tt+2}, v{tt+3}")
            S(f"v_add_u32 v{tt+1}, 56, v{tt+1}")
            S(f"v_xor_b32 v{tt+2}, v{tt+1}, v{tt}")
            S(f"v_add_u32 v{v_bv1}, v{tt+2}, v{tt+3}")
        return D

    def deferred_common():
        D = []
        S = D.append
        tt = vT
        d0, d1 = s_d0, s_d1
        is2 = True
        D += srd(sWS, 34, 35, WS_BYTES) + srd(sWd, 28, 29, WD_BYTES) + srd(sWo, 20, 21, WO_BYTES) + srd(sO, 30, 31, X_BYTES)
        S(f"s_cmp_lt_u32 s{s_cb}, 8\ns_cselect_b32 s{s_scale}, 0x{f2u(QSCALE):08x}, 1.0")
        S(f"s_lshl1_add_u32 s{s_qkst}, s{s_cb}, s{s_g}")
        S(f"s_lshl_b32 s{s_qkst}, s{s_qkst}, 17")
        S(f"s_lshl2_add_u32 s{d0}, s{s_tb}, s{s_mt}")
        S(f"s_mul_i32 s{d1}, s{d0}, {NKS*1024}")
        S(f"s_add_u32 s{s_hst}, s{s_hst}, s{d1}")
        S(f"s_lshl_b32 s{d1}, s{s_g}, 11")
        S(f"s_add_u32 s{s_hst}, s{s_hst}, s{d1}")
        S(f"s_add_u32 s{s_hst}, s{s_hst}, {HF}")
        S(f"s_lshl_b32 s{d0}, s{d0}, 11")
        S(f"s_add_u32 s{s_qkst}, s{s_qkst}, s{d0}")
        if is2:
            S(f"s_and_b32 s{s_vst}, s{s_cb}, 12")
            S(f"s_lshl1_add_u32 s{s_vst}, s{s_g}, s{s_vst}")
            S(f"s_lshl_b32 s{s_vst}, s{s_vst}, 17")
            S(f"s_add_u32 s{s_vst}, s{s_vst}, s{d0}")
            S(f"s_add_u32 s{s_vst}, s{s_vst}, {VF}")
            S(f"v_and_b32 v{tt}, 31, v{v_lane}")
            S(f"v_cmp_eq_u32 s[{s_one}:{s_one+1}], 28, v{tt}")
            S(f"v_mov_b32 v{v_one}, 0x3f803f80")
        S(f"s_and_b32 s{s_wr}, s{s_tb}, 3")
        S(f"v_mov_b32 v{v_c1}, 0x{f2u(GC1):08x}")
        S(f"v_mov_b32 v{v_c2}, 0x{f2u(GC2):08x}")
        S(f"v_mov_b32 v{v_k1}, 1.0")
        S(f"v_lshlrev_b32 v{v_st}, 4, v{v_lane}")
        S(f"v_bfe_u32 v{tt}, v{v_lane}, 3, 1")
        S(f"v_lshlrev_b32 v{tt}, 4, v{tt}")
        S(f"v_bfe_u32 v{tt+1}, v{v_lane}, 4, 1")
        S(f"v_lshl_or_b32 v{tt}, v{tt+1}, 3, v{tt}")
        S(f"v_and_b32 v{tt+1}, 0x27, v{v_lane}")
        S(f"v_or_b32 v{tt}, v{tt}, v{tt+1}")
        S(f"v_lshlrev_b32 v{v_stk}, 4, v{tt}")
        S(f"s_cmp_lt_u32 s{s_cb}, 8\ns_cselect_b64 s[{d0}:{d0+1}], -1, 0")
        S(f"v_cndmask_b32 v{v_stk}, v{v_stk}, v{v_st}, s[{d0}:{d0+1}]")
        S(f"v_cmp_gt_u32 s[{d0}:{d0+1}], 32, v{v_lane}")
        S(f"v_cndmask_b32 v{v_msk}, 0, -1, s[{d0}:{d0+1}]")
        return D

    if not OPT["dcl"]:
        for x in deferred_common():
            a(x)
    st("setup")

    F = vX
    a(f"s_cmp_lt_u32 s{s_w}, {OPT['we']}")
    a("s_cbranch_scc1 L_x0skip2")
    for (e, j) in xorder[:XF]:
        xload(e, j, False)
    a("L_x0skip2:")
    for (e, j) in xorder[:XF]:
        vm.issue(f"x{e}{j}")
    if OPT["dcl"]:
        for x in deferred_common():
            a(x)
    xrest = list(xorder[XF:])
    if not OPT["xil"]:
        while xrest:
            xload(*xrest.pop(0))
    def qdma(i0_, i1_, lab):
        a(f"s_cmp_lg_u32 s{s_g}, 0")
        a(f"s_cbranch_scc1 L_nodma{lab}")
        for i in range(i0_, i1_):
            a(f"s_add_u32 m0, s{s_mq0}, {32*i*128}")
            a(f"s_add_u32 s{s_b1}, s{s_q0}, {32*i*2688}")
            a(f"buffer_load_dwordx4 v{v_dq}, s[{sWq}:{sWq+3}], s{s_b1} offen lds")
            vm.issue("c0" if i < 7 else "c1")
        a(f"L_nodma{lab}:")
    if OPT["lnm"]:
        MF = "v_mfma_f32_4x4x4_16b_bf16"
        vOnes, vM = t, t + 2
        vAh, vAl, vB = t + 4, t + 6, t + 8
        S_, Q_, R_, U_ = t + 12, t + 13, t + 14, t + 15
        SA = [F, F + 4]
        QA = [F + 8, F + 12]
        D0 = F + 16
        sJ = [4, 6, 8]
        a(f"v_mov_b32 v{vOnes}, 0x3f803f80")
        a(f"v_mov_b32 v{vOnes+1}, 0x3f803f80")
        a(f"v_and_b32 v{U_}, 3, v{v_lane}")
        a(f"v_and_b32 v{R_}, 1, v{v_lane}")
        a(f"v_lshlrev_b32 v{R_}, 4, v{R_}")
        a(f"v_mov_b32 v{S_}, 0xffff")
        a(f"v_lshlrev_b32 v{S_}, v{R_}, v{S_}")
        a(f"v_cmp_gt_u32 s[{s_kv}:{s_kv+1}], 2, v{U_}")
        a(f"v_cmp_eq_u32 s[{s_bd}:{s_bd+1}], 0, v{R_}")
        a(f"v_cndmask_b32 v{vM}, 0, v{S_}, s[{s_kv}:{s_kv+1}]")
        a(f"v_cndmask_b32 v{vM+1}, v{S_}, 0, s[{s_kv}:{s_kv+1}]")
        Q4 = lambda r: f"v[{r}:{r+3}]"
        P2 = lambda r: f"v[{r}:{r+1}]"
        for e in range(2):
            for j in range(7):
                if xrest:
                    xload(*xrest.pop(0))
                a(f"s_waitcnt vmcnt({vm.wait_n(f'x{e}{j}')})")
                if (e, j) in ((0, 0), (1, 6)):
                    st(f"x{e}{j}")
                r = raw(e, j)
                for h2 in range(2):
                    cs = "0" if j == 0 else Q4(SA[h2])
                    a(f"{MF} {Q4(SA[h2])}, {P2(vOnes)}, {P2(r+2*h2)}, {cs}")
                    cq = "0" if j == 0 else Q4(QA[h2])
                    a(f"{MF} {Q4(QA[h2])}, {P2(r+2*h2)}, {P2(r+2*h2)}, {cq}")
            if e == 1 and OPT["dmae"]:
                qdma(0, OPT["dmae"], "a")
            a(f"v_add_f32 v{S_}, v{SA[0]}, v{SA[1]}")
            for k in range(0, 4, 2):
                a(f"v_pk_add_f32 {P2(QA[0]+k)}, {P2(QA[0]+k)}, {P2(QA[1]+k)}")
            a(f"v_cndmask_b32 v{QA[0]}, v{QA[0]+1}, v{QA[0]}, s[{s_bd}:{s_bd+1}]")
            a(f"v_cndmask_b32 v{QA[0]+2}, v{QA[0]+3}, v{QA[0]+2}, s[{s_bd}:{s_bd+1}]")
            a(f"v_cndmask_b32 v{Q_}, v{QA[0]+2}, v{QA[0]}, s[{s_kv}:{s_kv+1}]")
            for pat in ("quad_perm:[1,0,3,2]", "quad_perm:[2,3,0,1]", "row_half_mirror"):
                for r in (S_, Q_):
                    a(f"v_add_f32_dpp v{r}, v{r}, v{r} {pat} row_mask:0xf bank_mask:0xf")
            a(f"v_mul_f32 v{S_}, 0x{f2u(1.0/448):08x}, v{S_}")
            a(f"v_mul_f32 v{Q_}, 0x{f2u(1.0/448):08x}, v{Q_}")
            a(f"v_fma_f32 v{Q_}, -v{S_}, v{S_}, v{Q_}")
            a(f"v_max_f32 v{Q_}, 0, v{Q_}")
            a(f"v_add_f32 v{Q_}, 0x{f2u(1e-5):08x}, v{Q_}")
            a(f"v_rsq_f32 v{R_}, v{Q_}")
            a(f"v_cvt_pk_bf16_f32 v{U_}, v{R_}, v{R_}")
            a(f"v_mul_f32 v{vB}, -v{S_}, v{R_}")
            a(f"v_and_b32 v{Q_}, 0xffff0000, v{U_}")
            a(f"v_and_b32 v{vAh}, v{U_}, v{vM}")
            a(f"v_and_b32 v{vAh+1}, v{U_}, v{vM+1}")
            a(f"v_sub_f32 v{Q_}, v{R_}, v{Q_}")
            a(f"v_cvt_pk_bf16_f32 v{U_}, v{Q_}, v{Q_}")
            for k in range(1, 4):
                a(f"v_mov_b32 v{vB+k}, v{vB}")
            a(f"v_and_b32 v{vAl}, v{U_}, v{vM}")
            a(f"v_and_b32 v{vAl+1}, v{U_}, v{vM+1}")
            def hi(j, h2):
                r = raw(e, j); d = D0 + 8 * (j % 4)
                return f"{MF} {Q4(d+4*h2)}, {P2(vAh)}, {P2(r+2*h2)}, {Q4(vB)}"
            def lo(j, h2):
                r = raw(e, j); d = D0 + 8 * (j % 4)
                return f"{MF} {Q4(d+4*h2)}, {P2(vAl)}, {P2(r+2*h2)}, {Q4(d+4*h2)}"
            def cv(j, k):
                r = raw(e, j); d = D0 + 8 * (j % 4)
                return f"v_cvt_pk_bf16_f32 v{r+k}, v{d+2*k}, v{d+2*k+1}"
            for j in range(-3, 7):
                mf = []
                if 0 <= j + 3 < 7:
                    mf += [hi(j + 3, 0), hi(j + 3, 1)]
                if 0 <= j + 2 < 7:
                    mf += [lo(j + 2, 0), lo(j + 2, 1)]
                for k in range(4):
                    if k < len(mf):
                        a(mf[k])
                    if j >= 0:
                        a(cv(j, k))
                if j >= 0:
                    r = raw(e, j)
                    a(f"ds_write_b128 v{v_xw + e + (2 if j >= 4 else 0)}, v[{r}:{r+3}] offset:{(j % 4)*16384}")
    else:
        S_, Q_, R_ = t, t + 2, t + 4
        for e in range(2):
            for j in range(7):
                if xrest:
                    xload(*xrest.pop(0))
                a(f"s_waitcnt vmcnt({vm.wait_n(f'x{e}{j}')})")
                if (e, j) in ((0, 0), (1, 6)):
                    st(f"x{e}{j}")
                for d in range(4):
                    r = raw(e, j) + d
                    f = F + 8 * j + 2 * d
                    a(f"v_lshlrev_b32 v{f}, 16, v{r}")
                    a(f"v_and_b32 v{f+1}, 0xffff0000, v{r}")
                for d in range(4):
                    f = F + 8 * j + 2 * d
                    if j == 0 and d == 0:
                        a(f"v_pk_mul_f32 v[{Q_}:{Q_+1}], v[{f}:{f+1}], v[{f}:{f+1}]")
                    elif j == 0 and d == 1:
                        a(f"v_pk_add_f32 v[{S_}:{S_+1}], v[{f-2}:{f-1}], v[{f}:{f+1}]")
                        a(f"v_pk_fma_f32 v[{Q_}:{Q_+1}], v[{f}:{f+1}], v[{f}:{f+1}], v[{Q_}:{Q_+1}]")
                    else:
                        a(f"v_pk_add_f32 v[{S_}:{S_+1}], v[{S_}:{S_+1}], v[{f}:{f+1}]")
                        a(f"v_pk_fma_f32 v[{Q_}:{Q_+1}], v[{f}:{f+1}], v[{f}:{f+1}], v[{Q_}:{Q_+1}]")
            if e == 1 and OPT["dmae"]:
                qdma(0, OPT["dmae"], "a")
            for r in (S_, Q_):
                a(f"v_add_f32 v{r}, v{r}, v{r+1}")
            for pat in ("quad_perm:[1,0,3,2]", "quad_perm:[2,3,0,1]", "row_half_mirror"):
                for r in (S_, Q_):
                    a(f"v_add_f32_dpp v{r}, v{r}, v{r} {pat} row_mask:0xf bank_mask:0xf")
            a(f"v_mul_f32 v{S_}, 0x{f2u(1.0/448):08x}, v{S_}")
            a(f"v_mul_f32 v{Q_}, 0x{f2u(1.0/448):08x}, v{Q_}")
            a(f"v_fma_f32 v{Q_}, -v{S_}, v{S_}, v{Q_}")
            a(f"v_max_f32 v{Q_}, 0, v{Q_}")
            a(f"v_add_f32 v{Q_}, 0x{f2u(1e-5):08x}, v{Q_}")
            a(f"v_rsq_f32 v{R_}, v{Q_}")
            a(f"v_mul_f32 v{R_+2}, -v{S_}, v{R_}")
            for j in range(7):
                for d in range(4):
                    f = F + 8 * j + 2 * d
                    a(f"v_pk_fma_f32 v[{f}:{f+1}], v[{f}:{f+1}], v[{R_}:{R_+1}], v[{R_+2}:{R_+3}] op_sel_hi:[1,0,0]")
                for d in range(4):
                    f = F + 8 * j + 2 * d
                    a(f"v_cvt_pk_bf16_f32 v{raw(e, j)+d}, v{f}, v{f+1}")
                r = raw(e, j)
                a(f"ds_write_b128 v{v_xw + e + (2 if j >= 4 else 0)}, v[{r}:{r+3}] offset:{(j % 4)*16384}")
    st("lnend")
    qdma(OPT["dmae"], 12, "b")
    gtouch(sWg, 13, False, t + 10, vm)
    a(f"buffer_store_dwordx2 v[{v_non}:{v_non+1}], v{v_e0}, s[{sDbg}:{sDbg+3}], 0 offen sc1")
    vm.issue("t")
    a(f"s_waitcnt vmcnt({vm.wait_n('c0')}) lgkmcnt(0)")
    a("s_barrier")
    st("B1")
    if OPT["mprio"]:
        a(f"s_cmp_eq_u32 s{s_g}, 0")
        a("s_cbranch_scc1 L_noprio")
        a("s_setprio 1")
        a("L_noprio:")
    a(f"s_and_b32 s{s_t0}, s{s_cb}, 3")
    a(f"s_cmp_eq_u32 s{s_t0}, 3")
    a("s_cbranch_scc1 L_type2")

    def deferred2():
        D = []
        S = D.append
        tt = vT + 8
        d0, d1 = s_d0, s_d1
        S(f"s_and_b32 s{d0}, s2, 7")
        S(f"s_lshr_b32 s{d1}, s2, 7")
        S(f"s_lshl1_add_u32 s{s_h}, s{d0}, s{d1}")
        S(f"s_bfe_u32 s{s_qb}, s2, 0x40003")
        S(f"s_bfe_u32 s{d1}, s2, 0x20003")
        S(f"s_lshl2_add_u32 s{s_tb64}, s{d0}, s{d1}")
        S(f"s_lshr_b32 s{s_nb}, s2, 5")
        S(f"s_lshr_b32 s{d0}, s{s_h}, 1")
        S(f"s_or_b32 s{d1}, s{s_h}, 3")
        S(f"v_min_u32 v{tt}, 1, v{v_lane}")
        S(f"v_sub_u32 v{tt+1}, v{v_lane}, v{tt}")
        S(f"v_sub_u32 v{tt+1}, s{s_qb}, v{tt+1}")
        S(f"v_max_i32 v{tt+1}, 0, v{tt+1}")
        S(f"v_lshl_add_u32 v{tt}, v{tt}, 3, s{d0}")
        S(f"v_lshl_add_u32 v{tt}, v{tt+1}, 4, v{tt}")
        S(f"v_lshlrev_b32 v{tt}, 3, v{tt}")
        S(f"v_add_u32 v{tt}, {FL + F_QK*2048}, v{tt}")
        S(f"v_sub_u32 v{tt+1}, s{s_qb}, v{v_lane}")
        S(f"v_max_i32 v{tt+1}, 0, v{tt+1}")
        S(f"v_lshl_add_u32 v{tt+1}, v{tt+1}, 4, s{d1}")
        S(f"v_lshlrev_b32 v{tt+1}, 3, v{tt+1}")
        S(f"v_add_u32 v{tt+1}, {FL + F_V*2048}, v{tt+1}")
        S(f"v_mov_b32 v{tt+2}, {OOB}")
        S(f"v_cmp_gt_u32 s[{d0}:{d0+1}], 4, v0")
        S(f"v_cndmask_b32 v{v_pa}, v{tt+2}, v{tt}, s[{d0}:{d0+1}]")
        S(f"v_cndmask_b32 v{v_paV}, v{tt+2}, v{tt+1}, s[{d0}:{d0+1}]")
        S(f"s_lshr_b32 s{d0}, s{s_tb64}, 1")
        S(f"s_lshl_b32 s{d0}, s{d0}, 7")
        S(f"s_add_u32 s{d0}, s{d0}, {FL + F_H*2048}")
        S(f"v_lshl_add_u32 v{tt}, v{v_lane}, 3, s{d0}")
        S(f"v_cmp_gt_u32 s[{d0}:{d0+1}], 16, v{0 if OPT['p1'] else v_lane}")
        S(f"v_cndmask_b32 v{v_paH}, v{tt+2}, v{tt}, s[{d0}:{d0+1}]")
        S(f"s_lshl4_add_u32 s{s_fp}, s{s_tb}, s{s_cb}")
        S(f"s_lshl_b32 s{s_fp}, s{s_fp}, 3")
        S(f"s_add_u32 s{s_fp}, s{s_fp}, {FL}")
        S(f"s_lshl4_add_u32 s{s_fo}, s{s_qb}, s{s_h}")
        S(f"s_lshl_b32 s{s_fo}, s{s_fo}, 3")
        S(f"s_add_u32 s{s_fo}, s{s_fo}, {FL}")
        S(f"s_lshl_b32 s{s_kv}, s{s_h}, 17")
        S(f"s_lshl_b32 s{d0}, s{s_qb}, 13")
        S(f"s_mul_i32 s{d1}, s{s_w}, 3072")
        S(f"s_add_u32 s{d1}, s{d1}, s{d0}")
        for j in range(3):
            S(f"s_sub_u32 s{81+j}, s{d1}, {16384 - 1024*j}")
            S(f"s_max_i32 s{81+j}, s{81+j}, 0")
            S(f"s_add_u32 s{81+j}, s{81+j}, s{s_kv}")
        S(f"s_add_u32 s{s_kv}, s{s_kv}, s{d0}")
        S(f"v_and_b32 v{tt}, 15, v{v_lane}")
        S(f"v_lshrrev_b32 v{tt+1}, 4, v{v_lane}")
        S(f"v_lshlrev_b32 v{v_qa}, 9, v{tt+1}")
        S(f"v_lshl_add_u32 v{v_qa}, v{tt}, 4, v{v_qa}")
        S(f"s_and_b32 s{s_nt}, s{s_w}, 1")
        S(f"s_lshl_b32 s{s_par}, s{s_nt}, 8")
        S(f"s_lshr_b32 s{s_bd}, s{s_w}, 1")
        S(f"s_lshl2_add_u32 s{s_bd}, s{s_qb}, s{s_bd}")
        S(f"s_mul_i32 s{s_ost}, s{s_bd}, {NKS*1024}")
        S(f"s_lshl_b32 s{d0}, s{s_h}, 11")
        S(f"s_add_u32 s{s_ost}, s{s_ost}, s{d0}")
        S(f"s_add_u32 s{s_ost}, s{s_ost}, s{s_par}")
        S(f"s_add_u32 s{s_ost}, s{s_ost}, {HF + 112*1024}")
        S(f"v_and_b32 v{v_d}, 3, v{v_lane}")
        S(f"v_bfe_u32 v{tt}, v{v_lane}, 2, 1")
        S(f"v_lshl_or_b32 v{v_d}, v{tt}, 3, v{v_d}")
        S(f"v_bfe_u32 v{tt}, v{v_lane}, 3, 1")
        S(f"v_lshl_or_b32 v{v_d}, v{tt}, 2, v{v_d}")
        S(f"s_lshl_b32 s{d0}, s{s_nt}, 4")
        S(f"v_add_u32 v{v_d}, s{d0}, v{v_d}")
        S(f"v_lshlrev_b32 v{tt}, 3, v{tt+1}")
        S(f"v_sub_u32 v{v_d}, v{v_d}, v{tt}")
        S(f"s_lshr_b32 s{s_kh}, s{s_w}, 2")
        S(f"s_bfe_u32 s{s_cmt}, s{s_w}, 0x10001")
        S(f"v_lshrrev_b32 v{tt}, 3, v{v_lane}")
        S(f"v_and_b32 v{tt+1}, 7, v{v_lane}")
        S(f"v_bfe_u32 v{tt+2}, v{v_lane}, 4, 1")
        S(f"v_lshlrev_b32 v{tt+3}, 2, v{tt+2}")
        S(f"v_xor_b32 v{tt+3}, v{tt+3}, v{tt+1}")
        S(f"v_mul_u32_u24 v{v_dw}, 896, v{tt}")
        S(f"v_lshl_add_u32 v{v_dw}, v{tt+3}, 4, v{v_dw}")
        S(f"s_lshl_b32 s{s_m0h}, s{s_w}, 11")
        S(f"s_add_u32 s{s_m0w}, s{s_m0h}, {NH*16384}")
        S(f"s_mul_i32 s{s_wb}, s{s_w}, {16*896}")
        S(f"s_lshl_b32 s{d0}, s{s_nb}, 7")
        S(f"s_add_u32 s{s_wb}, s{s_wb}, s{d0}")
        S(f"s_lshr_b32 s{s_wob}, s{s_w}, 1")
        S(f"s_mul_i32 s{s_wob}, s{s_wob}, 28")
        S(f"s_lshl4_add_u32 s{s_wob}, s{s_nt}, s{s_wob}")
        S(f"s_mul_i32 s{s_wob}, s{s_wob}, 896")
        S(f"s_add_u32 s{s_wob}, s{s_wob}, s{d0}")
        S(f"s_lshl1_add_u32 s{d1}, s{s_tb64}, s{s_cmt}")
        S(f"s_mul_i32 s{s_xo}, s{d1}, {32*896}")
        S(f"s_add_u32 s{s_xo}, s{s_xo}, s{d0}")
        S(f"s_lshl_b32 s{d0}, s{s_nt}, 6")
        S(f"s_add_u32 s{s_xo}, s{s_xo}, s{d0}")
        S(f"s_lshl_b32 s{d0}, s{s_kh}, 5")
        S(f"s_add_u32 s{s_xo}, s{s_xo}, s{d0}")
        if OPT["rotc"]:
            S(f"s_lshl_b32 s{s_hr}, s{s_nb}, 14")
            S(f"s_mul_i32 s{d0}, s{s_nb}, {2*128*896}")
            S(f"s_add_u32 s{s_wb}, s{s_wb}, s{d0}")
        else:
            S(f"s_mov_b32 s{s_hr}, 0")
        S(f"s_lshl1_add_u32 s{s_hb}, s{s_tb64}, s{s_kh}")
        S(f"s_mul_i32 s{s_hb}, s{s_hb}, {NKS*1024}")
        S(f"s_lshl_b32 s{d0}, s{s_mt}, 11")
        S(f"s_add_u32 s{s_hb}, s{s_hb}, s{d0}")
        S(f"s_add_u32 s{s_hb}, s{s_hb}, {HF}")
        return D

    def split_hoist(D, n):
        return D[:n], D[n:]
    SC = "sc1"
    def epi_qk(acc):
        E = []
        for r in range(16):
            E.append(f"v_mul_f32 v{acc+r}, s{s_scale}, v{acc+r}")
        for d in range(8):
            E.append(f"v_cvt_pk_bf16_f32 v{vT+d}, v{acc+2*d}, v{acc+2*d+1}")
        E.append(f"v_and_b32 v{vT+6}, v{vT+6}, v{v_msk}")
        E.append(f"v_and_b32 v{vT+7}, v{vT+7}, v{v_msk}")
        return E
    qk_stores = [f"buffer_store_dwordx4 v[{vT}:{vT+3}], v{v_stk}, s[{sWS}:{sWS+3}], s{s_qkst} offen {SC}",
                 f"buffer_store_dwordx4 v[{vT+4}:{vT+7}], v{v_stk}, s[{sWS}:{sWS+3}], s{s_qkst} offen offset:1024 {SC}"]

    def epi_v(acc):
        E = []
        for jj in range(2):
            Ac = acc + 16 * jj
            T = vT + 8 * jj
            for d in range(8):
                E.append(f"v_cvt_pk_bf16_f32 v{T+d}, v{Ac+2*d}, v{Ac+2*d+1}")
            for d in range(8):
                E.append(f"v_cndmask_b32 v{T+d}, v{T+d}, v{v_one}, s[{s_one}:{s_one+1}]")
            if jj:
                E.append(f"s_add_u32 s{s_vst}, s{s_vst}, {1 << 17}")
            E.append(f"buffer_store_dwordx4 v[{T}:{T+3}], v{v_st}, s[{sWS}:{sWS+3}], s{s_vst} offen {SC}")
            E.append(f"buffer_store_dwordx4 v[{T+4}:{T+7}], v{v_st}, s[{sWS}:{sWS+3}], s{s_vst} offen offset:1024 {SC}")
        return E

    def epi_gu_tile(acc, jj, pk):
        E = []
        Ac = acc + 16 * jj
        T = vT + 12 * jj
        P = lambda r: f"v[{r}:{r+1}]"
        if pk:
            for i in range(0, 8, 2):
                E.append(f"v_pk_mul_f32 {P(T+i)}, {P(Ac+i)}, {P(Ac+i)}")
            for i in range(0, 8, 2):
                E.append(f"v_pk_fma_f32 {P(T+i)}, {P(T+i)}, {P(v_c2)}, {P(v_c1)} op_sel_hi:[1,0,0]")
            for i in range(0, 8, 2):
                E.append(f"v_pk_mul_f32 {P(T+i)}, {P(T+i)}, {P(Ac+i)}")
            for i in range(8):
                E.append(f"v_exp_f32 v{T+i}, v{T+i}")
                if i % 2:
                    E.append(f"v_pk_mul_f32 {P(Ac+i-1)}, {P(Ac+i-1)}, {P(Ac+8+i-1)}")
            for i in range(0, 8, 2):
                E.append(f"v_pk_add_f32 {P(T+i)}, {P(T+i)}, {P(v_k1)} op_sel_hi:[1,0]")
            for i in range(8):
                E.append(f"v_rcp_f32 v{T+i}, v{T+i}")
            for i in range(0, 8, 2):
                E.append(f"v_pk_mul_f32 {P(Ac+i)}, {P(Ac+i)}, {P(T+i)}")
        else:
            for i in range(8):
                E.append(f"v_mul_f32 v{T+i}, v{Ac+i}, v{Ac+i}")
            for i in range(8):
                E.append(f"v_fma_f32 v{T+i}, v{T+i}, v{v_c2}, v{v_c1}")
            for i in range(8):
                E.append(f"v_mul_f32 v{T+i}, v{T+i}, v{Ac+i}")
            for i in range(8):
                E.append(f"v_exp_f32 v{T+i}, v{T+i}")
                E.append(f"v_mul_f32 v{Ac+i}, v{Ac+i}, v{Ac+8+i}")
            for i in range(8):
                E.append(f"v_add_f32 v{T+i}, 1.0, v{T+i}")
            for i in range(8):
                E.append(f"v_rcp_f32 v{T+i}, v{T+i}")
            for i in range(8):
                E.append(f"v_mul_f32 v{Ac+i}, v{Ac+i}, v{T+i}")
        for d in range(4):
            E.append(f"v_cvt_pk_bf16_f32 v{T+8+d}, v{Ac+2*d}, v{Ac+2*d+1}")
        E.append(f"buffer_store_dwordx4 v[{T+8}:{T+11}], v{v_st}, s[{sWS}:{sWS+3}], s{s_hst} offen offset:{1024*jj} {SC}")
        return E

    def publish(vm, kind, s_base):
        a(f"s_add_u32 s{s_t1}, s{s_base}, {kind*2048}")
        a(f"buffer_store_dwordx2 v[{v_non}:{v_non+1}], v{v_fa}, s[{sWS}:{sWS+3}], s{s_t1} offen sc1")
        vm.issue("flag")

    def poll(vm, vaddr):
        a(f"buffer_load_dwordx2 v[{v_pf}:{v_pf+1}], v{vaddr}, s[{sWS}:{sWS+3}], 0 offen sc1")
        if vm is not None:
            vm.issue("poll")

    spin_id = [0]
    def wait_flags(vm, vaddr, nlanes):
        i = spin_id[0]; spin_id[0] += 1
        mask = (1 << nlanes) - 1
        if OPT["p1"]:
            a(f"s_cmp_lg_u32 s{s_w}, 0")
            a(f"s_cbranch_scc1 L_wf_done{i}")
        a(f"s_mov_b32 s{s_t2}, 0")
        a(f"s_waitcnt vmcnt({vm.wait_n('poll')})")
        a(f"L_wf{i}:")
        a(f"v_cmp_eq_u64 vcc, v[{v_pf}:{v_pf+1}], v[{v_non}:{v_non+1}]")
        a(f"s_and_b32 s{s_t1}, vcc_lo, {mask}")
        a(f"s_cmp_eq_u32 s{s_t1}, {mask}")
        a(f"s_cbranch_scc1 L_wf_done{i}")
        a(f"s_add_u32 s{s_t2}, s{s_t2}, 1")
        a(f"s_cmp_gt_u32 s{s_t2}, 100000")
        a(f"s_cbranch_scc1 L_wf_done{i}")
        a(f"s_sleep {OPT['slp']}")
        poll(None, vaddr)
        a("s_waitcnt vmcnt(0)")
        a(f"s_branch L_wf{i}")
        a(f"L_wf_done{i}:")

    def kq_groups():
        g = [f"s_mul_i32 s{s_b2}, s{s_w}, 3072",
             f"s_mov_b32 m0, s{s_b2}",
             ]
        for j in range(3):
            g.append(f"s_add_u32 s{s_b1}, s{81+j}, {KF - 1024*j}")
            g.append(f"buffer_load_dwordx4 v{v_st}, s[{sWS}:{sWS+3}], s{s_b1} offen offset:{1024*j} sc1 lds")
        g2 = [f"s_lshr_b32 s{s_b2}, s{s_w}, 1",
              f"s_lshl_b32 s{s_b2}, s{s_b2}, 11",
              f"s_add_u32 s{s_b2}, s{s_b2}, s{s_par}",
              f"s_add_u32 s{s_b2}, s{s_b2}, s{s_kv}",
              f"buffer_load_dwordx4 v[{vQ}:{vQ+3}], v{v_qa}, s[{sWS}:{sWS+3}], s{s_b2} offen sc1"]
        return [(g, "k"), (g2, "k")]
    tailk = {}
    st_state = (st.n, list(st.names))
    def main(seq, vm):
        st.n, st.names = st_state[0], list(st_state[1])
        is2 = seq[2][0] == "v"
        lg = Cnt(15)
        M = []
        sp = -1
        prev = None
        for c, (kind, idx, part) in enumerate(seq):
            if (kind, idx) != prev:
                sp += 1
                prev = (kind, idx)
            if kind == "qk":
                for s in range(14):
                    M.append(dict(c=c, kind=kind, idx=idx, ks=14 * part + s, sl=s, jj=0, first=(part == 0 and s == 0), sp=sp))
            else:
                for s in range(7):
                    for jj in range(2):
                        M.append(dict(c=c, kind=kind, idx=idx, ks=7 * part + s, sl=s, jj=jj, first=(part == 0 and s == 0), sp=sp))
        last = [q for q in M if q["sp"] == 2]
        M = [q for q in M if q["sp"] < 2] + [q for q in last if q["jj"] == 0] + [q for q in last if q["jj"] == 1]
        LA = 3
        cur = [-1]
        def reads(m):
            mm = M[m]
            c = mm["c"]
            if cur[0] != c and mm["sp"] == 2:
                cur[0] = c
                so = (c % 5) * SLOT
                if mm["jj"]:
                    a(f"v_add_u32 v{v_rdB}, {so}, v{v_bg1}")
                else:
                    a(f"v_add_u32 v{v_rdA}, {so}, v{v_bg0}")
            if cur[0] != c:
                cur[0] = c
                so = (c % 5) * SLOT
                if mm["kind"] == "qk":
                    a(f"v_add_u32 v{v_rdA}, {so}, v{v_bqk}")
                elif mm["kind"] == "v":
                    a(f"v_add_u32 v{v_rdA}, {so}, v{v_bv0}")
                    a(f"v_add_u32 v{v_rdB}, {so}, v{v_bv1}")
                else:
                    a(f"v_add_u32 v{v_rdA}, {so}, v{v_bg0}")
                    a(f"v_add_u32 v{v_rdB}, {so}, v{v_bg1}")
            b = vW + 4 * (m % 4)
            ad = v_rdB if mm["jj"] else v_rdA
            rb = 2 if mm["kind"] == "v" else 1
            o = mm["sl"] * 2048 * rb
            a(f"ds_read_b64_tr_b16 v[{b}:{b+1}], v{ad} offset:{o}")
            a(f"ds_read_b64_tr_b16 v[{b+2}:{b+3}], v{ad} offset:{o+512*rb}")
            lg.issue(f"w{m}"); lg.issue(f"w{m}")
        xn = [0]
        def xread(k=1):
            for _ in range(k):
                ks = xn[0]
                if ks >= 28:
                    return
                xn[0] += 1
                j, s2 = divmod(ks, 4)
                r = vX + 4 * ks
                a(f"ds_read_b128 v[{r}:{r+3}], v{v_xa + s2 + (4 if j >= 4 else 0)} offset:{(j % 4)*16384}")
                lg.issue(f"x{ks}")
        for m in range(LA):
            xread(1)
            reads(m)
        if OPT["rda"]:
            reads(LA)
        xread(3)
        pend = deferred(is2)
        D2 = deferred2()
        n2 = OPT["d2n"]
        pend += D2[:n2]
        pend_tag = "st"
        rate = len(pend) / 26.0
        accum = 0.0
        hold = 0
        n = len(M)
        bg = []
        B2 = OPT["b2"]
        def emit_pend():
            ins = pend.pop(0)
            a(ins)
            if ins.startswith("buffer_"):
                vm.issue(pend_tag)
        w2k = [0]
        def slot_store(stores, vaddr, k, nk, tag):
            if nk > 1:
                if nk == 2:
                    a(f"s_bitcmp{k}_b32 s{s_wr}, 0")
                else:
                    a(f"s_cmp_eq_u32 s{s_wr}, {k}")
                a(f"s_cselect_b64 s[{s_t0}:{s_t0+1}], -1, 0")
                a(f"v_cndmask_b32 v{v_e0}, v{v_e1}, v{vaddr}, s[{s_t0}:{s_t0+1}]")
                stores = [x.replace(f", v{vaddr},", f", v{v_e0},") for x in stores]
            for x in stores:
                a(x); vm.issue(tag)
        late = {}
        dsched = {}
        for m in range(n):
            mm = M[m]
            c = mm["c"]
            if m in STM:
                st(f"m{m}")
            if OPT["b2a"] and m == OPT["b2a"]:
                assert xn[0] >= 12
                a(f"s_waitcnt lgkmcnt({lg.wait_n('x11')})")
                a("s_barrier")
                emit_group(vm, c1b)
                bg += dmaA(seq[2], 2, "c2")
            if m == B2:
                assert xn[0] >= 28 and B2 <= 11
                a(f"s_waitcnt vmcnt({vm.wait_n('c1')}) lgkmcnt({lg.wait_n('x27')})")
                a("s_barrier")
                if not OPT["b2a"]:
                    emit_group(vm, c1b)
                    bg += dmaA(seq[2], 2, "c2")
                bg += dmaA(seq[3], 3, "c3") + dmaA(seq[4], 4, "c4")
                bg.append(([f"buffer_load_dwordx2 v[{v_non}:{v_non+1}], v{v_zero}, s[{sDbg}:{sDbg+3}], 0 offen sc1"], "nonce"))
            if m == 20:
                a(f"s_waitcnt vmcnt({vm.wait_n('c1b')})")
                a("s_barrier")
            if m in (87, 94, 101):
                a(f"s_waitcnt vmcnt({vm.wait_n(f'c{7 + (m - 87)//7}')})")
                a("s_barrier")
            if m == OPT["kqm"]:
                wait_flags(vm, v_pa, 4)
                a("s_barrier")
                bg += kq_groups()
            if m == OPT["kqm"] - OPT["kqlead"]:
                poll(vm, v_pa)
            if m == 114:
                pend.extend(epi_gu_tile(ACC[1], 0, 0))
                rate = max(rate, len(pend) / (OPT["aend"] - 114))
                if is2:
                    pend_tag = "st_a"
            if m % 14 == (8 if c != 1 else 10) and 1 <= c <= 5:
                tags = [f"c{c+1}"]
                while not vm.has(tags[0]) or any(g[1] == tags[0] for g in bg):
                    emit_group(vm, bg.pop(0))
                if c == OPT["pubqk"]:
                    tags.append("st_qk")
                if c == OPT["kq"]:
                    wait_flags(vm, v_pa, 4)
                a(f"s_waitcnt vmcnt({vm.wait_n(*tags)})")
                a("s_barrier")
                if c == OPT["pubqk"]:
                    publish(vm, F_QK, s_fp)
                if c == OPT["kq"]:
                    bg += kq_groups()
                if c + 4 < len(seq):
                    dl = OPT.get(f"d{c+4}", 0)
                    if dl > m:
                        dsched[dl] = c + 4
                    else:
                        bg += dmaA(seq[c + 4], (c + 4) % 5, f"c{c+4}")
                if c == 4:
                    i = spin_id[0]; spin_id[0] += 1
                    a(f"s_mov_b32 s{s_t2}, 0")
                    a(f"L_nz{i}:")
                    a(f"v_readfirstlane_b32 s{s_t1}, v{v_non}")
                    a(f"s_cmp_lg_u32 s{s_t1}, 0")
                    a(f"s_cbranch_scc1 L_nz_done{i}")
                    a(f"s_add_u32 s{s_t2}, s{s_t2}, 1")
                    a(f"s_cmp_gt_u32 s{s_t2}, 100000")
                    a(f"s_cbranch_scc1 L_nz_done{i}")
                    a("s_sleep 2")
                    a(f"buffer_load_dwordx2 v[{v_non}:{v_non+1}], v{v_zero}, s[{sDbg}:{sDbg+3}], 0 offen sc1")
                    a("s_waitcnt vmcnt(0)")
                    a(f"s_branch L_nz{i}")
                    a(f"L_nz_done{i}:")
            if m in dsched:
                k = dsched[m]
                bg += dmaA(seq[k], k % 5, f"c{k}")
            for k in range(OPT["qkn"]):
                if m == OPT["qkst"] + k * OPT["qkgap"]:
                    slot_store(qk_stores, v_stk, k, OPT["qkn"], "st_qk")
            if m == OPT["pubm"] and is2:
                a(f"s_waitcnt vmcnt({vm.wait_n('st_qkv')})")
                a("s_barrier")
                publish(vm, F_V, s_fp)
            if m in late:
                for (ins, k, nk, flush) in late[m]:
                    if flush:
                        while pend:
                            emit_pend()
                    if ins.startswith("buffer_"):
                        slot_store([ins], v_st, k, nk, "st_h0")
                    else:
                        a(ins)
            if m == OPT["w2s"]:
                gtouch(sWd, 7, True, v_e0, vm)
                gtouch(sWo, 2, True, v_e0, vm)
            if OPT["l2n"] and m >= OPT["l2s"] and (m - OPT["l2s"]) % OPT["l2d"] == 0 and (m - OPT["l2s"]) // OPT["l2d"] < OPT["l2n"] + 1:
                k = (m - OPT["l2s"]) // OPT["l2d"]
                nl = -(-49 // OPT["l2n"])
                isw = k == OPT["l2n"]
                a(f"s_lshr_b32 s{s_t0}, s2, 3")
                a(f"s_lshl3_add_u32 s{s_t0}, s{s_t0}, s{s_w}")
                if isw:
                    nl = 13
                    a(f"s_mul_i32 s{s_t0}, s{s_t0}, 13")
                else:
                    a(f"s_mul_i32 s{s_t0}, s{s_t0}, {nl}")
                    a(f"s_add_u32 s{s_t0}, s{s_t0}, {k*nl*256}")
                a(f"v_add_lshl_u32 v{v_e0}, v{v_lane}, s{s_t0}, 7")
                a(f"s_mov_b64 exec, {(1 << nl) - 1}")
                sr = sWo if isw else sWd
                a(f"buffer_load_dword v{v_td}, v{v_e0}, s[{sr}:{sr+3}], 0 offen")
                a(f"s_mov_b64 exec, -1")
                vm.issue("t")
            if m + LA < n and not OPT["rda"]:
                reads(m + LA)
            xread(OPT["xr"])
            tags = [f"w{m}"]
            if mm["sp"] == 0:
                tags.append(f"x{mm['ks']}")
            a(f"s_waitcnt lgkmcnt({lg.wait_n(*tags)})")
            accb = ACC[(mm["sp"] + 1) % 2]
            acc = accb + 16 * mm["jj"]
            b = vW + 4 * (m % 4)
            x = vX + 4 * mm["ks"]
            csrc = "0" if mm["first"] else f"v[{acc}:{acc+15}]"
            if mm["kind"] == "v":
                a(f"v_mfma_f32_32x32x16_bf16 v[{acc}:{acc+15}], v[{x}:{x+3}], v[{b}:{b+3}], {csrc}")
            else:
                a(f"v_mfma_f32_32x32x16_bf16 v[{acc}:{acc+15}], v[{b}:{b+3}], v[{x}:{x+3}], {csrc}")
            if OPT["rda"] and m + LA + 1 < n:
                reads(m + LA + 1)
            if bg and (m % OPT["bgp"] == 0 or len(bg) > 4):
                emit_group(vm, bg.pop(0))
            last_of_sp = (m + 1 == n) or (M[m + 1]["sp"] != mm["sp"])
            if pend and not hold:
                accum += rate
                while accum >= 1.0 and pend:
                    emit_pend()
                    accum -= 1.0
            if hold:
                hold -= 1
            if last_of_sp:
                while pend:
                    emit_pend()
                if m + 1 < n:
                    nsp = sum(1 for q in M if q["sp"] == mm["sp"] + 1)
                    if mm["kind"] == "qk":
                        pend = epi_qk(accb) + D2[n2:]
                        rate = max(len(pend) / (nsp - 8), 27.0 / max(1, OPT["qkst"] - 31))
                    elif mm["kind"] == "v":
                        pend = epi_v(accb)
                        pend_tag = "st_qkv"
                        rate = 3.0
                    else:
                        e0 = epi_gu_tile(accb, 0, OPT["pk"] & 2); e1 = epi_gu_tile(accb, 1, OPT["pk"] & 2)
                        pend = e0 + e1 + [f"s_add_u32 s{s_hst}, s{s_hst}, 4096"]
                        rate = 207.0 / (OPT["aend"] - 86)
                        pend_tag = "st_h0"
                    accum = 0.0
                    hold = 2
                else:
                    assert accb == ACC[1]
        assert not bg
        poll(vm, v_paV)
        a(f"s_waitcnt vmcnt({vm.wait_n('k')})")

    main(seq1, copy.deepcopy(vm))
    a("s_branch L_postA")
    a("L_type2:")
    main(seq2, copy.deepcopy(vm))
    a("L_postA:")
    st("T")
    vm = VM()

    vS = 132
    vKF = 204
    vP = 64
    vO = 100
    v_ka, v_va, v_m, v_u = 3, 4, 2, 128
    u = v_u

    def dmaW(c):
        slot = (c % NW) * 16384
        G = []
        for jj in range(2):
            g = [f"s_add_u32 m0, s{s_m0w}, {slot + 1024*jj}"]
            if c < 14:
                g.append(f"s_add_u32 s{s_b1}, s{s_wb}, {(128*c + 8*jj)*896}")
                g.append(f"s_sub_u32 s{s_b2}, s{s_b1}, {WD_BYTES}")
                g.append(f"s_min_u32 s{s_b1}, s{s_b1}, s{s_b2}")
                g.append(f"buffer_load_dwordx4 v{v_dw}, s[{sWd}:{sWd+3}], s{s_b1} offen lds")
            else:
                g.append(f"s_add_u32 s{s_b1}, s{s_nb}, {c-14}")
                g.append(f"s_and_b32 s{s_b1}, s{s_b1}, 3")
                g.append(f"s_mul_i32 s{s_b1}, s{s_b1}, {112*896}")
                g.append(f"s_add_u32 s{s_b1}, s{s_b1}, s{s_wob}")
                if jj:
                    g.append(f"s_add_u32 s{s_b1}, s{s_b1}, {8*896}")
                g.append(f"buffer_load_dwordx4 v{v_dw}, s[{sWo}:{sWo+3}], s{s_b1} offen lds")
            G.append((g, f"w{c}"))
        return G

    def dmaH(c):
        slot = (c % NH) * 16384
        g = [f"s_add_u32 m0, s{s_m0h}, {slot}"]
        if c < 14:
            g.append(f"s_add_u32 s{s_b1}, s{s_hr}, {8192*c}")
            g.append(f"s_sub_u32 s{s_b2}, s{s_b1}, {14*8192}")
            g.append(f"s_min_u32 s{s_b1}, s{s_b1}, s{s_b2}")
        else:
            g.append(f"s_add_u32 s{s_b1}, s{s_nb}, {c-14}")
            g.append(f"s_and_b32 s{s_b1}, s{s_b1}, 3")
            g.append(f"s_lshl_b32 s{s_b1}, s{s_b1}, 13")
            g.append(f"s_add_u32 s{s_b1}, s{s_b1}, {14*8192}")
        g.append(f"s_add_u32 s{s_b1}, s{s_b1}, s{s_hb}")
        for jj in range(2):
            g.append(f"buffer_load_dwordx4 v{v_st}, s[{sWS}:{sWS+3}], s{s_b1} offen offset:{1024*jj} sc1 lds")
        return (g, f"h{c}")

    wq = []
    for c in range(NW):
        wq += dmaW(c)
    cnt = [0]
    def e(ins, every=OPT["wspread"]):
        a(ins)
        cnt[0] += 1
        if cnt[0] % every == 0 and wq:
            emit_group(vm, wq.pop(0))

    vm.issue("poll")
    a(f"s_lshr_b32 s{s_t2}, s{s_w}, 1")
    a(f"s_lshl_b32 s{s_t2}, s{s_t2}, 11")
    a(f"v_add_u32 v{v_ka}, s{s_t2}, v{v_qa}")
    a(f"v_add_u32 v{v_va}, 24576, v{v_ka}")
    a("s_barrier")
    st("BK")
    E0 = epi_gu_tile(ACC[1], 0, OPT["pk"] & 1)
    E1 = epi_gu_tile(ACC[1], 1, OPT["pk"] & 1)
    side = E1[:-1] + [f"v_cmp_le_i32 s[{MK[i]}:{MK[i]+1}], {i}, v{v_d}" for i in range(8)]

    def kread(i):
        b, tt = divmod(i, 2)
        r = vKF + 4 * (i % 8)
        a(f"ds_read_b128 v[{r}:{r+3}], v{v_ka} offset:{b*2048 + tt*256}")
    LA = 6
    per = OPT["per"]
    e1done = [False]
    nf = OPT["wfirst"]
    for i in range(LA):
        kread(i)
    for i in range(18):
        if i + LA < 18:
            kread(i + LA)
            a(f"s_waitcnt lgkmcnt({LA})")
        else:
            a(f"s_waitcnt lgkmcnt({17-i})")
        r = vKF + 4 * (i % 8)
        a(f"v_mfma_f32_16x16x32_bf16 v[{vS+4*i}:{vS+4*i+3}], v[{r}:{r+3}], v[{vQ}:{vQ+3}], 0")
        for _ in range(per):
            if side:
                a(side.pop(0))
        if len(side) <= 8 and not e1done[0] and i > OPT["vpos"]:
            e1done[0] = True
            a(E1[-1]); vm.issue("st_h")
        if i == OPT["vpos"]:
            st("preV")
            wait_flags(vm, v_paV, 3)
            a("s_barrier")
            st("fV")
            a(f"s_mul_i32 s{s_t0}, s{s_w}, 3072")
            a(f"s_add_u32 m0, s{s_t0}, 24576")
            for j in range(3):
                a(f"s_add_u32 s{s_t2}, s{81+j}, {VF - 1024*j}")
                a(f"buffer_load_dwordx4 v{v_st}, s[{sWS}:{sWS+3}], s{s_t2} offen offset:{1024*j} sc1 lds")
                vm.issue("v")
        if i < OPT["vpos"] and i % 2 == 1 and nf:
            emit_group(vm, wq.pop(0)); nf -= 1
    if not e1done[0]:
        a(E1[-1]); vm.issue("st_h")
    st("Sdone")
    a(f"s_cmp_ge_u32 s{s_bd}, 8")
    a("s_cbranch_scc1 L_allvalid")
    for b in range(8):
        a(f"s_cmp_ge_u32 s{s_bd}, {8-b}")
        a("s_cbranch_scc1 L_allvalid")
        for i in range(8):
            a(f"v_mov_b32 v{vS+8*b+i}, 0xf149f2ca")
    a("L_allvalid:")
    for i in range(8):
        e(f"v_cndmask_b32 v{vS+i}, v{vS+i}, v{vS+64+i}, s[{MK[i]}:{MK[i]+1}]")
    e(f"v_max3_f32 v{v_m}, v{vS+8}, v{vS+9}, v{vS+10}")
    e(f"v_max3_f32 v{u}, v{vS+11}, v{vS+12}, v{vS+13}")
    ks = list(range(14, 64, 2)) + list(range(0, 8, 2))
    tog = 0
    for k in ks:
        d = v_m if tog == 0 else u
        e(f"v_max3_f32 v{d}, v{d}, v{vS+k}, v{vS+k+1}")
        tog ^= 1
    a(f"v_max_f32 v{v_m}, v{v_m}, v{u}")
    a(f"v_mov_b32 v{u}, v{v_m}")
    a(f"v_permlane32_swap_b32 v{v_m}, v{u}")
    a(f"v_max_f32 v{v_m}, v{v_m}, v{u}")
    a(f"v_mov_b32 v{u}, v{v_m}")
    a(f"v_permlane16_swap_b32 v{v_m}, v{u}")
    a(f"v_max_f32 v{v_m}, v{v_m}, v{u}")
    order = [1, 2, 3, 4, 5, 6, 7, 0, 8]
    def softmax_block(b):
        for i in range(0, 8, 2):
            r = vS + 8 * b + i
            e(f"v_pk_add_f32 v[{r}:{r+1}], v[{r}:{r+1}], v[{v_m}:{v_m+1}] op_sel_hi:[1,0] neg_lo:[0,1] neg_hi:[0,1]")
        for i in range(8):
            e(f"v_exp_f32 v{vS+8*b+i}, v{vS+8*b+i}")
        if b == 0:
            for i in range(8):
                e(f"v_cndmask_b32 v{vS+64+i}, 0, v{vS+i}, s[{MK[i]}:{MK[i]+1}]")
            for i in range(8):
                e(f"v_cndmask_b32 v{vS+i}, v{vS+i}, 0, s[{MK[i]}:{MK[i]+1}]")
            for d in range(4):
                e(f"v_cvt_pk_bf16_f32 v{vP+32+d}, v{vS+64+2*d}, v{vS+64+2*d+1}")
        for d in range(4):
            e(f"v_cvt_pk_bf16_f32 v{vP+4*b+d}, v{vS+8*b+2*d}, v{vS+8*b+2*d+1}")
    softmax_block(order[0])
    st("preBV")
    a(f"s_waitcnt vmcnt({vm.wait_n('st_h', 'v')})")
    a("s_barrier")
    publish(vm, F_H, s_fp)
    st("BV")
    def vread(i):
        b = order[i // 2]
        tt = i % 2
        r = vKF + 4 * (i % 8)
        a(f"ds_read_b128 v[{r}:{r+3}], v{v_va} offset:{b*2048 + tt*256}")
    for i in range(LA):
        vread(i)
    for bi in range(9):
        b = order[bi]
        if bi == 4:
            while wq:
                emit_group(vm, wq.pop(0))
            poll(vm, v_paH)
        if bi + 1 < 8:
            softmax_block(order[bi + 1])
        if bi == 6:
            a("s_waitcnt lgkmcnt(0)")
            st("preH")
            a(f"s_cmp_ge_u32 s{s_nb}, 7")
            a("s_cbranch_scc1 L_noC1")
            wait_flags(vm, v_paH, 16)
            a("s_barrier")
            for c in range(NH):
                emit_group(vm, dmaH(c))
            a("L_noC1:")
            st("Hiss")
        for tt in range(2):
            i = 2 * bi + tt
            if i + LA < 18:
                vread(i + LA)
                a(f"s_waitcnt lgkmcnt({LA})")
            elif bi < 6:
                a(f"s_waitcnt lgkmcnt({17-i})")
            r = vKF + 4 * (i % 8)
            cs = "0" if bi == 0 else f"v[{vO+4*tt}:{vO+4*tt+3}]"
            a(f"v_mfma_f32_16x16x32_bf16 v[{vO+4*tt}:{vO+4*tt+3}], v[{r}:{r+3}], v[{vP+4*b}:{vP+4*b+3}], {cs}")
    a(f"v_mov_b32 v{u}, v{vO+4}")
    a(f"v_mov_b32 v{u+1}, v{vO+4}")
    a(f"v_permlane32_swap_b32 v{u}, v{u+1}")
    a(f"v_mov_b32 v{u}, v{u+1}")
    a(f"v_permlane16_swap_b32 v{u}, v{u+1}")
    a(f"v_rcp_f32 v{u+1}, v{u+1}")
    for i in range(8):
        a(f"v_mul_f32 v{vO+i}, v{vO+i}, v{u+1}")
    for d in range(4):
        a(f"v_cvt_pk_bf16_f32 v{vQ+d}, v{vO+2*d}, v{vO+2*d+1}")
    a(f"v_cmp_gt_u32 s[{s_d0}:{s_d0+1}], 48, v{v_lane}")
    a(f"v_cndmask_b32 v{vQ+2}, 0, v{vQ+2}, s[{s_d0}:{s_d0+1}]")
    a(f"v_cndmask_b32 v{vQ+3}, 0, v{vQ+3}, s[{s_d0}:{s_d0+1}]")
    a(f"buffer_store_dwordx4 v[{vQ}:{vQ+3}], v{v_qa}, s[{sWS}:{sWS+3}], s{s_ost} offen sc1")
    vm.issue("st_o")
    st("Ost")
    a(f"s_cmp_lt_u32 s{s_nb}, 7")
    a("s_cbranch_scc1 L_phaseC")
    a("s_waitcnt vmcnt(0)")
    a("s_barrier")
    publish(VM(), F_O, s_fo)
    a("s_branch L_end")
    a("L_phaseC:")

    v_ah, v_aw, v_cxo = 2, 3, 4
    v_awB = 5
    vXr = 16
    vAcc = 48
    vF = 64
    tt = 20
    a(f"v_add_u32 v{v_paH}, {(F_O-F_H)*2048}, v{v_paH}")
    a(f"v_and_b32 v{tt}, 0x13, v{v_lane}")
    a(f"v_bfe_u32 v{tt+1}, v{v_lane}, 2, 1")
    a(f"v_lshl_or_b32 v{tt}, v{tt+1}, 3, v{tt}")
    a(f"v_bfe_u32 v{tt+1}, v{v_lane}, 3, 1")
    a(f"v_lshl_or_b32 v{tt}, v{tt+1}, 2, v{tt}")
    a(f"v_mul_u32_u24 v{v_cxo}, 896, v{tt}")
    a(f"v_lshrrev_b32 v{tt+1}, 5, v{v_lane}")
    a(f"v_lshl_add_u32 v{v_cxo}, v{tt+1}, 4, v{v_cxo}")
    a(f"s_lshl_b32 s{s_t0}, s{s_cmt}, 13")
    a(f"s_lshl_b32 s{s_t1}, s{s_kh}, 12")
    a(f"s_add_u32 s{s_t0}, s{s_t0}, s{s_t1}")
    a(f"v_add_u32 v{v_ah}, s{s_t0}, v{v_st}")
    a(f"v_bfe_u32 v{tt}, v{v_lane}, 2, 2")
    a(f"v_and_b32 v{tt+2}, 3, v{v_lane}")
    a(f"v_bfe_u32 v{tt+3}, v{v_lane}, 4, 1")
    a(f"v_lshrrev_b32 v{tt+4}, 1, v{tt+2}")
    a(f"v_and_b32 v{tt+5}, 1, v{tt+2}")
    a(f"v_lshl_or_b32 v{tt+4}, v{tt+5}, 1, v{tt+4}")
    a(f"v_lshl_add_u32 v{tt+5}, v{tt+1}, 3, v{tt}")
    a(f"v_lshlrev_b32 v{tt+5}, 7, v{tt+5}")
    a(f"v_lshrrev_b32 v{tt+6}, 1, v{tt}")
    a(f"v_xor_b32 v{tt+6}, s{s_nt}, v{tt+6}")
    a(f"v_lshl_add_u32 v{tt+5}, v{tt+6}, 6, v{tt+5}")
    a(f"v_lshl_add_u32 v{tt+5}, v{tt+3}, 5, v{tt+5}")
    a(f"v_lshl_add_u32 v{tt+5}, v{tt+4}, 3, v{tt+5}")
    a(f"s_lshl_b32 s{s_t0}, s{s_kh}, 13")
    a(f"s_add_u32 s{s_t0}, s{s_t0}, {NH*16384}")
    a(f"v_add_u32 v{v_aw}, s{s_t0}, v{tt+5}")
    a(f"v_add_u32 v{v_awB}, 65536, v{v_aw}")
    v_ahB = 7
    a(f"v_add_u32 v{v_ahB}, 65536, v{v_ah}")
    assert NH <= 8 and NW <= 8 and NH + NW <= 10
    NC = 18
    RA = OPT["ra"]
    NS = RA + 1
    def creads(c):
        sh = ((c % NH) % 4) * 16384
        ah = v_ah if (c % NH) < 4 else v_ahB
        sw = (c % NW)
        aw = v_aw if sw < 4 else v_awB
        swo = (sw % 4) * 16384
        base = vF + 32 * (c % NS)
        for i in range(4):
            f = base + 8 * i
            a(f"ds_read_b128 v[{f}:{f+3}], v{ah} offset:{sh + 1024*i}")
            a(f"ds_read_b64_tr_b16 v[{f+4}:{f+5}], v{aw} offset:{swo + 2048*i}")
            a(f"ds_read_b64_tr_b16 v[{f+6}:{f+7}], v{aw} offset:{swo + 2048*i + 512}")
    a(f"s_waitcnt vmcnt({vm.wait_n(*([f'h{k}' for k in range(RA)] + [f'w{k}' for k in range(RA)]))})")
    a("s_barrier")
    st("C0")
    for k in range(RA):
        creads(k)
    PUB_O = OPT["pubo"]
    POLL_O = 14 - NH - 2
    wsched = {}
    nW = 2 * (NC - NW)
    last_it = NC - 1 - 2 - RA
    for q in range(nW):
        k = NW + q // 2
        it = int(q * (last_it + 1) / nW)
        it = max(it, k - NW)
        it = min(it, k - 2 - RA)
        wsched.setdefault(it, []).append((k, q % 2))
    for c in range(NC):
        lgn = 12 * (min(NC, c + RA) - c - 1)
        if c + RA < NC:
            tags = [f"h{c+RA}", f"w{c+RA}"]
            if c == PUB_O:
                tags.append("st_o")
            if c + NH == 14:
                wait_flags(vm, v_paH, 16)
            a(f"s_waitcnt vmcnt({vm.wait_n(*tags)}) lgkmcnt({lgn})")
            a("s_barrier")
            if c in (4, 9, 13):
                st(f"c{c}")
            if not OPT["mf"]:
                creads(c + RA)
            if c == PUB_O:
                publish(vm, F_O, s_fo)
        else:
            a(f"s_waitcnt lgkmcnt({lgn})")
        G = []
        if c + NH < NC:
            G.append(dmaH(c + NH))
        for (k, jj) in wsched.get(c, []):
            G.append(dmaW(k)[jj])
        if c == POLL_O:
            G.append(([f"buffer_load_dwordx2 v[{v_pf}:{v_pf+1}], v{v_paH}, s[{sWS}:{sWS+3}], 0 offen sc1"], "poll"))
        if c == 12:
            G.append(([f"buffer_load_dwordx4 v[{vXr}:{vXr+3}], v{v_cxo}, s[{sX}:{sX+3}], s{s_xo} offen"], "xr"))
        base = vF + 32 * (c % NS)
        if OPT["gf"] and G:
            emit_group(vm, G.pop(0))
        for i in range(4):
            f = base + 8 * i
            cs = "0" if (c == 0 and i == 0) else f"v[{vAcc}:{vAcc+15}]"
            a(f"v_mfma_f32_32x32x16_bf16 v[{vAcc}:{vAcc+15}], v[{f+4}:{f+7}], v[{f}:{f+3}], {cs}")
            if i == 0 and OPT["mf"] and c + RA < NC:
                creads(c + RA)
            elif G:
                emit_group(vm, G.pop(0))
        while G:
            emit_group(vm, G.pop(0))
    st("Cend")
    a("s_barrier")
    a(f"s_lshl_b32 s{s_t0}, s{s_w}, 11")
    a(f"v_add_u32 v{tt+1}, s{s_t0}, v{v_st}")
    a(f"v_xor_b32 v{tt+2}, 8192, v{tt+1}")
    a(f"s_cmp_eq_u32 s{s_kh}, 0")
    a("s_cbranch_scc1 L_k0")
    a(f"ds_write_b128 v{tt+1}, v[{vAcc}:{vAcc+3}]")
    a(f"ds_write_b128 v{tt+1}, v[{vAcc+4}:{vAcc+7}] offset:1024")
    for i in range(8):
        a(f"v_mov_b32 v{vAcc+i}, v{vAcc+8+i}")
    a("s_branch L_k1")
    a("L_k0:")
    a(f"ds_write_b128 v{tt+1}, v[{vAcc+8}:{vAcc+11}]")
    a(f"ds_write_b128 v{tt+1}, v[{vAcc+12}:{vAcc+15}] offset:1024")
    a("L_k1:")
    a("s_waitcnt vmcnt(0) lgkmcnt(0)")
    a("s_barrier")
    a(f"ds_read_b128 v[{vF}:{vF+3}], v{tt+2}")
    a(f"ds_read_b128 v[{vF+4}:{vF+7}], v{tt+2} offset:1024")
    for d in range(4):
        a(f"v_lshlrev_b32 v{vF+8+2*d}, 16, v{vXr+d}")
        a(f"v_and_b32 v{vF+9+2*d}, 0xffff0000, v{vXr+d}")
    for i in range(8):
        a(f"v_add_f32 v{vAcc+i}, v{vAcc+i}, v{vF+8+i}")
    a("s_waitcnt lgkmcnt(0)")
    for i in range(8):
        a(f"v_add_f32 v{vAcc+i}, v{vAcc+i}, v{vF+i}")
    for d in range(4):
        a(f"v_cvt_pk_bf16_f32 v{vXr+d}, v{vAcc+2*d}, v{vAcc+2*d+1}")
    a(f"buffer_store_dwordx4 v[{vXr}:{vXr+3}], v{v_cxo}, s[{sO}:{sO+3}], s{s_xo} offen {['', 'sc1', 'nt', 'sc0 sc1'][OPT['osc']]}")
    if STAMP:
        a("s_waitcnt vmcnt(0)")
        st("end", wait=True); st("rt", rt=True, wait=True)
        st.finish()
        if DBGST:
            a("s_load_dwordx2 s[4:5], s[82:83], 64")
            a(f"v_sub_u32 v{v_stamp}, v{v_stamp}, v{v_non}")
            a(f"v_lshlrev_b32 v{tt}, 2, v{v_lane}")
            a(f"v_add_u32 v{tt}, 8, v{tt}")
            a("s_waitcnt lgkmcnt(0)")
            A(srd(8, 4, 5, 64))
            a(f"s_lshl3_add_u32 s3, s2, s{s_w}")
            a(f"s_cmp_lg_u32 s3, {37*8+4}")
            a("s_cbranch_scc1 L_end")
            a(f"buffer_store_dword v{v_stamp}, v{tt}, s[8:11], 0 offen")
            a("s_branch L_end")
        a(f"s_lshl3_add_u32 s3, s2, s{s_w}")
        a("s_lshl_b32 s3, s3, 7")
        a(f"s_add_u32 s3, s3, {STAMP_OFF}")
        a(f"v_lshlrev_b32 v{tt}, 2, v{v_lane}")
        a(f"v_cmp_gt_u32 vcc, {st.n}, v{v_lane}")
        a("s_and_saveexec_b64 s[4:5], vcc")
        a(f"buffer_store_dword v{v_stamp}, v{tt}, s[{sWS}:{sWS+3}], s3 offen")
        a.raw("; STAMPS " + " ".join(st.names))
        assert st.n <= 32
    a("L_end:")
    a("s_endpgm")
    return a


HEADER = """; Fused persistent kernel: LN + QKV/gate/up GEMM -> sliding-window attention -> [H|O] @ [w_down; wo] + x
;   0 A_x, 8 A_wqkv, 16 A_wo, 24 B_x, 32 B_w_gate, 40 B_w_up, 48 B_w_down, 56 d_out, 64 d_debug, 72 d_ws
; @launch grid=(256,1,1) block=(512,1,1) lds=163840
.amdgcn_target "amdgcn-amd-amdhsa--gfx950"
"""

def build():
    a = gen()
    print("instrs", a.nins, "nops", a.nnop, file=sys.stderr)
    return HEADER + a.text() + kernel_desc(NAME, 256)

if __name__ == "__main__":
    path = sys.argv[1] if len(sys.argv) > 1 else "parallel_sum__sliding_block__geglu_ffn__prompt.s"
    for arg in sys.argv[2:]:
        if arg == "stamp":
            STAMP = True
        elif arg == "dbgst":
            STAMP = True; DBGST = True
        else:
            k, v = arg.split("=")
            assert k in OPT, k
            OPT[k] = int(v)
    open(path, "w").write(build())
```

```python
import sys, struct, math, copy, os
sys.path.insert(0, "dev")
from asmlib import Asm, kernel_header, kernel_desc

NAME = "parallel_sum__sliding_block__geglu_ffn__prompt_kernel"

def f2u(f):
    return struct.unpack("<I", struct.pack("<f", f))[0]

QF = 0
KF = 2 << 20
VF = 4 << 20
FL = 6 << 20
HF = 8 << 20
WS_BYTES = 268435456
NKS = 144
F_QK, F_H, F_O, F_V = 0, 1, 2, 3
OOB = 0x7FFFFF00

X_BYTES = 2048 * 896
WQKV_BYTES = 448 * 2688
WG_BYTES = 448 * 3584
WD_BYTES = 1792 * 896
WO_BYTES = 448 * 896

LOG2E = 1.4426950408889634
QSCALE = (28 ** -0.5) * LOG2E
GC1 = -2.0 * 0.7978845608028654 * LOG2E
GC2 = GC1 * 0.044715

STAMP = False
DBGST = False
DBGN = ['t0','setup','x00','lnend','B1','m28','m84','T','Sdone','BV','Ost','C0','Cend','end']
STAMP_OFF = 200 << 20
STM = [int(x) for x in os.environ.get('STM', '11,28,56,84,112').split(',')]
OPT = dict(NH=4, NW=6, rotc=1, b2=10, bgp=1, qkst=44, pubm=112, pk=1, w2s=60, l2n=0, mprio=1, rda=0, b2a=4, d2n=60, kqm=122, aend=138, per=11, vbk=128, bvp=1, hook1=5, help=3, hk0=8, tlb=0, osc=0, we=4, dcl=0, ctouch=1, ra=1, mf=1, gf=1, l2s=64, l2d=9,
           wfirst=2, wspread=12, pubo=2, p1=1, slp=4, hst0=104, hst1=122, qkgap=0, d7=0, d8=0, d9=0,
           c1e=3, xr=3, xf=9, qkn=1, hn=1, hgap=0, tq=7, lnm=1, dmae=7, xil=1, pubqk=5, kq=8, kqlead=12, vpos=5)


class Cnt:
    def __init__(self, cap):
        self.ops = []
        self.cap = cap
    def issue(self, tag):
        self.ops.append(tag)
    def wait_n(self, *tags):
        idx = max(i for i, t in enumerate(self.ops) if t in tags)
        n = len(self.ops) - 1 - idx
        return min(n, self.cap)
    def has(self, tag):
        return tag in self.ops

def VM():
    return Cnt(63)


class Stamps:
    def __init__(self, a, vreg, base=98):
        self.a = a; self.base = base; self.n = 0; self.names = []; self.vreg = vreg
    def _flush_prev(self):
        if self.n >= 1:
            k = self.n - 1
            self.a(f"v_writelane_b32 v{self.vreg}, s{self.base + 2*(k % 2)}, {k}")
    def __call__(self, name="", rt=False, wait=False):
        if not STAMP: return
        p = self.base + 2 * (self.n % 2)
        if DBGST and name not in DBGN: return
        self.a(f"{'s_memrealtime' if (rt or DBGST or os.environ.get('RTST')) else 's_memtime'} s[{p}:{p+1}]")
        if wait:
            self.a("s_waitcnt lgkmcnt(0)")
        self._flush_prev()
        self.n += 1
        self.names.append(name)
    def finish(self):
        self.a("s_waitcnt lgkmcnt(0)")
        self._flush_prev()


def srd(d, lo, hi, nbytes):
    return [f"s_mov_b32 s{d}, s{lo}", f"s_and_b32 s{d+1}, s{hi}, 0xffff",
            f"s_mov_b32 s{d+2}, {nbytes}", f"s_mov_b32 s{d+3}, 0x00020000"]

SLOT = 28672
XBASE = 49152


def gen():
    a = Asm()
    a.raw(kernel_header(NAME))
    def A(lst):
        for x in lst:
            a(x)
    NH, NW = OPT["NH"], OPT["NW"]
    sX, sWq, sWg, sWS, sWd, sWo, sO, sDbg = 36, 40, 44, 48, 52, 56, 60, 64
    s_w, s_tb, s_cb, s_g, s_mt = 68, 69, 70, 71, 72
    s_t0, s_t1, s_t2 = 74, 75, 76
    s_hst = 77
    s_n0 = 78
    s_q0, s_q3, s_v0, s_v3, s_g0, s_g3 = 4, 5, 6, 7, 8, 9
    s_m0, s_m3, s_scale, s_tg, s_qkst, s_vst = 10, 11, 12, 13, 14, 15
    s_wr = 3
    s_b1 = 73
    s_b2 = 0
    s_d0, s_d1 = 96, 97
    s_one = 16
    s_h, s_qb, s_fp, s_tch = 18, 19, 20, 21
    s_mq0, s_mq3 = 22, 23
    sTch = 24
    s_xr, s_xr1, s_tr, s_tqk = 80, 81, 82, 83
    s_kv, s_par, s_bd, s_ost = 84, 85, 86, 87
    s_tb64, s_nb, s_kh, s_cmt, s_nt = 88, 89, 90, 91, 92
    s_hb, s_hr, s_wb = 93, 94, 95
    s_wob, s_m0h, s_m0w, s_xo = 28, 29, 30, 31
    s_fo = 80
    MK = [24, 26, 16, 64, 32, 34, 40, 42]
    vX = 128
    ACC = [64, 96]
    vW = 48
    vT = 16
    v_lane, v_dq, v_dg, v_rdA, v_rdB, v_st, v_msk = 1, 2, 3, 4, 5, 6, 7
    v_bqk, v_bg0, v_bg1 = 9, 11, 12
    v_c1, v_c2, v_k1 = 8, 10, 14
    v_stk = 13
    v_stamp = 15
    v_xa = 32
    v_xw = 40
    v_xo = 44
    v_dv, v_dvh, v_bv0, v_bv1 = 40, 41, 42, 43
    v_tg, v_tq = 46, 47
    v_dw, v_d = 44, 45
    v_paH = 46
    v_paV = 47
    vQ = 240
    v_qa = 244
    v_one = 245
    v_e0, v_td = 246, 247
    v_non = 248
    v_e1, v_zero = 250, 251
    v_fa = 252
    v_pa = 253
    v_pf = 254
    t = vT

    st = Stamps(a, v_stamp)
    a("s_cmp_ge_u32 s2, 256")
    a("s_cbranch_scc1 L_end")
    st("rt", rt=True); st("t0", wait=True)
    if DBGST:
        a("s_mov_b64 s[82:83], s[0:1]")
    a("s_load_dwordx16 s[16:31], s[0:1], 0")
    a("s_load_dwordx4 s[32:35], s[0:1], 64")
    a(f"s_memrealtime s[{s_n0}:{s_n0+1}]")
    if OPT["ctouch"]:
        a(f"s_getpc_b64 s[{s_d0}:{s_d0+1}]")
        a(f"s_and_b32 s{s_t0}, s2, 0xf8")
        a(f"v_add_lshl_u32 v{t+10}, v0, s{s_t0}, 7")
        a(f"v_min_u32 v{t+10}, 27000, v{t+10}")
        a(f"v_cmp_gt_u32 vcc, 8, v0")
        a(f"s_and_saveexec_b64 s[{s_t0}:{s_t0+1}], vcc")
        a("s_cbranch_execz L_noct")
        a(f"global_load_dword v{v_td}, v{t+10}, s[{s_d0}:{s_d0+1}]")
        a("L_noct:")
        a(f"s_mov_b64 exec, -1")
    a(f"v_and_b32 v{v_lane}, 63, v0")
    a(f"v_lshrrev_b32 v{t}, 6, v0")
    a(f"v_readfirstlane_b32 s{s_w}, v{t}")
    a(f"s_and_b32 s{s_tb}, s2, 3")
    a(f"s_bfe_u32 s{s_t2}, s2, 0x20003")
    a(f"s_lshl2_add_u32 s{s_tb}, s{s_tb}, s{s_t2}")
    a(f"s_bfe_u32 s{s_cb}, s2, 0x10002")
    a(f"s_lshr_b32 s{s_t1}, s2, 5")
    a(f"s_lshl3_add_u32 s{s_cb}, s{s_cb}, s{s_t1}")
    a(f"s_lshr_b32 s{s_g}, s{s_w}, 2")
    a(f"s_and_b32 s{s_mt}, s{s_w}, 3")
    if OPT["we"] == 4:
        a(f"s_and_b32 s{s_t0}, s{s_cb}, 1")
        a(f"s_and_b32 s{s_t1}, s{s_cb}, 2")
        a(f"s_lshl2_add_u32 s{s_t0}, s{s_t1}, s{s_t0}")
    elif OPT["we"] == 2:
        a(f"s_and_b32 s{s_t0}, s{s_cb}, 1")
        a(f"s_and_b32 s{s_t1}, s{s_cb}, 6")
        a(f"s_lshl1_add_u32 s{s_t0}, s{s_t1}, s{s_t0}")
    else:
        a(f"s_and_b32 s{s_t0}, s{s_cb}, 7")
        a(f"s_lshl_b32 s{s_t0}, s{s_t0}, 1")
    a(f"s_lshl_b32 s{s_wr}, s{s_w}, 1")
    a(f"s_xor_b32 s{s_wr}, s{s_wr}, s{s_t0}")
    a(f"v_lshrrev_b32 v{t}, 3, v{v_lane}")
    a(f"v_and_b32 v{t+1}, 7, v{v_lane}")
    a(f"v_mul_u32_u24 v{v_xo}, 896, v{t}")
    a(f"v_lshl_add_u32 v{v_xo}, v{t+1}, 4, v{v_xo}")
    a(f"s_lshl4_add_u32 s{s_t0}, s{s_tb}, s{s_wr}")
    a(f"s_mul_i32 s{s_xr}, s{s_t0}, {8*896}")
    a(f"s_xor_b32 s{s_t0}, s{s_t0}, 1")
    a(f"s_mul_i32 s{s_xr1}, s{s_t0}, {8*896}")
    a(f"v_mov_b32 v{v_e1}, {OOB}")
    a("s_waitcnt lgkmcnt(0)")
    A(srd(sX, 16, 17, X_BYTES))
    vm = VM()
    def raw(e, i):
        return ACC[0] + 28 * e + 4 * i
    def xload(e, j, track=True):
        r = raw(e, j)
        a(f"buffer_load_dwordx4 v[{r}:{r+3}], v{v_xo}, s[{sX}:{sX+3}], s{s_xr1 if e else s_xr} offen offset:{128*j}")
        if track:
            vm.issue(f"x{e}{j}")
    def gtouch(sr, nl, per_wg8, vt, vmx=None):
        if per_wg8:
            a(f"s_lshl3_add_u32 s{s_t0}, s2, s{s_w}")
        else:
            a(f"s_lshl2_add_u32 s{s_t0}, s2, s{s_mt}")
        a(f"s_mul_i32 s{s_t0}, s{s_t0}, {nl}")
        a(f"v_min_u32 v{vt}, {nl-1}, v{v_lane}")
        a(f"v_add_lshl_u32 v{vt}, v{vt}, s{s_t0}, 7")
        a(f"s_mov_b64 exec, {(1 << nl) - 1}")
        a(f"buffer_load_dword v{v_td}, v{vt}, s[{sr}:{sr+3}], 0 offen")
        a(f"s_mov_b64 exec, -1")
        if vmx is not None:
            vmx.issue("t")
    XF = OPT["xf"]
    xorder = [(0, j) for j in range(7)] + [(1, j) for j in range(7)]
    A(srd(sWq, 18, 19, WQKV_BYTES))
    a(f"s_cmp_ge_u32 s{s_w}, {OPT['we']}")
    a("s_cbranch_scc1 L_x0skip0")
    for k, (e, j) in enumerate(xorder[:XF]):
        xload(e, j, False)
    a("L_x0skip0:")
    a(f"s_cmp_lg_u32 s{s_g}, 0")
    a("s_cbranch_scc1 L_x0skip")
    gtouch(sWq, 10, False, t + 10)
    if OPT["tlb"]:
        a(f"s_cmp_lg_u32 s{s_w}, 3")
        a("s_cbranch_scc1 L_x0skip")
        a(f"v_lshlrev_b32 v{t+10}, {OPT['tlb']}, v{v_lane}")
        a(f"s_mov_b64 exec, {(1 << min(32, (18 << 20) >> OPT['tlb'])) - 1}")
        a(f"global_load_dword v{v_td}, v{t+10}, s[34:35] sc1")
        a(f"s_mov_b64 exec, 1")
        for p in (20, 24, 26, 28, 30, 32):
            a(f"global_load_dword v{v_td}, v{t+10}, s[{p}:{p+1}] sc1")
        a(f"s_mov_b64 exec, -1")
    a("L_x0skip:")
    a(f"s_cmp_eq_u32 s{s_g}, 0")
    a(f"s_cselect_b32 s{sWg}, s24, s26")
    a(f"s_cselect_b32 s{sWg+1}, s25, s27")
    a(f"s_and_b32 s{sWg+1}, s{sWg+1}, 0xffff")
    a(f"s_mov_b32 s{sWg+2}, {WG_BYTES}")
    a(f"s_mov_b32 s{sWg+3}, 0x00020000")
    A(srd(sDbg, 32, 33, 256))
    a(f"s_or_b32 s{s_n0}, s{s_n0}, 1")
    a(f"v_mov_b32 v{v_non}, s{s_n0}")
    a(f"v_mov_b32 v{v_non+1}, s{s_n0+1}")
    a(f"v_cmp_eq_u32 s[{s_d0}:{s_d0+1}], 0, v0")
    a(f"v_cndmask_b32 v{v_fa}, v{v_e1}, 0, s[{s_d0}:{s_d0+1}]")
    a(f"s_cmp_eq_u32 s2, 0")
    a(f"s_cselect_b64 s[{s_d0}:{s_d0+1}], s[{s_d0}:{s_d0+1}], 0")
    a(f"v_cndmask_b32 v{v_e0}, v{v_e1}, 0, s[{s_d0}:{s_d0+1}]")
    a(f"v_mov_b32 v{v_zero}, 0")
    a(f"v_bfe_u32 v{t+2}, v{v_lane}, 4, 1")
    a(f"v_lshlrev_b32 v{t+3}, 2, v{t+2}")
    a(f"v_xor_b32 v{t+3}, v{t+3}, v{t+1}")
    a(f"v_mul_u32_u24 v{v_dq}, 2688, v{t}")
    a(f"v_lshl_add_u32 v{v_dq}, v{t+3}, 4, v{v_dq}")
    a(f"v_lshlrev_b32 v{t+3}, 1, v{t+2}")
    a(f"v_xor_b32 v{t+3}, v{t+3}, v{t+1}")
    a(f"s_lshl_b32 s{s_t1}, s{s_g}, 2")
    a(f"v_xor_b32 v{t+3}, s{s_t1}, v{t+3}")
    a(f"v_mul_u32_u24 v{v_dg}, 3584, v{t}")
    a(f"v_lshl_add_u32 v{v_dg}, v{t+3}, 4, v{v_dg}")
    a(f"s_lshl_b32 s{s_t0}, s{s_wr}, 3")
    for e in range(2):
        a(f"v_add_u32 v{t+2}, s{s_t0}, v{t}")
        if e:
            a(f"v_xor_b32 v{t+2}, 8, v{t+2}")
        a(f"v_bfe_u32 v{t+3}, v{t+2}, 1, 3")
        a(f"v_xor_b32 v{t+3}, v{t+3}, v{t+1}")
        a(f"v_lshlrev_b32 v{t+2}, 7, v{t+2}")
        a(f"v_lshl_add_u32 v{t+2}, v{t+3}, 4, v{t+2}")
        a(f"v_add_u32 v{v_xw+e}, {XBASE}, v{t+2}")
        a(f"v_add_u32 v{v_xw+2+e}, {XBASE+65536}, v{t+2}")
    a(f"s_mul_i32 s{s_g0}, s{s_mt}, {8*3584}")
    a(f"s_mul_i32 s{s_g3}, s{s_mt}, {4*3584}")
    a(f"s_add_u32 s{s_g3}, s{s_g3}, {96*3584}")
    a(f"s_mul_i32 s{s_q0}, s{s_w}, {8*2688}")
    a(f"s_mul_i32 s{s_v0}, s{s_w}, {4*2688}")
    a(f"s_add_u32 s{s_q3}, s{s_v0}, {128*2688}")
    a(f"s_lshr_b32 s{s_t0}, s{s_cb}, 2")
    a(f"s_mul_i32 s{s_t1}, s{s_t0}, 224")
    a(f"s_add_u32 s{s_t1}, s{s_t1}, {56*32}")
    a(f"s_mul_i32 s{s_v3}, s{s_w}, {2*2688}")
    a(f"s_add_u32 s{s_v0}, s{s_v0}, s{s_t1}")
    a(f"s_add_u32 s{s_v3}, s{s_v3}, s{s_t1}")
    a(f"s_add_u32 s{s_v3}, s{s_v3}, {96*2688}")
    a(f"s_mul_i32 s{s_t1}, s{s_cb}, 112")
    a(f"s_add_u32 s{s_q0}, s{s_q0}, s{s_t1}")
    a(f"s_add_u32 s{s_q3}, s{s_q3}, s{s_t1}")
    a(f"s_mul_i32 s{s_t1}, s{s_t0}, 448")
    a(f"s_and_b32 s{s_t0}, s{s_cb}, 3")
    a(f"s_lshl_b32 s{s_hst}, s{s_t0}, 7")
    a(f"s_add_u32 s{s_t1}, s{s_t1}, s{s_hst}")
    a(f"s_lshl1_add_u32 s{s_g0}, s{s_t1}, s{s_g0}")
    a(f"s_lshl1_add_u32 s{s_g3}, s{s_t1}, s{s_g3}")
    a(f"s_lshl_b32 s{s_hst}, s{s_t1}, 6")
    a(f"s_mul_i32 s{s_m0}, s{s_g}, {112*128}")
    a(f"s_lshl_b32 s{s_t1}, s{s_mt}, 9")
    a(f"s_add_u32 s{s_m3}, s{s_m0}, s{s_t1}")
    a(f"s_add_u32 s{s_m3}, s{s_m3}, {96*128}")
    a(f"s_lshl1_add_u32 s{s_m0}, s{s_t1}, s{s_m0}")
    a(f"s_lshl_b32 s{s_mq0}, s{s_w}, 10")
    a(f"s_lshl_b32 s{s_mq3}, s{s_w}, 9")
    a(f"s_add_u32 s{s_mq3}, s{s_mq3}, {128*128}")
    a(f"v_bfe_u32 v{t}, v{v_lane}, 2, 2")
    a(f"v_and_b32 v{t+1}, 3, v{v_lane}")
    a(f"v_bfe_u32 v{t+2}, v{v_lane}, 4, 1")
    a(f"v_lshrrev_b32 v{t+3}, 5, v{v_lane}")
    a(f"v_lshrrev_b32 v{t+4}, 1, v{t+1}")
    a(f"v_and_b32 v{t+5}, 1, v{t+1}")
    a(f"v_lshl_or_b32 v{t+4}, v{t+5}, 1, v{t+4}")
    a(f"v_lshl_add_u32 v{t+5}, v{t+3}, 3, v{t}")
    a(f"v_lshlrev_b32 v{t+5}, 7, v{t+5}")
    a(f"v_lshrrev_b32 v{t+6}, 1, v{t}")
    a(f"s_mul_i32 s{s_t0}, s{s_g}, 56")
    a(f"v_lshlrev_b32 v{t+7}, 5, v{t+2}")
    a(f"v_lshl_add_u32 v{t+7}, v{t+4}, 3, v{t+7}")
    a(f"v_add_u32 v{t+7}, s{s_t0}, v{t+7}")
    a(f"v_lshlrev_b32 v{t+8}, 6, v{t+6}")
    a(f"v_xor_b32 v{t+7}, v{t+7}, v{t+8}")
    a(f"v_add_u32 v{v_bqk}, v{t+7}, v{t+5}")
    a(f"v_lshl_or_b32 v{t+7}, v{t+2}, 1, v{t+6}")
    a(f"s_lshl_b32 s{s_t0}, s{s_g}, 1")
    a(f"v_xor_b32 v{t+7}, s{s_t0}, v{t+7}")
    a(f"v_mul_u32_u24 v{t+8}, 14336, v{t+2}")
    a(f"v_add_u32 v{t+8}, v{t+8}, v{t+5}")
    a(f"v_lshl_add_u32 v{t+8}, v{t+4}, 3, v{t+8}")
    a(f"v_lshl_add_u32 v{v_bg0}, v{t+7}, 5, v{t+8}")
    a(f"v_xor_b32 v{v_bg1}, 32, v{v_bg0}")
    a(f"v_and_b32 v{t}, 0x13, v{v_lane}")
    a(f"v_bfe_u32 v{t+1}, v{v_lane}, 2, 1")
    a(f"v_lshl_or_b32 v{t}, v{t+1}, 3, v{t}")
    a(f"v_bfe_u32 v{t+1}, v{v_lane}, 3, 1")
    a(f"v_lshl_or_b32 v{t}, v{t+1}, 2, v{t}")
    a(f"s_lshl_b32 s{s_t0}, s{s_mt}, 5")
    a(f"v_add_u32 v{t}, s{s_t0}, v{t}")
    a(f"v_bfe_u32 v{t+1}, v{t}, 1, 3")
    a(f"v_xor_b32 v{t+1}, v{t+1}, v{t+3}")
    a(f"v_lshlrev_b32 v{t}, 7, v{t}")
    a(f"v_lshl_add_u32 v{t}, v{t+1}, 4, v{t}")
    a(f"v_add_u32 v{v_xa}, {XBASE}, v{t}")
    for s2 in range(1, 4):
        a(f"v_xor_b32 v{v_xa+s2}, {32*s2}, v{v_xa}")
    for s2 in range(4):
        a(f"v_add_u32 v{v_xa+4+s2}, 65536, v{v_xa+s2}")

    def dmaA(chunk, slot, tag):
        kind, idx, part = chunk
        G = []
        for jj in range(4):
            g = []
            rowb = 128
            m3x = 0
            if kind == "qk":
                b0, b3 = s_q0, s_q3
                stride = 2688
                off = 224 * part * stride
                sr, vo = sWq, v_dq
                rows = [0, 64, None, 160][jj]
                m0r, m3r = s_mq0, s_mq3
            elif kind == "v":
                b0, b3 = s_v0, s_v3
                stride = 2688
                off = 112 * part * stride
                rows = [0, 32, 64, None][jj]
                sr, vo = sWq, (v_dvh if rows is None else v_dv)
                m0r, m3r = s_mq0, s_mq3
                rowb = 256
                m3x = 8192
            else:
                b0, b3 = s_g0, s_g3
                stride = 3584
                off = 112 * part * stride + 128 * idx
                sr, vo = sWg, v_dg
                rows = [0, 32, 64, None][jj]
                m0r, m3r = s_m0, s_m3
            half = rows is None
            if not half:
                g.append(f"s_add_u32 m0, s{m0r}, {slot*SLOT + rows*rowb}")
                g.append(f"s_add_u32 s{s_b1}, s{b0}, {off + rows*stride}")
            else:
                g.append(f"s_add_u32 m0, s{m3r}, {slot*SLOT + m3x}")
                g.append(f"s_add_u32 s{s_b1}, s{b3}, {off}")
                g.append("s_mov_b32 exec_hi, 0")
            g.append(f"buffer_load_dwordx4 v{vo}, s[{sr}:{sr+3}], s{s_b1} offen lds")
            if half:
                g.append("s_mov_b32 exec_hi, -1")
            G.append((g, tag))
        return G

    def emit_group(vm, grp):
        g, tag = grp
        for ins in g:
            a(ins)
            if ins.startswith("buffer_"):
                vm.issue(tag)

    seq1 = [("qk", 0, 0), ("qk", 0, 1)] + [("gu", 0, p) for p in range(4)] + [("gu", 1, p) for p in range(4)]
    seq2 = [("qk", 0, 0), ("qk", 0, 1)] + [("v", 0, p) for p in range(4)] + [("gu", 0, p) for p in range(4)]
    c1groups = dmaA(seq1[1], 1, "c1")
    early = dmaA(seq1[0], 0, "c0") + c1groups[:OPT["c1e"]]
    c1b = (c1groups[3][0], "c1b")
    def deferred(is2):
        D = []
        S = D.append
        tt = vT
        d0, d1 = s_d0, s_d1
        if is2:
            S(f"v_lshrrev_b32 v{tt}, 4, v{v_lane}")
            S(f"v_and_b32 v{tt+1}, 15, v{v_lane}")
            S(f"v_mul_u32_u24 v{tt+2}, 2688, v{tt}")
            S(f"v_lshlrev_b32 v{tt+3}, 2, v{tt}")
            S(f"v_xor_b32 v{tt+3}, v{tt+3}, v{tt+1}")
            S(f"v_lshl_add_u32 v{v_dv}, v{tt+3}, 4, v{tt+2}")
            S(f"s_and_b32 s{d0}, s{s_w}, 1")
            S(f"s_lshl_b32 s{d0}, s{d0}, 7")
            S(f"v_lshlrev_b32 v{tt+3}, 4, v{tt+3}")
            S(f"v_xor_b32 v{tt+3}, s{d0}, v{tt+3}")
            S(f"v_add_u32 v{v_dvh}, v{tt+3}, v{tt+2}")
            S(f"v_bfe_u32 v{tt}, v{v_lane}, 2, 2")
            S(f"v_and_b32 v{tt+1}, 3, v{v_lane}")
            S(f"v_bfe_u32 v{tt+2}, v{v_lane}, 4, 1")
            S(f"v_lshrrev_b32 v{tt+3}, 5, v{v_lane}")
            S(f"v_lshl_add_u32 v{tt+3}, v{tt+3}, 3, v{tt}")
            S(f"v_lshlrev_b32 v{tt+3}, 8, v{tt+3}")
            S(f"v_lshlrev_b32 v{tt+1}, 4, v{tt+1}")
            S(f"v_lshl_add_u32 v{tt+1}, v{tt+2}, 3, v{tt+1}")
            S(f"s_mul_i32 s{d0}, s{s_g}, 112")
            S(f"v_add_u32 v{tt+1}, s{d0}, v{tt+1}")
            S(f"v_lshlrev_b32 v{tt}, 6, v{tt}")
            S(f"v_xor_b32 v{tt+2}, v{tt+1}, v{tt}")
            S(f"v_add_u32 v{v_bv0}, v{tt+2}, v{tt+3}")
            S(f"v_add_u32 v{tt+1}, 56, v{tt+1}")
            S(f"v_xor_b32 v{tt+2}, v{tt+1}, v{tt}")
            S(f"v_add_u32 v{v_bv1}, v{tt+2}, v{tt+3}")
        return D

    def deferred_common():
        D = []
        S = D.append
        tt = vT
        d0, d1 = s_d0, s_d1
        is2 = True
        D += srd(sWS, 34, 35, WS_BYTES) + srd(sWd, 28, 29, WD_BYTES) + srd(sWo, 20, 21, WO_BYTES) + srd(sO, 30, 31, X_BYTES)
        S(f"s_cmp_lt_u32 s{s_cb}, 8\ns_cselect_b32 s{s_scale}, 0x{f2u(QSCALE):08x}, 1.0")
        S(f"s_lshl1_add_u32 s{s_qkst}, s{s_cb}, s{s_g}")
        S(f"s_lshl_b32 s{s_qkst}, s{s_qkst}, 17")
        S(f"s_lshl2_add_u32 s{d0}, s{s_tb}, s{s_mt}")
        S(f"s_mul_i32 s{d1}, s{d0}, {NKS*1024}")
        S(f"s_add_u32 s{s_hst}, s{s_hst}, s{d1}")
        S(f"s_lshl_b32 s{d1}, s{s_g}, 11")
        S(f"s_add_u32 s{s_hst}, s{s_hst}, s{d1}")
        S(f"s_add_u32 s{s_hst}, s{s_hst}, {HF}")
        S(f"s_lshl_b32 s{d0}, s{d0}, 11")
        S(f"s_add_u32 s{s_qkst}, s{s_qkst}, s{d0}")
        if is2:
            S(f"s_and_b32 s{s_vst}, s{s_cb}, 12")
            S(f"s_lshl1_add_u32 s{s_vst}, s{s_g}, s{s_vst}")
            S(f"s_lshl_b32 s{s_vst}, s{s_vst}, 17")
            S(f"s_add_u32 s{s_vst}, s{s_vst}, s{d0}")
            S(f"s_add_u32 s{s_vst}, s{s_vst}, {VF}")
            S(f"v_and_b32 v{tt}, 31, v{v_lane}")
            S(f"v_cmp_eq_u32 s[{s_one}:{s_one+1}], 28, v{tt}")
            S(f"v_mov_b32 v{v_one}, 0x3f803f80")
        S(f"s_and_b32 s{s_wr}, s{s_tb}, 3")
        S(f"v_mov_b32 v{v_c1}, 0x{f2u(GC1):08x}")
        S(f"v_mov_b32 v{v_c2}, 0x{f2u(GC2):08x}")
        S(f"v_mov_b32 v{v_k1}, 1.0")
        S(f"v_lshlrev_b32 v{v_st}, 4, v{v_lane}")
        S(f"v_bfe_u32 v{tt}, v{v_lane}, 3, 1")
        S(f"v_lshlrev_b32 v{tt}, 4, v{tt}")
        S(f"v_bfe_u32 v{tt+1}, v{v_lane}, 4, 1")
        S(f"v_lshl_or_b32 v{tt}, v{tt+1}, 3, v{tt}")
        S(f"v_and_b32 v{tt+1}, 0x27, v{v_lane}")
        S(f"v_or_b32 v{tt}, v{tt}, v{tt+1}")
        S(f"v_lshlrev_b32 v{v_stk}, 4, v{tt}")
        S(f"s_cmp_lt_u32 s{s_cb}, 8\ns_cselect_b64 s[{d0}:{d0+1}], -1, 0")
        S(f"v_cndmask_b32 v{v_stk}, v{v_stk}, v{v_st}, s[{d0}:{d0+1}]")
        S(f"v_cmp_gt_u32 s[{d0}:{d0+1}], 32, v{v_lane}")
        S(f"v_cndmask_b32 v{v_msk}, 0, -1, s[{d0}:{d0+1}]")
        return D

    if not OPT["dcl"]:
        for x in deferred_common():
            a(x)
    st("setup")

    F = vX
    a(f"s_cmp_lt_u32 s{s_w}, {OPT['we']}")
    a("s_cbranch_scc1 L_x0skip2")
    for (e, j) in xorder[:XF]:
        xload(e, j, False)
    a("L_x0skip2:")
    for (e, j) in xorder[:XF]:
        vm.issue(f"x{e}{j}")
    if OPT["dcl"]:
        for x in deferred_common():
            a(x)
    xrest = list(xorder[XF:])
    if not OPT["xil"]:
        while xrest:
            xload(*xrest.pop(0))
    def qdma(i0_, i1_, lab):
        a(f"s_cmp_lg_u32 s{s_g}, 0")
        a(f"s_cbranch_scc1 L_nodma{lab}")
        for i in range(i0_, i1_):
            a(f"s_add_u32 m0, s{s_mq0}, {32*i*128}")
            a(f"s_add_u32 s{s_b1}, s{s_q0}, {32*i*2688}")
            a(f"buffer_load_dwordx4 v{v_dq}, s[{sWq}:{sWq+3}], s{s_b1} offen lds")
            vm.issue("c0" if i < 7 else "c1")
        a(f"L_nodma{lab}:")
    if OPT["lnm"]:
        MF = "v_mfma_f32_4x4x4_16b_bf16"
        vOnes, vM = t, t + 2
        vAh, vAl, vB = t + 4, t + 6, t + 8
        S_, Q_, R_, U_ = t + 12, t + 13, t + 14, t + 15
        SA = [F, F + 4]
        QA = [F + 8, F + 12]
        D0 = F + 16
        sJ = [4, 6, 8]
        a(f"v_mov_b32 v{vOnes}, 0x3f803f80")
        a(f"v_mov_b32 v{vOnes+1}, 0x3f803f80")
        a(f"v_and_b32 v{U_}, 3, v{v_lane}")
        a(f"v_and_b32 v{R_}, 1, v{v_lane}")
        a(f"v_lshlrev_b32 v{R_}, 4, v{R_}")
        a(f"v_mov_b32 v{S_}, 0xffff")
        a(f"v_lshlrev_b32 v{S_}, v{R_}, v{S_}")
        a(f"v_cmp_gt_u32 s[{s_kv}:{s_kv+1}], 2, v{U_}")
        a(f"v_cmp_eq_u32 s[{s_bd}:{s_bd+1}], 0, v{R_}")
        a(f"v_cndmask_b32 v{vM}, 0, v{S_}, s[{s_kv}:{s_kv+1}]")
        a(f"v_cndmask_b32 v{vM+1}, v{S_}, 0, s[{s_kv}:{s_kv+1}]")
        Q4 = lambda r: f"v[{r}:{r+3}]"
        P2 = lambda r: f"v[{r}:{r+1}]"
        for e in range(2):
            for j in range(7):
                if xrest:
                    xload(*xrest.pop(0))
                a(f"s_waitcnt vmcnt({vm.wait_n(f'x{e}{j}')})")
                if (e, j) in ((0, 0), (1, 6)):
                    st(f"x{e}{j}")
                r = raw(e, j)
                for h2 in range(2):
                    cs = "0" if j == 0 else Q4(SA[h2])
                    a(f"{MF} {Q4(SA[h2])}, {P2(vOnes)}, {P2(r+2*h2)}, {cs}")
                    cq = "0" if j == 0 else Q4(QA[h2])
                    a(f"{MF} {Q4(QA[h2])}, {P2(r+2*h2)}, {P2(r+2*h2)}, {cq}")
            if e == 1 and OPT["dmae"]:
                qdma(0, OPT["dmae"], "a")
            a(f"v_add_f32 v{S_}, v{SA[0]}, v{SA[1]}")
            for k in range(0, 4, 2):
                a(f"v_pk_add_f32 {P2(QA[0]+k)}, {P2(QA[0]+k)}, {P2(QA[1]+k)}")
            a(f"v_cndmask_b32 v{QA[0]}, v{QA[0]+1}, v{QA[0]}, s[{s_bd}:{s_bd+1}]")
            a(f"v_cndmask_b32 v{QA[0]+2}, v{QA[0]+3}, v{QA[0]+2}, s[{s_bd}:{s_bd+1}]")
            a(f"v_cndmask_b32 v{Q_}, v{QA[0]+2}, v{QA[0]}, s[{s_kv}:{s_kv+1}]")
            for pat in ("quad_perm:[1,0,3,2]", "quad_perm:[2,3,0,1]", "row_half_mirror"):
                for r in (S_, Q_):
                    a(f"v_add_f32_dpp v{r}, v{r}, v{r} {pat} row_mask:0xf bank_mask:0xf")
            a(f"v_mul_f32 v{S_}, 0x{f2u(1.0/448):08x}, v{S_}")
            a(f"v_mul_f32 v{Q_}, 0x{f2u(1.0/448):08x}, v{Q_}")
            a(f"v_fma_f32 v{Q_}, -v{S_}, v{S_}, v{Q_}")
            a(f"v_max_f32 v{Q_}, 0, v{Q_}")
            a(f"v_add_f32 v{Q_}, 0x{f2u(1e-5):08x}, v{Q_}")
            a(f"v_rsq_f32 v{R_}, v{Q_}")
            a(f"v_cvt_pk_bf16_f32 v{U_}, v{R_}, v{R_}")
            a(f"v_mul_f32 v{vB}, -v{S_}, v{R_}")
            a(f"v_and_b32 v{Q_}, 0xffff0000, v{U_}")
            a(f"v_and_b32 v{vAh}, v{U_}, v{vM}")
            a(f"v_and_b32 v{vAh+1}, v{U_}, v{vM+1}")
            a(f"v_sub_f32 v{Q_}, v{R_}, v{Q_}")
            a(f"v_cvt_pk_bf16_f32 v{U_}, v{Q_}, v{Q_}")
            for k in range(1, 4):
                a(f"v_mov_b32 v{vB+k}, v{vB}")
            a(f"v_and_b32 v{vAl}, v{U_}, v{vM}")
            a(f"v_and_b32 v{vAl+1}, v{U_}, v{vM+1}")
            def hi(j, h2):
                r = raw(e, j); d = D0 + 8 * (j % 4)
                return f"{MF} {Q4(d+4*h2)}, {P2(vAh)}, {P2(r+2*h2)}, {Q4(vB)}"
            def lo(j, h2):
                r = raw(e, j); d = D0 + 8 * (j % 4)
                return f"{MF} {Q4(d+4*h2)}, {P2(vAl)}, {P2(r+2*h2)}, {Q4(d+4*h2)}"
            def cv(j, k):
                r = raw(e, j); d = D0 + 8 * (j % 4)
                return f"v_cvt_pk_bf16_f32 v{r+k}, v{d+2*k}, v{d+2*k+1}"
            for j in range(-3, 7):
                mf = []
                if 0 <= j + 3 < 7:
                    mf += [hi(j + 3, 0), hi(j + 3, 1)]
                if 0 <= j + 2 < 7:
                    mf += [lo(j + 2, 0), lo(j + 2, 1)]
                for k in range(4):
                    if k < len(mf):
                        a(mf[k])
                    if j >= 0:
                        a(cv(j, k))
                if j >= 0:
                    r = raw(e, j)
                    a(f"ds_write_b128 v{v_xw + e + (2 if j >= 4 else 0)}, v[{r}:{r+3}] offset:{(j % 4)*16384}")
    else:
        S_, Q_, R_ = t, t + 2, t + 4
        for e in range(2):
            for j in range(7):
                if xrest:
                    xload(*xrest.pop(0))
                a(f"s_waitcnt vmcnt({vm.wait_n(f'x{e}{j}')})")
                if (e, j) in ((0, 0), (1, 6)):
                    st(f"x{e}{j}")
                for d in range(4):
                    r = raw(e, j) + d
                    f = F + 8 * j + 2 * d
                    a(f"v_lshlrev_b32 v{f}, 16, v{r}")
                    a(f"v_and_b32 v{f+1}, 0xffff0000, v{r}")
                for d in range(4):
                    f = F + 8 * j + 2 * d
                    if j == 0 and d == 0:
                        a(f"v_pk_mul_f32 v[{Q_}:{Q_+1}], v[{f}:{f+1}], v[{f}:{f+1}]")
                    elif j == 0 and d == 1:
                        a(f"v_pk_add_f32 v[{S_}:{S_+1}], v[{f-2}:{f-1}], v[{f}:{f+1}]")
                        a(f"v_pk_fma_f32 v[{Q_}:{Q_+1}], v[{f}:{f+1}], v[{f}:{f+1}], v[{Q_}:{Q_+1}]")
                    else:
                        a(f"v_pk_add_f32 v[{S_}:{S_+1}], v[{S_}:{S_+1}], v[{f}:{f+1}]")
                        a(f"v_pk_fma_f32 v[{Q_}:{Q_+1}], v[{f}:{f+1}], v[{f}:{f+1}], v[{Q_}:{Q_+1}]")
            if e == 1 and OPT["dmae"]:
                qdma(0, OPT["dmae"], "a")
            for r in (S_, Q_):
                a(f"v_add_f32 v{r}, v{r}, v{r+1}")
            for pat in ("quad_perm:[1,0,3,2]", "quad_perm:[2,3,0,1]", "row_half_mirror"):
                for r in (S_, Q_):
                    a(f"v_add_f32_dpp v{r}, v{r}, v{r} {pat} row_mask:0xf bank_mask:0xf")
            a(f"v_mul_f32 v{S_}, 0x{f2u(1.0/448):08x}, v{S_}")
            a(f"v_mul_f32 v{Q_}, 0x{f2u(1.0/448):08x}, v{Q_}")
            a(f"v_fma_f32 v{Q_}, -v{S_}, v{S_}, v{Q_}")
            a(f"v_max_f32 v{Q_}, 0, v{Q_}")
            a(f"v_add_f32 v{Q_}, 0x{f2u(1e-5):08x}, v{Q_}")
            a(f"v_rsq_f32 v{R_}, v{Q_}")
            a(f"v_mul_f32 v{R_+2}, -v{S_}, v{R_}")
            for j in range(7):
                for d in range(4):
                    f = F + 8 * j + 2 * d
                    a(f"v_pk_fma_f32 v[{f}:{f+1}], v[{f}:{f+1}], v[{R_}:{R_+1}], v[{R_+2}:{R_+3}] op_sel_hi:[1,0,0]")
                for d in range(4):
                    f = F + 8 * j + 2 * d
                    a(f"v_cvt_pk_bf16_f32 v{raw(e, j)+d}, v{f}, v{f+1}")
                r = raw(e, j)
                a(f"ds_write_b128 v{v_xw + e + (2 if j >= 4 else 0)}, v[{r}:{r+3}] offset:{(j % 4)*16384}")
    st("lnend")
    qdma(OPT["dmae"], 12, "b")
    gtouch(sWg, 13, False, t + 10, vm)
    a(f"buffer_store_dwordx2 v[{v_non}:{v_non+1}], v{v_e0}, s[{sDbg}:{sDbg+3}], 0 offen sc1")
    vm.issue("t")
    a(f"s_waitcnt vmcnt({vm.wait_n('c0')}) lgkmcnt(0)")
    a("s_barrier")
    st("B1")
    if OPT["mprio"]:
        a(f"s_cmp_eq_u32 s{s_g}, 0")
        a("s_cbranch_scc1 L_noprio")
        a("s_setprio 1")
        a("L_noprio:")
    a(f"s_and_b32 s{s_t0}, s{s_cb}, 3")
    a(f"s_cmp_eq_u32 s{s_t0}, 3")
    a("s_cbranch_scc1 L_type2")

    def deferred2():
        D = []
        S = D.append
        tt = vT + 8
        d0, d1 = s_d0, s_d1
        S(f"s_and_b32 s{d0}, s2, 7")
        S(f"s_lshr_b32 s{d1}, s2, 7")
        S(f"s_lshl1_add_u32 s{s_h}, s{d0}, s{d1}")
        S(f"s_bfe_u32 s{s_qb}, s2, 0x40003")
        S(f"s_bfe_u32 s{d1}, s2, 0x20003")
        S(f"s_lshl2_add_u32 s{s_tb64}, s{d0}, s{d1}")
        S(f"s_lshr_b32 s{s_nb}, s2, 5")
        S(f"s_lshr_b32 s{d0}, s{s_h}, 1")
        S(f"s_or_b32 s{d1}, s{s_h}, 3")
        S(f"v_min_u32 v{tt}, 1, v{v_lane}")
        S(f"v_sub_u32 v{tt+1}, v{v_lane}, v{tt}")
        S(f"v_sub_u32 v{tt+1}, s{s_qb}, v{tt+1}")
        S(f"v_max_i32 v{tt+1}, 0, v{tt+1}")
        S(f"v_lshl_add_u32 v{tt}, v{tt}, 3, s{d0}")
        S(f"v_lshl_add_u32 v{tt}, v{tt+1}, 4, v{tt}")
        S(f"v_lshlrev_b32 v{tt}, 3, v{tt}")
        S(f"v_add_u32 v{tt}, {FL + F_QK*2048}, v{tt}")
        S(f"v_sub_u32 v{tt+1}, s{s_qb}, v{v_lane}")
        S(f"v_max_i32 v{tt+1}, 0, v{tt+1}")
        S(f"v_lshl_add_u32 v{tt+1}, v{tt+1}, 4, s{d1}")
        S(f"v_lshlrev_b32 v{tt+1}, 3, v{tt+1}")
        S(f"v_add_u32 v{tt+1}, {FL + F_V*2048}, v{tt+1}")
        S(f"v_mov_b32 v{tt+2}, {OOB}")
        S(f"v_cmp_gt_u32 s[{d0}:{d0+1}], 4, v0")
        S(f"v_cndmask_b32 v{v_pa}, v{tt+2}, v{tt}, s[{d0}:{d0+1}]")
        S(f"v_cndmask_b32 v{v_paV}, v{tt+2}, v{tt+1}, s[{d0}:{d0+1}]")
        S(f"s_lshr_b32 s{d0}, s{s_tb64}, 1")
        S(f"s_lshl_b32 s{d0}, s{d0}, 7")
        S(f"s_add_u32 s{d0}, s{d0}, {FL + F_H*2048}")
        S(f"v_lshl_add_u32 v{tt}, v{v_lane}, 3, s{d0}")
        S(f"v_cmp_gt_u32 s[{d0}:{d0+1}], 16, v{0 if OPT['p1'] else v_lane}")
        S(f"v_cndmask_b32 v{v_paH}, v{tt+2}, v{tt}, s[{d0}:{d0+1}]")
        S(f"s_lshl4_add_u32 s{s_fp}, s{s_tb}, s{s_cb}")
        S(f"s_lshl_b32 s{s_fp}, s{s_fp}, 3")
        S(f"s_add_u32 s{s_fp}, s{s_fp}, {FL}")
        S(f"s_lshl4_add_u32 s{s_fo}, s{s_qb}, s{s_h}")
        S(f"s_lshl_b32 s{s_fo}, s{s_fo}, 3")
        S(f"s_add_u32 s{s_fo}, s{s_fo}, {FL}")
        S(f"s_lshl_b32 s{s_kv}, s{s_h}, 17")
        S(f"s_lshl_b32 s{d0}, s{s_qb}, 13")
        S(f"s_mul_i32 s{d1}, s{s_w}, 3072")
        S(f"s_add_u32 s{d1}, s{d1}, s{d0}")
        for j in range(3):
            S(f"s_sub_u32 s{81+j}, s{d1}, {16384 - 1024*j}")
            S(f"s_max_i32 s{81+j}, s{81+j}, 0")
            S(f"s_add_u32 s{81+j}, s{81+j}, s{s_kv}")
        S(f"s_add_u32 s{s_kv}, s{s_kv}, s{d0}")
        S(f"v_and_b32 v{tt}, 15, v{v_lane}")
        S(f"v_lshrrev_b32 v{tt+1}, 4, v{v_lane}")
        S(f"v_lshlrev_b32 v{v_qa}, 9, v{tt+1}")
        S(f"v_lshl_add_u32 v{v_qa}, v{tt}, 4, v{v_qa}")
        S(f"s_and_b32 s{s_nt}, s{s_w}, 1")
        S(f"s_lshl_b32 s{s_par}, s{s_nt}, 8")
        S(f"s_lshr_b32 s{s_bd}, s{s_w}, 1")
        S(f"s_lshl2_add_u32 s{s_bd}, s{s_qb}, s{s_bd}")
        S(f"s_mul_i32 s{s_ost}, s{s_bd}, {NKS*1024}")
        S(f"s_lshl_b32 s{d0}, s{s_h}, 11")
        S(f"s_add_u32 s{s_ost}, s{s_ost}, s{d0}")
        S(f"s_add_u32 s{s_ost}, s{s_ost}, s{s_par}")
        S(f"s_add_u32 s{s_ost}, s{s_ost}, {HF + 112*1024}")
        S(f"v_and_b32 v{v_d}, 3, v{v_lane}")
        S(f"v_bfe_u32 v{tt}, v{v_lane}, 2, 1")
        S(f"v_lshl_or_b32 v{v_d}, v{tt}, 3, v{v_d}")
        S(f"v_bfe_u32 v{tt}, v{v_lane}, 3, 1")
        S(f"v_lshl_or_b32 v{v_d}, v{tt}, 2, v{v_d}")
        S(f"s_lshl_b32 s{d0}, s{s_nt}, 4")
        S(f"v_add_u32 v{v_d}, s{d0}, v{v_d}")
        S(f"v_lshlrev_b32 v{tt}, 3, v{tt+1}")
        S(f"v_sub_u32 v{v_d}, v{v_d}, v{tt}")
        S(f"s_lshr_b32 s{s_kh}, s{s_w}, 2")
        S(f"s_bfe_u32 s{s_cmt}, s{s_w}, 0x10001")
        S(f"v_lshrrev_b32 v{tt}, 3, v{v_lane}")
        S(f"v_and_b32 v{tt+1}, 7, v{v_lane}")
        S(f"v_bfe_u32 v{tt+2}, v{v_lane}, 4, 1")
        S(f"v_lshlrev_b32 v{tt+3}, 2, v{tt+2}")
        S(f"v_xor_b32 v{tt+3}, v{tt+3}, v{tt+1}")
        S(f"v_mul_u32_u24 v{v_dw}, 896, v{tt}")
        S(f"v_lshl_add_u32 v{v_dw}, v{tt+3}, 4, v{v_dw}")
        S(f"s_lshl_b32 s{s_m0h}, s{s_w}, 11")
        S(f"s_add_u32 s{s_m0w}, s{s_m0h}, {NH*16384}")
        S(f"s_mul_i32 s{s_wb}, s{s_w}, {16*896}")
        S(f"s_lshl_b32 s{d0}, s{s_nb}, 7")
        S(f"s_add_u32 s{s_wb}, s{s_wb}, s{d0}")
        S(f"s_lshr_b32 s{s_wob}, s{s_w}, 1")
        S(f"s_mul_i32 s{s_wob}, s{s_wob}, 28")
        S(f"s_lshl4_add_u32 s{s_wob}, s{s_nt}, s{s_wob}")
        S(f"s_mul_i32 s{s_wob}, s{s_wob}, 896")
        S(f"s_add_u32 s{s_wob}, s{s_wob}, s{d0}")
        S(f"s_lshl1_add_u32 s{d1}, s{s_tb64}, s{s_cmt}")
        S(f"s_mul_i32 s{s_xo}, s{d1}, {32*896}")
        S(f"s_add_u32 s{s_xo}, s{s_xo}, s{d0}")
        S(f"s_lshl_b32 s{d0}, s{s_nt}, 6")
        S(f"s_add_u32 s{s_xo}, s{s_xo}, s{d0}")
        S(f"s_lshl_b32 s{d0}, s{s_kh}, 5")
        S(f"s_add_u32 s{s_xo}, s{s_xo}, s{d0}")
        if OPT["rotc"]:
            S(f"s_lshl_b32 s{s_hr}, s{s_nb}, 14")
            S(f"s_mul_i32 s{d0}, s{s_nb}, {2*128*896}")
            S(f"s_add_u32 s{s_wb}, s{s_wb}, s{d0}")
        else:
            S(f"s_mov_b32 s{s_hr}, 0")
        if OPT["help"] & 1:
            S(f"s_and_b32 s{d0}, s{s_tb64}, 3")
            S(f"s_mul_i32 s{d0}, s{d0}, {2*128*896 + 128}")
            S(f"s_mul_i32 s{d1}, s{s_w}, {16*896}")
            S(f"s_add_u32 s{d0}, s{d0}, s{d1}")
            S(f"s_add_u32 s{d0}, s{d0}, {6*128*896}")
            S(f"s_cmp_ge_u32 s{s_nb}, 7\ns_cselect_b32 s{s_wb}, s{d0}, s{s_wb}")
        S(f"s_lshl1_add_u32 s{s_hb}, s{s_tb64}, s{s_kh}")
        S(f"s_mul_i32 s{s_hb}, s{s_hb}, {NKS*1024}")
        S(f"s_lshl_b32 s{d0}, s{s_mt}, 11")
        S(f"s_add_u32 s{s_hb}, s{s_hb}, s{d0}")
        S(f"s_add_u32 s{s_hb}, s{s_hb}, {HF}")
        return D

    def split_hoist(D, n):
        return D[:n], D[n:]
    SC = "sc1"
    def epi_qk(acc):
        E = []
        for r in range(16):
            E.append(f"v_mul_f32 v{acc+r}, s{s_scale}, v{acc+r}")
        for d in range(8):
            E.append(f"v_cvt_pk_bf16_f32 v{vT+d}, v{acc+2*d}, v{acc+2*d+1}")
        E.append(f"v_and_b32 v{vT+6}, v{vT+6}, v{v_msk}")
        E.append(f"v_and_b32 v{vT+7}, v{vT+7}, v{v_msk}")
        return E
    qk_stores = [f"buffer_store_dwordx4 v[{vT}:{vT+3}], v{v_stk}, s[{sWS}:{sWS+3}], s{s_qkst} offen {SC}",
                 f"buffer_store_dwordx4 v[{vT+4}:{vT+7}], v{v_stk}, s[{sWS}:{sWS+3}], s{s_qkst} offen offset:1024 {SC}"]

    def epi_v(acc):
        E = []
        for jj in range(2):
            Ac = acc + 16 * jj
            T = vT + 8 * jj
            for d in range(8):
                E.append(f"v_cvt_pk_bf16_f32 v{T+d}, v{Ac+2*d}, v{Ac+2*d+1}")
            for d in range(8):
                E.append(f"v_cndmask_b32 v{T+d}, v{T+d}, v{v_one}, s[{s_one}:{s_one+1}]")
            if jj:
                E.append(f"s_add_u32 s{s_vst}, s{s_vst}, {1 << 17}")
            E.append(f"buffer_store_dwordx4 v[{T}:{T+3}], v{v_st}, s[{sWS}:{sWS+3}], s{s_vst} offen {SC}")
            E.append(f"buffer_store_dwordx4 v[{T+4}:{T+7}], v{v_st}, s[{sWS}:{sWS+3}], s{s_vst} offen offset:1024 {SC}")
        return E

    def epi_gu_tile(acc, jj, pk):
        E = []
        Ac = acc + 16 * jj
        T = vT + 12 * jj
        P = lambda r: f"v[{r}:{r+1}]"
        if pk:
            for i in range(0, 8, 2):
                E.append(f"v_pk_mul_f32 {P(T+i)}, {P(Ac+i)}, {P(Ac+i)}")
            for i in range(0, 8, 2):
                E.append(f"v_pk_fma_f32 {P(T+i)}, {P(T+i)}, {P(v_c2)}, {P(v_c1)} op_sel_hi:[1,0,0]")
            for i in range(0, 8, 2):
                E.append(f"v_pk_mul_f32 {P(T+i)}, {P(T+i)}, {P(Ac+i)}")
            for i in range(8):
                E.append(f"v_exp_f32 v{T+i}, v{T+i}")
                if i % 2:
                    E.append(f"v_pk_mul_f32 {P(Ac+i-1)}, {P(Ac+i-1)}, {P(Ac+8+i-1)}")
            for i in range(0, 8, 2):
                E.append(f"v_pk_add_f32 {P(T+i)}, {P(T+i)}, {P(v_k1)} op_sel_hi:[1,0]")
            for i in range(8):
                E.append(f"v_rcp_f32 v{T+i}, v{T+i}")
            for i in range(0, 8, 2):
                E.append(f"v_pk_mul_f32 {P(Ac+i)}, {P(Ac+i)}, {P(T+i)}")
        else:
            for i in range(8):
                E.append(f"v_mul_f32 v{T+i}, v{Ac+i}, v{Ac+i}")
            for i in range(8):
                E.append(f"v_fma_f32 v{T+i}, v{T+i}, v{v_c2}, v{v_c1}")
            for i in range(8):
                E.append(f"v_mul_f32 v{T+i}, v{T+i}, v{Ac+i}")
            for i in range(8):
                E.append(f"v_exp_f32 v{T+i}, v{T+i}")
                E.append(f"v_mul_f32 v{Ac+i}, v{Ac+i}, v{Ac+8+i}")
            for i in range(8):
                E.append(f"v_add_f32 v{T+i}, 1.0, v{T+i}")
            for i in range(8):
                E.append(f"v_rcp_f32 v{T+i}, v{T+i}")
            for i in range(8):
                E.append(f"v_mul_f32 v{Ac+i}, v{Ac+i}, v{T+i}")
        for d in range(4):
            E.append(f"v_cvt_pk_bf16_f32 v{T+8+d}, v{Ac+2*d}, v{Ac+2*d+1}")
        E.append(f"buffer_store_dwordx4 v[{T+8}:{T+11}], v{v_st}, s[{sWS}:{sWS+3}], s{s_hst} offen offset:{1024*jj} {SC}")
        return E

    def publish(vm, kind, s_base):
        a(f"s_add_u32 s{s_t1}, s{s_base}, {kind*2048}")
        a(f"buffer_store_dwordx2 v[{v_non}:{v_non+1}], v{v_fa}, s[{sWS}:{sWS+3}], s{s_t1} offen sc1")
        vm.issue("flag")

    def poll(vm, vaddr):
        a(f"buffer_load_dwordx2 v[{v_pf}:{v_pf+1}], v{vaddr}, s[{sWS}:{sWS+3}], 0 offen sc1")
        if vm is not None:
            vm.issue("poll")

    spin_id = [0]
    def wait_flags(vm, vaddr, nlanes):
        i = spin_id[0]; spin_id[0] += 1
        mask = (1 << nlanes) - 1
        if OPT["p1"]:
            a(f"s_cmp_lg_u32 s{s_w}, 0")
            a(f"s_cbranch_scc1 L_wf_done{i}")
        a(f"s_mov_b32 s{s_t2}, 0")
        a(f"s_waitcnt vmcnt({vm.wait_n('poll')})")
        a(f"L_wf{i}:")
        a(f"v_cmp_eq_u64 vcc, v[{v_pf}:{v_pf+1}], v[{v_non}:{v_non+1}]")
        a(f"s_and_b32 s{s_t1}, vcc_lo, {mask}")
        a(f"s_cmp_eq_u32 s{s_t1}, {mask}")
        a(f"s_cbranch_scc1 L_wf_done{i}")
        a(f"s_add_u32 s{s_t2}, s{s_t2}, 1")
        a(f"s_cmp_gt_u32 s{s_t2}, 100000")
        a(f"s_cbranch_scc1 L_wf_done{i}")
        a(f"s_sleep {OPT['slp']}")
        poll(None, vaddr)
        a("s_waitcnt vmcnt(0)")
        a(f"s_branch L_wf{i}")
        a(f"L_wf_done{i}:")

    def kq_groups():
        g = [f"s_mul_i32 s{s_b2}, s{s_w}, 3072",
             f"s_mov_b32 m0, s{s_b2}",
             ]
        for j in range(3):
            g.append(f"s_add_u32 s{s_b1}, s{81+j}, {KF - 1024*j}")
            g.append(f"buffer_load_dwordx4 v{v_st}, s[{sWS}:{sWS+3}], s{s_b1} offen offset:{1024*j} sc1 lds")
        g2 = [f"s_lshr_b32 s{s_b2}, s{s_w}, 1",
              f"s_lshl_b32 s{s_b2}, s{s_b2}, 11",
              f"s_add_u32 s{s_b2}, s{s_b2}, s{s_par}",
              f"s_add_u32 s{s_b2}, s{s_b2}, s{s_kv}",
              f"buffer_load_dwordx4 v[{vQ}:{vQ+3}], v{v_qa}, s[{sWS}:{sWS+3}], s{s_b2} offen sc1"]
        return [(g, "k"), (g2, "k")]
    tailk = {}
    st_state = (st.n, list(st.names))
    def main(seq, vm):
        st.n, st.names = st_state[0], list(st_state[1])
        is2 = seq[2][0] == "v"
        lg = Cnt(15)
        M = []
        sp = -1
        prev = None
        for c, (kind, idx, part) in enumerate(seq):
            if (kind, idx) != prev:
                sp += 1
                prev = (kind, idx)
            if kind == "qk":
                for s in range(14):
                    M.append(dict(c=c, kind=kind, idx=idx, ks=14 * part + s, sl=s, jj=0, first=(part == 0 and s == 0), sp=sp))
            else:
                for s in range(7):
                    for jj in range(2):
                        M.append(dict(c=c, kind=kind, idx=idx, ks=7 * part + s, sl=s, jj=jj, first=(part == 0 and s == 0), sp=sp))
        last = [q for q in M if q["sp"] == 2]
        M = [q for q in M if q["sp"] < 2] + [q for q in last if q["jj"] == 0] + [q for q in last if q["jj"] == 1]
        LA = 3
        cur = [-1]
        def reads(m):
            mm = M[m]
            c = mm["c"]
            if cur[0] != c and mm["sp"] == 2:
                cur[0] = c
                so = (c % 5) * SLOT
                if mm["jj"]:
                    a(f"v_add_u32 v{v_rdB}, {so}, v{v_bg1}")
                else:
                    a(f"v_add_u32 v{v_rdA}, {so}, v{v_bg0}")
            if cur[0] != c:
                cur[0] = c
                so = (c % 5) * SLOT
                if mm["kind"] == "qk":
                    a(f"v_add_u32 v{v_rdA}, {so}, v{v_bqk}")
                elif mm["kind"] == "v":
                    a(f"v_add_u32 v{v_rdA}, {so}, v{v_bv0}")
                    a(f"v_add_u32 v{v_rdB}, {so}, v{v_bv1}")
                else:
                    a(f"v_add_u32 v{v_rdA}, {so}, v{v_bg0}")
                    a(f"v_add_u32 v{v_rdB}, {so}, v{v_bg1}")
            b = vW + 4 * (m % 4)
            ad = v_rdB if mm["jj"] else v_rdA
            rb = 2 if mm["kind"] == "v" else 1
            o = mm["sl"] * 2048 * rb
            a(f"ds_read_b64_tr_b16 v[{b}:{b+1}], v{ad} offset:{o}")
            a(f"ds_read_b64_tr_b16 v[{b+2}:{b+3}], v{ad} offset:{o+512*rb}")
            lg.issue(f"w{m}"); lg.issue(f"w{m}")
        xn = [0]
        def xread(k=1):
            for _ in range(k):
                ks = xn[0]
                if ks >= 28:
                    return
                xn[0] += 1
                j, s2 = divmod(ks, 4)
                r = vX + 4 * ks
                a(f"ds_read_b128 v[{r}:{r+3}], v{v_xa + s2 + (4 if j >= 4 else 0)} offset:{(j % 4)*16384}")
                lg.issue(f"x{ks}")
        for m in range(LA):
            xread(1)
            reads(m)
        if OPT["rda"]:
            reads(LA)
        xread(3)
        pend = deferred(is2)
        D2 = deferred2()
        n2 = OPT["d2n"]
        pend += D2[:n2]
        pend_tag = "st"
        rate = len(pend) / 26.0
        accum = 0.0
        hold = 0
        n = len(M)
        bg = []
        B2 = OPT["b2"]
        def emit_pend():
            ins = pend.pop(0)
            a(ins)
            if ins.startswith("buffer_"):
                vm.issue(pend_tag)
        w2k = [0]
        def slot_store(stores, vaddr, k, nk, tag):
            if nk > 1:
                if nk == 2:
                    a(f"s_bitcmp{k}_b32 s{s_wr}, 0")
                else:
                    a(f"s_cmp_eq_u32 s{s_wr}, {k}")
                a(f"s_cselect_b64 s[{s_t0}:{s_t0+1}], -1, 0")
                a(f"v_cndmask_b32 v{v_e0}, v{v_e1}, v{vaddr}, s[{s_t0}:{s_t0+1}]")
                stores = [x.replace(f", v{vaddr},", f", v{v_e0},") for x in stores]
            for x in stores:
                a(x); vm.issue(tag)
        late = {}
        dsched = {}
        for m in range(n):
            mm = M[m]
            c = mm["c"]
            if m in STM:
                st(f"m{m}")
            if OPT["b2a"] and m == OPT["b2a"]:
                assert xn[0] >= 12
                a(f"s_waitcnt lgkmcnt({lg.wait_n('x11')})")
                a("s_barrier")
                emit_group(vm, c1b)
                bg += dmaA(seq[2], 2, "c2")
            if m == B2:
                assert xn[0] >= 28 and B2 <= 11
                a(f"s_waitcnt vmcnt({vm.wait_n('c1')}) lgkmcnt({lg.wait_n('x27')})")
                a("s_barrier")
                if not OPT["b2a"]:
                    emit_group(vm, c1b)
                    bg += dmaA(seq[2], 2, "c2")
                bg += dmaA(seq[3], 3, "c3") + dmaA(seq[4], 4, "c4")
                bg.append(([f"buffer_load_dwordx2 v[{v_non}:{v_non+1}], v{v_zero}, s[{sDbg}:{sDbg+3}], 0 offen sc1"], "nonce"))
            if m == 20:
                a(f"s_waitcnt vmcnt({vm.wait_n('c1b')})")
                a("s_barrier")
            if m in (87, 94, 101):
                a(f"s_waitcnt vmcnt({vm.wait_n(f'c{7 + (m - 87)//7}')})")
                a("s_barrier")
            if m == OPT["kqm"]:
                wait_flags(vm, v_pa, 4)
                a("s_barrier")
                bg += kq_groups()
            if m == OPT["kqm"] - OPT["kqlead"]:
                poll(vm, v_pa)
            if OPT["vbk"] and m == OPT["vbk"]:
                poll(vm, v_paV)
            if m == 114:
                pend.extend(epi_gu_tile(ACC[1], 0, 0))
                rate = max(rate, len(pend) / (OPT["aend"] - 114))
                if is2:
                    pend_tag = "st_a"
            if m % 14 == (8 if c != 1 else 10) and 1 <= c <= 5:
                tags = [f"c{c+1}"]
                while not vm.has(tags[0]) or any(g[1] == tags[0] for g in bg):
                    emit_group(vm, bg.pop(0))
                if c == OPT["pubqk"]:
                    tags.append("st_qk")
                if c == OPT["kq"]:
                    wait_flags(vm, v_pa, 4)
                a(f"s_waitcnt vmcnt({vm.wait_n(*tags)})")
                a("s_barrier")
                if c == OPT["pubqk"]:
                    publish(vm, F_QK, s_fp)
                if c == OPT["kq"]:
                    bg += kq_groups()
                if c + 4 < len(seq):
                    dl = OPT.get(f"d{c+4}", 0)
                    if dl > m:
                        dsched[dl] = c + 4
                    else:
                        bg += dmaA(seq[c + 4], (c + 4) % 5, f"c{c+4}")
                if c == 4:
                    i = spin_id[0]; spin_id[0] += 1
                    a(f"s_mov_b32 s{s_t2}, 0")
                    a(f"L_nz{i}:")
                    a(f"v_readfirstlane_b32 s{s_t1}, v{v_non}")
                    a(f"s_cmp_lg_u32 s{s_t1}, 0")
                    a(f"s_cbranch_scc1 L_nz_done{i}")
                    a(f"s_add_u32 s{s_t2}, s{s_t2}, 1")
                    a(f"s_cmp_gt_u32 s{s_t2}, 100000")
                    a(f"s_cbranch_scc1 L_nz_done{i}")
                    a("s_sleep 2")
                    a(f"buffer_load_dwordx2 v[{v_non}:{v_non+1}], v{v_zero}, s[{sDbg}:{sDbg+3}], 0 offen sc1")
                    a("s_waitcnt vmcnt(0)")
                    a(f"s_branch L_nz{i}")
                    a(f"L_nz_done{i}:")
            if m in dsched:
                k = dsched[m]
                bg += dmaA(seq[k], k % 5, f"c{k}")
            for k in range(OPT["qkn"]):
                if m == OPT["qkst"] + k * OPT["qkgap"]:
                    slot_store(qk_stores, v_stk, k, OPT["qkn"], "st_qk")
            if m == OPT["pubm"] and is2:
                a(f"s_waitcnt vmcnt({vm.wait_n('st_qkv')})")
                a("s_barrier")
                publish(vm, F_V, s_fp)
            if m in late:
                for (ins, k, nk, flush) in late[m]:
                    if flush:
                        while pend:
                            emit_pend()
                    if ins.startswith("buffer_"):
                        slot_store([ins], v_st, k, nk, "st_h0")
                    else:
                        a(ins)
            if m == OPT["w2s"]:
                gtouch(sWd, 7, True, v_e0, vm)
                gtouch(sWo, 2, True, v_e0, vm)
            if OPT["l2n"] and m >= OPT["l2s"] and (m - OPT["l2s"]) % OPT["l2d"] == 0 and (m - OPT["l2s"]) // OPT["l2d"] < OPT["l2n"] + 1:
                k = (m - OPT["l2s"]) // OPT["l2d"]
                nl = -(-49 // OPT["l2n"])
                isw = k == OPT["l2n"]
                a(f"s_lshr_b32 s{s_t0}, s2, 3")
                a(f"s_lshl3_add_u32 s{s_t0}, s{s_t0}, s{s_w}")
                if isw:
                    nl = 13
                    a(f"s_mul_i32 s{s_t0}, s{s_t0}, 13")
                else:
                    a(f"s_mul_i32 s{s_t0}, s{s_t0}, {nl}")
                    a(f"s_add_u32 s{s_t0}, s{s_t0}, {k*nl*256}")
                a(f"v_add_lshl_u32 v{v_e0}, v{v_lane}, s{s_t0}, 7")
                a(f"s_mov_b64 exec, {(1 << nl) - 1}")
                sr = sWo if isw else sWd
                a(f"buffer_load_dword v{v_td}, v{v_e0}, s[{sr}:{sr+3}], 0 offen")
                a(f"s_mov_b64 exec, -1")
                vm.issue("t")
            if m + LA < n and not OPT["rda"]:
                reads(m + LA)
            xread(OPT["xr"])
            tags = [f"w{m}"]
            if mm["sp"] == 0:
                tags.append(f"x{mm['ks']}")
            a(f"s_waitcnt lgkmcnt({lg.wait_n(*tags)})")
            accb = ACC[(mm["sp"] + 1) % 2]
            acc = accb + 16 * mm["jj"]
            b = vW + 4 * (m % 4)
            x = vX + 4 * mm["ks"]
            csrc = "0" if mm["first"] else f"v[{acc}:{acc+15}]"
            if mm["kind"] == "v":
                a(f"v_mfma_f32_32x32x16_bf16 v[{acc}:{acc+15}], v[{x}:{x+3}], v[{b}:{b+3}], {csrc}")
            else:
                a(f"v_mfma_f32_32x32x16_bf16 v[{acc}:{acc+15}], v[{b}:{b+3}], v[{x}:{x+3}], {csrc}")
            if OPT["rda"] and m + LA + 1 < n:
                reads(m + LA + 1)
            if bg and (m % OPT["bgp"] == 0 or len(bg) > 4):
                emit_group(vm, bg.pop(0))
            last_of_sp = (m + 1 == n) or (M[m + 1]["sp"] != mm["sp"])
            if pend and not hold:
                accum += rate
                while accum >= 1.0 and pend:
                    emit_pend()
                    accum -= 1.0
            if hold:
                hold -= 1
            if last_of_sp:
                while pend:
                    emit_pend()
                if m + 1 < n:
                    nsp = sum(1 for q in M if q["sp"] == mm["sp"] + 1)
                    if mm["kind"] == "qk":
                        pend = epi_qk(accb) + D2[n2:]
                        rate = max(len(pend) / (nsp - 8), 27.0 / max(1, OPT["qkst"] - 31))
                    elif mm["kind"] == "v":
                        pend = epi_v(accb)
                        pend_tag = "st_qkv"
                        rate = 3.0
                    else:
                        e0 = epi_gu_tile(accb, 0, OPT["pk"] & 2); e1 = epi_gu_tile(accb, 1, OPT["pk"] & 2)
                        pend = e0 + e1 + [f"s_add_u32 s{s_hst}, s{s_hst}, 4096"]
                        rate = 207.0 / (OPT["aend"] - 86)
                        pend_tag = "st_h0"
                    accum = 0.0
                    hold = 2
                else:
                    assert accb == ACC[1]
        assert not bg
        if OPT["vbk"]:
            wait_flags(vm, v_paV, 3)
        else:
            poll(vm, v_paV)
        a(f"s_waitcnt vmcnt({vm.wait_n('k')})")

    main(seq1, copy.deepcopy(vm))
    a("s_branch L_postA")
    a("L_type2:")
    main(seq2, copy.deepcopy(vm))
    a("L_postA:")
    st("T")
    vm = VM()

    vS = 132
    vKF = 204
    vP = 64
    vO = 100
    v_ka, v_va, v_m, v_u = 3, 4, 2, 128
    u = v_u

    def dmaW(c):
        slot = (c % NW) * 16384
        G = []
        for jj in range(2):
            g = [f"s_add_u32 m0, s{s_m0w}, {slot + 1024*jj}"]
            if c < 14:
                g.append(f"s_add_u32 s{s_b1}, s{s_wb}, {(128*c + 8*jj)*896}")
                g.append(f"s_sub_u32 s{s_b2}, s{s_b1}, {WD_BYTES}")
                g.append(f"s_min_u32 s{s_b1}, s{s_b1}, s{s_b2}")
                g.append(f"buffer_load_dwordx4 v{v_dw}, s[{sWd}:{sWd+3}], s{s_b1} offen lds")
            else:
                g.append(f"s_add_u32 s{s_b1}, s{s_nb}, {c-14}")
                g.append(f"s_and_b32 s{s_b1}, s{s_b1}, 3")
                g.append(f"s_mul_i32 s{s_b1}, s{s_b1}, {112*896}")
                g.append(f"s_add_u32 s{s_b1}, s{s_b1}, s{s_wob}")
                if jj:
                    g.append(f"s_add_u32 s{s_b1}, s{s_b1}, {8*896}")
                g.append(f"buffer_load_dwordx4 v{v_dw}, s[{sWo}:{sWo+3}], s{s_b1} offen lds")
            G.append((g, f"w{c}"))
        return G

    HSL = [0, 3, 1, 2] if OPT["hook1"] else list(range(NH))
    def dmaH(c):
        slot = HSL[c % NH] * 16384
        g = [f"s_add_u32 m0, s{s_m0h}, {slot}"]
        if c < 14:
            g.append(f"s_add_u32 s{s_b1}, s{s_hr}, {8192*c}")
            g.append(f"s_sub_u32 s{s_b2}, s{s_b1}, {14*8192}")
            g.append(f"s_min_u32 s{s_b1}, s{s_b1}, s{s_b2}")
        else:
            g.append(f"s_add_u32 s{s_b1}, s{s_nb}, {c-14}")
            g.append(f"s_and_b32 s{s_b1}, s{s_b1}, 3")
            g.append(f"s_lshl_b32 s{s_b1}, s{s_b1}, 13")
            g.append(f"s_add_u32 s{s_b1}, s{s_b1}, {14*8192}")
        g.append(f"s_add_u32 s{s_b1}, s{s_b1}, s{s_hb}")
        for jj in range(2):
            g.append(f"buffer_load_dwordx4 v{v_st}, s[{sWS}:{sWS+3}], s{s_b1} offen offset:{1024*jj} sc1 lds")
        return (g, f"h{c}")

    wq = []
    for c in range(NW):
        wq += dmaW(c)
    cnt = [0]
    def e(ins, every=OPT["wspread"]):
        a(ins)
        cnt[0] += 1
        if cnt[0] % every == 0 and wq:
            emit_group(vm, wq.pop(0))

    vm.issue("poll")
    a(f"s_lshr_b32 s{s_t2}, s{s_w}, 1")
    a(f"s_lshl_b32 s{s_t2}, s{s_t2}, 11")
    a(f"v_add_u32 v{v_ka}, s{s_t2}, v{v_qa}")
    a(f"v_add_u32 v{v_va}, 24576, v{v_ka}")
    a("s_barrier")
    st("BK")
    def vdma():
        a(f"s_mul_i32 s{s_t0}, s{s_w}, 3072")
        a(f"s_add_u32 m0, s{s_t0}, 24576")
        for j in range(3):
            a(f"s_add_u32 s{s_t2}, s{81+j}, {VF - 1024*j}")
            a(f"buffer_load_dwordx4 v{v_st}, s[{sWS}:{sWS+3}], s{s_t2} offen offset:{1024*j} sc1 lds")
            vm.issue("v")
    if OPT["vbk"]:
        OPT["vpos"] = -1
    E0 = epi_gu_tile(ACC[1], 0, OPT["pk"] & 1)
    E1 = epi_gu_tile(ACC[1], 1, OPT["pk"] & 1)
    side = E1[:-1] + [f"v_cmp_le_i32 s[{MK[i]}:{MK[i]+1}], {i}, v{v_d}" for i in range(8)]

    def kread(i):
        b, tt = divmod(i, 2)
        r = vKF + 4 * (i % 8)
        a(f"ds_read_b128 v[{r}:{r+3}], v{v_ka} offset:{b*2048 + tt*256}")
    LA = 6
    per = OPT["per"]
    e1done = [False]
    nf = OPT["wfirst"]
    for i in range(LA):
        kread(i)
    if OPT["vbk"]:
        vdma()
        while nf:
            emit_group(vm, wq.pop(0)); nf -= 1
    for i in range(18):
        if i + LA < 18:
            kread(i + LA)
            a(f"s_waitcnt lgkmcnt({LA})")
        else:
            a(f"s_waitcnt lgkmcnt({17-i})")
        r = vKF + 4 * (i % 8)
        a(f"v_mfma_f32_16x16x32_bf16 v[{vS+4*i}:{vS+4*i+3}], v[{r}:{r+3}], v[{vQ}:{vQ+3}], 0")
        for _ in range(per):
            if side:
                a(side.pop(0))
        if len(side) <= 8 and not e1done[0] and i > OPT["vpos"]:
            e1done[0] = True
            a(E1[-1]); vm.issue("st_h")
        if i == OPT["vpos"]:
            st("preV")
            wait_flags(vm, v_paV, 3)
            a("s_barrier")
            st("fV")
            vdma()
        if i < OPT["vpos"] and i % 2 == 1 and nf:
            emit_group(vm, wq.pop(0)); nf -= 1
    if not e1done[0]:
        a(E1[-1]); vm.issue("st_h")
    st("Sdone")
    a(f"s_cmp_ge_u32 s{s_bd}, 8")
    a("s_cbranch_scc1 L_allvalid")
    for b in range(8):
        a(f"s_cmp_ge_u32 s{s_bd}, {8-b}")
        a("s_cbranch_scc1 L_allvalid")
        for i in range(8):
            a(f"v_mov_b32 v{vS+8*b+i}, 0xf149f2ca")
    a("L_allvalid:")
    def bv():
        st("preBV")
        a(f"s_waitcnt vmcnt({vm.wait_n('st_h', 'v')})")
        a("s_barrier")
        publish(vm, F_H, s_fp)
        st("BV")
    if OPT["bvp"] == 2:
        bv()
    for i in range(8):
        e(f"v_cndmask_b32 v{vS+i}, v{vS+i}, v{vS+64+i}, s[{MK[i]}:{MK[i]+1}]")
    e(f"v_max3_f32 v{v_m}, v{vS+8}, v{vS+9}, v{vS+10}")
    e(f"v_max3_f32 v{u}, v{vS+11}, v{vS+12}, v{vS+13}")
    ks = list(range(14, 64, 2)) + list(range(0, 8, 2))
    tog = 0
    for k in ks:
        d = v_m if tog == 0 else u
        e(f"v_max3_f32 v{d}, v{d}, v{vS+k}, v{vS+k+1}")
        tog ^= 1
    a(f"v_max_f32 v{v_m}, v{v_m}, v{u}")
    a(f"v_mov_b32 v{u}, v{v_m}")
    a(f"v_permlane32_swap_b32 v{v_m}, v{u}")
    a(f"v_max_f32 v{v_m}, v{v_m}, v{u}")
    a(f"v_mov_b32 v{u}, v{v_m}")
    a(f"v_permlane16_swap_b32 v{v_m}, v{u}")
    a(f"v_max_f32 v{v_m}, v{v_m}, v{u}")
    order = [1, 2, 3, 4, 5, 6, 7, 0, 8]
    def softmax_block(b):
        for i in range(0, 8, 2):
            r = vS + 8 * b + i
            e(f"v_pk_add_f32 v[{r}:{r+1}], v[{r}:{r+1}], v[{v_m}:{v_m+1}] op_sel_hi:[1,0] neg_lo:[0,1] neg_hi:[0,1]")
        for i in range(8):
            e(f"v_exp_f32 v{vS+8*b+i}, v{vS+8*b+i}")
        if b == 0:
            for i in range(8):
                e(f"v_cndmask_b32 v{vS+64+i}, 0, v{vS+i}, s[{MK[i]}:{MK[i]+1}]")
            for i in range(8):
                e(f"v_cndmask_b32 v{vS+i}, v{vS+i}, 0, s[{MK[i]}:{MK[i]+1}]")
            for d in range(4):
                e(f"v_cvt_pk_bf16_f32 v{vP+32+d}, v{vS+64+2*d}, v{vS+64+2*d+1}")
        for d in range(4):
            e(f"v_cvt_pk_bf16_f32 v{vP+4*b+d}, v{vS+8*b+2*d}, v{vS+8*b+2*d+1}")
    if OPT["bvp"] == 1:
        bv()
    softmax_block(order[0])
    if OPT["bvp"] == 0:
        bv()
    def vread(i):
        b = order[i // 2]
        tt = i % 2
        r = vKF + 4 * (i % 8)
        a(f"ds_read_b128 v[{r}:{r+3}], v{v_va} offset:{b*2048 + tt*256}")
    for i in range(LA):
        vread(i)
    for bi in range(9):
        b = order[bi]
        H1 = OPT["hook1"]
        if bi == (H1 - 2 if H1 else 4):
            while wq:
                emit_group(vm, wq.pop(0))
            poll(vm, v_paH)
        if bi + 1 < 8:
            softmax_block(order[bi + 1])
        if H1 and bi == H1:
            st("preH")
            a(f"s_cmp_ge_u32 s{s_nb}, 7")
            a("s_cbranch_scc1 L_noC0")
            wait_flags(vm, v_paH, 16)
            a("s_barrier")
            for c in range(2):
                emit_group(vm, dmaH(c))
            a("L_noC0:")
            st("Hiss")
        if bi == 6:
            a("s_waitcnt lgkmcnt(0)")
            if not H1: st("preH")
            a(f"s_cmp_ge_u32 s{s_nb}, 7")
            a("s_cbranch_scc1 L_noC1")
            if not H1:
                wait_flags(vm, v_paH, 16)
            a("s_barrier")
            for c in range(2 if H1 else 0, NH):
                emit_group(vm, dmaH(c))
            a("L_noC1:")
            if not H1: st("Hiss")
        for tt in range(2):
            i = 2 * bi + tt
            if i + LA < 18:
                vread(i + LA)
                a(f"s_waitcnt lgkmcnt({LA})")
            elif bi < 6:
                a(f"s_waitcnt lgkmcnt({17-i})")
            r = vKF + 4 * (i % 8)
            cs = "0" if bi == 0 else f"v[{vO+4*tt}:{vO+4*tt+3}]"
            a(f"v_mfma_f32_16x16x32_bf16 v[{vO+4*tt}:{vO+4*tt+3}], v[{r}:{r+3}], v[{vP+4*b}:{vP+4*b+3}], {cs}")
    a(f"v_mov_b32 v{u}, v{vO+4}")
    a(f"v_mov_b32 v{u+1}, v{vO+4}")
    a(f"v_permlane32_swap_b32 v{u}, v{u+1}")
    a(f"v_mov_b32 v{u}, v{u+1}")
    a(f"v_permlane16_swap_b32 v{u}, v{u+1}")
    a(f"v_rcp_f32 v{u+1}, v{u+1}")
    for i in range(8):
        a(f"v_mul_f32 v{vO+i}, v{vO+i}, v{u+1}")
    for d in range(4):
        a(f"v_cvt_pk_bf16_f32 v{vQ+d}, v{vO+2*d}, v{vO+2*d+1}")
    a(f"v_cmp_gt_u32 s[{s_d0}:{s_d0+1}], 48, v{v_lane}")
    a(f"v_cndmask_b32 v{vQ+2}, 0, v{vQ+2}, s[{s_d0}:{s_d0+1}]")
    a(f"v_cndmask_b32 v{vQ+3}, 0, v{vQ+3}, s[{s_d0}:{s_d0+1}]")
    a(f"buffer_store_dwordx4 v[{vQ}:{vQ+3}], v{v_qa}, s[{sWS}:{sWS+3}], s{s_ost} offen sc1")
    vm.issue("st_o")
    st("Ost")
    a(f"s_cmp_lt_u32 s{s_nb}, 7")
    a("s_cbranch_scc1 L_phaseC")
    def htouch(k):
        if k < 14:
            a(f"s_add_u32 s{s_b1}, s{s_t0}, {128*k*896}")
            a(f"s_sub_u32 s{s_b2}, s{s_b1}, {WD_BYTES}")
            a(f"s_min_u32 s{s_b1}, s{s_b1}, s{s_b2}")
            a(f"buffer_load_dword v{v_td}, v{u}, s[{sWd}:{sWd+3}], s{s_b1} offen")
        else:
            a(f"s_add_u32 s{s_b1}, s{s_t2}, {112*(k-14)*896}")
            a(f"buffer_load_dword v{v_td}, v{u}, s[{sWo}:{sWo+3}], s{s_b1} offen")
    if OPT["help"] & 2:
        a(f"v_mul_u32_u24 v{u}, 896, v{v_lane}")
        a(f"s_cmp_lt_u32 s{s_w}, 7")
        a(f"s_cselect_b32 s{s_d0}, -1, 0")
        a(f"s_mov_b32 s{s_d1}, 0")
        a(f"v_cndmask_b32 v{u}, v{v_e1}, v{u}, s[{s_d0}:{s_d0+1}]")
        a(f"s_and_b32 s{s_t1}, s{s_tb64}, 3")
        a(f"s_mul_i32 s{s_t0}, s{s_w}, {2*128*896 + 128}")
        a(f"s_mul_i32 s{s_t2}, s{s_t1}, {32*896}")
        a(f"s_add_u32 s{s_t0}, s{s_t0}, s{s_t2}")
        a(f"s_mul_i32 s{s_t2}, s{s_t1}, {28*896}")
        a(f"s_lshl_b32 s{s_t1}, s{s_w}, 7")
        a(f"s_add_u32 s{s_t2}, s{s_t2}, s{s_t1}")
        htouch(OPT["hk0"])
        a("s_waitcnt vmcnt(1)")
    else:
        a("s_waitcnt vmcnt(0)")
    a("s_barrier")
    publish(VM(), F_O, s_fo)
    if OPT["help"] & 2:
        for k in range(OPT["hk0"] + 1, 18):
            htouch(k)
    a("s_branch L_end")
    a("L_phaseC:")

    v_ah, v_aw, v_cxo = 2, 3, 4
    v_awB = 5
    vXr = 16
    vAcc = 48
    vF = 64
    tt = 20
    a(f"v_add_u32 v{v_paH}, {(F_O-F_H)*2048}, v{v_paH}")
    a(f"v_and_b32 v{tt}, 0x13, v{v_lane}")
    a(f"v_bfe_u32 v{tt+1}, v{v_lane}, 2, 1")
    a(f"v_lshl_or_b32 v{tt}, v{tt+1}, 3, v{tt}")
    a(f"v_bfe_u32 v{tt+1}, v{v_lane}, 3, 1")
    a(f"v_lshl_or_b32 v{tt}, v{tt+1}, 2, v{tt}")
    a(f"v_mul_u32_u24 v{v_cxo}, 896, v{tt}")
    a(f"v_lshrrev_b32 v{tt+1}, 5, v{v_lane}")
    a(f"v_lshl_add_u32 v{v_cxo}, v{tt+1}, 4, v{v_cxo}")
    a(f"s_lshl_b32 s{s_t0}, s{s_cmt}, 13")
    a(f"s_lshl_b32 s{s_t1}, s{s_kh}, 12")
    a(f"s_add_u32 s{s_t0}, s{s_t0}, s{s_t1}")
    a(f"v_add_u32 v{v_ah}, s{s_t0}, v{v_st}")
    a(f"v_bfe_u32 v{tt}, v{v_lane}, 2, 2")
    a(f"v_and_b32 v{tt+2}, 3, v{v_lane}")
    a(f"v_bfe_u32 v{tt+3}, v{v_lane}, 4, 1")
    a(f"v_lshrrev_b32 v{tt+4}, 1, v{tt+2}")
    a(f"v_and_b32 v{tt+5}, 1, v{tt+2}")
    a(f"v_lshl_or_b32 v{tt+4}, v{tt+5}, 1, v{tt+4}")
    a(f"v_lshl_add_u32 v{tt+5}, v{tt+1}, 3, v{tt}")
    a(f"v_lshlrev_b32 v{tt+5}, 7, v{tt+5}")
    a(f"v_lshrrev_b32 v{tt+6}, 1, v{tt}")
    a(f"v_xor_b32 v{tt+6}, s{s_nt}, v{tt+6}")
    a(f"v_lshl_add_u32 v{tt+5}, v{tt+6}, 6, v{tt+5}")
    a(f"v_lshl_add_u32 v{tt+5}, v{tt+3}, 5, v{tt+5}")
    a(f"v_lshl_add_u32 v{tt+5}, v{tt+4}, 3, v{tt+5}")
    a(f"s_lshl_b32 s{s_t0}, s{s_kh}, 13")
    a(f"s_add_u32 s{s_t0}, s{s_t0}, {NH*16384}")
    a(f"v_add_u32 v{v_aw}, s{s_t0}, v{tt+5}")
    a(f"v_add_u32 v{v_awB}, 65536, v{v_aw}")
    v_ahB = 7
    a(f"v_add_u32 v{v_ahB}, 65536, v{v_ah}")
    assert NH <= 8 and NW <= 8 and NH + NW <= 10
    NC = 18
    RA = OPT["ra"]
    NS = RA + 1
    def creads(c):
        sh = (HSL[c % NH] % 4) * 16384
        ah = v_ah if HSL[c % NH] < 4 else v_ahB
        sw = (c % NW)
        aw = v_aw if sw < 4 else v_awB
        swo = (sw % 4) * 16384
        base = vF + 32 * (c % NS)
        for i in range(4):
            f = base + 8 * i
            a(f"ds_read_b128 v[{f}:{f+3}], v{ah} offset:{sh + 1024*i}")
            a(f"ds_read_b64_tr_b16 v[{f+4}:{f+5}], v{aw} offset:{swo + 2048*i}")
            a(f"ds_read_b64_tr_b16 v[{f+6}:{f+7}], v{aw} offset:{swo + 2048*i + 512}")
    a(f"s_waitcnt vmcnt({vm.wait_n(*([f'h{k}' for k in range(RA)] + [f'w{k}' for k in range(RA)]))})")
    a("s_barrier")
    st("C0")
    for k in range(RA):
        creads(k)
    PUB_O = OPT["pubo"]
    POLL_O = 14 - NH - 2
    wsched = {}
    nW = 2 * (NC - NW)
    last_it = NC - 1 - 2 - RA
    for q in range(nW):
        k = NW + q // 2
        it = int(q * (last_it + 1) / nW)
        it = max(it, k - NW)
        it = min(it, k - 2 - RA)
        wsched.setdefault(it, []).append((k, q % 2))
    for c in range(NC):
        lgn = 12 * (min(NC, c + RA) - c - 1)
        if c + RA < NC:
            tags = [f"h{c+RA}", f"w{c+RA}"]
            if c == PUB_O:
                tags.append("st_o")
            if c + NH == 14:
                wait_flags(vm, v_paH, 16)
            a(f"s_waitcnt vmcnt({vm.wait_n(*tags)}) lgkmcnt({lgn})")
            a("s_barrier")
            if c in (4, 9, 13):
                st(f"c{c}")
            if not OPT["mf"]:
                creads(c + RA)
            if c == PUB_O:
                publish(vm, F_O, s_fo)
        else:
            a(f"s_waitcnt lgkmcnt({lgn})")
        G = []
        if c + NH < NC:
            G.append(dmaH(c + NH))
        for (k, jj) in wsched.get(c, []):
            G.append(dmaW(k)[jj])
        if c == POLL_O:
            G.append(([f"buffer_load_dwordx2 v[{v_pf}:{v_pf+1}], v{v_paH}, s[{sWS}:{sWS+3}], 0 offen sc1"], "poll"))
        if c == 12:
            G.append(([f"buffer_load_dwordx4 v[{vXr}:{vXr+3}], v{v_cxo}, s[{sX}:{sX+3}], s{s_xo} offen"], "xr"))
        base = vF + 32 * (c % NS)
        if OPT["gf"] and G:
            emit_group(vm, G.pop(0))
        for i in range(4):
            f = base + 8 * i
            cs = "0" if (c == 0 and i == 0) else f"v[{vAcc}:{vAcc+15}]"
            a(f"v_mfma_f32_32x32x16_bf16 v[{vAcc}:{vAcc+15}], v[{f+4}:{f+7}], v[{f}:{f+3}], {cs}")
            if i == 0 and OPT["mf"] and c + RA < NC:
                creads(c + RA)
            elif G:
                emit_group(vm, G.pop(0))
        while G:
            emit_group(vm, G.pop(0))
    st("Cend")
    a("s_barrier")
    a(f"s_lshl_b32 s{s_t0}, s{s_w}, 11")
    a(f"v_add_u32 v{tt+1}, s{s_t0}, v{v_st}")
    a(f"v_xor_b32 v{tt+2}, 8192, v{tt+1}")
    a(f"s_cmp_eq_u32 s{s_kh}, 0")
    a("s_cbranch_scc1 L_k0")
    a(f"ds_write_b128 v{tt+1}, v[{vAcc}:{vAcc+3}]")
    a(f"ds_write_b128 v{tt+1}, v[{vAcc+4}:{vAcc+7}] offset:1024")
    for i in range(8):
        a(f"v_mov_b32 v{vAcc+i}, v{vAcc+8+i}")
    a("s_branch L_k1")
    a("L_k0:")
    a(f"ds_write_b128 v{tt+1}, v[{vAcc+8}:{vAcc+11}]")
    a(f"ds_write_b128 v{tt+1}, v[{vAcc+12}:{vAcc+15}] offset:1024")
    a("L_k1:")
    a("s_waitcnt vmcnt(0) lgkmcnt(0)")
    a("s_barrier")
    a(f"ds_read_b128 v[{vF}:{vF+3}], v{tt+2}")
    a(f"ds_read_b128 v[{vF+4}:{vF+7}], v{tt+2} offset:1024")
    for d in range(4):
        a(f"v_lshlrev_b32 v{vF+8+2*d}, 16, v{vXr+d}")
        a(f"v_and_b32 v{vF+9+2*d}, 0xffff0000, v{vXr+d}")
    for i in range(8):
        a(f"v_add_f32 v{vAcc+i}, v{vAcc+i}, v{vF+8+i}")
    a("s_waitcnt lgkmcnt(0)")
    for i in range(8):
        a(f"v_add_f32 v{vAcc+i}, v{vAcc+i}, v{vF+i}")
    for d in range(4):
        a(f"v_cvt_pk_bf16_f32 v{vXr+d}, v{vAcc+2*d}, v{vAcc+2*d+1}")
    a(f"buffer_store_dwordx4 v[{vXr}:{vXr+3}], v{v_cxo}, s[{sO}:{sO+3}], s{s_xo} offen {['', 'sc1', 'nt', 'sc0 sc1'][OPT['osc']]}")
    if STAMP:
        a("s_waitcnt vmcnt(0)")
        st("end", wait=True); st("rt", rt=True, wait=True)
        st.finish()
        if DBGST:
            a("s_load_dwordx2 s[4:5], s[82:83], 64")
            a(f"v_sub_u32 v{v_stamp}, v{v_stamp}, v{v_non}")
            a(f"v_lshlrev_b32 v{tt}, 2, v{v_lane}")
            a(f"v_add_u32 v{tt}, 8, v{tt}")
            a("s_waitcnt lgkmcnt(0)")
            A(srd(8, 4, 5, 64))
            a(f"s_lshl3_add_u32 s3, s2, s{s_w}")
            a(f"s_cmp_lg_u32 s3, {37*8+4}")
            a("s_cbranch_scc1 L_end")
            a(f"buffer_store_dword v{v_stamp}, v{tt}, s[8:11], 0 offen")
            a("s_branch L_end")
        a(f"s_lshl3_add_u32 s3, s2, s{s_w}")
        a("s_lshl_b32 s3, s3, 7")
        a(f"s_add_u32 s3, s3, {STAMP_OFF}")
        a(f"v_lshlrev_b32 v{tt}, 2, v{v_lane}")
        a(f"v_cmp_gt_u32 vcc, {st.n}, v{v_lane}")
        a("s_and_saveexec_b64 s[4:5], vcc")
        a(f"buffer_store_dword v{v_stamp}, v{tt}, s[{sWS}:{sWS+3}], s3 offen")
        a.raw("; STAMPS " + " ".join(st.names))
        assert st.n <= 32
    a("L_end:")
    a("s_endpgm")
    return a


HEADER = """; Fused persistent kernel: LN + QKV/gate/up GEMM -> sliding-window attention -> [H|O] @ [w_down; wo] + x
;   0 A_x, 8 A_wqkv, 16 A_wo, 24 B_x, 32 B_w_gate, 40 B_w_up, 48 B_w_down, 56 d_out, 64 d_debug, 72 d_ws
; @launch grid=(256,1,1) block=(512,1,1) lds=163840
.amdgcn_target "amdgcn-amd-amdhsa--gfx950"
"""

def build():
    a = gen()
    print("instrs", a.nins, "nops", a.nnop, file=sys.stderr)
    return HEADER + a.text() + kernel_desc(NAME, 256)

if __name__ == "__main__":
    path = sys.argv[1] if len(sys.argv) > 1 else "parallel_sum__sliding_block__geglu_ffn__prompt.s"
    for arg in sys.argv[2:]:
        if arg == "stamp":
            STAMP = True
        elif arg == "dbgst":
            STAMP = True; DBGST = True
        else:
            k, v = arg.split("=")
            assert k in OPT, k
            OPT[k] = int(v)
    open(path, "w").write(build())
```

```python
import sys, struct, math, copy, os
sys.path.insert(0, "dev")
from asmlib import Asm, kernel_header, kernel_desc

NAME = "parallel_sum__sliding_block__geglu_ffn__prompt_kernel"

def f2u(f):
    return struct.unpack("<I", struct.pack("<f", f))[0]

QF = 0
KF = 2 << 20
VF = 4 << 20
FL = 6 << 20
HF = 8 << 20
WS_BYTES = 268435456
NKS = 144
F_QK, F_H, F_O, F_V = 0, 1, 2, 3
OOB = 0x7FFFFF00

X_BYTES = 2048 * 896
WQKV_BYTES = 448 * 2688
WG_BYTES = 448 * 3584
WD_BYTES = 1792 * 896
WO_BYTES = 448 * 896

LOG2E = 1.4426950408889634
QSCALE = (28 ** -0.5) * LOG2E
GC1 = -2.0 * 0.7978845608028654 * LOG2E
GC2 = GC1 * 0.044715

STAMP = False
DBGST = False
DBGN = ['t0','setup','x00','lnend','B1','m28','m84','T','Sdone','BV','Ost','C0','Cend','end']
STAMP_OFF = 200 << 20
STM = [int(x) for x in os.environ.get('STM', '11,28,56,84,112').split(',')]
OPT = dict(NH=4, NW=6, rotc=1, b2=10, bgp=1, qkst=44, pubm=112, pk=1, w2s=60, l2n=0, mprio=1, rda=0, b2a=4, d2n=60, kqm=122, aend=138, per=11, vbk=128, bvp=1, hook1=5, wl=13, xrp=14, nob=1, xre=104, w5e=108, rmod=1, rmul=2, hh0=4, xhit=0, help=3, hk0=8, tlb=0, osc=0, we=4, dcl=0, ctouch=1, ra=1, mf=1, gf=1, l2s=64, l2d=9,
           wfirst=2, wspread=12, pubo=2, p1=1, slp=4, hst0=104, hst1=122, qkgap=0, d7=0, d8=0, d9=0,
           c1e=3, xr=3, xf=9, qkn=1, hn=1, hgap=0, tq=7, lnm=1, dmae=7, xil=1, pubqk=5, kq=8, kqlead=12, vpos=5)


class Cnt:
    def __init__(self, cap):
        self.ops = []
        self.cap = cap
    def issue(self, tag):
        self.ops.append(tag)
    def wait_n(self, *tags):
        idx = max(i for i, t in enumerate(self.ops) if t in tags)
        n = len(self.ops) - 1 - idx
        return min(n, self.cap)
    def has(self, tag):
        return tag in self.ops

def VM():
    return Cnt(63)


class Stamps:
    def __init__(self, a, vreg, base=98):
        self.a = a; self.base = base; self.n = 0; self.names = []; self.vreg = vreg
    def _flush_prev(self):
        if self.n >= 1:
            k = self.n - 1
            self.a(f"v_writelane_b32 v{self.vreg}, s{self.base + 2*(k % 2)}, {k}")
    def __call__(self, name="", rt=False, wait=False):
        if not STAMP: return
        p = self.base + 2 * (self.n % 2)
        if DBGST and name not in DBGN: return
        self.a(f"{'s_memrealtime' if (rt or DBGST or os.environ.get('RTST')) else 's_memtime'} s[{p}:{p+1}]")
        if wait:
            self.a("s_waitcnt lgkmcnt(0)")
        self._flush_prev()
        self.n += 1
        self.names.append(name)
    def finish(self):
        self.a("s_waitcnt lgkmcnt(0)")
        self._flush_prev()


def srd(d, lo, hi, nbytes):
    return [f"s_mov_b32 s{d}, s{lo}", f"s_and_b32 s{d+1}, s{hi}, 0xffff",
            f"s_mov_b32 s{d+2}, {nbytes}", f"s_mov_b32 s{d+3}, 0x00020000"]

SLOT = 28672
XBASE = 49152


def gen():
    a = Asm()
    a.raw(kernel_header(NAME))
    def A(lst):
        for x in lst:
            a(x)
    NH, NW = OPT["NH"], OPT["NW"]
    RTAB = 0
    for nb_ in range(8):
        RTAB |= ((OPT["rmul"] * (nb_ % OPT["rmod"])) % 14) << (4 * nb_)
    sX, sWq, sWg, sWS, sWd, sWo, sO, sDbg = 36, 40, 44, 48, 52, 56, 60, 64
    s_w, s_tb, s_cb, s_g, s_mt = 68, 69, 70, 71, 72
    s_t0, s_t1, s_t2 = 74, 75, 76
    s_hst = 77
    s_n0 = 78
    s_q0, s_q3, s_v0, s_v3, s_g0, s_g3 = 4, 5, 6, 7, 8, 9
    s_m0, s_m3, s_scale, s_tg, s_qkst, s_vst = 10, 11, 12, 13, 14, 15
    s_wr = 3
    s_b1 = 73
    s_b2 = 0
    s_d0, s_d1 = 96, 97
    s_one = 16
    s_h, s_qb, s_fp, s_tch = 18, 19, 20, 21
    s_mq0, s_mq3 = 22, 23
    sTch = 24
    s_xr, s_xr1, s_tr, s_tqk = 80, 81, 82, 83
    s_kv, s_par, s_bd, s_ost = 84, 85, 86, 87
    s_tb64, s_nb, s_kh, s_cmt, s_nt = 88, 89, 90, 91, 92
    s_hb, s_hr, s_wb = 93, 94, 95
    s_wob, s_m0h, s_m0w, s_xo = 28, 29, 30, 31
    s_fo = 80
    MK = [24, 26, 16, 64, 32, 34, 40, 42]
    vX = 128
    ACC = [64, 96]
    vW = 48
    vT = 16
    v_lane, v_dq, v_dg, v_rdA, v_rdB, v_st, v_msk = 1, 2, 3, 4, 5, 6, 7
    v_bqk, v_bg0, v_bg1 = 9, 11, 12
    v_c1, v_c2, v_k1 = 8, 10, 14
    v_stk = 13
    v_stamp = 15
    v_xa = 32
    v_xw = 40
    v_xo = 44
    v_dv, v_dvh, v_bv0, v_bv1 = 40, 41, 42, 43
    v_tg, v_tq = 46, 47
    v_dw, v_d = 44, 45
    v_paH = 46
    v_paV = 47
    vQ = 240
    v_qa = 244
    v_one = 245
    v_e0, v_td = 246, 247
    v_non = 248
    v_e1, v_zero = 250, 251
    v_fa = 252
    v_pa = 253
    v_pf = 254
    t = vT

    st = Stamps(a, v_stamp)
    a("s_cmp_ge_u32 s2, 256")
    a("s_cbranch_scc1 L_end")
    st("rt", rt=True); st("t0", wait=True)
    if DBGST:
        a("s_mov_b64 s[82:83], s[0:1]")
    a("s_load_dwordx16 s[16:31], s[0:1], 0")
    a("s_load_dwordx4 s[32:35], s[0:1], 64")
    a(f"s_memrealtime s[{s_n0}:{s_n0+1}]")
    if OPT["ctouch"]:
        a(f"s_getpc_b64 s[{s_d0}:{s_d0+1}]")
        a(f"s_and_b32 s{s_t0}, s2, 0xf8")
        a(f"v_add_lshl_u32 v{t+10}, v0, s{s_t0}, 7")
        a(f"v_min_u32 v{t+10}, 27000, v{t+10}")
        a(f"v_cmp_gt_u32 vcc, 8, v0")
        a(f"s_and_saveexec_b64 s[{s_t0}:{s_t0+1}], vcc")
        a("s_cbranch_execz L_noct")
        a(f"global_load_dword v{v_td}, v{t+10}, s[{s_d0}:{s_d0+1}]")
        a("L_noct:")
        a(f"s_mov_b64 exec, -1")
    a(f"v_and_b32 v{v_lane}, 63, v0")
    a(f"v_lshrrev_b32 v{t}, 6, v0")
    a(f"v_readfirstlane_b32 s{s_w}, v{t}")
    a(f"s_and_b32 s{s_tb}, s2, 3")
    a(f"s_bfe_u32 s{s_t2}, s2, 0x20003")
    a(f"s_lshl2_add_u32 s{s_tb}, s{s_tb}, s{s_t2}")
    a(f"s_bfe_u32 s{s_cb}, s2, 0x10002")
    a(f"s_lshr_b32 s{s_t1}, s2, 5")
    a(f"s_lshl3_add_u32 s{s_cb}, s{s_cb}, s{s_t1}")
    a(f"s_lshr_b32 s{s_g}, s{s_w}, 2")
    a(f"s_and_b32 s{s_mt}, s{s_w}, 3")
    if OPT["we"] == 4:
        a(f"s_and_b32 s{s_t0}, s{s_cb}, 1")
        a(f"s_and_b32 s{s_t1}, s{s_cb}, 2")
        a(f"s_lshl2_add_u32 s{s_t0}, s{s_t1}, s{s_t0}")
    elif OPT["we"] == 2:
        a(f"s_and_b32 s{s_t0}, s{s_cb}, 1")
        a(f"s_and_b32 s{s_t1}, s{s_cb}, 6")
        a(f"s_lshl1_add_u32 s{s_t0}, s{s_t1}, s{s_t0}")
    else:
        a(f"s_and_b32 s{s_t0}, s{s_cb}, 7")
        a(f"s_lshl_b32 s{s_t0}, s{s_t0}, 1")
    a(f"s_lshl_b32 s{s_wr}, s{s_w}, 1")
    a(f"s_xor_b32 s{s_wr}, s{s_wr}, s{s_t0}")
    a(f"v_lshrrev_b32 v{t}, 3, v{v_lane}")
    a(f"v_and_b32 v{t+1}, 7, v{v_lane}")
    a(f"v_mul_u32_u24 v{v_xo}, 896, v{t}")
    a(f"v_lshl_add_u32 v{v_xo}, v{t+1}, 4, v{v_xo}")
    a(f"s_lshl4_add_u32 s{s_t0}, s{s_tb}, s{s_wr}")
    a(f"s_mul_i32 s{s_xr}, s{s_t0}, {8*896}")
    a(f"s_xor_b32 s{s_t0}, s{s_t0}, 1")
    a(f"s_mul_i32 s{s_xr1}, s{s_t0}, {8*896}")
    a(f"v_mov_b32 v{v_e1}, {OOB}")
    a("s_waitcnt lgkmcnt(0)")
    A(srd(sX, 16, 17, X_BYTES))
    vm = VM()
    def raw(e, i):
        return ACC[0] + 28 * e + 4 * i
    def xload(e, j, track=True):
        r = raw(e, j)
        a(f"buffer_load_dwordx4 v[{r}:{r+3}], v{v_xo}, s[{sX}:{sX+3}], s{s_xr1 if e else s_xr} offen offset:{128*j}")
        if track:
            vm.issue(f"x{e}{j}")
    def gtouch(sr, nl, per_wg8, vt, vmx=None):
        if per_wg8:
            a(f"s_lshl3_add_u32 s{s_t0}, s2, s{s_w}")
        else:
            a(f"s_lshl2_add_u32 s{s_t0}, s2, s{s_mt}")
        a(f"s_mul_i32 s{s_t0}, s{s_t0}, {nl}")
        a(f"v_min_u32 v{vt}, {nl-1}, v{v_lane}")
        a(f"v_add_lshl_u32 v{vt}, v{vt}, s{s_t0}, 7")
        a(f"s_mov_b64 exec, {(1 << nl) - 1}")
        a(f"buffer_load_dword v{v_td}, v{vt}, s[{sr}:{sr+3}], 0 offen")
        a(f"s_mov_b64 exec, -1")
        if vmx is not None:
            vmx.issue("t")
    XF = OPT["xf"]
    xorder = [(0, j) for j in range(7)] + [(1, j) for j in range(7)]
    A(srd(sWq, 18, 19, WQKV_BYTES))
    a(f"s_cmp_ge_u32 s{s_w}, {OPT['we']}")
    a("s_cbranch_scc1 L_x0skip0")
    for k, (e, j) in enumerate(xorder[:XF]):
        xload(e, j, False)
    a("L_x0skip0:")
    a(f"s_cmp_lg_u32 s{s_g}, 0")
    a("s_cbranch_scc1 L_x0skip")
    gtouch(sWq, 10, False, t + 10)
    if OPT["tlb"]:
        a(f"s_cmp_lg_u32 s{s_w}, 3")
        a("s_cbranch_scc1 L_x0skip")
        a(f"v_lshlrev_b32 v{t+10}, {OPT['tlb']}, v{v_lane}")
        a(f"s_mov_b64 exec, {(1 << min(32, (18 << 20) >> OPT['tlb'])) - 1}")
        a(f"global_load_dword v{v_td}, v{t+10}, s[34:35] sc1")
        a(f"s_mov_b64 exec, 1")
        for p in (20, 24, 26, 28, 30, 32):
            a(f"global_load_dword v{v_td}, v{t+10}, s[{p}:{p+1}] sc1")
        a(f"s_mov_b64 exec, -1")
    a("L_x0skip:")
    a(f"s_cmp_eq_u32 s{s_g}, 0")
    a(f"s_cselect_b32 s{sWg}, s24, s26")
    a(f"s_cselect_b32 s{sWg+1}, s25, s27")
    a(f"s_and_b32 s{sWg+1}, s{sWg+1}, 0xffff")
    a(f"s_mov_b32 s{sWg+2}, {WG_BYTES}")
    a(f"s_mov_b32 s{sWg+3}, 0x00020000")
    A(srd(sDbg, 32, 33, 256))
    a(f"s_or_b32 s{s_n0}, s{s_n0}, 1")
    a(f"v_mov_b32 v{v_non}, s{s_n0}")
    a(f"v_mov_b32 v{v_non+1}, s{s_n0+1}")
    a(f"v_cmp_eq_u32 s[{s_d0}:{s_d0+1}], 0, v0")
    a(f"v_cndmask_b32 v{v_fa}, v{v_e1}, 0, s[{s_d0}:{s_d0+1}]")
    a(f"s_cmp_eq_u32 s2, 0")
    a(f"s_cselect_b64 s[{s_d0}:{s_d0+1}], s[{s_d0}:{s_d0+1}], 0")
    a(f"v_cndmask_b32 v{v_e0}, v{v_e1}, 0, s[{s_d0}:{s_d0+1}]")
    a(f"v_mov_b32 v{v_zero}, 0")
    a(f"v_bfe_u32 v{t+2}, v{v_lane}, 4, 1")
    a(f"v_lshlrev_b32 v{t+3}, 2, v{t+2}")
    a(f"v_xor_b32 v{t+3}, v{t+3}, v{t+1}")
    a(f"v_mul_u32_u24 v{v_dq}, 2688, v{t}")
    a(f"v_lshl_add_u32 v{v_dq}, v{t+3}, 4, v{v_dq}")
    a(f"v_lshlrev_b32 v{t+3}, 1, v{t+2}")
    a(f"v_xor_b32 v{t+3}, v{t+3}, v{t+1}")
    a(f"s_lshl_b32 s{s_t1}, s{s_g}, 2")
    a(f"v_xor_b32 v{t+3}, s{s_t1}, v{t+3}")
    a(f"v_mul_u32_u24 v{v_dg}, 3584, v{t}")
    a(f"v_lshl_add_u32 v{v_dg}, v{t+3}, 4, v{v_dg}")
    a(f"s_lshl_b32 s{s_t0}, s{s_wr}, 3")
    for e in range(2):
        a(f"v_add_u32 v{t+2}, s{s_t0}, v{t}")
        if e:
            a(f"v_xor_b32 v{t+2}, 8, v{t+2}")
        a(f"v_bfe_u32 v{t+3}, v{t+2}, 1, 3")
        a(f"v_xor_b32 v{t+3}, v{t+3}, v{t+1}")
        a(f"v_lshlrev_b32 v{t+2}, 7, v{t+2}")
        a(f"v_lshl_add_u32 v{t+2}, v{t+3}, 4, v{t+2}")
        a(f"v_add_u32 v{v_xw+e}, {XBASE}, v{t+2}")
        a(f"v_add_u32 v{v_xw+2+e}, {XBASE+65536}, v{t+2}")
    a(f"s_mul_i32 s{s_g0}, s{s_mt}, {8*3584}")
    a(f"s_mul_i32 s{s_g3}, s{s_mt}, {4*3584}")
    a(f"s_add_u32 s{s_g3}, s{s_g3}, {96*3584}")
    a(f"s_mul_i32 s{s_q0}, s{s_w}, {8*2688}")
    a(f"s_mul_i32 s{s_v0}, s{s_w}, {4*2688}")
    a(f"s_add_u32 s{s_q3}, s{s_v0}, {128*2688}")
    a(f"s_lshr_b32 s{s_t0}, s{s_cb}, 2")
    a(f"s_mul_i32 s{s_t1}, s{s_t0}, 224")
    a(f"s_add_u32 s{s_t1}, s{s_t1}, {56*32}")
    a(f"s_mul_i32 s{s_v3}, s{s_w}, {2*2688}")
    a(f"s_add_u32 s{s_v0}, s{s_v0}, s{s_t1}")
    a(f"s_add_u32 s{s_v3}, s{s_v3}, s{s_t1}")
    a(f"s_add_u32 s{s_v3}, s{s_v3}, {96*2688}")
    a(f"s_mul_i32 s{s_t1}, s{s_cb}, 112")
    a(f"s_add_u32 s{s_q0}, s{s_q0}, s{s_t1}")
    a(f"s_add_u32 s{s_q3}, s{s_q3}, s{s_t1}")
    a(f"s_mul_i32 s{s_t1}, s{s_t0}, 448")
    a(f"s_and_b32 s{s_t0}, s{s_cb}, 3")
    a(f"s_lshl_b32 s{s_hst}, s{s_t0}, 7")
    a(f"s_add_u32 s{s_t1}, s{s_t1}, s{s_hst}")
    a(f"s_lshl1_add_u32 s{s_g0}, s{s_t1}, s{s_g0}")
    a(f"s_lshl1_add_u32 s{s_g3}, s{s_t1}, s{s_g3}")
    a(f"s_lshl_b32 s{s_hst}, s{s_t1}, 6")
    a(f"s_mul_i32 s{s_m0}, s{s_g}, {112*128}")
    a(f"s_lshl_b32 s{s_t1}, s{s_mt}, 9")
    a(f"s_add_u32 s{s_m3}, s{s_m0}, s{s_t1}")
    a(f"s_add_u32 s{s_m3}, s{s_m3}, {96*128}")
    a(f"s_lshl1_add_u32 s{s_m0}, s{s_t1}, s{s_m0}")
    a(f"s_lshl_b32 s{s_mq0}, s{s_w}, 10")
    a(f"s_lshl_b32 s{s_mq3}, s{s_w}, 9")
    a(f"s_add_u32 s{s_mq3}, s{s_mq3}, {128*128}")
    a(f"v_bfe_u32 v{t}, v{v_lane}, 2, 2")
    a(f"v_and_b32 v{t+1}, 3, v{v_lane}")
    a(f"v_bfe_u32 v{t+2}, v{v_lane}, 4, 1")
    a(f"v_lshrrev_b32 v{t+3}, 5, v{v_lane}")
    a(f"v_lshrrev_b32 v{t+4}, 1, v{t+1}")
    a(f"v_and_b32 v{t+5}, 1, v{t+1}")
    a(f"v_lshl_or_b32 v{t+4}, v{t+5}, 1, v{t+4}")
    a(f"v_lshl_add_u32 v{t+5}, v{t+3}, 3, v{t}")
    a(f"v_lshlrev_b32 v{t+5}, 7, v{t+5}")
    a(f"v_lshrrev_b32 v{t+6}, 1, v{t}")
    a(f"s_mul_i32 s{s_t0}, s{s_g}, 56")
    a(f"v_lshlrev_b32 v{t+7}, 5, v{t+2}")
    a(f"v_lshl_add_u32 v{t+7}, v{t+4}, 3, v{t+7}")
    a(f"v_add_u32 v{t+7}, s{s_t0}, v{t+7}")
    a(f"v_lshlrev_b32 v{t+8}, 6, v{t+6}")
    a(f"v_xor_b32 v{t+7}, v{t+7}, v{t+8}")
    a(f"v_add_u32 v{v_bqk}, v{t+7}, v{t+5}")
    a(f"v_lshl_or_b32 v{t+7}, v{t+2}, 1, v{t+6}")
    a(f"s_lshl_b32 s{s_t0}, s{s_g}, 1")
    a(f"v_xor_b32 v{t+7}, s{s_t0}, v{t+7}")
    a(f"v_mul_u32_u24 v{t+8}, 14336, v{t+2}")
    a(f"v_add_u32 v{t+8}, v{t+8}, v{t+5}")
    a(f"v_lshl_add_u32 v{t+8}, v{t+4}, 3, v{t+8}")
    a(f"v_lshl_add_u32 v{v_bg0}, v{t+7}, 5, v{t+8}")
    a(f"v_xor_b32 v{v_bg1}, 32, v{v_bg0}")
    a(f"v_and_b32 v{t}, 0x13, v{v_lane}")
    a(f"v_bfe_u32 v{t+1}, v{v_lane}, 2, 1")
    a(f"v_lshl_or_b32 v{t}, v{t+1}, 3, v{t}")
    a(f"v_bfe_u32 v{t+1}, v{v_lane}, 3, 1")
    a(f"v_lshl_or_b32 v{t}, v{t+1}, 2, v{t}")
    a(f"s_lshl_b32 s{s_t0}, s{s_mt}, 5")
    a(f"v_add_u32 v{t}, s{s_t0}, v{t}")
    a(f"v_bfe_u32 v{t+1}, v{t}, 1, 3")
    a(f"v_xor_b32 v{t+1}, v{t+1}, v{t+3}")
    a(f"v_lshlrev_b32 v{t}, 7, v{t}")
    a(f"v_lshl_add_u32 v{t}, v{t+1}, 4, v{t}")
    a(f"v_add_u32 v{v_xa}, {XBASE}, v{t}")
    for s2 in range(1, 4):
        a(f"v_xor_b32 v{v_xa+s2}, {32*s2}, v{v_xa}")
    for s2 in range(4):
        a(f"v_add_u32 v{v_xa+4+s2}, 65536, v{v_xa+s2}")

    def dmaA(chunk, slot, tag):
        kind, idx, part = chunk
        G = []
        for jj in range(4):
            g = []
            rowb = 128
            m3x = 0
            if kind == "qk":
                b0, b3 = s_q0, s_q3
                stride = 2688
                off = 224 * part * stride
                sr, vo = sWq, v_dq
                rows = [0, 64, None, 160][jj]
                m0r, m3r = s_mq0, s_mq3
            elif kind == "v":
                b0, b3 = s_v0, s_v3
                stride = 2688
                off = 112 * part * stride
                rows = [0, 32, 64, None][jj]
                sr, vo = sWq, (v_dvh if rows is None else v_dv)
                m0r, m3r = s_mq0, s_mq3
                rowb = 256
                m3x = 8192
            else:
                b0, b3 = s_g0, s_g3
                stride = 3584
                off = 112 * part * stride + 128 * idx
                sr, vo = sWg, v_dg
                rows = [0, 32, 64, None][jj]
                m0r, m3r = s_m0, s_m3
            half = rows is None
            if not half:
                g.append(f"s_add_u32 m0, s{m0r}, {slot*SLOT + rows*rowb}")
                g.append(f"s_add_u32 s{s_b1}, s{b0}, {off + rows*stride}")
            else:
                g.append(f"s_add_u32 m0, s{m3r}, {slot*SLOT + m3x}")
                g.append(f"s_add_u32 s{s_b1}, s{b3}, {off}")
                g.append("s_mov_b32 exec_hi, 0")
            g.append(f"buffer_load_dwordx4 v{vo}, s[{sr}:{sr+3}], s{s_b1} offen lds")
            if half:
                g.append("s_mov_b32 exec_hi, -1")
            G.append((g, tag))
        return G

    def emit_group(vm, grp):
        g, tag = grp
        for ins in g:
            a(ins)
            if ins.startswith("buffer_"):
                vm.issue(tag)

    seq1 = [("qk", 0, 0), ("qk", 0, 1)] + [("gu", 0, p) for p in range(4)] + [("gu", 1, p) for p in range(4)]
    seq2 = [("qk", 0, 0), ("qk", 0, 1)] + [("v", 0, p) for p in range(4)] + [("gu", 0, p) for p in range(4)]
    c1groups = dmaA(seq1[1], 1, "c1")
    early = dmaA(seq1[0], 0, "c0") + c1groups[:OPT["c1e"]]
    c1b = (c1groups[3][0], "c1b")
    def deferred(is2):
        D = []
        S = D.append
        tt = vT
        d0, d1 = s_d0, s_d1
        if is2:
            S(f"v_lshrrev_b32 v{tt}, 4, v{v_lane}")
            S(f"v_and_b32 v{tt+1}, 15, v{v_lane}")
            S(f"v_mul_u32_u24 v{tt+2}, 2688, v{tt}")
            S(f"v_lshlrev_b32 v{tt+3}, 2, v{tt}")
            S(f"v_xor_b32 v{tt+3}, v{tt+3}, v{tt+1}")
            S(f"v_lshl_add_u32 v{v_dv}, v{tt+3}, 4, v{tt+2}")
            S(f"s_and_b32 s{d0}, s{s_w}, 1")
            S(f"s_lshl_b32 s{d0}, s{d0}, 7")
            S(f"v_lshlrev_b32 v{tt+3}, 4, v{tt+3}")
            S(f"v_xor_b32 v{tt+3}, s{d0}, v{tt+3}")
            S(f"v_add_u32 v{v_dvh}, v{tt+3}, v{tt+2}")
            S(f"v_bfe_u32 v{tt}, v{v_lane}, 2, 2")
            S(f"v_and_b32 v{tt+1}, 3, v{v_lane}")
            S(f"v_bfe_u32 v{tt+2}, v{v_lane}, 4, 1")
            S(f"v_lshrrev_b32 v{tt+3}, 5, v{v_lane}")
            S(f"v_lshl_add_u32 v{tt+3}, v{tt+3}, 3, v{tt}")
            S(f"v_lshlrev_b32 v{tt+3}, 8, v{tt+3}")
            S(f"v_lshlrev_b32 v{tt+1}, 4, v{tt+1}")
            S(f"v_lshl_add_u32 v{tt+1}, v{tt+2}, 3, v{tt+1}")
            S(f"s_mul_i32 s{d0}, s{s_g}, 112")
            S(f"v_add_u32 v{tt+1}, s{d0}, v{tt+1}")
            S(f"v_lshlrev_b32 v{tt}, 6, v{tt}")
            S(f"v_xor_b32 v{tt+2}, v{tt+1}, v{tt}")
            S(f"v_add_u32 v{v_bv0}, v{tt+2}, v{tt+3}")
            S(f"v_add_u32 v{tt+1}, 56, v{tt+1}")
            S(f"v_xor_b32 v{tt+2}, v{tt+1}, v{tt}")
            S(f"v_add_u32 v{v_bv1}, v{tt+2}, v{tt+3}")
        return D

    def deferred_common():
        D = []
        S = D.append
        tt = vT
        d0, d1 = s_d0, s_d1
        is2 = True
        D += srd(sWS, 34, 35, WS_BYTES) + srd(sWd, 28, 29, WD_BYTES) + srd(sWo, 20, 21, WO_BYTES) + srd(sO, 30, 31, X_BYTES)
        S(f"s_cmp_lt_u32 s{s_cb}, 8\ns_cselect_b32 s{s_scale}, 0x{f2u(QSCALE):08x}, 1.0")
        S(f"s_lshl1_add_u32 s{s_qkst}, s{s_cb}, s{s_g}")
        S(f"s_lshl_b32 s{s_qkst}, s{s_qkst}, 17")
        S(f"s_lshl2_add_u32 s{d0}, s{s_tb}, s{s_mt}")
        S(f"s_mul_i32 s{d1}, s{d0}, {NKS*1024}")
        S(f"s_add_u32 s{s_hst}, s{s_hst}, s{d1}")
        S(f"s_lshl_b32 s{d1}, s{s_g}, 11")
        S(f"s_add_u32 s{s_hst}, s{s_hst}, s{d1}")
        S(f"s_add_u32 s{s_hst}, s{s_hst}, {HF}")
        S(f"s_lshl_b32 s{d0}, s{d0}, 11")
        S(f"s_add_u32 s{s_qkst}, s{s_qkst}, s{d0}")
        if is2:
            S(f"s_and_b32 s{s_vst}, s{s_cb}, 12")
            S(f"s_lshl1_add_u32 s{s_vst}, s{s_g}, s{s_vst}")
            S(f"s_lshl_b32 s{s_vst}, s{s_vst}, 17")
            S(f"s_add_u32 s{s_vst}, s{s_vst}, s{d0}")
            S(f"s_add_u32 s{s_vst}, s{s_vst}, {VF}")
            S(f"v_and_b32 v{tt}, 31, v{v_lane}")
            S(f"v_cmp_eq_u32 s[{s_one}:{s_one+1}], 28, v{tt}")
            S(f"v_mov_b32 v{v_one}, 0x3f803f80")
        S(f"s_and_b32 s{s_wr}, s{s_tb}, 3")
        S(f"v_mov_b32 v{v_c1}, 0x{f2u(GC1):08x}")
        S(f"v_mov_b32 v{v_c2}, 0x{f2u(GC2):08x}")
        S(f"v_mov_b32 v{v_k1}, 1.0")
        S(f"v_lshlrev_b32 v{v_st}, 4, v{v_lane}")
        S(f"v_bfe_u32 v{tt}, v{v_lane}, 3, 1")
        S(f"v_lshlrev_b32 v{tt}, 4, v{tt}")
        S(f"v_bfe_u32 v{tt+1}, v{v_lane}, 4, 1")
        S(f"v_lshl_or_b32 v{tt}, v{tt+1}, 3, v{tt}")
        S(f"v_and_b32 v{tt+1}, 0x27, v{v_lane}")
        S(f"v_or_b32 v{tt}, v{tt}, v{tt+1}")
        S(f"v_lshlrev_b32 v{v_stk}, 4, v{tt}")
        S(f"s_cmp_lt_u32 s{s_cb}, 8\ns_cselect_b64 s[{d0}:{d0+1}], -1, 0")
        S(f"v_cndmask_b32 v{v_stk}, v{v_stk}, v{v_st}, s[{d0}:{d0+1}]")
        S(f"v_cmp_gt_u32 s[{d0}:{d0+1}], 32, v{v_lane}")
        S(f"v_cndmask_b32 v{v_msk}, 0, -1, s[{d0}:{d0+1}]")
        return D

    if not OPT["dcl"]:
        for x in deferred_common():
            a(x)
    st("setup")

    F = vX
    a(f"s_cmp_lt_u32 s{s_w}, {OPT['we']}")
    a("s_cbranch_scc1 L_x0skip2")
    for (e, j) in xorder[:XF]:
        xload(e, j, False)
    a("L_x0skip2:")
    for (e, j) in xorder[:XF]:
        vm.issue(f"x{e}{j}")
    if OPT["dcl"]:
        for x in deferred_common():
            a(x)
    xrest = list(xorder[XF:])
    if not OPT["xil"]:
        while xrest:
            xload(*xrest.pop(0))
    def qdma(i0_, i1_, lab):
        a(f"s_cmp_lg_u32 s{s_g}, 0")
        a(f"s_cbranch_scc1 L_nodma{lab}")
        for i in range(i0_, i1_):
            a(f"s_add_u32 m0, s{s_mq0}, {32*i*128}")
            a(f"s_add_u32 s{s_b1}, s{s_q0}, {32*i*2688}")
            a(f"buffer_load_dwordx4 v{v_dq}, s[{sWq}:{sWq+3}], s{s_b1} offen lds")
            vm.issue("c0" if i < 7 else "c1")
        a(f"L_nodma{lab}:")
    if OPT["lnm"]:
        MF = "v_mfma_f32_4x4x4_16b_bf16"
        vOnes, vM = t, t + 2
        vAh, vAl, vB = t + 4, t + 6, t + 8
        S_, Q_, R_, U_ = t + 12, t + 13, t + 14, t + 15
        SA = [F, F + 4]
        QA = [F + 8, F + 12]
        D0 = F + 16
        sJ = [4, 6, 8]
        a(f"v_mov_b32 v{vOnes}, 0x3f803f80")
        a(f"v_mov_b32 v{vOnes+1}, 0x3f803f80")
        a(f"v_and_b32 v{U_}, 3, v{v_lane}")
        a(f"v_and_b32 v{R_}, 1, v{v_lane}")
        a(f"v_lshlrev_b32 v{R_}, 4, v{R_}")
        a(f"v_mov_b32 v{S_}, 0xffff")
        a(f"v_lshlrev_b32 v{S_}, v{R_}, v{S_}")
        a(f"v_cmp_gt_u32 s[{s_kv}:{s_kv+1}], 2, v{U_}")
        a(f"v_cmp_eq_u32 s[{s_bd}:{s_bd+1}], 0, v{R_}")
        a(f"v_cndmask_b32 v{vM}, 0, v{S_}, s[{s_kv}:{s_kv+1}]")
        a(f"v_cndmask_b32 v{vM+1}, v{S_}, 0, s[{s_kv}:{s_kv+1}]")
        Q4 = lambda r: f"v[{r}:{r+3}]"
        P2 = lambda r: f"v[{r}:{r+1}]"
        for e in range(2):
            for j in range(7):
                if xrest:
                    xload(*xrest.pop(0))
                a(f"s_waitcnt vmcnt({vm.wait_n(f'x{e}{j}')})")
                if (e, j) in ((0, 0), (1, 6)):
                    st(f"x{e}{j}")
                r = raw(e, j)
                for h2 in range(2):
                    cs = "0" if j == 0 else Q4(SA[h2])
                    a(f"{MF} {Q4(SA[h2])}, {P2(vOnes)}, {P2(r+2*h2)}, {cs}")
                    cq = "0" if j == 0 else Q4(QA[h2])
                    a(f"{MF} {Q4(QA[h2])}, {P2(r+2*h2)}, {P2(r+2*h2)}, {cq}")
            if e == 1 and OPT["dmae"]:
                qdma(0, OPT["dmae"], "a")
            a(f"v_add_f32 v{S_}, v{SA[0]}, v{SA[1]}")
            for k in range(0, 4, 2):
                a(f"v_pk_add_f32 {P2(QA[0]+k)}, {P2(QA[0]+k)}, {P2(QA[1]+k)}")
            a(f"v_cndmask_b32 v{QA[0]}, v{QA[0]+1}, v{QA[0]}, s[{s_bd}:{s_bd+1}]")
            a(f"v_cndmask_b32 v{QA[0]+2}, v{QA[0]+3}, v{QA[0]+2}, s[{s_bd}:{s_bd+1}]")
            a(f"v_cndmask_b32 v{Q_}, v{QA[0]+2}, v{QA[0]}, s[{s_kv}:{s_kv+1}]")
            for pat in ("quad_perm:[1,0,3,2]", "quad_perm:[2,3,0,1]", "row_half_mirror"):
                for r in (S_, Q_):
                    a(f"v_add_f32_dpp v{r}, v{r}, v{r} {pat} row_mask:0xf bank_mask:0xf")
            a(f"v_mul_f32 v{S_}, 0x{f2u(1.0/448):08x}, v{S_}")
            a(f"v_mul_f32 v{Q_}, 0x{f2u(1.0/448):08x}, v{Q_}")
            a(f"v_fma_f32 v{Q_}, -v{S_}, v{S_}, v{Q_}")
            a(f"v_max_f32 v{Q_}, 0, v{Q_}")
            a(f"v_add_f32 v{Q_}, 0x{f2u(1e-5):08x}, v{Q_}")
            a(f"v_rsq_f32 v{R_}, v{Q_}")
            a(f"v_cvt_pk_bf16_f32 v{U_}, v{R_}, v{R_}")
            a(f"v_mul_f32 v{vB}, -v{S_}, v{R_}")
            a(f"v_and_b32 v{Q_}, 0xffff0000, v{U_}")
            a(f"v_and_b32 v{vAh}, v{U_}, v{vM}")
            a(f"v_and_b32 v{vAh+1}, v{U_}, v{vM+1}")
            a(f"v_sub_f32 v{Q_}, v{R_}, v{Q_}")
            a(f"v_cvt_pk_bf16_f32 v{U_}, v{Q_}, v{Q_}")
            for k in range(1, 4):
                a(f"v_mov_b32 v{vB+k}, v{vB}")
            a(f"v_and_b32 v{vAl}, v{U_}, v{vM}")
            a(f"v_and_b32 v{vAl+1}, v{U_}, v{vM+1}")
            def hi(j, h2):
                r = raw(e, j); d = D0 + 8 * (j % 4)
                return f"{MF} {Q4(d+4*h2)}, {P2(vAh)}, {P2(r+2*h2)}, {Q4(vB)}"
            def lo(j, h2):
                r = raw(e, j); d = D0 + 8 * (j % 4)
                return f"{MF} {Q4(d+4*h2)}, {P2(vAl)}, {P2(r+2*h2)}, {Q4(d+4*h2)}"
            def cv(j, k):
                r = raw(e, j); d = D0 + 8 * (j % 4)
                return f"v_cvt_pk_bf16_f32 v{r+k}, v{d+2*k}, v{d+2*k+1}"
            for j in range(-3, 7):
                mf = []
                if 0 <= j + 3 < 7:
                    mf += [hi(j + 3, 0), hi(j + 3, 1)]
                if 0 <= j + 2 < 7:
                    mf += [lo(j + 2, 0), lo(j + 2, 1)]
                for k in range(4):
                    if k < len(mf):
                        a(mf[k])
                    if j >= 0:
                        a(cv(j, k))
                if j >= 0:
                    r = raw(e, j)
                    a(f"ds_write_b128 v{v_xw + e + (2 if j >= 4 else 0)}, v[{r}:{r+3}] offset:{(j % 4)*16384}")
    else:
        S_, Q_, R_ = t, t + 2, t + 4
        for e in range(2):
            for j in range(7):
                if xrest:
                    xload(*xrest.pop(0))
                a(f"s_waitcnt vmcnt({vm.wait_n(f'x{e}{j}')})")
                if (e, j) in ((0, 0), (1, 6)):
                    st(f"x{e}{j}")
                for d in range(4):
                    r = raw(e, j) + d
                    f = F + 8 * j + 2 * d
                    a(f"v_lshlrev_b32 v{f}, 16, v{r}")
                    a(f"v_and_b32 v{f+1}, 0xffff0000, v{r}")
                for d in range(4):
                    f = F + 8 * j + 2 * d
                    if j == 0 and d == 0:
                        a(f"v_pk_mul_f32 v[{Q_}:{Q_+1}], v[{f}:{f+1}], v[{f}:{f+1}]")
                    elif j == 0 and d == 1:
                        a(f"v_pk_add_f32 v[{S_}:{S_+1}], v[{f-2}:{f-1}], v[{f}:{f+1}]")
                        a(f"v_pk_fma_f32 v[{Q_}:{Q_+1}], v[{f}:{f+1}], v[{f}:{f+1}], v[{Q_}:{Q_+1}]")
                    else:
                        a(f"v_pk_add_f32 v[{S_}:{S_+1}], v[{S_}:{S_+1}], v[{f}:{f+1}]")
                        a(f"v_pk_fma_f32 v[{Q_}:{Q_+1}], v[{f}:{f+1}], v[{f}:{f+1}], v[{Q_}:{Q_+1}]")
            if e == 1 and OPT["dmae"]:
                qdma(0, OPT["dmae"], "a")
            for r in (S_, Q_):
                a(f"v_add_f32 v{r}, v{r}, v{r+1}")
            for pat in ("quad_perm:[1,0,3,2]", "quad_perm:[2,3,0,1]", "row_half_mirror"):
                for r in (S_, Q_):
                    a(f"v_add_f32_dpp v{r}, v{r}, v{r} {pat} row_mask:0xf bank_mask:0xf")
            a(f"v_mul_f32 v{S_}, 0x{f2u(1.0/448):08x}, v{S_}")
            a(f"v_mul_f32 v{Q_}, 0x{f2u(1.0/448):08x}, v{Q_}")
            a(f"v_fma_f32 v{Q_}, -v{S_}, v{S_}, v{Q_}")
            a(f"v_max_f32 v{Q_}, 0, v{Q_}")
            a(f"v_add_f32 v{Q_}, 0x{f2u(1e-5):08x}, v{Q_}")
            a(f"v_rsq_f32 v{R_}, v{Q_}")
            a(f"v_mul_f32 v{R_+2}, -v{S_}, v{R_}")
            for j in range(7):
                for d in range(4):
                    f = F + 8 * j + 2 * d
                    a(f"v_pk_fma_f32 v[{f}:{f+1}], v[{f}:{f+1}], v[{R_}:{R_+1}], v[{R_+2}:{R_+3}] op_sel_hi:[1,0,0]")
                for d in range(4):
                    f = F + 8 * j + 2 * d
                    a(f"v_cvt_pk_bf16_f32 v{raw(e, j)+d}, v{f}, v{f+1}")
                r = raw(e, j)
                a(f"ds_write_b128 v{v_xw + e + (2 if j >= 4 else 0)}, v[{r}:{r+3}] offset:{(j % 4)*16384}")
    st("lnend")
    qdma(OPT["dmae"], 12, "b")
    gtouch(sWg, 13, False, t + 10, vm)
    a(f"buffer_store_dwordx2 v[{v_non}:{v_non+1}], v{v_e0}, s[{sDbg}:{sDbg+3}], 0 offen sc1")
    vm.issue("t")
    a(f"s_waitcnt vmcnt({vm.wait_n('c0')}) lgkmcnt(0)")
    a("s_barrier")
    st("B1")
    if OPT["mprio"]:
        a(f"s_cmp_eq_u32 s{s_g}, 0")
        a("s_cbranch_scc1 L_noprio")
        a("s_setprio 1")
        a("L_noprio:")
    a(f"s_and_b32 s{s_t0}, s{s_cb}, 3")
    a(f"s_cmp_eq_u32 s{s_t0}, 3")
    a("s_cbranch_scc1 L_type2")

    def deferred2():
        D = []
        S = D.append
        tt = vT + 8
        d0, d1 = s_d0, s_d1
        S(f"s_and_b32 s{d0}, s2, 7")
        S(f"s_lshr_b32 s{d1}, s2, 7")
        S(f"s_lshl1_add_u32 s{s_h}, s{d0}, s{d1}")
        S(f"s_bfe_u32 s{s_qb}, s2, 0x40003")
        S(f"s_bfe_u32 s{d1}, s2, 0x20003")
        S(f"s_lshl2_add_u32 s{s_tb64}, s{d0}, s{d1}")
        S(f"s_lshr_b32 s{s_nb}, s2, 5")
        S(f"s_lshr_b32 s{d0}, s{s_h}, 1")
        S(f"s_or_b32 s{d1}, s{s_h}, 3")
        S(f"v_min_u32 v{tt}, 1, v{v_lane}")
        S(f"v_sub_u32 v{tt+1}, v{v_lane}, v{tt}")
        S(f"v_sub_u32 v{tt+1}, s{s_qb}, v{tt+1}")
        S(f"v_max_i32 v{tt+1}, 0, v{tt+1}")
        S(f"v_lshl_add_u32 v{tt}, v{tt}, 3, s{d0}")
        S(f"v_lshl_add_u32 v{tt}, v{tt+1}, 4, v{tt}")
        S(f"v_lshlrev_b32 v{tt}, 3, v{tt}")
        S(f"v_add_u32 v{tt}, {FL + F_QK*2048}, v{tt}")
        S(f"v_sub_u32 v{tt+1}, s{s_qb}, v{v_lane}")
        S(f"v_max_i32 v{tt+1}, 0, v{tt+1}")
        S(f"v_lshl_add_u32 v{tt+1}, v{tt+1}, 4, s{d1}")
        S(f"v_lshlrev_b32 v{tt+1}, 3, v{tt+1}")
        S(f"v_add_u32 v{tt+1}, {FL + F_V*2048}, v{tt+1}")
        S(f"v_mov_b32 v{tt+2}, {OOB}")
        S(f"v_cmp_gt_u32 s[{d0}:{d0+1}], 4, v0")
        S(f"v_cndmask_b32 v{v_pa}, v{tt+2}, v{tt}, s[{d0}:{d0+1}]")
        S(f"v_cndmask_b32 v{v_paV}, v{tt+2}, v{tt+1}, s[{d0}:{d0+1}]")
        S(f"s_lshr_b32 s{d0}, s{s_tb64}, 1")
        S(f"s_lshl_b32 s{d0}, s{d0}, 7")
        S(f"s_add_u32 s{d0}, s{d0}, {FL + F_H*2048}")
        S(f"v_lshl_add_u32 v{tt}, v{v_lane}, 3, s{d0}")
        S(f"v_cmp_gt_u32 s[{d0}:{d0+1}], 16, v{0 if OPT['p1'] else v_lane}")
        S(f"v_cndmask_b32 v{v_paH}, v{tt+2}, v{tt}, s[{d0}:{d0+1}]")
        S(f"s_lshl4_add_u32 s{s_fp}, s{s_tb}, s{s_cb}")
        S(f"s_lshl_b32 s{s_fp}, s{s_fp}, 3")
        S(f"s_add_u32 s{s_fp}, s{s_fp}, {FL}")
        S(f"s_lshl4_add_u32 s{s_fo}, s{s_qb}, s{s_h}")
        S(f"s_lshl_b32 s{s_fo}, s{s_fo}, 3")
        S(f"s_add_u32 s{s_fo}, s{s_fo}, {FL}")
        S(f"s_lshl_b32 s{s_kv}, s{s_h}, 17")
        S(f"s_lshl_b32 s{d0}, s{s_qb}, 13")
        S(f"s_mul_i32 s{d1}, s{s_w}, 3072")
        S(f"s_add_u32 s{d1}, s{d1}, s{d0}")
        for j in range(3):
            S(f"s_sub_u32 s{81+j}, s{d1}, {16384 - 1024*j}")
            S(f"s_max_i32 s{81+j}, s{81+j}, 0")
            S(f"s_add_u32 s{81+j}, s{81+j}, s{s_kv}")
        S(f"s_add_u32 s{s_kv}, s{s_kv}, s{d0}")
        S(f"v_and_b32 v{tt}, 15, v{v_lane}")
        S(f"v_lshrrev_b32 v{tt+1}, 4, v{v_lane}")
        S(f"v_lshlrev_b32 v{v_qa}, 9, v{tt+1}")
        S(f"v_lshl_add_u32 v{v_qa}, v{tt}, 4, v{v_qa}")
        S(f"s_and_b32 s{s_nt}, s{s_w}, 1")
        S(f"s_lshl_b32 s{s_par}, s{s_nt}, 8")
        S(f"s_lshr_b32 s{s_bd}, s{s_w}, 1")
        S(f"s_lshl2_add_u32 s{s_bd}, s{s_qb}, s{s_bd}")
        S(f"s_mul_i32 s{s_ost}, s{s_bd}, {NKS*1024}")
        S(f"s_lshl_b32 s{d0}, s{s_h}, 11")
        S(f"s_add_u32 s{s_ost}, s{s_ost}, s{d0}")
        S(f"s_add_u32 s{s_ost}, s{s_ost}, s{s_par}")
        S(f"s_add_u32 s{s_ost}, s{s_ost}, {HF + 112*1024}")
        S(f"v_and_b32 v{v_d}, 3, v{v_lane}")
        S(f"v_bfe_u32 v{tt}, v{v_lane}, 2, 1")
        S(f"v_lshl_or_b32 v{v_d}, v{tt}, 3, v{v_d}")
        S(f"v_bfe_u32 v{tt}, v{v_lane}, 3, 1")
        S(f"v_lshl_or_b32 v{v_d}, v{tt}, 2, v{v_d}")
        S(f"s_lshl_b32 s{d0}, s{s_nt}, 4")
        S(f"v_add_u32 v{v_d}, s{d0}, v{v_d}")
        S(f"v_lshlrev_b32 v{tt}, 3, v{tt+1}")
        S(f"v_sub_u32 v{v_d}, v{v_d}, v{tt}")
        S(f"s_lshr_b32 s{s_kh}, s{s_w}, 2")
        S(f"s_bfe_u32 s{s_cmt}, s{s_w}, 0x10001")
        S(f"v_lshrrev_b32 v{tt}, 3, v{v_lane}")
        S(f"v_and_b32 v{tt+1}, 7, v{v_lane}")
        S(f"v_bfe_u32 v{tt+2}, v{v_lane}, 4, 1")
        S(f"v_lshlrev_b32 v{tt+3}, 2, v{tt+2}")
        S(f"v_xor_b32 v{tt+3}, v{tt+3}, v{tt+1}")
        S(f"v_mul_u32_u24 v{v_dw}, 896, v{tt}")
        S(f"v_lshl_add_u32 v{v_dw}, v{tt+3}, 4, v{v_dw}")
        S(f"s_lshl_b32 s{s_m0h}, s{s_w}, 11")
        S(f"s_add_u32 s{s_m0w}, s{s_m0h}, {NH*16384}")
        S(f"s_mul_i32 s{s_wb}, s{s_w}, {16*896}")
        S(f"s_lshl_b32 s{d0}, s{s_nb}, 7")
        S(f"s_add_u32 s{s_wb}, s{s_wb}, s{d0}")
        S(f"s_lshr_b32 s{s_wob}, s{s_w}, 1")
        S(f"s_mul_i32 s{s_wob}, s{s_wob}, 28")
        S(f"s_lshl4_add_u32 s{s_wob}, s{s_nt}, s{s_wob}")
        S(f"s_mul_i32 s{s_wob}, s{s_wob}, 896")
        S(f"s_add_u32 s{s_wob}, s{s_wob}, s{d0}")
        S(f"s_lshl1_add_u32 s{d1}, s{s_tb64}, s{s_cmt}")
        S(f"s_mul_i32 s{s_xo}, s{d1}, {32*896}")
        S(f"s_add_u32 s{s_xo}, s{s_xo}, s{d0}")
        S(f"s_lshl_b32 s{d0}, s{s_nt}, 6")
        S(f"s_add_u32 s{s_xo}, s{s_xo}, s{d0}")
        S(f"s_lshl_b32 s{d0}, s{s_kh}, 5")
        S(f"s_add_u32 s{s_xo}, s{s_xo}, s{d0}")
        if OPT["rotc"]:
            S(f"s_lshl_b32 s{d0}, s{s_nb}, 2")
            S(f"s_lshr_b32 s{d0}, 0x{RTAB:x}, s{d0}")
            S(f"s_and_b32 s{d0}, s{d0}, 15")
            S(f"s_lshl_b32 s{s_hr}, s{d0}, 13")
            S(f"s_mul_i32 s{d0}, s{d0}, {128*896}")
            S(f"s_add_u32 s{s_wb}, s{s_wb}, s{d0}")
        else:
            S(f"s_mov_b32 s{s_hr}, 0")
        if OPT["help"] & 1:
            S(f"s_and_b32 s{d0}, s{s_tb64}, 3")
            S(f"s_lshl_b32 s{d1}, s{d0}, 2")
            S(f"s_lshr_b32 s{d1}, 0x{RTAB:x}, s{d1}")
            S(f"s_and_b32 s{d1}, s{d1}, 15")
            S(f"s_mul_i32 s{d1}, s{d1}, 896")
            S(f"s_add_u32 s{d0}, s{d0}, s{d1}")
            S(f"s_lshl_b32 s{d0}, s{d0}, 7")
            S(f"s_mul_i32 s{d1}, s{s_w}, {16*896}")
            S(f"s_add_u32 s{d0}, s{d0}, s{d1}")
            S(f"s_add_u32 s{d0}, s{d0}, {6*128*896}")
            S(f"s_cmp_ge_u32 s{s_nb}, 7\ns_cselect_b32 s{s_wb}, s{d0}, s{s_wb}")
        S(f"s_lshl1_add_u32 s{s_hb}, s{s_tb64}, s{s_kh}")
        S(f"s_mul_i32 s{s_hb}, s{s_hb}, {NKS*1024}")
        S(f"s_lshl_b32 s{d0}, s{s_mt}, 11")
        S(f"s_add_u32 s{s_hb}, s{s_hb}, s{d0}")
        S(f"s_add_u32 s{s_hb}, s{s_hb}, {HF}")
        return D

    def split_hoist(D, n):
        return D[:n], D[n:]
    SC = "sc1"
    def epi_qk(acc):
        E = []
        for r in range(16):
            E.append(f"v_mul_f32 v{acc+r}, s{s_scale}, v{acc+r}")
        for d in range(8):
            E.append(f"v_cvt_pk_bf16_f32 v{vT+d}, v{acc+2*d}, v{acc+2*d+1}")
        E.append(f"v_and_b32 v{vT+6}, v{vT+6}, v{v_msk}")
        E.append(f"v_and_b32 v{vT+7}, v{vT+7}, v{v_msk}")
        return E
    qk_stores = [f"buffer_store_dwordx4 v[{vT}:{vT+3}], v{v_stk}, s[{sWS}:{sWS+3}], s{s_qkst} offen {SC}",
                 f"buffer_store_dwordx4 v[{vT+4}:{vT+7}], v{v_stk}, s[{sWS}:{sWS+3}], s{s_qkst} offen offset:1024 {SC}"]

    def epi_v(acc):
        E = []
        for jj in range(2):
            Ac = acc + 16 * jj
            T = vT + 8 * jj
            for d in range(8):
                E.append(f"v_cvt_pk_bf16_f32 v{T+d}, v{Ac+2*d}, v{Ac+2*d+1}")
            for d in range(8):
                E.append(f"v_cndmask_b32 v{T+d}, v{T+d}, v{v_one}, s[{s_one}:{s_one+1}]")
            if jj:
                E.append(f"s_add_u32 s{s_vst}, s{s_vst}, {1 << 17}")
            E.append(f"buffer_store_dwordx4 v[{T}:{T+3}], v{v_st}, s[{sWS}:{sWS+3}], s{s_vst} offen {SC}")
            E.append(f"buffer_store_dwordx4 v[{T+4}:{T+7}], v{v_st}, s[{sWS}:{sWS+3}], s{s_vst} offen offset:1024 {SC}")
        return E

    def epi_gu_tile(acc, jj, pk):
        E = []
        Ac = acc + 16 * jj
        T = vT + 12 * jj
        P = lambda r: f"v[{r}:{r+1}]"
        if pk:
            for i in range(0, 8, 2):
                E.append(f"v_pk_mul_f32 {P(T+i)}, {P(Ac+i)}, {P(Ac+i)}")
            for i in range(0, 8, 2):
                E.append(f"v_pk_fma_f32 {P(T+i)}, {P(T+i)}, {P(v_c2)}, {P(v_c1)} op_sel_hi:[1,0,0]")
            for i in range(0, 8, 2):
                E.append(f"v_pk_mul_f32 {P(T+i)}, {P(T+i)}, {P(Ac+i)}")
            for i in range(8):
                E.append(f"v_exp_f32 v{T+i}, v{T+i}")
                if i % 2:
                    E.append(f"v_pk_mul_f32 {P(Ac+i-1)}, {P(Ac+i-1)}, {P(Ac+8+i-1)}")
            for i in range(0, 8, 2):
                E.append(f"v_pk_add_f32 {P(T+i)}, {P(T+i)}, {P(v_k1)} op_sel_hi:[1,0]")
            for i in range(8):
                E.append(f"v_rcp_f32 v{T+i}, v{T+i}")
            for i in range(0, 8, 2):
                E.append(f"v_pk_mul_f32 {P(Ac+i)}, {P(Ac+i)}, {P(T+i)}")
        else:
            for i in range(8):
                E.append(f"v_mul_f32 v{T+i}, v{Ac+i}, v{Ac+i}")
            for i in range(8):
                E.append(f"v_fma_f32 v{T+i}, v{T+i}, v{v_c2}, v{v_c1}")
            for i in range(8):
                E.append(f"v_mul_f32 v{T+i}, v{T+i}, v{Ac+i}")
            for i in range(8):
                E.append(f"v_exp_f32 v{T+i}, v{T+i}")
                E.append(f"v_mul_f32 v{Ac+i}, v{Ac+i}, v{Ac+8+i}")
            for i in range(8):
                E.append(f"v_add_f32 v{T+i}, 1.0, v{T+i}")
            for i in range(8):
                E.append(f"v_rcp_f32 v{T+i}, v{T+i}")
            for i in range(8):
                E.append(f"v_mul_f32 v{Ac+i}, v{Ac+i}, v{T+i}")
        for d in range(4):
            E.append(f"v_cvt_pk_bf16_f32 v{T+8+d}, v{Ac+2*d}, v{Ac+2*d+1}")
        E.append(f"buffer_store_dwordx4 v[{T+8}:{T+11}], v{v_st}, s[{sWS}:{sWS+3}], s{s_hst} offen offset:{1024*jj} {SC}")
        return E

    def publish(vm, kind, s_base):
        a(f"s_add_u32 s{s_t1}, s{s_base}, {kind*2048}")
        a(f"buffer_store_dwordx2 v[{v_non}:{v_non+1}], v{v_fa}, s[{sWS}:{sWS+3}], s{s_t1} offen sc1")
        vm.issue("flag")

    def poll(vm, vaddr):
        a(f"buffer_load_dwordx2 v[{v_pf}:{v_pf+1}], v{vaddr}, s[{sWS}:{sWS+3}], 0 offen sc1")
        if vm is not None:
            vm.issue("poll")

    spin_id = [0]
    def wait_flags(vm, vaddr, nlanes):
        i = spin_id[0]; spin_id[0] += 1
        mask = (1 << nlanes) - 1
        if OPT["p1"]:
            a(f"s_cmp_lg_u32 s{s_w}, 0")
            a(f"s_cbranch_scc1 L_wf_done{i}")
        a(f"s_mov_b32 s{s_t2}, 0")
        a(f"s_waitcnt vmcnt({vm.wait_n('poll')})")
        a(f"L_wf{i}:")
        a(f"v_cmp_eq_u64 vcc, v[{v_pf}:{v_pf+1}], v[{v_non}:{v_non+1}]")
        a(f"s_and_b32 s{s_t1}, vcc_lo, {mask}")
        a(f"s_cmp_eq_u32 s{s_t1}, {mask}")
        a(f"s_cbranch_scc1 L_wf_done{i}")
        a(f"s_add_u32 s{s_t2}, s{s_t2}, 1")
        a(f"s_cmp_gt_u32 s{s_t2}, 100000")
        a(f"s_cbranch_scc1 L_wf_done{i}")
        a(f"s_sleep {OPT['slp']}")
        poll(None, vaddr)
        a("s_waitcnt vmcnt(0)")
        a(f"s_branch L_wf{i}")
        a(f"L_wf_done{i}:")

    def dmaW(c):
        slot = (c % NW) * 16384
        G = []
        for jj in range(2):
            g = [f"s_add_u32 m0, s{s_m0w}, {slot + 1024*jj}"]
            if c < 14:
                g.append(f"s_add_u32 s{s_b1}, s{s_wb}, {(128*(c if not OPT['xhit'] else c % 3) + 8*jj)*896}")
                g.append(f"s_sub_u32 s{s_b2}, s{s_b1}, {WD_BYTES}")
                g.append(f"s_min_u32 s{s_b1}, s{s_b1}, s{s_b2}")
                g.append(f"buffer_load_dwordx4 v{v_dw}, s[{sWd}:{sWd+3}], s{s_b1} offen lds")
            else:
                g.append(f"s_add_u32 s{s_b1}, s{s_nb}, {c-14}")
                g.append(f"s_and_b32 s{s_b1}, s{s_b1}, 3")
                g.append(f"s_mul_i32 s{s_b1}, s{s_b1}, {112*896}")
                g.append(f"s_add_u32 s{s_b1}, s{s_b1}, s{s_wob}")
                if jj:
                    g.append(f"s_add_u32 s{s_b1}, s{s_b1}, {8*896}")
                g.append(f"buffer_load_dwordx4 v{v_dw}, s[{sWo}:{sWo+3}], s{s_b1} offen lds")
            G.append((g, f"w{c}"))
        return G

    def kq_groups():
        g = [f"s_mul_i32 s{s_b2}, s{s_w}, 3072",
             f"s_mov_b32 m0, s{s_b2}",
             ]
        for j in range(3):
            g.append(f"s_add_u32 s{s_b1}, s{81+j}, {KF - 1024*j}")
            g.append(f"buffer_load_dwordx4 v{v_st}, s[{sWS}:{sWS+3}], s{s_b1} offen offset:{1024*j} sc1 lds")
        g2 = [f"s_lshr_b32 s{s_b2}, s{s_w}, 1",
              f"s_lshl_b32 s{s_b2}, s{s_b2}, 11",
              f"s_add_u32 s{s_b2}, s{s_b2}, s{s_par}",
              f"s_add_u32 s{s_b2}, s{s_b2}, s{s_kv}",
              f"buffer_load_dwordx4 v[{vQ}:{vQ+3}], v{v_qa}, s[{sWS}:{sWS+3}], s{s_b2} offen sc1"]
        return [(g, "k"), (g2, "k")]
    tailk = {}
    st_state = (st.n, list(st.names))
    def main(seq, vm):
        st.n, st.names = st_state[0], list(st_state[1])
        is2 = seq[2][0] == "v"
        lg = Cnt(15)
        M = []
        sp = -1
        prev = None
        for c, (kind, idx, part) in enumerate(seq):
            if (kind, idx) != prev:
                sp += 1
                prev = (kind, idx)
            if kind == "qk":
                for s in range(14):
                    M.append(dict(c=c, kind=kind, idx=idx, ks=14 * part + s, sl=s, jj=0, first=(part == 0 and s == 0), sp=sp))
            else:
                for s in range(7):
                    for jj in range(2):
                        M.append(dict(c=c, kind=kind, idx=idx, ks=7 * part + s, sl=s, jj=jj, first=(part == 0 and s == 0), sp=sp))
        last = [q for q in M if q["sp"] == 2]
        M = [q for q in M if q["sp"] < 2] + [q for q in last if q["jj"] == 0] + [q for q in last if q["jj"] == 1]
        LA = 3
        cur = [-1]
        def reads(m):
            mm = M[m]
            c = mm["c"]
            if cur[0] != c and mm["sp"] == 2:
                cur[0] = c
                so = (c % 5) * SLOT
                if mm["jj"]:
                    a(f"v_add_u32 v{v_rdB}, {so}, v{v_bg1}")
                else:
                    a(f"v_add_u32 v{v_rdA}, {so}, v{v_bg0}")
            if cur[0] != c:
                cur[0] = c
                so = (c % 5) * SLOT
                if mm["kind"] == "qk":
                    a(f"v_add_u32 v{v_rdA}, {so}, v{v_bqk}")
                elif mm["kind"] == "v":
                    a(f"v_add_u32 v{v_rdA}, {so}, v{v_bv0}")
                    a(f"v_add_u32 v{v_rdB}, {so}, v{v_bv1}")
                else:
                    a(f"v_add_u32 v{v_rdA}, {so}, v{v_bg0}")
                    a(f"v_add_u32 v{v_rdB}, {so}, v{v_bg1}")
            b = vW + 4 * (m % 4)
            ad = v_rdB if mm["jj"] else v_rdA
            rb = 2 if mm["kind"] == "v" else 1
            o = mm["sl"] * 2048 * rb
            a(f"ds_read_b64_tr_b16 v[{b}:{b+1}], v{ad} offset:{o}")
            a(f"ds_read_b64_tr_b16 v[{b+2}:{b+3}], v{ad} offset:{o+512*rb}")
            lg.issue(f"w{m}"); lg.issue(f"w{m}")
        xn = [0]
        def xread(k=1):
            for _ in range(k):
                ks = xn[0]
                if ks >= 28:
                    return
                xn[0] += 1
                j, s2 = divmod(ks, 4)
                r = vX + 4 * ks
                a(f"ds_read_b128 v[{r}:{r+3}], v{v_xa + s2 + (4 if j >= 4 else 0)} offset:{(j % 4)*16384}")
                lg.issue(f"x{ks}")
        for m in range(LA):
            xread(1)
            reads(m)
        if OPT["rda"]:
            reads(LA)
        xread(3)
        pend = deferred(is2)
        D2 = deferred2()
        n2 = OPT["d2n"]
        pend += D2[:n2]
        pend_tag = "st"
        rate = len(pend) / 26.0
        accum = 0.0
        hold = 0
        n = len(M)
        bg = []
        B2 = OPT["b2"]
        def emit_pend():
            ins = pend.pop(0)
            a(ins)
            if ins.startswith("buffer_"):
                vm.issue(pend_tag)
        w2k = [0]
        def slot_store(stores, vaddr, k, nk, tag):
            if nk > 1:
                if nk == 2:
                    a(f"s_bitcmp{k}_b32 s{s_wr}, 0")
                else:
                    a(f"s_cmp_eq_u32 s{s_wr}, {k}")
                a(f"s_cselect_b64 s[{s_t0}:{s_t0+1}], -1, 0")
                a(f"v_cndmask_b32 v{v_e0}, v{v_e1}, v{vaddr}, s[{s_t0}:{s_t0+1}]")
                stores = [x.replace(f", v{vaddr},", f", v{v_e0},") for x in stores]
            for x in stores:
                a(x); vm.issue(tag)
        late = {}
        dsched = {}
        for m in range(n):
            mm = M[m]
            c = mm["c"]
            if m in STM:
                st(f"m{m}")
            if OPT["b2a"] and m == OPT["b2a"]:
                assert xn[0] >= 12
                a(f"s_waitcnt lgkmcnt({lg.wait_n('x11')})")
                a("s_barrier")
                emit_group(vm, c1b)
                bg += dmaA(seq[2], 2, "c2")
            if m == B2:
                assert xn[0] >= 28 and B2 <= 11
                a(f"s_waitcnt vmcnt({vm.wait_n('c1')}) lgkmcnt({lg.wait_n('x27')})")
                a("s_barrier")
                if not OPT["b2a"]:
                    emit_group(vm, c1b)
                    bg += dmaA(seq[2], 2, "c2")
                bg += dmaA(seq[3], 3, "c3") + dmaA(seq[4], 4, "c4")
                bg.append(([f"buffer_load_dwordx2 v[{v_non}:{v_non+1}], v{v_zero}, s[{sDbg}:{sDbg+3}], 0 offen sc1"], "nonce"))
            if m == 20:
                a(f"s_waitcnt vmcnt({vm.wait_n('c1b')})")
                a("s_barrier")
            if m in (87, 94, 101):
                a(f"s_waitcnt vmcnt({vm.wait_n(f'c{7 + (m - 87)//7}')})")
                a("s_barrier")
            if m == OPT["kqm"]:
                wait_flags(vm, v_pa, 4)
                a("s_barrier")
                bg += kq_groups()
            if m == OPT["kqm"] - OPT["kqlead"]:
                poll(vm, v_pa)
            if OPT["vbk"] and m == OPT["vbk"]:
                poll(vm, v_paV)
            if OPT["xre"] and m == OPT["xre"]:
                for x in [f"v_and_b32 v{v_e0}, 0x13, v{v_lane}",
                          f"v_bfe_u32 v{v_bqk}, v{v_lane}, 2, 1",
                          f"v_lshl_or_b32 v{v_e0}, v{v_bqk}, 3, v{v_e0}",
                          f"v_bfe_u32 v{v_bqk}, v{v_lane}, 3, 1",
                          f"v_lshl_or_b32 v{v_e0}, v{v_bqk}, 2, v{v_e0}",
                          f"v_mul_u32_u24 v{v_e0}, 896, v{v_e0}",
                          f"v_lshrrev_b32 v{v_bqk}, 5, v{v_lane}",
                          f"v_lshl_add_u32 v{v_bqk}, v{v_bqk}, 4, v{v_e0}",
                          f"buffer_load_dwordx4 v[40:43], v{v_bqk}, s[{sX}:{sX+3}], s{s_xo} offen"]:
                    a(x)
                vm.issue("xr")
            if OPT["w5e"] and m == OPT["w5e"]:
                assert NH == 4 and NW == 6
                bg += dmaW(5)
            if m == 114:
                pend.extend(epi_gu_tile(ACC[1], 0, 0))
                rate = max(rate, len(pend) / (OPT["aend"] - 114))
                if is2:
                    pend_tag = "st_a"
            if m % 14 == (8 if c != 1 else 10) and 1 <= c <= 5:
                tags = [f"c{c+1}"]
                while not vm.has(tags[0]) or any(g[1] == tags[0] for g in bg):
                    emit_group(vm, bg.pop(0))
                if c == OPT["pubqk"]:
                    tags.append("st_qk")
                if c == OPT["kq"]:
                    wait_flags(vm, v_pa, 4)
                a(f"s_waitcnt vmcnt({vm.wait_n(*tags)})")
                a("s_barrier")
                if c == OPT["pubqk"]:
                    publish(vm, F_QK, s_fp)
                if c == OPT["kq"]:
                    bg += kq_groups()
                if c + 4 < len(seq):
                    dl = OPT.get(f"d{c+4}", 0)
                    if dl > m:
                        dsched[dl] = c + 4
                    else:
                        bg += dmaA(seq[c + 4], (c + 4) % 5, f"c{c+4}")
                if c == 4:
                    i = spin_id[0]; spin_id[0] += 1
                    a(f"s_mov_b32 s{s_t2}, 0")
                    a(f"L_nz{i}:")
                    a(f"v_readfirstlane_b32 s{s_t1}, v{v_non}")
                    a(f"s_cmp_lg_u32 s{s_t1}, 0")
                    a(f"s_cbranch_scc1 L_nz_done{i}")
                    a(f"s_add_u32 s{s_t2}, s{s_t2}, 1")
                    a(f"s_cmp_gt_u32 s{s_t2}, 100000")
                    a(f"s_cbranch_scc1 L_nz_done{i}")
                    a("s_sleep 2")
                    a(f"buffer_load_dwordx2 v[{v_non}:{v_non+1}], v{v_zero}, s[{sDbg}:{sDbg+3}], 0 offen sc1")
                    a("s_waitcnt vmcnt(0)")
                    a(f"s_branch L_nz{i}")
                    a(f"L_nz_done{i}:")
            if m in dsched:
                k = dsched[m]
                bg += dmaA(seq[k], k % 5, f"c{k}")
            for k in range(OPT["qkn"]):
                if m == OPT["qkst"] + k * OPT["qkgap"]:
                    slot_store(qk_stores, v_stk, k, OPT["qkn"], "st_qk")
            if m == OPT["pubm"] and is2:
                a(f"s_waitcnt vmcnt({vm.wait_n('st_qkv')})")
                a("s_barrier")
                publish(vm, F_V, s_fp)
            if m in late:
                for (ins, k, nk, flush) in late[m]:
                    if flush:
                        while pend:
                            emit_pend()
                    if ins.startswith("buffer_"):
                        slot_store([ins], v_st, k, nk, "st_h0")
                    else:
                        a(ins)
            if m == OPT["w2s"]:
                gtouch(sWd, 7, True, v_e0, vm)
                gtouch(sWo, 2, True, v_e0, vm)
            if OPT["l2n"] and m >= OPT["l2s"] and (m - OPT["l2s"]) % OPT["l2d"] == 0 and (m - OPT["l2s"]) // OPT["l2d"] < OPT["l2n"] + 1:
                k = (m - OPT["l2s"]) // OPT["l2d"]
                nl = -(-49 // OPT["l2n"])
                isw = k == OPT["l2n"]
                a(f"s_lshr_b32 s{s_t0}, s2, 3")
                a(f"s_lshl3_add_u32 s{s_t0}, s{s_t0}, s{s_w}")
                if isw:
                    nl = 13
                    a(f"s_mul_i32 s{s_t0}, s{s_t0}, 13")
                else:
                    a(f"s_mul_i32 s{s_t0}, s{s_t0}, {nl}")
                    a(f"s_add_u32 s{s_t0}, s{s_t0}, {k*nl*256}")
                a(f"v_add_lshl_u32 v{v_e0}, v{v_lane}, s{s_t0}, 7")
                a(f"s_mov_b64 exec, {(1 << nl) - 1}")
                sr = sWo if isw else sWd
                a(f"buffer_load_dword v{v_td}, v{v_e0}, s[{sr}:{sr+3}], 0 offen")
                a(f"s_mov_b64 exec, -1")
                vm.issue("t")
            if m + LA < n and not OPT["rda"]:
                reads(m + LA)
            xread(OPT["xr"])
            tags = [f"w{m}"]
            if mm["sp"] == 0:
                tags.append(f"x{mm['ks']}")
            a(f"s_waitcnt lgkmcnt({lg.wait_n(*tags)})")
            accb = ACC[(mm["sp"] + 1) % 2]
            acc = accb + 16 * mm["jj"]
            b = vW + 4 * (m % 4)
            x = vX + 4 * mm["ks"]
            csrc = "0" if mm["first"] else f"v[{acc}:{acc+15}]"
            if mm["kind"] == "v":
                a(f"v_mfma_f32_32x32x16_bf16 v[{acc}:{acc+15}], v[{x}:{x+3}], v[{b}:{b+3}], {csrc}")
            else:
                a(f"v_mfma_f32_32x32x16_bf16 v[{acc}:{acc+15}], v[{b}:{b+3}], v[{x}:{x+3}], {csrc}")
            if OPT["rda"] and m + LA + 1 < n:
                reads(m + LA + 1)
            if bg and (m % OPT["bgp"] == 0 or len(bg) > 4):
                emit_group(vm, bg.pop(0))
            last_of_sp = (m + 1 == n) or (M[m + 1]["sp"] != mm["sp"])
            if pend and not hold:
                accum += rate
                while accum >= 1.0 and pend:
                    emit_pend()
                    accum -= 1.0
            if hold:
                hold -= 1
            if last_of_sp:
                while pend:
                    emit_pend()
                if m + 1 < n:
                    nsp = sum(1 for q in M if q["sp"] == mm["sp"] + 1)
                    if mm["kind"] == "qk":
                        pend = epi_qk(accb) + D2[n2:]
                        rate = max(len(pend) / (nsp - 8), 27.0 / max(1, OPT["qkst"] - 31))
                    elif mm["kind"] == "v":
                        pend = epi_v(accb)
                        pend_tag = "st_qkv"
                        rate = 3.0
                    else:
                        e0 = epi_gu_tile(accb, 0, OPT["pk"] & 2); e1 = epi_gu_tile(accb, 1, OPT["pk"] & 2)
                        pend = e0 + e1 + [f"s_add_u32 s{s_hst}, s{s_hst}, 4096"]
                        rate = 207.0 / (OPT["aend"] - 86)
                        pend_tag = "st_h0"
                    accum = 0.0
                    hold = 2
                else:
                    assert accb == ACC[1]
        assert not bg
        if OPT["vbk"]:
            wait_flags(vm, v_paV, 3)
        else:
            poll(vm, v_paV)
        a(f"s_waitcnt vmcnt({vm.wait_n('k')})")

    main(seq1, copy.deepcopy(vm))
    a("s_branch L_postA")
    a("L_type2:")
    main(seq2, copy.deepcopy(vm))
    a("L_postA:")
    st("T")
    vm = VM()

    vS = 132
    vKF = 204
    vP = 64
    vO = 100
    v_ka, v_va, v_m, v_u = 3, 4, 2, 128
    u = v_u

    HSL = [0, 3, 1, 2] if OPT["hook1"] else list(range(NH))
    def dmaH(c):
        slot = HSL[c % NH] * 16384
        g = [f"s_add_u32 m0, s{s_m0h}, {slot}"]
        if c < 14:
            g.append(f"s_add_u32 s{s_b1}, s{s_hr}, {8192*(c if not OPT['xhit'] else c % 2)}")
            g.append(f"s_sub_u32 s{s_b2}, s{s_b1}, {14*8192}")
            g.append(f"s_min_u32 s{s_b1}, s{s_b1}, s{s_b2}")
        else:
            g.append(f"s_add_u32 s{s_b1}, s{s_nb}, {c-14}")
            g.append(f"s_and_b32 s{s_b1}, s{s_b1}, 3")
            g.append(f"s_lshl_b32 s{s_b1}, s{s_b1}, 13")
            g.append(f"s_add_u32 s{s_b1}, s{s_b1}, {14*8192}")
        g.append(f"s_add_u32 s{s_b1}, s{s_b1}, s{s_hb}")
        for jj in range(2):
            g.append(f"buffer_load_dwordx4 v{v_st}, s[{sWS}:{sWS+3}], s{s_b1} offen offset:{1024*jj} sc1 lds")
        return (g, f"h{c}")

    wq = []
    for c in range(NW - (1 if OPT["w5e"] else 0)):
        wq += dmaW(c)
    if OPT["w5e"]:
        vm.issue("w5")
    cnt = [0]
    def e(ins, every=OPT["wspread"]):
        a(ins)
        cnt[0] += 1
        if cnt[0] % every == 0 and wq:
            emit_group(vm, wq.pop(0))

    vm.issue("poll")
    a(f"s_lshr_b32 s{s_t2}, s{s_w}, 1")
    a(f"s_lshl_b32 s{s_t2}, s{s_t2}, 11")
    a(f"v_add_u32 v{v_ka}, s{s_t2}, v{v_qa}")
    a(f"v_add_u32 v{v_va}, 24576, v{v_ka}")
    a("s_barrier")
    st("BK")
    def vdma():
        a(f"s_mul_i32 s{s_t0}, s{s_w}, 3072")
        a(f"s_add_u32 m0, s{s_t0}, 24576")
        for j in range(3):
            a(f"s_add_u32 s{s_t2}, s{81+j}, {VF - 1024*j}")
            a(f"buffer_load_dwordx4 v{v_st}, s[{sWS}:{sWS+3}], s{s_t2} offen offset:{1024*j} sc1 lds")
            vm.issue("v")
    if OPT["vbk"]:
        OPT["vpos"] = -1
    E0 = epi_gu_tile(ACC[1], 0, OPT["pk"] & 1)
    E1 = epi_gu_tile(ACC[1], 1, OPT["pk"] & 1)
    side = E1[:-1] + [f"v_cmp_le_i32 s[{MK[i]}:{MK[i]+1}], {i}, v{v_d}" for i in range(8)]

    def kread(i):
        b, tt = divmod(i, 2)
        r = vKF + 4 * (i % 8)
        a(f"ds_read_b128 v[{r}:{r+3}], v{v_ka} offset:{b*2048 + tt*256}")
    LA = 6
    per = OPT["per"]
    e1done = [False]
    nf = OPT["wfirst"]
    for i in range(LA):
        kread(i)
    if OPT["vbk"]:
        vdma()
        while nf:
            emit_group(vm, wq.pop(0)); nf -= 1
    for i in range(18):
        if i + LA < 18:
            kread(i + LA)
            a(f"s_waitcnt lgkmcnt({LA})")
        else:
            a(f"s_waitcnt lgkmcnt({17-i})")
        r = vKF + 4 * (i % 8)
        a(f"v_mfma_f32_16x16x32_bf16 v[{vS+4*i}:{vS+4*i+3}], v[{r}:{r+3}], v[{vQ}:{vQ+3}], 0")
        for _ in range(per):
            if side:
                a(side.pop(0))
        if len(side) <= 8 and not e1done[0] and i > OPT["vpos"]:
            e1done[0] = True
            a(E1[-1]); vm.issue("st_h")
        if i == OPT["vpos"]:
            st("preV")
            wait_flags(vm, v_paV, 3)
            a("s_barrier")
            st("fV")
            vdma()
        if i < OPT["vpos"] and i % 2 == 1 and nf:
            emit_group(vm, wq.pop(0)); nf -= 1
    if not e1done[0]:
        a(E1[-1]); vm.issue("st_h")
    st("Sdone")
    a(f"s_cmp_ge_u32 s{s_bd}, 8")
    a("s_cbranch_scc1 L_allvalid")
    for b in range(8):
        a(f"s_cmp_ge_u32 s{s_bd}, {8-b}")
        a("s_cbranch_scc1 L_allvalid")
        for i in range(8):
            a(f"v_mov_b32 v{vS+8*b+i}, 0xf149f2ca")
    a("L_allvalid:")
    def bv():
        st("preBV")
        a(f"s_waitcnt vmcnt({vm.wait_n('st_h', 'v')})")
        a("s_barrier")
        publish(vm, F_H, s_fp)
        st("BV")
    if OPT["bvp"] == 2:
        bv()
    for i in range(8):
        e(f"v_cndmask_b32 v{vS+i}, v{vS+i}, v{vS+64+i}, s[{MK[i]}:{MK[i]+1}]")
    e(f"v_max3_f32 v{v_m}, v{vS+8}, v{vS+9}, v{vS+10}")
    e(f"v_max3_f32 v{u}, v{vS+11}, v{vS+12}, v{vS+13}")
    ks = list(range(14, 64, 2)) + list(range(0, 8, 2))
    tog = 0
    for k in ks:
        d = v_m if tog == 0 else u
        e(f"v_max3_f32 v{d}, v{d}, v{vS+k}, v{vS+k+1}")
        tog ^= 1
    a(f"v_max_f32 v{v_m}, v{v_m}, v{u}")
    a(f"v_mov_b32 v{u}, v{v_m}")
    a(f"v_permlane32_swap_b32 v{v_m}, v{u}")
    a(f"v_max_f32 v{v_m}, v{v_m}, v{u}")
    a(f"v_mov_b32 v{u}, v{v_m}")
    a(f"v_permlane16_swap_b32 v{v_m}, v{u}")
    a(f"v_max_f32 v{v_m}, v{v_m}, v{u}")
    order = [1, 2, 3, 4, 5, 6, 7, 0, 8]
    def softmax_block(b):
        for i in range(0, 8, 2):
            r = vS + 8 * b + i
            e(f"v_pk_add_f32 v[{r}:{r+1}], v[{r}:{r+1}], v[{v_m}:{v_m+1}] op_sel_hi:[1,0] neg_lo:[0,1] neg_hi:[0,1]")
        for i in range(8):
            e(f"v_exp_f32 v{vS+8*b+i}, v{vS+8*b+i}")
        if b == 0:
            for i in range(8):
                e(f"v_cndmask_b32 v{vS+64+i}, 0, v{vS+i}, s[{MK[i]}:{MK[i]+1}]")
            for i in range(8):
                e(f"v_cndmask_b32 v{vS+i}, v{vS+i}, 0, s[{MK[i]}:{MK[i]+1}]")
            for d in range(4):
                e(f"v_cvt_pk_bf16_f32 v{vP+32+d}, v{vS+64+2*d}, v{vS+64+2*d+1}")
        for d in range(4):
            e(f"v_cvt_pk_bf16_f32 v{vP+4*b+d}, v{vS+8*b+2*d}, v{vS+8*b+2*d+1}")
    if OPT["bvp"] == 1:
        bv()
    softmax_block(order[0])
    if OPT["bvp"] == 0:
        bv()
    def vread(i):
        b = order[i // 2]
        tt = i % 2
        r = vKF + 4 * (i % 8)
        a(f"ds_read_b128 v[{r}:{r+3}], v{v_va} offset:{b*2048 + tt*256}")
    for i in range(LA):
        vread(i)
    for bi in range(9):
        b = order[bi]
        H1 = OPT["hook1"]
        if bi == (H1 - 2 if H1 else 4):
            while wq:
                emit_group(vm, wq.pop(0))
            poll(vm, v_paH)
        if bi + 1 < 8:
            softmax_block(order[bi + 1])
        if H1 and bi == H1:
            st("preH")
            a(f"s_cmp_ge_u32 s{s_nb}, 7")
            a("s_cbranch_scc1 L_noC0")
            wait_flags(vm, v_paH, 16)
            a("s_barrier")
            for c in range(2):
                emit_group(vm, dmaH(c))
            a("L_noC0:")
            st("Hiss")
        if bi == 6:
            a("s_waitcnt lgkmcnt(0)")
            if not H1: st("preH")
            a(f"s_cmp_ge_u32 s{s_nb}, 7")
            a("s_cbranch_scc1 L_noC1")
            if not H1:
                wait_flags(vm, v_paH, 16)
            a("s_barrier")
            for c in range(2 if H1 else 0, NH):
                emit_group(vm, dmaH(c))
            a("L_noC1:")
            if not H1: st("Hiss")
        for tt in range(2):
            i = 2 * bi + tt
            if i + LA < 18:
                vread(i + LA)
                a(f"s_waitcnt lgkmcnt({LA})")
            elif bi < 6:
                a(f"s_waitcnt lgkmcnt({17-i})")
            r = vKF + 4 * (i % 8)
            cs = "0" if bi == 0 else f"v[{vO+4*tt}:{vO+4*tt+3}]"
            a(f"v_mfma_f32_16x16x32_bf16 v[{vO+4*tt}:{vO+4*tt+3}], v[{r}:{r+3}], v[{vP+4*b}:{vP+4*b+3}], {cs}")
    a(f"v_mov_b32 v{u}, v{vO+4}")
    a(f"v_mov_b32 v{u+1}, v{vO+4}")
    a(f"v_permlane32_swap_b32 v{u}, v{u+1}")
    a(f"v_mov_b32 v{u}, v{u+1}")
    a(f"v_permlane16_swap_b32 v{u}, v{u+1}")
    a(f"v_rcp_f32 v{u+1}, v{u+1}")
    for i in range(8):
        a(f"v_mul_f32 v{vO+i}, v{vO+i}, v{u+1}")
    for d in range(4):
        a(f"v_cvt_pk_bf16_f32 v{vQ+d}, v{vO+2*d}, v{vO+2*d+1}")
    a(f"v_cmp_gt_u32 s[{s_d0}:{s_d0+1}], 48, v{v_lane}")
    a(f"v_cndmask_b32 v{vQ+2}, 0, v{vQ+2}, s[{s_d0}:{s_d0+1}]")
    a(f"v_cndmask_b32 v{vQ+3}, 0, v{vQ+3}, s[{s_d0}:{s_d0+1}]")
    a(f"buffer_store_dwordx4 v[{vQ}:{vQ+3}], v{v_qa}, s[{sWS}:{sWS+3}], s{s_ost} offen sc1")
    vm.issue("st_o")
    st("Ost")
    a(f"s_cmp_lt_u32 s{s_nb}, 7")
    a("s_cbranch_scc1 L_phaseC")
    def htouch(k):
        if k < 14:
            a(f"s_add_u32 s{s_b1}, s{s_t0}, {128*k*896}")
            a(f"s_sub_u32 s{s_b2}, s{s_b1}, {WD_BYTES}")
            a(f"s_min_u32 s{s_b1}, s{s_b1}, s{s_b2}")
            a(f"buffer_load_dword v{v_td}, v{u}, s[{sWd}:{sWd+3}], s{s_b1} offen")
        else:
            a(f"s_add_u32 s{s_b1}, s{s_t2}, {112*(k-14)*896}")
            a(f"buffer_load_dword v{v_td}, v{u}, s[{sWo}:{sWo+3}], s{s_b1} offen")
    if OPT["help"] & 2:
        a(f"v_mul_u32_u24 v{u}, 896, v{v_lane}")
        a(f"s_cmp_lt_u32 s{s_w}, 7")
        a(f"s_cselect_b32 s{s_d0}, -1, 0")
        a(f"s_mov_b32 s{s_d1}, 0")
        a(f"v_cndmask_b32 v{u}, v{v_e1}, v{u}, s[{s_d0}:{s_d0+1}]")
        a(f"s_and_b32 s{s_t1}, s{s_tb64}, 3")
        a(f"s_lshl_b32 s{s_t0}, s{s_w}, 2")
        a(f"s_lshr_b32 s{s_t0}, 0x{RTAB:x}, s{s_t0}")
        a(f"s_and_b32 s{s_t0}, s{s_t0}, 15")
        a(f"s_mul_i32 s{s_t0}, s{s_t0}, 896")
        a(f"s_add_u32 s{s_t0}, s{s_t0}, s{s_w}")
        a(f"s_lshl_b32 s{s_t0}, s{s_t0}, 7")
        a(f"s_mul_i32 s{s_t2}, s{s_t1}, {32*896}")
        a(f"s_add_u32 s{s_t0}, s{s_t0}, s{s_t2}")
        a(f"s_mul_i32 s{s_t2}, s{s_t1}, {28*896}")
        a(f"s_lshl_b32 s{s_t1}, s{s_w}, 7")
        a(f"s_add_u32 s{s_t2}, s{s_t2}, s{s_t1}")
        htouch(OPT["hk0"])
        a("s_waitcnt vmcnt(1)")
    else:
        a("s_waitcnt vmcnt(0)")
    if OPT["help"] & 4:
        vtmp = VM(); vtmp.issue("poll"); vtmp.issue("a"); vtmp.issue("b")
        a(f"s_mov_b32 s{s_cmt}, s{s_t2}")
        wait_flags(vtmp, v_paH, 16)
        a(f"s_mov_b32 s{s_t2}, s{s_cmt}")
    a("s_barrier")
    publish(VM(), F_O, s_fo)
    if OPT["help"] & 4:
        a(f"v_lshrrev_b32 v{u+1}, 4, v{v_lane}")
        a(f"v_and_b32 v{u+2}, 15, v{v_lane}")
        a(f"v_lshlrev_b32 v{u+1}, 13, v{u+1}")
        a(f"v_lshl_add_u32 v{u+1}, v{u+2}, 7, v{u+1}")
    kk = list(range(OPT["hk0"] + 1, 18)) if OPT["help"] & 2 else []
    hh = list(range(OPT["hh0"], 14, 4)) if OPT["help"] & 4 else []
    while kk or hh:
        if hh:
            h_ = min(hh.pop(0), 10)
            a(f"s_add_u32 s{s_b1}, s{s_hb}, {8192*h_}")
            a(f"buffer_load_dword v{v_td}, v{u+1}, s[{sWS}:{sWS+3}], s{s_b1} offen sc1")
        for _ in range(3):
            if kk:
                htouch(kk.pop(0))
    a("s_branch L_end")
    a("L_phaseC:")

    v_ah, v_aw, v_cxo = 2, 3, 4
    v_awB = 5
    vXr = 16
    if OPT["xre"]:
        vXr = 40
        OPT["xrp"] = -1
    vAcc = 48
    vF = 64
    tt = 20
    a(f"v_add_u32 v{v_paH}, {(F_O-F_H)*2048}, v{v_paH}")
    if OPT["xre"]:
        v_cxo = v_bqk
        a(f"v_lshrrev_b32 v{tt+1}, 5, v{v_lane}")
    else:
        a(f"v_and_b32 v{tt}, 0x13, v{v_lane}")
        a(f"v_bfe_u32 v{tt+1}, v{v_lane}, 2, 1")
        a(f"v_lshl_or_b32 v{tt}, v{tt+1}, 3, v{tt}")
        a(f"v_bfe_u32 v{tt+1}, v{v_lane}, 3, 1")
        a(f"v_lshl_or_b32 v{tt}, v{tt+1}, 2, v{tt}")
        a(f"v_mul_u32_u24 v{v_cxo}, 896, v{tt}")
        a(f"v_lshrrev_b32 v{tt+1}, 5, v{v_lane}")
        a(f"v_lshl_add_u32 v{v_cxo}, v{tt+1}, 4, v{v_cxo}")
    a(f"s_lshl_b32 s{s_t0}, s{s_cmt}, 13")
    a(f"s_lshl_b32 s{s_t1}, s{s_kh}, 12")
    a(f"s_add_u32 s{s_t0}, s{s_t0}, s{s_t1}")
    a(f"v_add_u32 v{v_ah}, s{s_t0}, v{v_st}")
    a(f"v_bfe_u32 v{tt}, v{v_lane}, 2, 2")
    a(f"v_and_b32 v{tt+2}, 3, v{v_lane}")
    a(f"v_bfe_u32 v{tt+3}, v{v_lane}, 4, 1")
    a(f"v_lshrrev_b32 v{tt+4}, 1, v{tt+2}")
    a(f"v_and_b32 v{tt+5}, 1, v{tt+2}")
    a(f"v_lshl_or_b32 v{tt+4}, v{tt+5}, 1, v{tt+4}")
    a(f"v_lshl_add_u32 v{tt+5}, v{tt+1}, 3, v{tt}")
    a(f"v_lshlrev_b32 v{tt+5}, 7, v{tt+5}")
    a(f"v_lshrrev_b32 v{tt+6}, 1, v{tt}")
    a(f"v_xor_b32 v{tt+6}, s{s_nt}, v{tt+6}")
    a(f"v_lshl_add_u32 v{tt+5}, v{tt+6}, 6, v{tt+5}")
    a(f"v_lshl_add_u32 v{tt+5}, v{tt+3}, 5, v{tt+5}")
    a(f"v_lshl_add_u32 v{tt+5}, v{tt+4}, 3, v{tt+5}")
    a(f"s_lshl_b32 s{s_t0}, s{s_kh}, 13")
    a(f"s_add_u32 s{s_t0}, s{s_t0}, {NH*16384}")
    a(f"v_add_u32 v{v_aw}, s{s_t0}, v{tt+5}")
    a(f"v_add_u32 v{v_awB}, 65536, v{v_aw}")
    v_ahB = 7
    a(f"v_add_u32 v{v_ahB}, 65536, v{v_ah}")
    assert NH <= 8 and NW <= 8 and NH + NW <= 10
    NC = 18
    RA = OPT["ra"]
    NS = RA + 1
    def creads(c):
        sh = (HSL[c % NH] % 4) * 16384
        ah = v_ah if HSL[c % NH] < 4 else v_ahB
        sw = (c % NW)
        aw = v_aw if sw < 4 else v_awB
        swo = (sw % 4) * 16384
        base = vF + 32 * (c % NS)
        for i in range(4):
            f = base + 8 * i
            a(f"ds_read_b128 v[{f}:{f+3}], v{ah} offset:{sh + 1024*i}")
            a(f"ds_read_b64_tr_b16 v[{f+4}:{f+5}], v{aw} offset:{swo + 2048*i}")
            a(f"ds_read_b64_tr_b16 v[{f+6}:{f+7}], v{aw} offset:{swo + 2048*i + 512}")
    a(f"s_waitcnt vmcnt({vm.wait_n(*([f'h{k}' for k in range(RA)] + [f'w{k}' for k in range(RA)]))})")
    a("s_barrier")
    st("C0")
    for k in range(RA):
        creads(k)
    PUB_O = OPT["pubo"]
    POLL_O = 14 - NH - 2
    wsched = {}
    nW = 2 * (NC - NW)
    last_it = OPT['wl']
    for q in range(nW):
        k = NW + q // 2
        it = int(q * (last_it + 1) / nW)
        it = max(it, k - NW)
        it = min(it, k - 2 - RA)
        wsched.setdefault(it, []).append((k, q % 2))
    for c in range(NC):
        lgn = 12 * (min(NC, c + RA) - c - 1)
        if c + RA < NC:
            tags = [f"h{c+RA}", f"w{c+RA}"]
            if c == PUB_O:
                tags.append("st_o")
            if c + NH == 14:
                wait_flags(vm, v_paH, 16)
            a(f"s_waitcnt vmcnt({vm.wait_n(*tags)}) lgkmcnt({lgn})")
            a("s_barrier")
            if c in (4, 9, 13):
                st(f"c{c}")
            if not OPT["mf"]:
                creads(c + RA)
            if c == PUB_O:
                publish(vm, F_O, s_fo)
        else:
            a(f"s_waitcnt lgkmcnt({lgn})")
        G = []
        if c + NH < NC:
            G.append(dmaH(c + NH))
        for (k, jj) in wsched.get(c, []):
            G.append(dmaW(k)[jj])
        if c == POLL_O:
            G.append(([f"buffer_load_dwordx2 v[{v_pf}:{v_pf+1}], v{v_paH}, s[{sWS}:{sWS+3}], 0 offen sc1"], "poll"))
        if c == OPT['xrp']:
            G.append(([f"buffer_load_dwordx4 v[{vXr}:{vXr+3}], v{v_cxo}, s[{sX}:{sX+3}], s{s_xo} offen"], "xr"))
        base = vF + 32 * (c % NS)
        if OPT["gf"] and G:
            emit_group(vm, G.pop(0))
        for i in range(4):
            f = base + 8 * i
            cs = "0" if (c == 0 and i == 0) else f"v[{vAcc}:{vAcc+15}]"
            a(f"v_mfma_f32_32x32x16_bf16 v[{vAcc}:{vAcc+15}], v[{f+4}:{f+7}], v[{f}:{f+3}], {cs}")
            if i == 0 and OPT["mf"] and c + RA < NC:
                creads(c + RA)
            elif G:
                emit_group(vm, G.pop(0))
        while G:
            emit_group(vm, G.pop(0))
    st("Cend")
    if not OPT["nob"]:
        a("s_barrier")
    a(f"s_lshl_b32 s{s_t0}, s{s_w}, 11")
    if OPT["nob"]:
        a(f"s_add_u32 s{s_t0}, s{s_t0}, {NH*16384 + (14 % NW)*16384}")
    a(f"v_add_u32 v{tt+1}, s{s_t0}, v{v_st}")
    a(f"v_xor_b32 v{tt+2}, 8192, v{tt+1}")
    a(f"s_cmp_eq_u32 s{s_kh}, 0")
    a("s_cbranch_scc1 L_k0")
    a(f"ds_write_b128 v{tt+1}, v[{vAcc}:{vAcc+3}]")
    a(f"ds_write_b128 v{tt+1}, v[{vAcc+4}:{vAcc+7}] offset:1024")
    for i in range(8):
        a(f"v_mov_b32 v{vAcc+i}, v{vAcc+8+i}")
    a("s_branch L_k1")
    a("L_k0:")
    a(f"ds_write_b128 v{tt+1}, v[{vAcc+8}:{vAcc+11}]")
    a(f"ds_write_b128 v{tt+1}, v[{vAcc+12}:{vAcc+15}] offset:1024")
    a("L_k1:")
    a("s_waitcnt vmcnt(0) lgkmcnt(0)")
    a("s_barrier")
    a(f"ds_read_b128 v[{vF}:{vF+3}], v{tt+2}")
    a(f"ds_read_b128 v[{vF+4}:{vF+7}], v{tt+2} offset:1024")
    for d in range(4):
        a(f"v_lshlrev_b32 v{vF+8+2*d}, 16, v{vXr+d}")
        a(f"v_and_b32 v{vF+9+2*d}, 0xffff0000, v{vXr+d}")
    for i in range(8):
        a(f"v_add_f32 v{vAcc+i}, v{vAcc+i}, v{vF+8+i}")
    a("s_waitcnt lgkmcnt(0)")
    for i in range(8):
        a(f"v_add_f32 v{vAcc+i}, v{vAcc+i}, v{vF+i}")
    for d in range(4):
        a(f"v_cvt_pk_bf16_f32 v{vXr+d}, v{vAcc+2*d}, v{vAcc+2*d+1}")
    a(f"buffer_store_dwordx4 v[{vXr}:{vXr+3}], v{v_cxo}, s[{sO}:{sO+3}], s{s_xo} offen {['', 'sc1', 'nt', 'sc0 sc1'][OPT['osc']]}")
    if STAMP:
        a("s_waitcnt vmcnt(0)")
        st("end", wait=True); st("rt", rt=True, wait=True)
        st.finish()
        if DBGST:
            a("s_load_dwordx2 s[4:5], s[82:83], 64")
            a(f"v_sub_u32 v{v_stamp}, v{v_stamp}, v{v_non}")
            a(f"v_lshlrev_b32 v{tt}, 2, v{v_lane}")
            a(f"v_add_u32 v{tt}, 8, v{tt}")
            a("s_waitcnt lgkmcnt(0)")
            A(srd(8, 4, 5, 64))
            a(f"s_lshl3_add_u32 s3, s2, s{s_w}")
            a(f"s_cmp_lg_u32 s3, {37*8+4}")
            a("s_cbranch_scc1 L_end")
            a(f"buffer_store_dword v{v_stamp}, v{tt}, s[8:11], 0 offen")
            a("s_branch L_end")
        a(f"s_lshl3_add_u32 s3, s2, s{s_w}")
        a("s_lshl_b32 s3, s3, 7")
        a(f"s_add_u32 s3, s3, {STAMP_OFF}")
        a(f"v_lshlrev_b32 v{tt}, 2, v{v_lane}")
        a(f"v_cmp_gt_u32 vcc, {st.n}, v{v_lane}")
        a("s_and_saveexec_b64 s[4:5], vcc")
        a(f"buffer_store_dword v{v_stamp}, v{tt}, s[{sWS}:{sWS+3}], s3 offen")
        a.raw("; STAMPS " + " ".join(st.names))
        assert st.n <= 32
    a("L_end:")
    a("s_endpgm")
    return a


HEADER = """; Fused persistent kernel: LN + QKV/gate/up GEMM -> sliding-window attention -> [H|O] @ [w_down; wo] + x
;   0 A_x, 8 A_wqkv, 16 A_wo, 24 B_x, 32 B_w_gate, 40 B_w_up, 48 B_w_down, 56 d_out, 64 d_debug, 72 d_ws
; @launch grid=(256,1,1) block=(512,1,1) lds=163840
.amdgcn_target "amdgcn-amd-amdhsa--gfx950"
"""

def build():
    a = gen()
    print("instrs", a.nins, "nops", a.nnop, file=sys.stderr)
    return HEADER + a.text() + kernel_desc(NAME, 256)

if __name__ == "__main__":
    path = sys.argv[1] if len(sys.argv) > 1 else "parallel_sum__sliding_block__geglu_ffn__prompt.s"
    for arg in sys.argv[2:]:
        if arg == "stamp":
            STAMP = True
        elif arg == "dbgst":
            STAMP = True; DBGST = True
        else:
            k, v = arg.split("=")
            assert k in OPT, k
            OPT[k] = int(v)
    open(path, "w").write(build())
```

```python
import sys, struct, math, copy, os
sys.path.insert(0, "dev")
from asmlib import Asm, kernel_header, kernel_desc

NAME = "parallel_sum__sliding_block__geglu_ffn__prompt_kernel"

def f2u(f):
    return struct.unpack("<I", struct.pack("<f", f))[0]

QF = 0
KF = 2 << 20
VF = 4 << 20
FL = 6 << 20
HF = 8 << 20
WS_BYTES = 268435456
NKS = 144
F_QK, F_H, F_O, F_V = 0, 1, 2, 3
OOB = 0x7FFFFF00

X_BYTES = 2048 * 896
WQKV_BYTES = 448 * 2688
WG_BYTES = 448 * 3584
WD_BYTES = 1792 * 896
WO_BYTES = 448 * 896

LOG2E = 1.4426950408889634
QSCALE = (28 ** -0.5) * LOG2E
GC1 = -2.0 * 0.7978845608028654 * LOG2E
GC2 = GC1 * 0.044715

STAMP = False
DBGST = False
DBGN = ['t0','setup','x00','lnend','B1','m28','m84','T','Sdone','BV','Ost','C0','Cend','end']
STAMP_OFF = 200 << 20
CST = [int(x) for x in os.environ.get('CST', '4,9,13').split(',')]
STM = [int(x) for x in os.environ.get('STM', '11,28,56,84,112').split(',')]
OPT = dict(NH=4, NW=6, rotc=1, b2=10, bgp=1, qkst=44, pubm=112, pk=1, w2s=60, l2n=0, mprio=1, rda=0, b2a=4, d2n=60, kqm=122, aend=138, per=11, vbk=128, bvp=1, hook1=5, wl=13, xrp=14, nob=1, xre=104, w5e=108, rmod=1, rmul=2, hh0=4, polo=7, polf=1, xhit=0, help=3, hk0=8, tlb=0, osc=0, we=4, dcl=0, ctouch=1, ra=1, mf=1, gf=1, l2s=64, l2d=9,
           wfirst=2, wspread=12, pubo=1, p1=1, slp=4, hst0=104, hst1=122, qkgap=0, d7=0, d8=0, d9=0,
           c1e=3, xr=3, xf=9, qkn=1, hn=1, hgap=0, tq=7, lnm=1, dmae=7, xil=1, pubqk=5, kq=8, kqlead=12, vpos=5)


class Cnt:
    def __init__(self, cap):
        self.ops = []
        self.cap = cap
    def issue(self, tag):
        self.ops.append(tag)
    def wait_n(self, *tags):
        idx = max(i for i, t in enumerate(self.ops) if t in tags)
        n = len(self.ops) - 1 - idx
        return min(n, self.cap)
    def has(self, tag):
        return tag in self.ops

def VM():
    return Cnt(63)


class Stamps:
    def __init__(self, a, vreg, base=98):
        self.a = a; self.base = base; self.n = 0; self.names = []; self.vreg = vreg
    def _flush_prev(self):
        if self.n >= 1:
            k = self.n - 1
            self.a(f"v_writelane_b32 v{self.vreg}, s{self.base + 2*(k % 2)}, {k}")
    def __call__(self, name="", rt=False, wait=False):
        if not STAMP: return
        p = self.base + 2 * (self.n % 2)
        if DBGST and name not in DBGN: return
        self.a(f"{'s_memrealtime' if (rt or DBGST or os.environ.get('RTST')) else 's_memtime'} s[{p}:{p+1}]")
        if wait:
            self.a("s_waitcnt lgkmcnt(0)")
        self._flush_prev()
        self.n += 1
        self.names.append(name)
    def finish(self):
        self.a("s_waitcnt lgkmcnt(0)")
        self._flush_prev()


def srd(d, lo, hi, nbytes):
    return [f"s_mov_b32 s{d}, s{lo}", f"s_and_b32 s{d+1}, s{hi}, 0xffff",
            f"s_mov_b32 s{d+2}, {nbytes}", f"s_mov_b32 s{d+3}, 0x00020000"]

SLOT = 28672
XBASE = 49152


def gen():
    a = Asm()
    a.raw(kernel_header(NAME))
    def A(lst):
        for x in lst:
            a(x)
    NH, NW = OPT["NH"], OPT["NW"]
    RTAB = 0
    for nb_ in range(8):
        RTAB |= ((OPT["rmul"] * (nb_ % OPT["rmod"])) % 14) << (4 * nb_)
    sX, sWq, sWg, sWS, sWd, sWo, sO, sDbg = 36, 40, 44, 48, 52, 56, 60, 64
    s_w, s_tb, s_cb, s_g, s_mt = 68, 69, 70, 71, 72
    s_t0, s_t1, s_t2 = 74, 75, 76
    s_hst = 77
    s_n0 = 78
    s_q0, s_q3, s_v0, s_v3, s_g0, s_g3 = 4, 5, 6, 7, 8, 9
    s_m0, s_m3, s_scale, s_tg, s_qkst, s_vst = 10, 11, 12, 13, 14, 15
    s_wr = 3
    s_b1 = 73
    s_b2 = 0
    s_d0, s_d1 = 96, 97
    s_one = 16
    s_h, s_qb, s_fp, s_tch = 18, 19, 20, 21
    s_mq0, s_mq3 = 22, 23
    sTch = 24
    s_xr, s_xr1, s_tr, s_tqk = 80, 81, 82, 83
    s_kv, s_par, s_bd, s_ost = 84, 85, 86, 87
    s_tb64, s_nb, s_kh, s_cmt, s_nt = 88, 89, 90, 91, 92
    s_hb, s_hr, s_wb = 93, 94, 95
    s_wob, s_m0h, s_m0w, s_xo = 28, 29, 30, 31
    s_fo = 80
    MK = [24, 26, 16, 64, 32, 34, 40, 42]
    vX = 128
    ACC = [64, 96]
    vW = 48
    vT = 16
    v_lane, v_dq, v_dg, v_rdA, v_rdB, v_st, v_msk = 1, 2, 3, 4, 5, 6, 7
    v_bqk, v_bg0, v_bg1 = 9, 11, 12
    v_c1, v_c2, v_k1 = 8, 10, 14
    v_stk = 13
    v_stamp = 15
    v_xa = 32
    v_xw = 40
    v_xo = 44
    v_dv, v_dvh, v_bv0, v_bv1 = 40, 41, 42, 43
    v_tg, v_tq = 46, 47
    v_dw, v_d = 44, 45
    v_paH = 46
    v_paV = 47
    vQ = 240
    v_qa = 244
    v_one = 245
    v_e0, v_td = 246, 247
    v_non = 248
    v_e1, v_zero = 250, 251
    v_fa = 252
    v_pa = 253
    v_pf = 254
    t = vT

    st = Stamps(a, v_stamp)
    a("s_cmp_ge_u32 s2, 256")
    a("s_cbranch_scc1 L_end")
    st("rt", rt=True); st("t0", wait=True)
    if DBGST:
        a("s_mov_b64 s[82:83], s[0:1]")
    a("s_load_dwordx16 s[16:31], s[0:1], 0")
    a("s_load_dwordx4 s[32:35], s[0:1], 64")
    a(f"s_memrealtime s[{s_n0}:{s_n0+1}]")
    if OPT["ctouch"]:
        a(f"s_getpc_b64 s[{s_d0}:{s_d0+1}]")
        a(f"s_and_b32 s{s_t0}, s2, 0xf8")
        a(f"v_add_lshl_u32 v{t+10}, v0, s{s_t0}, 7")
        a(f"v_min_u32 v{t+10}, 27000, v{t+10}")
        a(f"v_cmp_gt_u32 vcc, 8, v0")
        a(f"s_and_saveexec_b64 s[{s_t0}:{s_t0+1}], vcc")
        a("s_cbranch_execz L_noct")
        a(f"global_load_dword v{v_td}, v{t+10}, s[{s_d0}:{s_d0+1}]")
        a("L_noct:")
        a(f"s_mov_b64 exec, -1")
    a(f"v_and_b32 v{v_lane}, 63, v0")
    a(f"v_lshrrev_b32 v{t}, 6, v0")
    a(f"v_readfirstlane_b32 s{s_w}, v{t}")
    a(f"s_and_b32 s{s_tb}, s2, 3")
    a(f"s_bfe_u32 s{s_t2}, s2, 0x20003")
    a(f"s_lshl2_add_u32 s{s_tb}, s{s_tb}, s{s_t2}")
    a(f"s_bfe_u32 s{s_cb}, s2, 0x10002")
    a(f"s_lshr_b32 s{s_t1}, s2, 5")
    a(f"s_lshl3_add_u32 s{s_cb}, s{s_cb}, s{s_t1}")
    a(f"s_lshr_b32 s{s_g}, s{s_w}, 2")
    a(f"s_and_b32 s{s_mt}, s{s_w}, 3")
    if OPT["we"] == 4:
        a(f"s_and_b32 s{s_t0}, s{s_cb}, 1")
        a(f"s_and_b32 s{s_t1}, s{s_cb}, 2")
        a(f"s_lshl2_add_u32 s{s_t0}, s{s_t1}, s{s_t0}")
    elif OPT["we"] == 2:
        a(f"s_and_b32 s{s_t0}, s{s_cb}, 1")
        a(f"s_and_b32 s{s_t1}, s{s_cb}, 6")
        a(f"s_lshl1_add_u32 s{s_t0}, s{s_t1}, s{s_t0}")
    else:
        a(f"s_and_b32 s{s_t0}, s{s_cb}, 7")
        a(f"s_lshl_b32 s{s_t0}, s{s_t0}, 1")
    a(f"s_lshl_b32 s{s_wr}, s{s_w}, 1")
    a(f"s_xor_b32 s{s_wr}, s{s_wr}, s{s_t0}")
    a(f"v_lshrrev_b32 v{t}, 3, v{v_lane}")
    a(f"v_and_b32 v{t+1}, 7, v{v_lane}")
    a(f"v_mul_u32_u24 v{v_xo}, 896, v{t}")
    a(f"v_lshl_add_u32 v{v_xo}, v{t+1}, 4, v{v_xo}")
    a(f"s_lshl4_add_u32 s{s_t0}, s{s_tb}, s{s_wr}")
    a(f"s_mul_i32 s{s_xr}, s{s_t0}, {8*896}")
    a(f"s_xor_b32 s{s_t0}, s{s_t0}, 1")
    a(f"s_mul_i32 s{s_xr1}, s{s_t0}, {8*896}")
    a(f"v_mov_b32 v{v_e1}, {OOB}")
    a("s_waitcnt lgkmcnt(0)")
    A(srd(sX, 16, 17, X_BYTES))
    vm = VM()
    def raw(e, i):
        return ACC[0] + 28 * e + 4 * i
    def xload(e, j, track=True):
        r = raw(e, j)
        a(f"buffer_load_dwordx4 v[{r}:{r+3}], v{v_xo}, s[{sX}:{sX+3}], s{s_xr1 if e else s_xr} offen offset:{128*j}")
        if track:
            vm.issue(f"x{e}{j}")
    def gtouch(sr, nl, per_wg8, vt, vmx=None):
        if per_wg8:
            a(f"s_lshl3_add_u32 s{s_t0}, s2, s{s_w}")
        else:
            a(f"s_lshl2_add_u32 s{s_t0}, s2, s{s_mt}")
        a(f"s_mul_i32 s{s_t0}, s{s_t0}, {nl}")
        a(f"v_min_u32 v{vt}, {nl-1}, v{v_lane}")
        a(f"v_add_lshl_u32 v{vt}, v{vt}, s{s_t0}, 7")
        a(f"s_mov_b64 exec, {(1 << nl) - 1}")
        a(f"buffer_load_dword v{v_td}, v{vt}, s[{sr}:{sr+3}], 0 offen")
        a(f"s_mov_b64 exec, -1")
        if vmx is not None:
            vmx.issue("t")
    XF = OPT["xf"]
    xorder = [(0, j) for j in range(7)] + [(1, j) for j in range(7)]
    A(srd(sWq, 18, 19, WQKV_BYTES))
    a(f"s_cmp_ge_u32 s{s_w}, {OPT['we']}")
    a("s_cbranch_scc1 L_x0skip0")
    for k, (e, j) in enumerate(xorder[:XF]):
        xload(e, j, False)
    a("L_x0skip0:")
    a(f"s_cmp_lg_u32 s{s_g}, 0")
    a("s_cbranch_scc1 L_x0skip")
    gtouch(sWq, 10, False, t + 10)
    if OPT["tlb"]:
        a(f"s_cmp_lg_u32 s{s_w}, 3")
        a("s_cbranch_scc1 L_x0skip")
        a(f"v_lshlrev_b32 v{t+10}, {OPT['tlb']}, v{v_lane}")
        a(f"s_mov_b64 exec, {(1 << min(32, (18 << 20) >> OPT['tlb'])) - 1}")
        a(f"global_load_dword v{v_td}, v{t+10}, s[34:35] sc1")
        a(f"s_mov_b64 exec, 1")
        for p in (20, 24, 26, 28, 30, 32):
            a(f"global_load_dword v{v_td}, v{t+10}, s[{p}:{p+1}] sc1")
        a(f"s_mov_b64 exec, -1")
    a("L_x0skip:")
    a(f"s_cmp_eq_u32 s{s_g}, 0")
    a(f"s_cselect_b32 s{sWg}, s24, s26")
    a(f"s_cselect_b32 s{sWg+1}, s25, s27")
    a(f"s_and_b32 s{sWg+1}, s{sWg+1}, 0xffff")
    a(f"s_mov_b32 s{sWg+2}, {WG_BYTES}")
    a(f"s_mov_b32 s{sWg+3}, 0x00020000")
    A(srd(sDbg, 32, 33, 256))
    a(f"s_or_b32 s{s_n0}, s{s_n0}, 1")
    a(f"v_mov_b32 v{v_non}, s{s_n0}")
    a(f"v_mov_b32 v{v_non+1}, s{s_n0+1}")
    a(f"v_cmp_eq_u32 s[{s_d0}:{s_d0+1}], 0, v0")
    a(f"v_cndmask_b32 v{v_fa}, v{v_e1}, 0, s[{s_d0}:{s_d0+1}]")
    a(f"s_cmp_eq_u32 s2, 0")
    a(f"s_cselect_b64 s[{s_d0}:{s_d0+1}], s[{s_d0}:{s_d0+1}], 0")
    a(f"v_cndmask_b32 v{v_e0}, v{v_e1}, 0, s[{s_d0}:{s_d0+1}]")
    a(f"v_mov_b32 v{v_zero}, 0")
    a(f"v_bfe_u32 v{t+2}, v{v_lane}, 4, 1")
    a(f"v_lshlrev_b32 v{t+3}, 2, v{t+2}")
    a(f"v_xor_b32 v{t+3}, v{t+3}, v{t+1}")
    a(f"v_mul_u32_u24 v{v_dq}, 2688, v{t}")
    a(f"v_lshl_add_u32 v{v_dq}, v{t+3}, 4, v{v_dq}")
    a(f"v_lshlrev_b32 v{t+3}, 1, v{t+2}")
    a(f"v_xor_b32 v{t+3}, v{t+3}, v{t+1}")
    a(f"s_lshl_b32 s{s_t1}, s{s_g}, 2")
    a(f"v_xor_b32 v{t+3}, s{s_t1}, v{t+3}")
    a(f"v_mul_u32_u24 v{v_dg}, 3584, v{t}")
    a(f"v_lshl_add_u32 v{v_dg}, v{t+3}, 4, v{v_dg}")
    a(f"s_lshl_b32 s{s_t0}, s{s_wr}, 3")
    for e in range(2):
        a(f"v_add_u32 v{t+2}, s{s_t0}, v{t}")
        if e:
            a(f"v_xor_b32 v{t+2}, 8, v{t+2}")
        a(f"v_bfe_u32 v{t+3}, v{t+2}, 1, 3")
        a(f"v_xor_b32 v{t+3}, v{t+3}, v{t+1}")
        a(f"v_lshlrev_b32 v{t+2}, 7, v{t+2}")
        a(f"v_lshl_add_u32 v{t+2}, v{t+3}, 4, v{t+2}")
        a(f"v_add_u32 v{v_xw+e}, {XBASE}, v{t+2}")
        a(f"v_add_u32 v{v_xw+2+e}, {XBASE+65536}, v{t+2}")
    a(f"s_mul_i32 s{s_g0}, s{s_mt}, {8*3584}")
    a(f"s_mul_i32 s{s_g3}, s{s_mt}, {4*3584}")
    a(f"s_add_u32 s{s_g3}, s{s_g3}, {96*3584}")
    a(f"s_mul_i32 s{s_q0}, s{s_w}, {8*2688}")
    a(f"s_mul_i32 s{s_v0}, s{s_w}, {4*2688}")
    a(f"s_add_u32 s{s_q3}, s{s_v0}, {128*2688}")
    a(f"s_lshr_b32 s{s_t0}, s{s_cb}, 2")
    a(f"s_mul_i32 s{s_t1}, s{s_t0}, 224")
    a(f"s_add_u32 s{s_t1}, s{s_t1}, {56*32}")
    a(f"s_mul_i32 s{s_v3}, s{s_w}, {2*2688}")
    a(f"s_add_u32 s{s_v0}, s{s_v0}, s{s_t1}")
    a(f"s_add_u32 s{s_v3}, s{s_v3}, s{s_t1}")
    a(f"s_add_u32 s{s_v3}, s{s_v3}, {96*2688}")
    a(f"s_mul_i32 s{s_t1}, s{s_cb}, 112")
    a(f"s_add_u32 s{s_q0}, s{s_q0}, s{s_t1}")
    a(f"s_add_u32 s{s_q3}, s{s_q3}, s{s_t1}")
    a(f"s_mul_i32 s{s_t1}, s{s_t0}, 448")
    a(f"s_and_b32 s{s_t0}, s{s_cb}, 3")
    a(f"s_lshl_b32 s{s_hst}, s{s_t0}, 7")
    a(f"s_add_u32 s{s_t1}, s{s_t1}, s{s_hst}")
    a(f"s_lshl1_add_u32 s{s_g0}, s{s_t1}, s{s_g0}")
    a(f"s_lshl1_add_u32 s{s_g3}, s{s_t1}, s{s_g3}")
    a(f"s_lshl_b32 s{s_hst}, s{s_t1}, 6")
    a(f"s_mul_i32 s{s_m0}, s{s_g}, {112*128}")
    a(f"s_lshl_b32 s{s_t1}, s{s_mt}, 9")
    a(f"s_add_u32 s{s_m3}, s{s_m0}, s{s_t1}")
    a(f"s_add_u32 s{s_m3}, s{s_m3}, {96*128}")
    a(f"s_lshl1_add_u32 s{s_m0}, s{s_t1}, s{s_m0}")
    a(f"s_lshl_b32 s{s_mq0}, s{s_w}, 10")
    a(f"s_lshl_b32 s{s_mq3}, s{s_w}, 9")
    a(f"s_add_u32 s{s_mq3}, s{s_mq3}, {128*128}")
    a(f"v_bfe_u32 v{t}, v{v_lane}, 2, 2")
    a(f"v_and_b32 v{t+1}, 3, v{v_lane}")
    a(f"v_bfe_u32 v{t+2}, v{v_lane}, 4, 1")
    a(f"v_lshrrev_b32 v{t+3}, 5, v{v_lane}")
    a(f"v_lshrrev_b32 v{t+4}, 1, v{t+1}")
    a(f"v_and_b32 v{t+5}, 1, v{t+1}")
    a(f"v_lshl_or_b32 v{t+4}, v{t+5}, 1, v{t+4}")
    a(f"v_lshl_add_u32 v{t+5}, v{t+3}, 3, v{t}")
    a(f"v_lshlrev_b32 v{t+5}, 7, v{t+5}")
    a(f"v_lshrrev_b32 v{t+6}, 1, v{t}")
    a(f"s_mul_i32 s{s_t0}, s{s_g}, 56")
    a(f"v_lshlrev_b32 v{t+7}, 5, v{t+2}")
    a(f"v_lshl_add_u32 v{t+7}, v{t+4}, 3, v{t+7}")
    a(f"v_add_u32 v{t+7}, s{s_t0}, v{t+7}")
    a(f"v_lshlrev_b32 v{t+8}, 6, v{t+6}")
    a(f"v_xor_b32 v{t+7}, v{t+7}, v{t+8}")
    a(f"v_add_u32 v{v_bqk}, v{t+7}, v{t+5}")
    a(f"v_lshl_or_b32 v{t+7}, v{t+2}, 1, v{t+6}")
    a(f"s_lshl_b32 s{s_t0}, s{s_g}, 1")
    a(f"v_xor_b32 v{t+7}, s{s_t0}, v{t+7}")
    a(f"v_mul_u32_u24 v{t+8}, 14336, v{t+2}")
    a(f"v_add_u32 v{t+8}, v{t+8}, v{t+5}")
    a(f"v_lshl_add_u32 v{t+8}, v{t+4}, 3, v{t+8}")
    a(f"v_lshl_add_u32 v{v_bg0}, v{t+7}, 5, v{t+8}")
    a(f"v_xor_b32 v{v_bg1}, 32, v{v_bg0}")
    a(f"v_and_b32 v{t}, 0x13, v{v_lane}")
    a(f"v_bfe_u32 v{t+1}, v{v_lane}, 2, 1")
    a(f"v_lshl_or_b32 v{t}, v{t+1}, 3, v{t}")
    a(f"v_bfe_u32 v{t+1}, v{v_lane}, 3, 1")
    a(f"v_lshl_or_b32 v{t}, v{t+1}, 2, v{t}")
    a(f"s_lshl_b32 s{s_t0}, s{s_mt}, 5")
    a(f"v_add_u32 v{t}, s{s_t0}, v{t}")
    a(f"v_bfe_u32 v{t+1}, v{t}, 1, 3")
    a(f"v_xor_b32 v{t+1}, v{t+1}, v{t+3}")
    a(f"v_lshlrev_b32 v{t}, 7, v{t}")
    a(f"v_lshl_add_u32 v{t}, v{t+1}, 4, v{t}")
    a(f"v_add_u32 v{v_xa}, {XBASE}, v{t}")
    for s2 in range(1, 4):
        a(f"v_xor_b32 v{v_xa+s2}, {32*s2}, v{v_xa}")
    for s2 in range(4):
        a(f"v_add_u32 v{v_xa+4+s2}, 65536, v{v_xa+s2}")

    def dmaA(chunk, slot, tag):
        kind, idx, part = chunk
        G = []
        for jj in range(4):
            g = []
            rowb = 128
            m3x = 0
            if kind == "qk":
                b0, b3 = s_q0, s_q3
                stride = 2688
                off = 224 * part * stride
                sr, vo = sWq, v_dq
                rows = [0, 64, None, 160][jj]
                m0r, m3r = s_mq0, s_mq3
            elif kind == "v":
                b0, b3 = s_v0, s_v3
                stride = 2688
                off = 112 * part * stride
                rows = [0, 32, 64, None][jj]
                sr, vo = sWq, (v_dvh if rows is None else v_dv)
                m0r, m3r = s_mq0, s_mq3
                rowb = 256
                m3x = 8192
            else:
                b0, b3 = s_g0, s_g3
                stride = 3584
                off = 112 * part * stride + 128 * idx
                sr, vo = sWg, v_dg
                rows = [0, 32, 64, None][jj]
                m0r, m3r = s_m0, s_m3
            half = rows is None
            if not half:
                g.append(f"s_add_u32 m0, s{m0r}, {slot*SLOT + rows*rowb}")
                g.append(f"s_add_u32 s{s_b1}, s{b0}, {off + rows*stride}")
            else:
                g.append(f"s_add_u32 m0, s{m3r}, {slot*SLOT + m3x}")
                g.append(f"s_add_u32 s{s_b1}, s{b3}, {off}")
                g.append("s_mov_b32 exec_hi, 0")
            g.append(f"buffer_load_dwordx4 v{vo}, s[{sr}:{sr+3}], s{s_b1} offen lds")
            if half:
                g.append("s_mov_b32 exec_hi, -1")
            G.append((g, tag))
        return G

    def emit_group(vm, grp):
        g, tag = grp
        for ins in g:
            a(ins)
            if ins.startswith("buffer_"):
                vm.issue(tag)

    seq1 = [("qk", 0, 0), ("qk", 0, 1)] + [("gu", 0, p) for p in range(4)] + [("gu", 1, p) for p in range(4)]
    seq2 = [("qk", 0, 0), ("qk", 0, 1)] + [("v", 0, p) for p in range(4)] + [("gu", 0, p) for p in range(4)]
    c1groups = dmaA(seq1[1], 1, "c1")
    early = dmaA(seq1[0], 0, "c0") + c1groups[:OPT["c1e"]]
    c1b = (c1groups[3][0], "c1b")
    def deferred(is2):
        D = []
        S = D.append
        tt = vT
        d0, d1 = s_d0, s_d1
        if is2:
            S(f"v_lshrrev_b32 v{tt}, 4, v{v_lane}")
            S(f"v_and_b32 v{tt+1}, 15, v{v_lane}")
            S(f"v_mul_u32_u24 v{tt+2}, 2688, v{tt}")
            S(f"v_lshlrev_b32 v{tt+3}, 2, v{tt}")
            S(f"v_xor_b32 v{tt+3}, v{tt+3}, v{tt+1}")
            S(f"v_lshl_add_u32 v{v_dv}, v{tt+3}, 4, v{tt+2}")
            S(f"s_and_b32 s{d0}, s{s_w}, 1")
            S(f"s_lshl_b32 s{d0}, s{d0}, 7")
            S(f"v_lshlrev_b32 v{tt+3}, 4, v{tt+3}")
            S(f"v_xor_b32 v{tt+3}, s{d0}, v{tt+3}")
            S(f"v_add_u32 v{v_dvh}, v{tt+3}, v{tt+2}")
            S(f"v_bfe_u32 v{tt}, v{v_lane}, 2, 2")
            S(f"v_and_b32 v{tt+1}, 3, v{v_lane}")
            S(f"v_bfe_u32 v{tt+2}, v{v_lane}, 4, 1")
            S(f"v_lshrrev_b32 v{tt+3}, 5, v{v_lane}")
            S(f"v_lshl_add_u32 v{tt+3}, v{tt+3}, 3, v{tt}")
            S(f"v_lshlrev_b32 v{tt+3}, 8, v{tt+3}")
            S(f"v_lshlrev_b32 v{tt+1}, 4, v{tt+1}")
            S(f"v_lshl_add_u32 v{tt+1}, v{tt+2}, 3, v{tt+1}")
            S(f"s_mul_i32 s{d0}, s{s_g}, 112")
            S(f"v_add_u32 v{tt+1}, s{d0}, v{tt+1}")
            S(f"v_lshlrev_b32 v{tt}, 6, v{tt}")
            S(f"v_xor_b32 v{tt+2}, v{tt+1}, v{tt}")
            S(f"v_add_u32 v{v_bv0}, v{tt+2}, v{tt+3}")
            S(f"v_add_u32 v{tt+1}, 56, v{tt+1}")
            S(f"v_xor_b32 v{tt+2}, v{tt+1}, v{tt}")
            S(f"v_add_u32 v{v_bv1}, v{tt+2}, v{tt+3}")
        return D

    def deferred_common():
        D = []
        S = D.append
        tt = vT
        d0, d1 = s_d0, s_d1
        is2 = True
        D += srd(sWS, 34, 35, WS_BYTES) + srd(sWd, 28, 29, WD_BYTES) + srd(sWo, 20, 21, WO_BYTES) + srd(sO, 30, 31, X_BYTES)
        S(f"s_cmp_lt_u32 s{s_cb}, 8\ns_cselect_b32 s{s_scale}, 0x{f2u(QSCALE):08x}, 1.0")
        S(f"s_lshl1_add_u32 s{s_qkst}, s{s_cb}, s{s_g}")
        S(f"s_lshl_b32 s{s_qkst}, s{s_qkst}, 17")
        S(f"s_lshl2_add_u32 s{d0}, s{s_tb}, s{s_mt}")
        S(f"s_mul_i32 s{d1}, s{d0}, {NKS*1024}")
        S(f"s_add_u32 s{s_hst}, s{s_hst}, s{d1}")
        S(f"s_lshl_b32 s{d1}, s{s_g}, 11")
        S(f"s_add_u32 s{s_hst}, s{s_hst}, s{d1}")
        S(f"s_add_u32 s{s_hst}, s{s_hst}, {HF}")
        S(f"s_lshl_b32 s{d0}, s{d0}, 11")
        S(f"s_add_u32 s{s_qkst}, s{s_qkst}, s{d0}")
        if is2:
            S(f"s_and_b32 s{s_vst}, s{s_cb}, 12")
            S(f"s_lshl1_add_u32 s{s_vst}, s{s_g}, s{s_vst}")
            S(f"s_lshl_b32 s{s_vst}, s{s_vst}, 17")
            S(f"s_add_u32 s{s_vst}, s{s_vst}, s{d0}")
            S(f"s_add_u32 s{s_vst}, s{s_vst}, {VF}")
            S(f"v_and_b32 v{tt}, 31, v{v_lane}")
            S(f"v_cmp_eq_u32 s[{s_one}:{s_one+1}], 28, v{tt}")
            S(f"v_mov_b32 v{v_one}, 0x3f803f80")
        S(f"s_and_b32 s{s_wr}, s{s_tb}, 3")
        S(f"v_mov_b32 v{v_c1}, 0x{f2u(GC1):08x}")
        S(f"v_mov_b32 v{v_c2}, 0x{f2u(GC2):08x}")
        S(f"v_mov_b32 v{v_k1}, 1.0")
        S(f"v_lshlrev_b32 v{v_st}, 4, v{v_lane}")
        S(f"v_bfe_u32 v{tt}, v{v_lane}, 3, 1")
        S(f"v_lshlrev_b32 v{tt}, 4, v{tt}")
        S(f"v_bfe_u32 v{tt+1}, v{v_lane}, 4, 1")
        S(f"v_lshl_or_b32 v{tt}, v{tt+1}, 3, v{tt}")
        S(f"v_and_b32 v{tt+1}, 0x27, v{v_lane}")
        S(f"v_or_b32 v{tt}, v{tt}, v{tt+1}")
        S(f"v_lshlrev_b32 v{v_stk}, 4, v{tt}")
        S(f"s_cmp_lt_u32 s{s_cb}, 8\ns_cselect_b64 s[{d0}:{d0+1}], -1, 0")
        S(f"v_cndmask_b32 v{v_stk}, v{v_stk}, v{v_st}, s[{d0}:{d0+1}]")
        S(f"v_cmp_gt_u32 s[{d0}:{d0+1}], 32, v{v_lane}")
        S(f"v_cndmask_b32 v{v_msk}, 0, -1, s[{d0}:{d0+1}]")
        return D

    if not OPT["dcl"]:
        for x in deferred_common():
            a(x)
    st("setup")

    F = vX
    a(f"s_cmp_lt_u32 s{s_w}, {OPT['we']}")
    a("s_cbranch_scc1 L_x0skip2")
    for (e, j) in xorder[:XF]:
        xload(e, j, False)
    a("L_x0skip2:")
    for (e, j) in xorder[:XF]:
        vm.issue(f"x{e}{j}")
    if OPT["dcl"]:
        for x in deferred_common():
            a(x)
    xrest = list(xorder[XF:])
    if not OPT["xil"]:
        while xrest:
            xload(*xrest.pop(0))
    def qdma(i0_, i1_, lab):
        a(f"s_cmp_lg_u32 s{s_g}, 0")
        a(f"s_cbranch_scc1 L_nodma{lab}")
        for i in range(i0_, i1_):
            a(f"s_add_u32 m0, s{s_mq0}, {32*i*128}")
            a(f"s_add_u32 s{s_b1}, s{s_q0}, {32*i*2688}")
            a(f"buffer_load_dwordx4 v{v_dq}, s[{sWq}:{sWq+3}], s{s_b1} offen lds")
            vm.issue("c0" if i < 7 else "c1")
        a(f"L_nodma{lab}:")
    if OPT["lnm"]:
        MF = "v_mfma_f32_4x4x4_16b_bf16"
        vOnes, vM = t, t + 2
        vAh, vAl, vB = t + 4, t + 6, t + 8
        S_, Q_, R_, U_ = t + 12, t + 13, t + 14, t + 15
        SA = [F, F + 4]
        QA = [F + 8, F + 12]
        D0 = F + 16
        sJ = [4, 6, 8]
        a(f"v_mov_b32 v{vOnes}, 0x3f803f80")
        a(f"v_mov_b32 v{vOnes+1}, 0x3f803f80")
        a(f"v_and_b32 v{U_}, 3, v{v_lane}")
        a(f"v_and_b32 v{R_}, 1, v{v_lane}")
        a(f"v_lshlrev_b32 v{R_}, 4, v{R_}")
        a(f"v_mov_b32 v{S_}, 0xffff")
        a(f"v_lshlrev_b32 v{S_}, v{R_}, v{S_}")
        a(f"v_cmp_gt_u32 s[{s_kv}:{s_kv+1}], 2, v{U_}")
        a(f"v_cmp_eq_u32 s[{s_bd}:{s_bd+1}], 0, v{R_}")
        a(f"v_cndmask_b32 v{vM}, 0, v{S_}, s[{s_kv}:{s_kv+1}]")
        a(f"v_cndmask_b32 v{vM+1}, v{S_}, 0, s[{s_kv}:{s_kv+1}]")
        Q4 = lambda r: f"v[{r}:{r+3}]"
        P2 = lambda r: f"v[{r}:{r+1}]"
        for e in range(2):
            for j in range(7):
                if xrest:
                    xload(*xrest.pop(0))
                a(f"s_waitcnt vmcnt({vm.wait_n(f'x{e}{j}')})")
                if (e, j) in ((0, 0), (1, 6)):
                    st(f"x{e}{j}")
                r = raw(e, j)
                for h2 in range(2):
                    cs = "0" if j == 0 else Q4(SA[h2])
                    a(f"{MF} {Q4(SA[h2])}, {P2(vOnes)}, {P2(r+2*h2)}, {cs}")
                    cq = "0" if j == 0 else Q4(QA[h2])
                    a(f"{MF} {Q4(QA[h2])}, {P2(r+2*h2)}, {P2(r+2*h2)}, {cq}")
            if e == 1 and OPT["dmae"]:
                qdma(0, OPT["dmae"], "a")
            a(f"v_add_f32 v{S_}, v{SA[0]}, v{SA[1]}")
            for k in range(0, 4, 2):
                a(f"v_pk_add_f32 {P2(QA[0]+k)}, {P2(QA[0]+k)}, {P2(QA[1]+k)}")
            a(f"v_cndmask_b32 v{QA[0]}, v{QA[0]+1}, v{QA[0]}, s[{s_bd}:{s_bd+1}]")
            a(f"v_cndmask_b32 v{QA[0]+2}, v{QA[0]+3}, v{QA[0]+2}, s[{s_bd}:{s_bd+1}]")
            a(f"v_cndmask_b32 v{Q_}, v{QA[0]+2}, v{QA[0]}, s[{s_kv}:{s_kv+1}]")
            for pat in ("quad_perm:[1,0,3,2]", "quad_perm:[2,3,0,1]", "row_half_mirror"):
                for r in (S_, Q_):
                    a(f"v_add_f32_dpp v{r}, v{r}, v{r} {pat} row_mask:0xf bank_mask:0xf")
            a(f"v_mul_f32 v{S_}, 0x{f2u(1.0/448):08x}, v{S_}")
            a(f"v_mul_f32 v{Q_}, 0x{f2u(1.0/448):08x}, v{Q_}")
            a(f"v_fma_f32 v{Q_}, -v{S_}, v{S_}, v{Q_}")
            a(f"v_max_f32 v{Q_}, 0, v{Q_}")
            a(f"v_add_f32 v{Q_}, 0x{f2u(1e-5):08x}, v{Q_}")
            a(f"v_rsq_f32 v{R_}, v{Q_}")
            a(f"v_cvt_pk_bf16_f32 v{U_}, v{R_}, v{R_}")
            a(f"v_mul_f32 v{vB}, -v{S_}, v{R_}")
            a(f"v_and_b32 v{Q_}, 0xffff0000, v{U_}")
            a(f"v_and_b32 v{vAh}, v{U_}, v{vM}")
            a(f"v_and_b32 v{vAh+1}, v{U_}, v{vM+1}")
            a(f"v_sub_f32 v{Q_}, v{R_}, v{Q_}")
            a(f"v_cvt_pk_bf16_f32 v{U_}, v{Q_}, v{Q_}")
            for k in range(1, 4):
                a(f"v_mov_b32 v{vB+k}, v{vB}")
            a(f"v_and_b32 v{vAl}, v{U_}, v{vM}")
            a(f"v_and_b32 v{vAl+1}, v{U_}, v{vM+1}")
            def hi(j, h2):
                r = raw(e, j); d = D0 + 8 * (j % 4)
                return f"{MF} {Q4(d+4*h2)}, {P2(vAh)}, {P2(r+2*h2)}, {Q4(vB)}"
            def lo(j, h2):
                r = raw(e, j); d = D0 + 8 * (j % 4)
                return f"{MF} {Q4(d+4*h2)}, {P2(vAl)}, {P2(r+2*h2)}, {Q4(d+4*h2)}"
            def cv(j, k):
                r = raw(e, j); d = D0 + 8 * (j % 4)
                return f"v_cvt_pk_bf16_f32 v{r+k}, v{d+2*k}, v{d+2*k+1}"
            for j in range(-3, 7):
                mf = []
                if 0 <= j + 3 < 7:
                    mf += [hi(j + 3, 0), hi(j + 3, 1)]
                if 0 <= j + 2 < 7:
                    mf += [lo(j + 2, 0), lo(j + 2, 1)]
                for k in range(4):
                    if k < len(mf):
                        a(mf[k])
                    if j >= 0:
                        a(cv(j, k))
                if j >= 0:
                    r = raw(e, j)
                    a(f"ds_write_b128 v{v_xw + e + (2 if j >= 4 else 0)}, v[{r}:{r+3}] offset:{(j % 4)*16384}")
    else:
        S_, Q_, R_ = t, t + 2, t + 4
        for e in range(2):
            for j in range(7):
                if xrest:
                    xload(*xrest.pop(0))
                a(f"s_waitcnt vmcnt({vm.wait_n(f'x{e}{j}')})")
                if (e, j) in ((0, 0), (1, 6)):
                    st(f"x{e}{j}")
                for d in range(4):
                    r = raw(e, j) + d
                    f = F + 8 * j + 2 * d
                    a(f"v_lshlrev_b32 v{f}, 16, v{r}")
                    a(f"v_and_b32 v{f+1}, 0xffff0000, v{r}")
                for d in range(4):
                    f = F + 8 * j + 2 * d
                    if j == 0 and d == 0:
                        a(f"v_pk_mul_f32 v[{Q_}:{Q_+1}], v[{f}:{f+1}], v[{f}:{f+1}]")
                    elif j == 0 and d == 1:
                        a(f"v_pk_add_f32 v[{S_}:{S_+1}], v[{f-2}:{f-1}], v[{f}:{f+1}]")
                        a(f"v_pk_fma_f32 v[{Q_}:{Q_+1}], v[{f}:{f+1}], v[{f}:{f+1}], v[{Q_}:{Q_+1}]")
                    else:
                        a(f"v_pk_add_f32 v[{S_}:{S_+1}], v[{S_}:{S_+1}], v[{f}:{f+1}]")
                        a(f"v_pk_fma_f32 v[{Q_}:{Q_+1}], v[{f}:{f+1}], v[{f}:{f+1}], v[{Q_}:{Q_+1}]")
            if e == 1 and OPT["dmae"]:
                qdma(0, OPT["dmae"], "a")
            for r in (S_, Q_):
                a(f"v_add_f32 v{r}, v{r}, v{r+1}")
            for pat in ("quad_perm:[1,0,3,2]", "quad_perm:[2,3,0,1]", "row_half_mirror"):
                for r in (S_, Q_):
                    a(f"v_add_f32_dpp v{r}, v{r}, v{r} {pat} row_mask:0xf bank_mask:0xf")
            a(f"v_mul_f32 v{S_}, 0x{f2u(1.0/448):08x}, v{S_}")
            a(f"v_mul_f32 v{Q_}, 0x{f2u(1.0/448):08x}, v{Q_}")
            a(f"v_fma_f32 v{Q_}, -v{S_}, v{S_}, v{Q_}")
            a(f"v_max_f32 v{Q_}, 0, v{Q_}")
            a(f"v_add_f32 v{Q_}, 0x{f2u(1e-5):08x}, v{Q_}")
            a(f"v_rsq_f32 v{R_}, v{Q_}")
            a(f"v_mul_f32 v{R_+2}, -v{S_}, v{R_}")
            for j in range(7):
                for d in range(4):
                    f = F + 8 * j + 2 * d
                    a(f"v_pk_fma_f32 v[{f}:{f+1}], v[{f}:{f+1}], v[{R_}:{R_+1}], v[{R_+2}:{R_+3}] op_sel_hi:[1,0,0]")
                for d in range(4):
                    f = F + 8 * j + 2 * d
                    a(f"v_cvt_pk_bf16_f32 v{raw(e, j)+d}, v{f}, v{f+1}")
                r = raw(e, j)
                a(f"ds_write_b128 v{v_xw + e + (2 if j >= 4 else 0)}, v[{r}:{r+3}] offset:{(j % 4)*16384}")
    st("lnend")
    qdma(OPT["dmae"], 12, "b")
    gtouch(sWg, 13, False, t + 10, vm)
    a(f"buffer_store_dwordx2 v[{v_non}:{v_non+1}], v{v_e0}, s[{sDbg}:{sDbg+3}], 0 offen sc1")
    vm.issue("t")
    a(f"s_waitcnt vmcnt({vm.wait_n('c0')}) lgkmcnt(0)")
    a("s_barrier")
    st("B1")
    if OPT["mprio"]:
        a(f"s_cmp_eq_u32 s{s_g}, 0")
        a("s_cbranch_scc1 L_noprio")
        a("s_setprio 1")
        a("L_noprio:")
    a(f"s_and_b32 s{s_t0}, s{s_cb}, 3")
    a(f"s_cmp_eq_u32 s{s_t0}, 3")
    a("s_cbranch_scc1 L_type2")

    def deferred2():
        D = []
        S = D.append
        tt = vT + 8
        d0, d1 = s_d0, s_d1
        S(f"s_and_b32 s{d0}, s2, 7")
        S(f"s_lshr_b32 s{d1}, s2, 7")
        S(f"s_lshl1_add_u32 s{s_h}, s{d0}, s{d1}")
        S(f"s_bfe_u32 s{s_qb}, s2, 0x40003")
        S(f"s_bfe_u32 s{d1}, s2, 0x20003")
        S(f"s_lshl2_add_u32 s{s_tb64}, s{d0}, s{d1}")
        S(f"s_lshr_b32 s{s_nb}, s2, 5")
        S(f"s_lshr_b32 s{d0}, s{s_h}, 1")
        S(f"s_or_b32 s{d1}, s{s_h}, 3")
        S(f"v_min_u32 v{tt}, 1, v{v_lane}")
        S(f"v_sub_u32 v{tt+1}, v{v_lane}, v{tt}")
        S(f"v_sub_u32 v{tt+1}, s{s_qb}, v{tt+1}")
        S(f"v_max_i32 v{tt+1}, 0, v{tt+1}")
        S(f"v_lshl_add_u32 v{tt}, v{tt}, 3, s{d0}")
        S(f"v_lshl_add_u32 v{tt}, v{tt+1}, 4, v{tt}")
        S(f"v_lshlrev_b32 v{tt}, 3, v{tt}")
        S(f"v_add_u32 v{tt}, {FL + F_QK*2048}, v{tt}")
        S(f"v_sub_u32 v{tt+1}, s{s_qb}, v{v_lane}")
        S(f"v_max_i32 v{tt+1}, 0, v{tt+1}")
        S(f"v_lshl_add_u32 v{tt+1}, v{tt+1}, 4, s{d1}")
        S(f"v_lshlrev_b32 v{tt+1}, 3, v{tt+1}")
        S(f"v_add_u32 v{tt+1}, {FL + F_V*2048}, v{tt+1}")
        S(f"v_mov_b32 v{tt+2}, {OOB}")
        S(f"v_cmp_gt_u32 s[{d0}:{d0+1}], 4, v0")
        S(f"v_cndmask_b32 v{v_pa}, v{tt+2}, v{tt}, s[{d0}:{d0+1}]")
        S(f"v_cndmask_b32 v{v_paV}, v{tt+2}, v{tt+1}, s[{d0}:{d0+1}]")
        S(f"s_lshr_b32 s{d0}, s{s_tb64}, 1")
        S(f"s_lshl_b32 s{d0}, s{d0}, 7")
        S(f"s_add_u32 s{d0}, s{d0}, {FL + F_H*2048}")
        S(f"v_lshl_add_u32 v{tt}, v{v_lane}, 3, s{d0}")
        S(f"v_cmp_gt_u32 s[{d0}:{d0+1}], 16, v{0 if OPT['p1'] else v_lane}")
        S(f"v_cndmask_b32 v{v_paH}, v{tt+2}, v{tt}, s[{d0}:{d0+1}]")
        S(f"s_lshl4_add_u32 s{s_fp}, s{s_tb}, s{s_cb}")
        S(f"s_lshl_b32 s{s_fp}, s{s_fp}, 3")
        S(f"s_add_u32 s{s_fp}, s{s_fp}, {FL}")
        S(f"s_lshl4_add_u32 s{s_fo}, s{s_qb}, s{s_h}")
        S(f"s_lshl_b32 s{s_fo}, s{s_fo}, 3")
        S(f"s_add_u32 s{s_fo}, s{s_fo}, {FL}")
        S(f"s_lshl_b32 s{s_kv}, s{s_h}, 17")
        S(f"s_lshl_b32 s{d0}, s{s_qb}, 13")
        S(f"s_mul_i32 s{d1}, s{s_w}, 3072")
        S(f"s_add_u32 s{d1}, s{d1}, s{d0}")
        for j in range(3):
            S(f"s_sub_u32 s{81+j}, s{d1}, {16384 - 1024*j}")
            S(f"s_max_i32 s{81+j}, s{81+j}, 0")
            S(f"s_add_u32 s{81+j}, s{81+j}, s{s_kv}")
        S(f"s_add_u32 s{s_kv}, s{s_kv}, s{d0}")
        S(f"v_and_b32 v{tt}, 15, v{v_lane}")
        S(f"v_lshrrev_b32 v{tt+1}, 4, v{v_lane}")
        S(f"v_lshlrev_b32 v{v_qa}, 9, v{tt+1}")
        S(f"v_lshl_add_u32 v{v_qa}, v{tt}, 4, v{v_qa}")
        S(f"s_and_b32 s{s_nt}, s{s_w}, 1")
        S(f"s_lshl_b32 s{s_par}, s{s_nt}, 8")
        S(f"s_lshr_b32 s{s_bd}, s{s_w}, 1")
        S(f"s_lshl2_add_u32 s{s_bd}, s{s_qb}, s{s_bd}")
        S(f"s_mul_i32 s{s_ost}, s{s_bd}, {NKS*1024}")
        S(f"s_lshl_b32 s{d0}, s{s_h}, 11")
        S(f"s_add_u32 s{s_ost}, s{s_ost}, s{d0}")
        S(f"s_add_u32 s{s_ost}, s{s_ost}, s{s_par}")
        S(f"s_add_u32 s{s_ost}, s{s_ost}, {HF + 112*1024}")
        S(f"v_and_b32 v{v_d}, 3, v{v_lane}")
        S(f"v_bfe_u32 v{tt}, v{v_lane}, 2, 1")
        S(f"v_lshl_or_b32 v{v_d}, v{tt}, 3, v{v_d}")
        S(f"v_bfe_u32 v{tt}, v{v_lane}, 3, 1")
        S(f"v_lshl_or_b32 v{v_d}, v{tt}, 2, v{v_d}")
        S(f"s_lshl_b32 s{d0}, s{s_nt}, 4")
        S(f"v_add_u32 v{v_d}, s{d0}, v{v_d}")
        S(f"v_lshlrev_b32 v{tt}, 3, v{tt+1}")
        S(f"v_sub_u32 v{v_d}, v{v_d}, v{tt}")
        S(f"s_lshr_b32 s{s_kh}, s{s_w}, 2")
        S(f"s_bfe_u32 s{s_cmt}, s{s_w}, 0x10001")
        S(f"v_lshrrev_b32 v{tt}, 3, v{v_lane}")
        S(f"v_and_b32 v{tt+1}, 7, v{v_lane}")
        S(f"v_bfe_u32 v{tt+2}, v{v_lane}, 4, 1")
        S(f"v_lshlrev_b32 v{tt+3}, 2, v{tt+2}")
        S(f"v_xor_b32 v{tt+3}, v{tt+3}, v{tt+1}")
        S(f"v_mul_u32_u24 v{v_dw}, 896, v{tt}")
        S(f"v_lshl_add_u32 v{v_dw}, v{tt+3}, 4, v{v_dw}")
        S(f"s_lshl_b32 s{s_m0h}, s{s_w}, 11")
        S(f"s_add_u32 s{s_m0w}, s{s_m0h}, {NH*16384}")
        S(f"s_mul_i32 s{s_wb}, s{s_w}, {16*896}")
        S(f"s_lshl_b32 s{d0}, s{s_nb}, 7")
        S(f"s_add_u32 s{s_wb}, s{s_wb}, s{d0}")
        S(f"s_lshr_b32 s{s_wob}, s{s_w}, 1")
        S(f"s_mul_i32 s{s_wob}, s{s_wob}, 28")
        S(f"s_lshl4_add_u32 s{s_wob}, s{s_nt}, s{s_wob}")
        S(f"s_mul_i32 s{s_wob}, s{s_wob}, 896")
        S(f"s_add_u32 s{s_wob}, s{s_wob}, s{d0}")
        S(f"s_lshl1_add_u32 s{d1}, s{s_tb64}, s{s_cmt}")
        S(f"s_mul_i32 s{s_xo}, s{d1}, {32*896}")
        S(f"s_add_u32 s{s_xo}, s{s_xo}, s{d0}")
        S(f"s_lshl_b32 s{d0}, s{s_nt}, 6")
        S(f"s_add_u32 s{s_xo}, s{s_xo}, s{d0}")
        S(f"s_lshl_b32 s{d0}, s{s_kh}, 5")
        S(f"s_add_u32 s{s_xo}, s{s_xo}, s{d0}")
        if OPT["rotc"]:
            S(f"s_lshl_b32 s{d0}, s{s_nb}, 2")
            S(f"s_lshr_b32 s{d0}, 0x{RTAB:x}, s{d0}")
            S(f"s_and_b32 s{d0}, s{d0}, 15")
            S(f"s_lshl_b32 s{s_hr}, s{d0}, 13")
            S(f"s_mul_i32 s{d0}, s{d0}, {128*896}")
            S(f"s_add_u32 s{s_wb}, s{s_wb}, s{d0}")
        else:
            S(f"s_mov_b32 s{s_hr}, 0")
        if OPT["help"] & 1:
            S(f"s_and_b32 s{d0}, s{s_tb64}, 3")
            S(f"s_lshl_b32 s{d1}, s{d0}, 2")
            S(f"s_lshr_b32 s{d1}, 0x{RTAB:x}, s{d1}")
            S(f"s_and_b32 s{d1}, s{d1}, 15")
            S(f"s_mul_i32 s{d1}, s{d1}, 896")
            S(f"s_add_u32 s{d0}, s{d0}, s{d1}")
            S(f"s_lshl_b32 s{d0}, s{d0}, 7")
            S(f"s_mul_i32 s{d1}, s{s_w}, {16*896}")
            S(f"s_add_u32 s{d0}, s{d0}, s{d1}")
            S(f"s_add_u32 s{d0}, s{d0}, {6*128*896}")
            S(f"s_cmp_ge_u32 s{s_nb}, 7\ns_cselect_b32 s{s_wb}, s{d0}, s{s_wb}")
        S(f"s_lshl1_add_u32 s{s_hb}, s{s_tb64}, s{s_kh}")
        S(f"s_mul_i32 s{s_hb}, s{s_hb}, {NKS*1024}")
        S(f"s_lshl_b32 s{d0}, s{s_mt}, 11")
        S(f"s_add_u32 s{s_hb}, s{s_hb}, s{d0}")
        S(f"s_add_u32 s{s_hb}, s{s_hb}, {HF}")
        return D

    def split_hoist(D, n):
        return D[:n], D[n:]
    SC = "sc1"
    def epi_qk(acc):
        E = []
        for r in range(16):
            E.append(f"v_mul_f32 v{acc+r}, s{s_scale}, v{acc+r}")
        for d in range(8):
            E.append(f"v_cvt_pk_bf16_f32 v{vT+d}, v{acc+2*d}, v{acc+2*d+1}")
        E.append(f"v_and_b32 v{vT+6}, v{vT+6}, v{v_msk}")
        E.append(f"v_and_b32 v{vT+7}, v{vT+7}, v{v_msk}")
        return E
    qk_stores = [f"buffer_store_dwordx4 v[{vT}:{vT+3}], v{v_stk}, s[{sWS}:{sWS+3}], s{s_qkst} offen {SC}",
                 f"buffer_store_dwordx4 v[{vT+4}:{vT+7}], v{v_stk}, s[{sWS}:{sWS+3}], s{s_qkst} offen offset:1024 {SC}"]

    def epi_v(acc):
        E = []
        for jj in range(2):
            Ac = acc + 16 * jj
            T = vT + 8 * jj
            for d in range(8):
                E.append(f"v_cvt_pk_bf16_f32 v{T+d}, v{Ac+2*d}, v{Ac+2*d+1}")
            for d in range(8):
                E.append(f"v_cndmask_b32 v{T+d}, v{T+d}, v{v_one}, s[{s_one}:{s_one+1}]")
            if jj:
                E.append(f"s_add_u32 s{s_vst}, s{s_vst}, {1 << 17}")
            E.append(f"buffer_store_dwordx4 v[{T}:{T+3}], v{v_st}, s[{sWS}:{sWS+3}], s{s_vst} offen {SC}")
            E.append(f"buffer_store_dwordx4 v[{T+4}:{T+7}], v{v_st}, s[{sWS}:{sWS+3}], s{s_vst} offen offset:1024 {SC}")
        return E

    def epi_gu_tile(acc, jj, pk):
        E = []
        Ac = acc + 16 * jj
        T = vT + 12 * jj
        P = lambda r: f"v[{r}:{r+1}]"
        if pk:
            for i in range(0, 8, 2):
                E.append(f"v_pk_mul_f32 {P(T+i)}, {P(Ac+i)}, {P(Ac+i)}")
            for i in range(0, 8, 2):
                E.append(f"v_pk_fma_f32 {P(T+i)}, {P(T+i)}, {P(v_c2)}, {P(v_c1)} op_sel_hi:[1,0,0]")
            for i in range(0, 8, 2):
                E.append(f"v_pk_mul_f32 {P(T+i)}, {P(T+i)}, {P(Ac+i)}")
            for i in range(8):
                E.append(f"v_exp_f32 v{T+i}, v{T+i}")
                if i % 2:
                    E.append(f"v_pk_mul_f32 {P(Ac+i-1)}, {P(Ac+i-1)}, {P(Ac+8+i-1)}")
            for i in range(0, 8, 2):
                E.append(f"v_pk_add_f32 {P(T+i)}, {P(T+i)}, {P(v_k1)} op_sel_hi:[1,0]")
            for i in range(8):
                E.append(f"v_rcp_f32 v{T+i}, v{T+i}")
            for i in range(0, 8, 2):
                E.append(f"v_pk_mul_f32 {P(Ac+i)}, {P(Ac+i)}, {P(T+i)}")
        else:
            for i in range(8):
                E.append(f"v_mul_f32 v{T+i}, v{Ac+i}, v{Ac+i}")
            for i in range(8):
                E.append(f"v_fma_f32 v{T+i}, v{T+i}, v{v_c2}, v{v_c1}")
            for i in range(8):
                E.append(f"v_mul_f32 v{T+i}, v{T+i}, v{Ac+i}")
            for i in range(8):
                E.append(f"v_exp_f32 v{T+i}, v{T+i}")
                E.append(f"v_mul_f32 v{Ac+i}, v{Ac+i}, v{Ac+8+i}")
            for i in range(8):
                E.append(f"v_add_f32 v{T+i}, 1.0, v{T+i}")
            for i in range(8):
                E.append(f"v_rcp_f32 v{T+i}, v{T+i}")
            for i in range(8):
                E.append(f"v_mul_f32 v{Ac+i}, v{Ac+i}, v{T+i}")
        for d in range(4):
            E.append(f"v_cvt_pk_bf16_f32 v{T+8+d}, v{Ac+2*d}, v{Ac+2*d+1}")
        E.append(f"buffer_store_dwordx4 v[{T+8}:{T+11}], v{v_st}, s[{sWS}:{sWS+3}], s{s_hst} offen offset:{1024*jj} {SC}")
        return E

    def publish(vm, kind, s_base):
        a(f"s_add_u32 s{s_t1}, s{s_base}, {kind*2048}")
        a(f"buffer_store_dwordx2 v[{v_non}:{v_non+1}], v{v_fa}, s[{sWS}:{sWS+3}], s{s_t1} offen sc1")
        vm.issue("flag")

    def poll(vm, vaddr):
        a(f"buffer_load_dwordx2 v[{v_pf}:{v_pf+1}], v{vaddr}, s[{sWS}:{sWS+3}], 0 offen sc1")
        if vm is not None:
            vm.issue("poll")

    spin_id = [0]
    def wait_flags(vm, vaddr, nlanes):
        i = spin_id[0]; spin_id[0] += 1
        mask = (1 << nlanes) - 1
        if OPT["p1"]:
            a(f"s_cmp_lg_u32 s{s_w}, 0")
            a(f"s_cbranch_scc1 L_wf_done{i}")
        a(f"s_mov_b32 s{s_t2}, 0")
        a(f"s_waitcnt vmcnt({vm.wait_n('poll')})")
        a(f"L_wf{i}:")
        a(f"v_cmp_eq_u64 vcc, v[{v_pf}:{v_pf+1}], v[{v_non}:{v_non+1}]")
        a(f"s_and_b32 s{s_t1}, vcc_lo, {mask}")
        a(f"s_cmp_eq_u32 s{s_t1}, {mask}")
        a(f"s_cbranch_scc1 L_wf_done{i}")
        a(f"s_add_u32 s{s_t2}, s{s_t2}, 1")
        a(f"s_cmp_gt_u32 s{s_t2}, 100000")
        a(f"s_cbranch_scc1 L_wf_done{i}")
        a(f"s_sleep {OPT['slp']}")
        poll(None, vaddr)
        a("s_waitcnt vmcnt(0)")
        a(f"s_branch L_wf{i}")
        a(f"L_wf_done{i}:")

    def dmaW(c):
        slot = (c % NW) * 16384
        G = []
        for jj in range(2):
            g = [f"s_add_u32 m0, s{s_m0w}, {slot + 1024*jj}"]
            if c < 14:
                g.append(f"s_add_u32 s{s_b1}, s{s_wb}, {(128*(c if not OPT['xhit'] else c % 3) + 8*jj)*896}")
                g.append(f"s_sub_u32 s{s_b2}, s{s_b1}, {WD_BYTES}")
                g.append(f"s_min_u32 s{s_b1}, s{s_b1}, s{s_b2}")
                g.append(f"buffer_load_dwordx4 v{v_dw}, s[{sWd}:{sWd+3}], s{s_b1} offen lds")
            else:
                g.append(f"s_add_u32 s{s_b1}, s{s_nb}, {c-14}")
                g.append(f"s_and_b32 s{s_b1}, s{s_b1}, 3")
                g.append(f"s_mul_i32 s{s_b1}, s{s_b1}, {112*896}")
                g.append(f"s_add_u32 s{s_b1}, s{s_b1}, s{s_wob}")
                if jj:
                    g.append(f"s_add_u32 s{s_b1}, s{s_b1}, {8*896}")
                g.append(f"buffer_load_dwordx4 v{v_dw}, s[{sWo}:{sWo+3}], s{s_b1} offen lds")
            G.append((g, f"w{c}"))
        return G

    def kq_groups():
        g = [f"s_mul_i32 s{s_b2}, s{s_w}, 3072",
             f"s_mov_b32 m0, s{s_b2}",
             ]
        for j in range(3):
            g.append(f"s_add_u32 s{s_b1}, s{81+j}, {KF - 1024*j}")
            g.append(f"buffer_load_dwordx4 v{v_st}, s[{sWS}:{sWS+3}], s{s_b1} offen offset:{1024*j} sc1 lds")
        g2 = [f"s_lshr_b32 s{s_b2}, s{s_w}, 1",
              f"s_lshl_b32 s{s_b2}, s{s_b2}, 11",
              f"s_add_u32 s{s_b2}, s{s_b2}, s{s_par}",
              f"s_add_u32 s{s_b2}, s{s_b2}, s{s_kv}",
              f"buffer_load_dwordx4 v[{vQ}:{vQ+3}], v{v_qa}, s[{sWS}:{sWS+3}], s{s_b2} offen sc1"]
        return [(g, "k"), (g2, "k")]
    tailk = {}
    st_state = (st.n, list(st.names))
    def main(seq, vm):
        st.n, st.names = st_state[0], list(st_state[1])
        is2 = seq[2][0] == "v"
        lg = Cnt(15)
        M = []
        sp = -1
        prev = None
        for c, (kind, idx, part) in enumerate(seq):
            if (kind, idx) != prev:
                sp += 1
                prev = (kind, idx)
            if kind == "qk":
                for s in range(14):
                    M.append(dict(c=c, kind=kind, idx=idx, ks=14 * part + s, sl=s, jj=0, first=(part == 0 and s == 0), sp=sp))
            else:
                for s in range(7):
                    for jj in range(2):
                        M.append(dict(c=c, kind=kind, idx=idx, ks=7 * part + s, sl=s, jj=jj, first=(part == 0 and s == 0), sp=sp))
        last = [q for q in M if q["sp"] == 2]
        M = [q for q in M if q["sp"] < 2] + [q for q in last if q["jj"] == 0] + [q for q in last if q["jj"] == 1]
        LA = 3
        cur = [-1]
        def reads(m):
            mm = M[m]
            c = mm["c"]
            if cur[0] != c and mm["sp"] == 2:
                cur[0] = c
                so = (c % 5) * SLOT
                if mm["jj"]:
                    a(f"v_add_u32 v{v_rdB}, {so}, v{v_bg1}")
                else:
                    a(f"v_add_u32 v{v_rdA}, {so}, v{v_bg0}")
            if cur[0] != c:
                cur[0] = c
                so = (c % 5) * SLOT
                if mm["kind"] == "qk":
                    a(f"v_add_u32 v{v_rdA}, {so}, v{v_bqk}")
                elif mm["kind"] == "v":
                    a(f"v_add_u32 v{v_rdA}, {so}, v{v_bv0}")
                    a(f"v_add_u32 v{v_rdB}, {so}, v{v_bv1}")
                else:
                    a(f"v_add_u32 v{v_rdA}, {so}, v{v_bg0}")
                    a(f"v_add_u32 v{v_rdB}, {so}, v{v_bg1}")
            b = vW + 4 * (m % 4)
            ad = v_rdB if mm["jj"] else v_rdA
            rb = 2 if mm["kind"] == "v" else 1
            o = mm["sl"] * 2048 * rb
            a(f"ds_read_b64_tr_b16 v[{b}:{b+1}], v{ad} offset:{o}")
            a(f"ds_read_b64_tr_b16 v[{b+2}:{b+3}], v{ad} offset:{o+512*rb}")
            lg.issue(f"w{m}"); lg.issue(f"w{m}")
        xn = [0]
        def xread(k=1):
            for _ in range(k):
                ks = xn[0]
                if ks >= 28:
                    return
                xn[0] += 1
                j, s2 = divmod(ks, 4)
                r = vX + 4 * ks
                a(f"ds_read_b128 v[{r}:{r+3}], v{v_xa + s2 + (4 if j >= 4 else 0)} offset:{(j % 4)*16384}")
                lg.issue(f"x{ks}")
        for m in range(LA):
            xread(1)
            reads(m)
        if OPT["rda"]:
            reads(LA)
        xread(3)
        pend = deferred(is2)
        D2 = deferred2()
        n2 = OPT["d2n"]
        pend += D2[:n2]
        pend_tag = "st"
        rate = len(pend) / 26.0
        accum = 0.0
        hold = 0
        n = len(M)
        bg = []
        B2 = OPT["b2"]
        def emit_pend():
            ins = pend.pop(0)
            a(ins)
            if ins.startswith("buffer_"):
                vm.issue(pend_tag)
        w2k = [0]
        def slot_store(stores, vaddr, k, nk, tag):
            if nk > 1:
                if nk == 2:
                    a(f"s_bitcmp{k}_b32 s{s_wr}, 0")
                else:
                    a(f"s_cmp_eq_u32 s{s_wr}, {k}")
                a(f"s_cselect_b64 s[{s_t0}:{s_t0+1}], -1, 0")
                a(f"v_cndmask_b32 v{v_e0}, v{v_e1}, v{vaddr}, s[{s_t0}:{s_t0+1}]")
                stores = [x.replace(f", v{vaddr},", f", v{v_e0},") for x in stores]
            for x in stores:
                a(x); vm.issue(tag)
        late = {}
        dsched = {}
        for m in range(n):
            mm = M[m]
            c = mm["c"]
            if m in STM:
                st(f"m{m}")
            if OPT["b2a"] and m == OPT["b2a"]:
                assert xn[0] >= 12
                a(f"s_waitcnt lgkmcnt({lg.wait_n('x11')})")
                a("s_barrier")
                emit_group(vm, c1b)
                bg += dmaA(seq[2], 2, "c2")
            if m == B2:
                assert xn[0] >= 28 and B2 <= 11
                a(f"s_waitcnt vmcnt({vm.wait_n('c1')}) lgkmcnt({lg.wait_n('x27')})")
                a("s_barrier")
                if not OPT["b2a"]:
                    emit_group(vm, c1b)
                    bg += dmaA(seq[2], 2, "c2")
                bg += dmaA(seq[3], 3, "c3") + dmaA(seq[4], 4, "c4")
                bg.append(([f"buffer_load_dwordx2 v[{v_non}:{v_non+1}], v{v_zero}, s[{sDbg}:{sDbg+3}], 0 offen sc1"], "nonce"))
            if m == 20:
                a(f"s_waitcnt vmcnt({vm.wait_n('c1b')})")
                a("s_barrier")
            if m in (87, 94, 101):
                a(f"s_waitcnt vmcnt({vm.wait_n(f'c{7 + (m - 87)//7}')})")
                a("s_barrier")
            if m == OPT["kqm"]:
                wait_flags(vm, v_pa, 4)
                a("s_barrier")
                bg += kq_groups()
            if m == OPT["kqm"] - OPT["kqlead"]:
                poll(vm, v_pa)
            if OPT["vbk"] and m == OPT["vbk"]:
                poll(vm, v_paV)
            if OPT["xre"] and m == OPT["xre"]:
                for x in [f"v_and_b32 v{v_e0}, 0x13, v{v_lane}",
                          f"v_bfe_u32 v{v_bqk}, v{v_lane}, 2, 1",
                          f"v_lshl_or_b32 v{v_e0}, v{v_bqk}, 3, v{v_e0}",
                          f"v_bfe_u32 v{v_bqk}, v{v_lane}, 3, 1",
                          f"v_lshl_or_b32 v{v_e0}, v{v_bqk}, 2, v{v_e0}",
                          f"v_mul_u32_u24 v{v_e0}, 896, v{v_e0}",
                          f"v_lshrrev_b32 v{v_bqk}, 5, v{v_lane}",
                          f"v_lshl_add_u32 v{v_bqk}, v{v_bqk}, 4, v{v_e0}",
                          f"buffer_load_dwordx4 v[40:43], v{v_bqk}, s[{sX}:{sX+3}], s{s_xo} offen"]:
                    a(x)
                vm.issue("xr")
            if OPT["w5e"] and m == OPT["w5e"]:
                assert NH == 4 and NW == 6
                bg += dmaW(5)
            if m == 114:
                pend.extend(epi_gu_tile(ACC[1], 0, 0))
                rate = max(rate, len(pend) / (OPT["aend"] - 114))
                if is2:
                    pend_tag = "st_a"
            if m % 14 == (8 if c != 1 else 10) and 1 <= c <= 5:
                tags = [f"c{c+1}"]
                while not vm.has(tags[0]) or any(g[1] == tags[0] for g in bg):
                    emit_group(vm, bg.pop(0))
                if c == OPT["pubqk"]:
                    tags.append("st_qk")
                if c == OPT["kq"]:
                    wait_flags(vm, v_pa, 4)
                a(f"s_waitcnt vmcnt({vm.wait_n(*tags)})")
                a("s_barrier")
                if c == OPT["pubqk"]:
                    publish(vm, F_QK, s_fp)
                if c == OPT["kq"]:
                    bg += kq_groups()
                if c + 4 < len(seq):
                    dl = OPT.get(f"d{c+4}", 0)
                    if dl > m:
                        dsched[dl] = c + 4
                    else:
                        bg += dmaA(seq[c + 4], (c + 4) % 5, f"c{c+4}")
                if c == 4:
                    i = spin_id[0]; spin_id[0] += 1
                    a(f"s_mov_b32 s{s_t2}, 0")
                    a(f"L_nz{i}:")
                    a(f"v_readfirstlane_b32 s{s_t1}, v{v_non}")
                    a(f"s_cmp_lg_u32 s{s_t1}, 0")
                    a(f"s_cbranch_scc1 L_nz_done{i}")
                    a(f"s_add_u32 s{s_t2}, s{s_t2}, 1")
                    a(f"s_cmp_gt_u32 s{s_t2}, 100000")
                    a(f"s_cbranch_scc1 L_nz_done{i}")
                    a("s_sleep 2")
                    a(f"buffer_load_dwordx2 v[{v_non}:{v_non+1}], v{v_zero}, s[{sDbg}:{sDbg+3}], 0 offen sc1")
                    a("s_waitcnt vmcnt(0)")
                    a(f"s_branch L_nz{i}")
                    a(f"L_nz_done{i}:")
            if m in dsched:
                k = dsched[m]
                bg += dmaA(seq[k], k % 5, f"c{k}")
            for k in range(OPT["qkn"]):
                if m == OPT["qkst"] + k * OPT["qkgap"]:
                    slot_store(qk_stores, v_stk, k, OPT["qkn"], "st_qk")
            if m == OPT["pubm"] and is2:
                a(f"s_waitcnt vmcnt({vm.wait_n('st_qkv')})")
                a("s_barrier")
                publish(vm, F_V, s_fp)
            if m in late:
                for (ins, k, nk, flush) in late[m]:
                    if flush:
                        while pend:
                            emit_pend()
                    if ins.startswith("buffer_"):
                        slot_store([ins], v_st, k, nk, "st_h0")
                    else:
                        a(ins)
            if m == OPT["w2s"]:
                gtouch(sWd, 7, True, v_e0, vm)
                gtouch(sWo, 2, True, v_e0, vm)
            if OPT["l2n"] and m >= OPT["l2s"] and (m - OPT["l2s"]) % OPT["l2d"] == 0 and (m - OPT["l2s"]) // OPT["l2d"] < OPT["l2n"] + 1:
                k = (m - OPT["l2s"]) // OPT["l2d"]
                nl = -(-49 // OPT["l2n"])
                isw = k == OPT["l2n"]
                a(f"s_lshr_b32 s{s_t0}, s2, 3")
                a(f"s_lshl3_add_u32 s{s_t0}, s{s_t0}, s{s_w}")
                if isw:
                    nl = 13
                    a(f"s_mul_i32 s{s_t0}, s{s_t0}, 13")
                else:
                    a(f"s_mul_i32 s{s_t0}, s{s_t0}, {nl}")
                    a(f"s_add_u32 s{s_t0}, s{s_t0}, {k*nl*256}")
                a(f"v_add_lshl_u32 v{v_e0}, v{v_lane}, s{s_t0}, 7")
                a(f"s_mov_b64 exec, {(1 << nl) - 1}")
                sr = sWo if isw else sWd
                a(f"buffer_load_dword v{v_td}, v{v_e0}, s[{sr}:{sr+3}], 0 offen")
                a(f"s_mov_b64 exec, -1")
                vm.issue("t")
            if m + LA < n and not OPT["rda"]:
                reads(m + LA)
            xread(OPT["xr"])
            tags = [f"w{m}"]
            if mm["sp"] == 0:
                tags.append(f"x{mm['ks']}")
            a(f"s_waitcnt lgkmcnt({lg.wait_n(*tags)})")
            accb = ACC[(mm["sp"] + 1) % 2]
            acc = accb + 16 * mm["jj"]
            b = vW + 4 * (m % 4)
            x = vX + 4 * mm["ks"]
            csrc = "0" if mm["first"] else f"v[{acc}:{acc+15}]"
            if mm["kind"] == "v":
                a(f"v_mfma_f32_32x32x16_bf16 v[{acc}:{acc+15}], v[{x}:{x+3}], v[{b}:{b+3}], {csrc}")
            else:
                a(f"v_mfma_f32_32x32x16_bf16 v[{acc}:{acc+15}], v[{b}:{b+3}], v[{x}:{x+3}], {csrc}")
            if OPT["rda"] and m + LA + 1 < n:
                reads(m + LA + 1)
            if bg and (m % OPT["bgp"] == 0 or len(bg) > 4):
                emit_group(vm, bg.pop(0))
            last_of_sp = (m + 1 == n) or (M[m + 1]["sp"] != mm["sp"])
            if pend and not hold:
                accum += rate
                while accum >= 1.0 and pend:
                    emit_pend()
                    accum -= 1.0
            if hold:
                hold -= 1
            if last_of_sp:
                while pend:
                    emit_pend()
                if m + 1 < n:
                    nsp = sum(1 for q in M if q["sp"] == mm["sp"] + 1)
                    if mm["kind"] == "qk":
                        pend = epi_qk(accb) + D2[n2:]
                        rate = max(len(pend) / (nsp - 8), 27.0 / max(1, OPT["qkst"] - 31))
                    elif mm["kind"] == "v":
                        pend = epi_v(accb)
                        pend_tag = "st_qkv"
                        rate = 3.0
                    else:
                        e0 = epi_gu_tile(accb, 0, OPT["pk"] & 2); e1 = epi_gu_tile(accb, 1, OPT["pk"] & 2)
                        pend = e0 + e1 + [f"s_add_u32 s{s_hst}, s{s_hst}, 4096"]
                        rate = 207.0 / (OPT["aend"] - 86)
                        pend_tag = "st_h0"
                    accum = 0.0
                    hold = 2
                else:
                    assert accb == ACC[1]
        assert not bg
        if OPT["vbk"]:
            wait_flags(vm, v_paV, 3)
        else:
            poll(vm, v_paV)
        a(f"s_waitcnt vmcnt({vm.wait_n('k')})")

    main(seq1, copy.deepcopy(vm))
    a("s_branch L_postA")
    a("L_type2:")
    main(seq2, copy.deepcopy(vm))
    a("L_postA:")
    st("T")
    vm = VM()

    vS = 132
    vKF = 204
    vP = 64
    vO = 100
    v_ka, v_va, v_m, v_u = 3, 4, 2, 128
    u = v_u

    HSL = [0, 3, 1, 2] if OPT["hook1"] else list(range(NH))
    def dmaH(c):
        slot = HSL[c % NH] * 16384
        g = [f"s_add_u32 m0, s{s_m0h}, {slot}"]
        if c < 14:
            g.append(f"s_add_u32 s{s_b1}, s{s_hr}, {8192*(c if not OPT['xhit'] else c % 2)}")
            g.append(f"s_sub_u32 s{s_b2}, s{s_b1}, {14*8192}")
            g.append(f"s_min_u32 s{s_b1}, s{s_b1}, s{s_b2}")
        else:
            g.append(f"s_add_u32 s{s_b1}, s{s_nb}, {c-14}")
            g.append(f"s_and_b32 s{s_b1}, s{s_b1}, 3")
            g.append(f"s_lshl_b32 s{s_b1}, s{s_b1}, 13")
            g.append(f"s_add_u32 s{s_b1}, s{s_b1}, {14*8192}")
        g.append(f"s_add_u32 s{s_b1}, s{s_b1}, s{s_hb}")
        for jj in range(2):
            g.append(f"buffer_load_dwordx4 v{v_st}, s[{sWS}:{sWS+3}], s{s_b1} offen offset:{1024*jj} sc1 lds")
        return (g, f"h{c}")

    wq = []
    for c in range(NW - (1 if OPT["w5e"] else 0)):
        wq += dmaW(c)
    if OPT["w5e"]:
        vm.issue("w5")
    cnt = [0]
    def e(ins, every=OPT["wspread"]):
        a(ins)
        cnt[0] += 1
        if cnt[0] % every == 0 and wq:
            emit_group(vm, wq.pop(0))

    vm.issue("poll")
    a(f"s_lshr_b32 s{s_t2}, s{s_w}, 1")
    a(f"s_lshl_b32 s{s_t2}, s{s_t2}, 11")
    a(f"v_add_u32 v{v_ka}, s{s_t2}, v{v_qa}")
    a(f"v_add_u32 v{v_va}, 24576, v{v_ka}")
    a("s_barrier")
    st("BK")
    def vdma():
        a(f"s_mul_i32 s{s_t0}, s{s_w}, 3072")
        a(f"s_add_u32 m0, s{s_t0}, 24576")
        for j in range(3):
            a(f"s_add_u32 s{s_t2}, s{81+j}, {VF - 1024*j}")
            a(f"buffer_load_dwordx4 v{v_st}, s[{sWS}:{sWS+3}], s{s_t2} offen offset:{1024*j} sc1 lds")
            vm.issue("v")
    if OPT["vbk"]:
        OPT["vpos"] = -1
    E0 = epi_gu_tile(ACC[1], 0, OPT["pk"] & 1)
    E1 = epi_gu_tile(ACC[1], 1, OPT["pk"] & 1)
    side = E1[:-1] + [f"v_cmp_le_i32 s[{MK[i]}:{MK[i]+1}], {i}, v{v_d}" for i in range(8)]

    def kread(i):
        b, tt = divmod(i, 2)
        r = vKF + 4 * (i % 8)
        a(f"ds_read_b128 v[{r}:{r+3}], v{v_ka} offset:{b*2048 + tt*256}")
    LA = 6
    per = OPT["per"]
    e1done = [False]
    nf = OPT["wfirst"]
    for i in range(LA):
        kread(i)
    if OPT["vbk"]:
        vdma()
        while nf:
            emit_group(vm, wq.pop(0)); nf -= 1
    for i in range(18):
        if i + LA < 18:
            kread(i + LA)
            a(f"s_waitcnt lgkmcnt({LA})")
        else:
            a(f"s_waitcnt lgkmcnt({17-i})")
        r = vKF + 4 * (i % 8)
        a(f"v_mfma_f32_16x16x32_bf16 v[{vS+4*i}:{vS+4*i+3}], v[{r}:{r+3}], v[{vQ}:{vQ+3}], 0")
        for _ in range(per):
            if side:
                a(side.pop(0))
        if len(side) <= 8 and not e1done[0] and i > OPT["vpos"]:
            e1done[0] = True
            a(E1[-1]); vm.issue("st_h")
        if i == OPT["vpos"]:
            st("preV")
            wait_flags(vm, v_paV, 3)
            a("s_barrier")
            st("fV")
            vdma()
        if i < OPT["vpos"] and i % 2 == 1 and nf:
            emit_group(vm, wq.pop(0)); nf -= 1
    if not e1done[0]:
        a(E1[-1]); vm.issue("st_h")
    st("Sdone")
    a(f"s_cmp_ge_u32 s{s_bd}, 8")
    a("s_cbranch_scc1 L_allvalid")
    for b in range(8):
        a(f"s_cmp_ge_u32 s{s_bd}, {8-b}")
        a("s_cbranch_scc1 L_allvalid")
        for i in range(8):
            a(f"v_mov_b32 v{vS+8*b+i}, 0xf149f2ca")
    a("L_allvalid:")
    def bv():
        st("preBV")
        a(f"s_waitcnt vmcnt({vm.wait_n('st_h', 'v')})")
        a("s_barrier")
        publish(vm, F_H, s_fp)
        st("BV")
    if OPT["bvp"] == 2:
        bv()
    for i in range(8):
        e(f"v_cndmask_b32 v{vS+i}, v{vS+i}, v{vS+64+i}, s[{MK[i]}:{MK[i]+1}]")
    e(f"v_max3_f32 v{v_m}, v{vS+8}, v{vS+9}, v{vS+10}")
    e(f"v_max3_f32 v{u}, v{vS+11}, v{vS+12}, v{vS+13}")
    ks = list(range(14, 64, 2)) + list(range(0, 8, 2))
    tog = 0
    for k in ks:
        d = v_m if tog == 0 else u
        e(f"v_max3_f32 v{d}, v{d}, v{vS+k}, v{vS+k+1}")
        tog ^= 1
    a(f"v_max_f32 v{v_m}, v{v_m}, v{u}")
    a(f"v_mov_b32 v{u}, v{v_m}")
    a(f"v_permlane32_swap_b32 v{v_m}, v{u}")
    a(f"v_max_f32 v{v_m}, v{v_m}, v{u}")
    a(f"v_mov_b32 v{u}, v{v_m}")
    a(f"v_permlane16_swap_b32 v{v_m}, v{u}")
    a(f"v_max_f32 v{v_m}, v{v_m}, v{u}")
    order = [1, 2, 3, 4, 5, 6, 7, 0, 8]
    def softmax_block(b):
        for i in range(0, 8, 2):
            r = vS + 8 * b + i
            e(f"v_pk_add_f32 v[{r}:{r+1}], v[{r}:{r+1}], v[{v_m}:{v_m+1}] op_sel_hi:[1,0] neg_lo:[0,1] neg_hi:[0,1]")
        for i in range(8):
            e(f"v_exp_f32 v{vS+8*b+i}, v{vS+8*b+i}")
        if b == 0:
            for i in range(8):
                e(f"v_cndmask_b32 v{vS+64+i}, 0, v{vS+i}, s[{MK[i]}:{MK[i]+1}]")
            for i in range(8):
                e(f"v_cndmask_b32 v{vS+i}, v{vS+i}, 0, s[{MK[i]}:{MK[i]+1}]")
            for d in range(4):
                e(f"v_cvt_pk_bf16_f32 v{vP+32+d}, v{vS+64+2*d}, v{vS+64+2*d+1}")
        for d in range(4):
            e(f"v_cvt_pk_bf16_f32 v{vP+4*b+d}, v{vS+8*b+2*d}, v{vS+8*b+2*d+1}")
    if OPT["bvp"] == 1:
        bv()
    softmax_block(order[0])
    if OPT["bvp"] == 0:
        bv()
    def vread(i):
        b = order[i // 2]
        tt = i % 2
        r = vKF + 4 * (i % 8)
        a(f"ds_read_b128 v[{r}:{r+3}], v{v_va} offset:{b*2048 + tt*256}")
    for i in range(LA):
        vread(i)
    for bi in range(9):
        b = order[bi]
        H1 = OPT["hook1"]
        if bi == (H1 - 2 if H1 else 4):
            while wq:
                emit_group(vm, wq.pop(0))
            poll(vm, v_paH)
        if bi + 1 < 8:
            softmax_block(order[bi + 1])
        if H1 and bi == H1:
            st("preH")
            a(f"s_cmp_ge_u32 s{s_nb}, 7")
            a("s_cbranch_scc1 L_noC0")
            wait_flags(vm, v_paH, 16)
            a("s_barrier")
            for c in range(2):
                emit_group(vm, dmaH(c))
            a("L_noC0:")
            st("Hiss")
        if bi == 6:
            a("s_waitcnt lgkmcnt(0)")
            if not H1: st("preH")
            a(f"s_cmp_ge_u32 s{s_nb}, 7")
            a("s_cbranch_scc1 L_noC1")
            if not H1:
                wait_flags(vm, v_paH, 16)
            a("s_barrier")
            for c in range(2 if H1 else 0, NH):
                emit_group(vm, dmaH(c))
            a("L_noC1:")
            if not H1: st("Hiss")
        for tt in range(2):
            i = 2 * bi + tt
            if i + LA < 18:
                vread(i + LA)
                a(f"s_waitcnt lgkmcnt({LA})")
            elif bi < 6:
                a(f"s_waitcnt lgkmcnt({17-i})")
            r = vKF + 4 * (i % 8)
            cs = "0" if bi == 0 else f"v[{vO+4*tt}:{vO+4*tt+3}]"
            a(f"v_mfma_f32_16x16x32_bf16 v[{vO+4*tt}:{vO+4*tt+3}], v[{r}:{r+3}], v[{vP+4*b}:{vP+4*b+3}], {cs}")
    a(f"v_mov_b32 v{u}, v{vO+4}")
    a(f"v_mov_b32 v{u+1}, v{vO+4}")
    a(f"v_permlane32_swap_b32 v{u}, v{u+1}")
    a(f"v_mov_b32 v{u}, v{u+1}")
    a(f"v_permlane16_swap_b32 v{u}, v{u+1}")
    a(f"v_rcp_f32 v{u+1}, v{u+1}")
    for i in range(8):
        a(f"v_mul_f32 v{vO+i}, v{vO+i}, v{u+1}")
    for d in range(4):
        a(f"v_cvt_pk_bf16_f32 v{vQ+d}, v{vO+2*d}, v{vO+2*d+1}")
    a(f"v_cmp_gt_u32 s[{s_d0}:{s_d0+1}], 48, v{v_lane}")
    a(f"v_cndmask_b32 v{vQ+2}, 0, v{vQ+2}, s[{s_d0}:{s_d0+1}]")
    a(f"v_cndmask_b32 v{vQ+3}, 0, v{vQ+3}, s[{s_d0}:{s_d0+1}]")
    a(f"buffer_store_dwordx4 v[{vQ}:{vQ+3}], v{v_qa}, s[{sWS}:{sWS+3}], s{s_ost} offen sc1")
    vm.issue("st_o")
    st("Ost")
    a(f"s_cmp_lt_u32 s{s_nb}, 7")
    a("s_cbranch_scc1 L_phaseC")
    def htouch(k):
        if k < 14:
            a(f"s_add_u32 s{s_b1}, s{s_t0}, {128*k*896}")
            a(f"s_sub_u32 s{s_b2}, s{s_b1}, {WD_BYTES}")
            a(f"s_min_u32 s{s_b1}, s{s_b1}, s{s_b2}")
            a(f"buffer_load_dword v{v_td}, v{u}, s[{sWd}:{sWd+3}], s{s_b1} offen")
        else:
            a(f"s_add_u32 s{s_b1}, s{s_t2}, {112*(k-14)*896}")
            a(f"buffer_load_dword v{v_td}, v{u}, s[{sWo}:{sWo+3}], s{s_b1} offen")
    if OPT["help"] & 2:
        a(f"v_mul_u32_u24 v{u}, 896, v{v_lane}")
        a(f"s_cmp_lt_u32 s{s_w}, 7")
        a(f"s_cselect_b32 s{s_d0}, -1, 0")
        a(f"s_mov_b32 s{s_d1}, 0")
        a(f"v_cndmask_b32 v{u}, v{v_e1}, v{u}, s[{s_d0}:{s_d0+1}]")
        a(f"s_and_b32 s{s_t1}, s{s_tb64}, 3")
        a(f"s_lshl_b32 s{s_t0}, s{s_w}, 2")
        a(f"s_lshr_b32 s{s_t0}, 0x{RTAB:x}, s{s_t0}")
        a(f"s_and_b32 s{s_t0}, s{s_t0}, 15")
        a(f"s_mul_i32 s{s_t0}, s{s_t0}, 896")
        a(f"s_add_u32 s{s_t0}, s{s_t0}, s{s_w}")
        a(f"s_lshl_b32 s{s_t0}, s{s_t0}, 7")
        a(f"s_mul_i32 s{s_t2}, s{s_t1}, {32*896}")
        a(f"s_add_u32 s{s_t0}, s{s_t0}, s{s_t2}")
        a(f"s_mul_i32 s{s_t2}, s{s_t1}, {28*896}")
        a(f"s_lshl_b32 s{s_t1}, s{s_w}, 7")
        a(f"s_add_u32 s{s_t2}, s{s_t2}, s{s_t1}")
        htouch(OPT["hk0"])
        a("s_waitcnt vmcnt(1)")
    else:
        a("s_waitcnt vmcnt(0)")
    if OPT["help"] & 4:
        vtmp = VM(); vtmp.issue("poll"); vtmp.issue("a"); vtmp.issue("b")
        a(f"s_mov_b32 s{s_cmt}, s{s_t2}")
        wait_flags(vtmp, v_paH, 16)
        a(f"s_mov_b32 s{s_t2}, s{s_cmt}")
    a("s_barrier")
    publish(VM(), F_O, s_fo)
    if OPT["help"] & 4:
        a(f"v_lshrrev_b32 v{u+1}, 4, v{v_lane}")
        a(f"v_and_b32 v{u+2}, 15, v{v_lane}")
        a(f"v_lshlrev_b32 v{u+1}, 13, v{u+1}")
        a(f"v_lshl_add_u32 v{u+1}, v{u+2}, 7, v{u+1}")
    kk = list(range(OPT["hk0"] + 1, 18)) if OPT["help"] & 2 else []
    hh = list(range(OPT["hh0"], 14, 4)) if OPT["help"] & 4 else []
    while kk or hh:
        if hh:
            h_ = min(hh.pop(0), 10)
            a(f"s_add_u32 s{s_b1}, s{s_hb}, {8192*h_}")
            a(f"buffer_load_dword v{v_td}, v{u+1}, s[{sWS}:{sWS+3}], s{s_b1} offen sc1")
        for _ in range(3):
            if kk:
                htouch(kk.pop(0))
    a("s_branch L_end")
    a("L_phaseC:")

    v_ah, v_aw, v_cxo = 2, 3, 4
    v_awB = 5
    vXr = 16
    if OPT["xre"]:
        vXr = 40
        OPT["xrp"] = -1
    vAcc = 48
    vF = 64
    tt = 20
    a(f"v_add_u32 v{v_paH}, {(F_O-F_H)*2048}, v{v_paH}")
    if OPT["xre"]:
        v_cxo = v_bqk
        a(f"v_lshrrev_b32 v{tt+1}, 5, v{v_lane}")
    else:
        a(f"v_and_b32 v{tt}, 0x13, v{v_lane}")
        a(f"v_bfe_u32 v{tt+1}, v{v_lane}, 2, 1")
        a(f"v_lshl_or_b32 v{tt}, v{tt+1}, 3, v{tt}")
        a(f"v_bfe_u32 v{tt+1}, v{v_lane}, 3, 1")
        a(f"v_lshl_or_b32 v{tt}, v{tt+1}, 2, v{tt}")
        a(f"v_mul_u32_u24 v{v_cxo}, 896, v{tt}")
        a(f"v_lshrrev_b32 v{tt+1}, 5, v{v_lane}")
        a(f"v_lshl_add_u32 v{v_cxo}, v{tt+1}, 4, v{v_cxo}")
    a(f"s_lshl_b32 s{s_t0}, s{s_cmt}, 13")
    a(f"s_lshl_b32 s{s_t1}, s{s_kh}, 12")
    a(f"s_add_u32 s{s_t0}, s{s_t0}, s{s_t1}")
    a(f"v_add_u32 v{v_ah}, s{s_t0}, v{v_st}")
    a(f"v_bfe_u32 v{tt}, v{v_lane}, 2, 2")
    a(f"v_and_b32 v{tt+2}, 3, v{v_lane}")
    a(f"v_bfe_u32 v{tt+3}, v{v_lane}, 4, 1")
    a(f"v_lshrrev_b32 v{tt+4}, 1, v{tt+2}")
    a(f"v_and_b32 v{tt+5}, 1, v{tt+2}")
    a(f"v_lshl_or_b32 v{tt+4}, v{tt+5}, 1, v{tt+4}")
    a(f"v_lshl_add_u32 v{tt+5}, v{tt+1}, 3, v{tt}")
    a(f"v_lshlrev_b32 v{tt+5}, 7, v{tt+5}")
    a(f"v_lshrrev_b32 v{tt+6}, 1, v{tt}")
    a(f"v_xor_b32 v{tt+6}, s{s_nt}, v{tt+6}")
    a(f"v_lshl_add_u32 v{tt+5}, v{tt+6}, 6, v{tt+5}")
    a(f"v_lshl_add_u32 v{tt+5}, v{tt+3}, 5, v{tt+5}")
    a(f"v_lshl_add_u32 v{tt+5}, v{tt+4}, 3, v{tt+5}")
    a(f"s_lshl_b32 s{s_t0}, s{s_kh}, 13")
    a(f"s_add_u32 s{s_t0}, s{s_t0}, {NH*16384}")
    a(f"v_add_u32 v{v_aw}, s{s_t0}, v{tt+5}")
    a(f"v_add_u32 v{v_awB}, 65536, v{v_aw}")
    v_ahB = 7
    a(f"v_add_u32 v{v_ahB}, 65536, v{v_ah}")
    assert NH <= 8 and NW <= 8 and NH + NW <= 10
    NC = 18
    RA = OPT["ra"]
    NS = RA + 1
    def creads(c):
        sh = (HSL[c % NH] % 4) * 16384
        ah = v_ah if HSL[c % NH] < 4 else v_ahB
        sw = (c % NW)
        aw = v_aw if sw < 4 else v_awB
        swo = (sw % 4) * 16384
        base = vF + 32 * (c % NS)
        for i in range(4):
            f = base + 8 * i
            a(f"ds_read_b128 v[{f}:{f+3}], v{ah} offset:{sh + 1024*i}")
            a(f"ds_read_b64_tr_b16 v[{f+4}:{f+5}], v{aw} offset:{swo + 2048*i}")
            a(f"ds_read_b64_tr_b16 v[{f+6}:{f+7}], v{aw} offset:{swo + 2048*i + 512}")
    a(f"s_waitcnt vmcnt({vm.wait_n(*([f'h{k}' for k in range(RA)] + [f'w{k}' for k in range(RA)]))})")
    a("s_barrier")
    st("C0")
    for k in range(RA):
        creads(k)
    PUB_O = OPT["pubo"]
    POLL_O = OPT['polo']
    wsched = {}
    nW = 2 * (NC - NW)
    last_it = OPT['wl']
    for q in range(nW):
        k = NW + q // 2
        it = int(q * (last_it + 1) / nW)
        it = max(it, k - NW)
        it = min(it, k - 2 - RA)
        wsched.setdefault(it, []).append((k, q % 2))
    for c in range(NC):
        lgn = 12 * (min(NC, c + RA) - c - 1)
        if c + RA < NC:
            tags = [f"h{c+RA}", f"w{c+RA}"]
            if c == PUB_O:
                tags.append("st_o")
            if c + NH == 14:
                wait_flags(vm, v_paH, 16)
            a(f"s_waitcnt vmcnt({vm.wait_n(*tags)}) lgkmcnt({lgn})")
            a("s_barrier")
            if c in CST:
                st(f"c{c}")
            if not OPT["mf"]:
                creads(c + RA)
            if c == PUB_O:
                publish(vm, F_O, s_fo)
        else:
            a(f"s_waitcnt lgkmcnt({lgn})")
        G = []
        if c + NH < NC:
            G.append(dmaH(c + NH))
        for (k, jj) in wsched.get(c, []):
            G.append(dmaW(k)[jj])
        if c == POLL_O:
            G.insert(0 if OPT['polf'] else len(G), ([f"buffer_load_dwordx2 v[{v_pf}:{v_pf+1}], v{v_paH}, s[{sWS}:{sWS+3}], 0 offen sc1"], "poll"))
        if c == OPT['xrp']:
            G.append(([f"buffer_load_dwordx4 v[{vXr}:{vXr+3}], v{v_cxo}, s[{sX}:{sX+3}], s{s_xo} offen"], "xr"))
        base = vF + 32 * (c % NS)
        if OPT["gf"] and G:
            emit_group(vm, G.pop(0))
        for i in range(4):
            f = base + 8 * i
            cs = "0" if (c == 0 and i == 0) else f"v[{vAcc}:{vAcc+15}]"
            a(f"v_mfma_f32_32x32x16_bf16 v[{vAcc}:{vAcc+15}], v[{f+4}:{f+7}], v[{f}:{f+3}], {cs}")
            if i == 0 and OPT["mf"] and c + RA < NC:
                creads(c + RA)
            elif G:
                emit_group(vm, G.pop(0))
        while G:
            emit_group(vm, G.pop(0))
    st("Cend")
    if not OPT["nob"]:
        a("s_barrier")
    a(f"s_lshl_b32 s{s_t0}, s{s_w}, 11")
    if OPT["nob"]:
        a(f"s_add_u32 s{s_t0}, s{s_t0}, {NH*16384 + (14 % NW)*16384}")
    a(f"v_add_u32 v{tt+1}, s{s_t0}, v{v_st}")
    a(f"v_xor_b32 v{tt+2}, 8192, v{tt+1}")
    a(f"s_cmp_eq_u32 s{s_kh}, 0")
    a("s_cbranch_scc1 L_k0")
    a(f"ds_write_b128 v{tt+1}, v[{vAcc}:{vAcc+3}]")
    a(f"ds_write_b128 v{tt+1}, v[{vAcc+4}:{vAcc+7}] offset:1024")
    for i in range(8):
        a(f"v_mov_b32 v{vAcc+i}, v{vAcc+8+i}")
    a("s_branch L_k1")
    a("L_k0:")
    a(f"ds_write_b128 v{tt+1}, v[{vAcc+8}:{vAcc+11}]")
    a(f"ds_write_b128 v{tt+1}, v[{vAcc+12}:{vAcc+15}] offset:1024")
    a("L_k1:")
    a("s_waitcnt vmcnt(0) lgkmcnt(0)")
    a("s_barrier")
    a(f"ds_read_b128 v[{vF}:{vF+3}], v{tt+2}")
    a(f"ds_read_b128 v[{vF+4}:{vF+7}], v{tt+2} offset:1024")
    for d in range(4):
        a(f"v_lshlrev_b32 v{vF+8+2*d}, 16, v{vXr+d}")
        a(f"v_and_b32 v{vF+9+2*d}, 0xffff0000, v{vXr+d}")
    for i in range(8):
        a(f"v_add_f32 v{vAcc+i}, v{vAcc+i}, v{vF+8+i}")
    a("s_waitcnt lgkmcnt(0)")
    for i in range(8):
        a(f"v_add_f32 v{vAcc+i}, v{vAcc+i}, v{vF+i}")
    for d in range(4):
        a(f"v_cvt_pk_bf16_f32 v{vXr+d}, v{vAcc+2*d}, v{vAcc+2*d+1}")
    a(f"buffer_store_dwordx4 v[{vXr}:{vXr+3}], v{v_cxo}, s[{sO}:{sO+3}], s{s_xo} offen {['', 'sc1', 'nt', 'sc0 sc1'][OPT['osc']]}")
    if STAMP:
        a("s_waitcnt vmcnt(0)")
        st("end", wait=True); st("rt", rt=True, wait=True)
        st.finish()
        if DBGST:
            a("s_load_dwordx2 s[4:5], s[82:83], 64")
            a(f"v_sub_u32 v{v_stamp}, v{v_stamp}, v{v_non}")
            a(f"v_lshlrev_b32 v{tt}, 2, v{v_lane}")
            a(f"v_add_u32 v{tt}, 8, v{tt}")
            a("s_waitcnt lgkmcnt(0)")
            A(srd(8, 4, 5, 64))
            a(f"s_lshl3_add_u32 s3, s2, s{s_w}")
            a(f"s_cmp_lg_u32 s3, {37*8+4}")
            a("s_cbranch_scc1 L_end")
            a(f"buffer_store_dword v{v_stamp}, v{tt}, s[8:11], 0 offen")
            a("s_branch L_end")
        a(f"s_lshl3_add_u32 s3, s2, s{s_w}")
        a("s_lshl_b32 s3, s3, 7")
        a(f"s_add_u32 s3, s3, {STAMP_OFF}")
        a(f"v_lshlrev_b32 v{tt}, 2, v{v_lane}")
        a(f"v_cmp_gt_u32 vcc, {st.n}, v{v_lane}")
        a("s_and_saveexec_b64 s[4:5], vcc")
        a(f"buffer_store_dword v{v_stamp}, v{tt}, s[{sWS}:{sWS+3}], s3 offen")
        a.raw("; STAMPS " + " ".join(st.names))
        assert st.n <= 32
    a("L_end:")
    a("s_endpgm")
    return a


HEADER = """; Fused persistent kernel: LN + QKV/gate/up GEMM -> sliding-window attention -> [H|O] @ [w_down; wo] + x
;   0 A_x, 8 A_wqkv, 16 A_wo, 24 B_x, 32 B_w_gate, 40 B_w_up, 48 B_w_down, 56 d_out, 64 d_debug, 72 d_ws
; @launch grid=(256,1,1) block=(512,1,1) lds=163840
.amdgcn_target "amdgcn-amd-amdhsa--gfx950"
"""

def build():
    a = gen()
    print("instrs", a.nins, "nops", a.nnop, file=sys.stderr)
    return HEADER + a.text() + kernel_desc(NAME, 256)

if __name__ == "__main__":
    path = sys.argv[1] if len(sys.argv) > 1 else "parallel_sum__sliding_block__geglu_ffn__prompt.s"
    for arg in sys.argv[2:]:
        if arg == "stamp":
            STAMP = True
        elif arg == "dbgst":
            STAMP = True; DBGST = True
        else:
            k, v = arg.split("=")
            assert k in OPT, k
            OPT[k] = int(v)
    open(path, "w").write(build())
```
